```python
import torch

def _softmax(x, axis=-1):
    return torch.softmax(x, dim=axis)
def _gelu(x):
    return torch.nn.functional.gelu(x, approximate="tanh")
def _silu(x):
    return torch.nn.functional.silu(x)
def _sigmoid(x):
    return torch.sigmoid(x)
def _layernorm(x, axis=-1, eps=1e-5):
    m = x.mean(dim=axis, keepdim=True)
    v = x.var(dim=axis, keepdim=True, unbiased=False)
    return (x - m) / torch.sqrt(v + eps)
def _scatter_add(tgt, idx, src, axis=0):
    return tgt.clone().index_add_(axis, idx, src)
def _segment_sum(src, seg, n):
    out = torch.zeros((n,) + src.shape[1:], dtype=src.dtype)
    return out.index_add_(0, seg, src)
def _pad(x, pw):
    flat = tuple(v for pair in reversed(pw) for v in pair)
    return torch.nn.functional.pad(x, flat)

kernel_name = 'parallel_sum__ssm_conv_h3__moe_arch_mod__prompt'

def setup_inputs():

    _w = (lambda a: (lambda t: t.to(torch.bfloat16) if t.is_floating_point() else t)(torch.as_tensor(a)))
    def _A_setup():
        B, S, D = 1, 2048, 640
        ks = 4
        return {
            "q": _w((lambda *s: torch.randn(*s, dtype=torch.bfloat16) * 0.05)(B, S, D)),
            "k": _w((lambda *s: torch.randn(*s, dtype=torch.bfloat16) * 0.4)(B, S, D)),
            "v": _w((lambda *s: torch.randn(*s, dtype=torch.bfloat16) * 0.4)(B, S, D)),
            "shift_k": _w((lambda *s: torch.randn(*s, dtype=torch.bfloat16) * 0.4)(D, ks) * 0.5),
            "ssm_k": _w((lambda *s: torch.randn(*s, dtype=torch.bfloat16) * 1.6)(D, S) * (1.0 / S ** 0.5)),
            "ssm_D": _w((lambda *s: torch.randn(*s, dtype=torch.bfloat16) * 0.4)(D)),
        }
    _A_in = _A_setup()

    def _B_setup():
        B, S, D, F, C = 1, 2048, 640, 1728, 2
        return {
            "x": _w((lambda *s: torch.randn(*s, dtype=torch.bfloat16) * 0.05)(B, S, D)),
            "w_r": _w((lambda *s: torch.randn(*s, dtype=torch.bfloat16) * 0.05)(D)),
            "w_gate": _w((lambda *s: torch.randn(*s, dtype=torch.bfloat16) * 0.05)(D, F)),
            "w_up": _w((lambda *s: torch.randn(*s, dtype=torch.bfloat16) * 0.05)(D, F)),
            "w_down": _w((lambda *s: torch.randn(*s, dtype=torch.bfloat16) * 0.05)(F, D)),
        }
    _B_in = _B_setup()

    return {
        "A_q": _A_in["q"],
        "A_k": _A_in["k"],
        "A_v": _A_in["v"],
        "A_shift_k": _A_in["shift_k"],
        "A_ssm_k": _A_in["ssm_k"],
        "A_ssm_D": _A_in["ssm_D"],
        "B_x": _B_in["x"],
        "B_w_r": _B_in["w_r"],
        "B_w_gate": _B_in["w_gate"],
        "B_w_up": _B_in["w_up"],
        "B_w_down": _B_in["w_down"],
    }

def reference(A_q, A_k, A_v, A_shift_k, A_ssm_k, A_ssm_D, B_x, B_w_r, B_w_gate, B_w_up, B_w_down):
    def _A_ref(q, k, v, shift_k, ssm_k, ssm_D):
        B, S, D = q.shape
        ks = shift_k.shape[-1]
        k_pad = _pad(k, ((0, 0), (ks - 1, 0), (0, 0)))
        k_shift = torch.zeros_like(k)
        for t in range(ks):
            k_shift = k_shift + k_pad[:, t:t + S, :] * shift_k[:, ks - 1 - t][None, None, :]
        kv = k_shift * v
        L = 2 * S
        kv_pad = _pad(kv, ((0, 0), (0, S), (0, 0)))
        kf_pad = _pad(ssm_k, ((0, 0), (0, S)))
        kv_f = (lambda x, axes=(-2,-1): torch.fft.rfft2(x.float(), dim=axes))(kv_pad[:, None, :, :], axes=(1, 2))
        kf_f = (lambda x, axes=(-2,-1): torch.fft.rfft2(x.float(), dim=axes))(kf_pad[:, None, :], axes=(1, 2))
        kf_f = (lambda x, *d: x.permute(*d))(kf_f, 1, 2, 0)
        y_f = kv_f * kf_f[None, :, :, :]
        y = (lambda x, s, axes=(-2,-1): torch.fft.irfft2(x, s=s, dim=axes).to(torch.bfloat16))(y_f, (1, L), axes=(1, 2))[:, 0, :S, :]
        y = y + kv * ssm_D[None, None, :]
        return q * y

    def _B_ref(x, w_r, w_gate, w_up, w_down):
        B, S, D = x.shape
        C = 2
        r = x @ w_r
        idx = torch.argsort(-r, axis=-1)[:, :C]
        idx_e = (lambda x, n, axis: torch.repeat_interleave(x, n, dim=axis))(idx.reshape(B, C, 1), D, axis=2)
        x_sel = (lambda x, i, axis: torch.take_along_dim(x, i, dim=axis))(x, idx_e, axis=1)
        g = _silu(x_sel @ w_gate)
        u = x_sel @ w_up
        y = (g * u) @ w_down
        r_sel = _sigmoid((lambda x, i, axis: torch.take_along_dim(x, i, dim=axis))(r, idx, axis=1))
        y = y * r_sel.reshape(B, C, 1)
        b_off = (torch.arange(B) * S).reshape(B, 1)
        flat_idx = (idx + b_off).reshape(B * C)
        zero = (x * 0.0).reshape(B * S, D)
        upd = _scatter_add(zero, flat_idx, y.reshape(B * C, D), axis=0)
        return x + upd.reshape(B, S, D)

    x = A_q
    xn = _layernorm(x, axis=-1)
    return x + _A_ref(xn, A_k, A_v, A_shift_k, A_ssm_k, A_ssm_D) + _B_ref(xn, B_w_r, B_w_gate, B_w_up, B_w_down)
```

```python
import re

TRANS = ("v_exp_f32", "v_log_f32", "v_rcp_f32", "v_rsq_f32", "v_sqrt_f32", "v_sin_f32", "v_cos_f32",
         "v_rcp_iflag_f32")

_reg_re = re.compile(r"\b([vas])(\d+)\b|\b([vas])\[(\d+):(\d+)\]|\b(vcc|exec|m0|vcc_lo|vcc_hi|exec_lo|exec_hi)\b")


def regs_of(tok):
    out = set()
    for m in _reg_re.finditer(tok):
        if m.group(1):
            out.add((m.group(1), int(m.group(2))))
        elif m.group(3):
            for i in range(int(m.group(4)), int(m.group(5)) + 1):
                out.add((m.group(3), i))
        else:
            n = m.group(6)
            if n.startswith("vcc"):
                out.add(("s", "vcc"))
            elif n.startswith("exec"):
                out.add(("s", "exec"))
            else:
                out.add(("s", "m0"))
    return out


def split_ops(rest):
    ops, depth, cur = [], 0, ""
    for ch in rest:
        if ch == "[":
            depth += 1
        if ch == "]":
            depth -= 1
        if ch == "," and depth == 0:
            ops.append(cur.strip())
            cur = ""
        else:
            cur += ch
    if cur.strip():
        ops.append(cur.strip())
    return ops


class Ins:
    def __init__(self, text):
        self.text = text
        t = text.split(";")[0].strip()
        self.op = t.split()[0] if t else ""
        rest = t[len(self.op):].strip()
        ops = split_ops(rest)
        op = self.op
        self.is_label = t.endswith(":")
        self.is_dir = t.startswith(".")
        self.mfma = op.startswith("v_mfma")
        self.valu = op.startswith("v_") and not self.mfma
        self.salu = op.startswith("s_")
        self.ds = op.startswith("ds_")
        self.vmem = op.startswith("buffer_") or op.startswith("global_")
        self.dpp = "_dpp" in op or "row_" in t or "quad_perm" in t or "wave_sh" in t
        self.trans = any(op.startswith(x) for x in TRANS)
        self.perml = op.startswith("v_permlane")
        self.rdlane = op.startswith("v_readlane") or op.startswith("v_readfirstlane")
        self.lds_dma = self.vmem and re.search(r"\blds\b", t) is not None
        self.dst, self.src = set(), set()
        self.srcC = set()
        self.store_data = set()
        if self.is_label or self.is_dir or not op:
            return
        if self.valu or self.mfma:
            nd = 1
            if op.startswith(("v_add_co", "v_sub_co", "v_addc_co", "v_subb_co", "v_subrev_co", "v_div_scale", "v_mad_u64")):
                nd = 2
            for o in ops[:nd]:
                self.dst |= regs_of(o)
            for o in ops[nd:]:
                self.src |= regs_of(o)
            if op.startswith(("v_fmac", "v_dot2c", "v_writelane")) or self.dpp:
                self.src |= regs_of(ops[0])
            if self.perml:
                self.src |= regs_of(ops[0])
                self.dst |= regs_of(ops[1])
            if op.startswith("v_cmpx"):
                self.dst.add(("s", "exec"))
            if self.mfma:
                self.srcC = regs_of(ops[3])
        elif self.ds:
            if op.startswith(("ds_read", "ds_bpermute", "ds_permute", "ds_swizzle")):
                self.dst |= regs_of(ops[0])
                for o in ops[1:]:
                    self.src |= regs_of(o)
            else:
                for o in ops:
                    self.src |= regs_of(o)
        elif self.vmem:
            if "load" in op and not self.lds_dma:
                self.dst |= regs_of(ops[0])
                for o in ops[1:]:
                    self.src |= regs_of(o)
            else:
                for o in ops:
                    self.src |= regs_of(o)
                if "store" in op and ("x3" in op or "x4" in op):
                    self.store_data = regs_of(ops[0] if op.startswith("buffer") else ops[1])
            if self.lds_dma:
                self.src.add(("s", "m0"))
        elif self.salu:
            if op.startswith(("s_cmp", "s_cbranch", "s_branch", "s_waitcnt", "s_nop", "s_barrier", "s_sleep",
                              "s_setprio", "s_endpgm", "s_bitcmp", "s_setpc")):
                for o in ops:
                    self.src |= regs_of(o)
            else:
                if ops:
                    self.dst |= regs_of(ops[0])
                for o in ops[1:]:
                    self.src |= regs_of(o)
                if "saveexec" in op:
                    self.dst.add(("s", "exec"))

    def states(self):
        if self.is_label or self.is_dir or not self.op:
            return 0
        if self.op == "s_nop":
            return int(self.text.split(";")[0].split()[1], 0) + 1
        return 1


def isv(r):
    return r[0] in ("v", "a")


def need(prod, cons):
    n = 0
    pv = {r for r in prod.dst if isv(r)}
    ps = {r for r in prod.dst if not isv(r)}
    if prod.valu:
        if cons.mfma and (pv & cons.src):
            n = max(n, 2)
        if cons.valu and cons.dpp and (pv & cons.src):
            n = max(n, 2)
        if cons.perml and (pv & (cons.src | cons.dst)):
            n = max(n, 2)
        if cons.rdlane and (pv & cons.src):
            n = max(n, 1)
        if prod.trans and cons.valu and (pv & cons.src):
            n = max(n, 1)
        if ps:
            if cons.vmem and (ps & cons.src):
                n = max(n, 5)
            if cons.valu and (ps & cons.src):
                n = max(n, 4 if cons.op.startswith(("v_readlane", "v_writelane")) else 2)
            if ("s", "exec") in ps:
                if cons.mfma or cons.rdlane or cons.perml:
                    n = max(n, 4)
                if cons.valu and cons.dpp:
                    n = max(n, 5)
            if cons.salu and (ps & cons.src):
                n = max(n, 1)
            if cons.op.startswith("s_cbranch_vcc") and ("s", "vcc") in ps:
                n = max(n, 1)
        if "sdwa" in prod.op and cons.valu and (pv & (cons.src | cons.dst)):
            n = max(n, 1)
    if prod.mfma:
        if cons.mfma:
            if pv & cons.srcC and cons.srcC != pv:
                n = max(n, 6)
            if pv & (cons.src - cons.srcC):
                n = max(n, 8)
        elif (cons.valu or cons.ds or cons.vmem) and (pv & (cons.src | cons.dst)):
            n = max(n, 8)
        if cons.valu and (prod.srcC & cons.dst):
            n = max(n, 3)
    if prod.salu and ("s", "m0") in ps and cons.lds_dma:
        n = max(n, 1)
    if prod.store_data and (prod.store_data & cons.dst):
        n = max(n, 2)
    return n


class Asm:
    def __init__(self):
        self.lines = []

    def __call__(self, s):
        for l in s.split("\n"):
            l = l.strip()
            if l:
                self.lines.append(l)

    def label(self, name):
        self.lines.append(name + ":")

    def padded(self):
        out, hist = [], []
        for l in self.lines:
            ins = Ins(l)
            if ins.is_label or ins.is_dir or not ins.op:
                out.append(l)
                continue
            req = 0
            dist = 0
            for p in reversed(hist[-24:]):
                r = need(p, ins) - dist
                req = max(req, r)
                dist += p.states()
                if dist >= 20:
                    break
            if req > 0:
                nop = Ins(f"s_nop {req - 1}")
                out.append("    " + nop.text)
                hist.append(nop)
            out.append("    " + l)
            hist.append(ins)
            if ins.op in ("s_branch", "s_endpgm", "s_setpc_b64"):
                hist = []
        return out
```

```python
import sys, os
sys.path.insert(0, os.path.dirname(os.path.abspath(__file__)))
from asmlib import Asm

NAME = "parallel_sum__ssm_conv_h3__moe_arch_mod__prompt"
OPT = dict(prof=0, pretouch=1, xtouch=1, codewarm=1, wwarm=0, force_fb=0)
for a in sys.argv[2:]:
    k, v = a.split("=")
    OPT[k] = int(v)
PROF = OPT["prof"]

EPOCH, FLAGL, FLAGG, FLAGB = 0, 0x1000, 0x4000, 0x7000
CAND, STATS, PART = 0xA000, 0xC000, 0x10000
KVT, XB, PROFB = 0x100000, 0x400000, 0x800000
WS_BYTES = 0x1000000
TBYTES = 2621440
WBYTES = 2211840
NMOE = 72
LA, A_C, A_CP = 0, 16640, 4160
LU, U_C, U_P = 66560, 9120, 4576
LY = 103040
LS, S_W, S_T = 103040, 7344, 2448
LF = 139776
LDS_BYTES = 140032
LWG, LWU, LWD, LRED = 0, 30720, 61440, 92160
POLL_LIMIT = 1 << 16

sX, sJ, sW, sTAG, sXCC = "s3", "s4", "s5", "s6", "s7"
pQ, pK, pV, pSH, pH, pD, pWR, pWG, pWU, pWD, pOUT, pWS = 8, 10, 12, 14, 16, 18, 22, 24, 26, 28, 30, 34
WS = "s[36:39]"
sHI = "s52"

A = Asm()


def sp(p):
    return f"s[{p}:{p+1}]"


def srd(reg, ptr, nbytes):
    A(f"s_mov_b32 s{reg}, s{ptr}")
    A(f"s_mov_b32 s{reg+1}, s{ptr+1}")
    A(f"s_mov_b32 s{reg+2}, {nbytes:#x}")
    A(f"s_mov_b32 s{reg+3}, 0x20000")


def stamp(k):
    if PROF:
        A(f"s_memrealtime s[{64+2*k}:{65+2*k}]")


def vr(b, n):
    return f"v[{b}:{b+n-1}]"


def after_kernarg():
    A("s_waitcnt lgkmcnt(0)")
    A(f"s_load_dword {sTAG}, {sp(pWS)}, {EPOCH}")
    srd(36, pWS, WS_BYTES)


def make_tag_and_b0():
    A("s_waitcnt lgkmcnt(0)")
    A(f"s_mul_i32 {sTAG}, {sTAG}, 0x9E3779B1")
    A(f"s_add_u32 {sTAG}, {sTAG}, 0x7F4A7C15")
    A("s_barrier")


A(f"{NAME}_kernel:")
A("s_cmp_ge_u32 s2, 256")
A("s_cbranch_scc1 L_end")
A("s_load_dwordx16 s[8:23], s[0:1], 0")
A("s_load_dwordx8 s[24:31], s[0:1], 64")
A("s_load_dwordx4 s[32:35], s[0:1], 96")
A("v_lshrrev_b32 v1, 6, v0")
A("v_and_b32 v0, 63, v0")
A(f"s_and_b32 {sX}, s2, 7")
A(f"s_lshr_b32 {sJ}, s2, 3")
A(f"v_readfirstlane_b32 {sW}, v1")
A(f"s_getreg_b32 {sXCC}, hwreg(HW_REG_XCC_ID)")
if OPT["force_fb"]:
    A(f"s_add_u32 {sXCC}, {sXCC}, {sJ}")
A(f"s_mov_b32 {sHI}, 0xffff0000")
if PROF:
    for k in range(64, 96):
        A(f"s_mov_b32 s{k}, 0")
stamp(0)
A(f"s_cmp_ge_u32 {sW}, 5")
A("s_cbranch_scc1 L_notkv")

A(f"s_mul_i32 s53, {sJ}, {64*1280}")
A(f"s_mul_i32 s54, {sX}, 160")
A("s_add_u32 s53, s53, s54")
A(f"s_lshl_b32 s54, {sW}, 5")
A("s_add_u32 s53, s53, s54")
A(f"s_sub_u32 s53, s53, {8*1280}")
for i in range(3):
    d = 1 + i
    A(f"v_add_u32 v4, {10+64*i}, v0")
    A("v_mul_u32_u24 v5, 241, v4")
    A("v_lshrrev_b32 v5, 12, v5")
    A("v_mul_u32_u24 v6, 17, v5")
    A("v_sub_u32 v4, v4, v6")
    A("v_lshrrev_b32 v6, 1, v4")
    A("v_lshl_add_u32 v5, v5, 3, v6")
    A("v_mul_u32_u24 v5, 1280, v5")
    A("v_and_b32 v4, 1, v4")
    A("v_lshl_add_u32 v5, v4, 4, v5")
    if i:
        A(f"v_subrev_u32 v5, {1024*i}, v5")
    A(f"v_add_u32 v{d}, s53, v5")
A("v_lshrrev_b32 v7, 3, v0")
A("v_and_b32 v8, 7, v0")
A(f"s_mul_i32 s54, {sX}, 80")
A(f"s_lshl_b32 s55, {sW}, 4")
A("s_add_u32 s54, s54, s55")
A("s_lshl_b32 s55, s54, 3")
A("v_lshl_add_u32 v9, v7, 4, s55")
A(f"s_mul_i32 s56, {sW}, {S_W}")
A(f"s_add_u32 s56, s56, {LS}")
after_kernarg()
A(f"global_load_dwordx4 v[20:23], v9, {sp(pSH)}")
srd(40, pK, TBYTES)
srd(44, pV, TBYTES)
srd(48, pQ, TBYTES)
for t, r in enumerate((40, 44, 48)):
    A(f"s_add_u32 m0, s56, {160 + t*S_T}")
    A(f"buffer_load_dwordx4 v1, s[{r}:{r+3}], 0 offen lds")
    A(f"buffer_load_dwordx4 v2, s[{r}:{r+3}], 0 offen offset:1024 lds")
    A("s_mov_b64 exec, 0x3fff")
    A(f"buffer_load_dwordx4 v3, s[{r}:{r+3}], 0 offen offset:2048 lds")
    A("s_mov_b64 exec, -1")
stamp(1)
A("v_mul_u32_u24 v1, 272, v8")
A("v_lshl_add_u32 v1, v7, 2, v1")
A("v_add_u32 v1, s56, v1")
A(f"v_add_u32 v2, {S_T}, v1")
A("v_bfe_u32 v4, v0, 2, 3")
A("v_mul_u32_u24 v3, 272, v4")
A("v_and_b32 v4, 1, v0")
A("v_lshl_add_u32 v3, v4, 7, v3")
A("v_bfe_u32 v4, v0, 1, 1")
A("v_lshl_add_u32 v3, v4, 5, v3")
A("v_lshrrev_b32 v4, 5, v0")
A("v_lshl_add_u32 v3, v4, 3, v3")
A(f"s_add_u32 s55, s56, {2*S_T + 272}")
A("v_add_u32 v3, s55, v3")
A("s_lshl_b32 s55, s54, 12")
A(f"s_lshl_b32 s57, {sJ}, 7")
A("s_add_u32 s55, s55, s57")
A(f"s_add_u32 s55, s55, {KVT}")
A("v_lshlrev_b32 v5, 13, v7")
A("v_lshl_add_u32 v5, v8, 4, v5")
A("v_add_u32 v5, s55, v5")
A("v_add_u32 v6, 4096, v5")
A("s_lshl_b32 s55, s54, 12")
A(f"s_lshl_b32 s57, {sJ}, 9")
A("s_add_u32 s55, s55, s57")
A(f"s_add_u32 s55, s55, {XB}")
A("v_lshlrev_b32 v7, 14, v4")
A("v_and_b32 v8, 31, v0")
A("v_lshl_add_u32 v7, v8, 4, v7")
A("v_add_u32 v7, s55, v7")
A("v_add_u32 v8, 32768, v7")
make_tag_and_b0()
A("s_waitcnt vmcnt(9)")
A("v_lshlrev_b32 v10, 16, v20")
A("v_lshlrev_b32 v11, 16, v22")
A(f"v_and_b32 v12, {sHI}, v20")
A(f"v_and_b32 v13, {sHI}, v22")
A("v_lshlrev_b32 v14, 16, v21")
A("v_lshlrev_b32 v15, 16, v23")
A(f"v_and_b32 v16, {sHI}, v21")
A(f"v_and_b32 v17, {sHI}, v23")
A("s_waitcnt vmcnt(3)")
stamp(2)


def koff(t):
    return (68 + 8*t) if t >= 0 else 8*(8 + t)


rows = list(range(-3, 8))
for i in range(5):
    A(f"ds_read2_b32 v[{20+2*i}:{21+2*i}], v1 offset0:{koff(rows[2*i])} offset1:{koff(rows[2*i+1])}")
A(f"ds_read_b32 v30, v1 offset:{4*koff(7)}")
for i in range(4):
    A(f"ds_read2_b32 v[{32+2*i}:{33+2*i}], v2 offset0:{koff(2*i)} offset1:{koff(2*i+1)}")
A("s_waitcnt lgkmcnt(4)")
for i in range(11):
    A(f"v_lshlrev_b32 v{40+2*i}, 16, v{20+i}")
    A(f"v_and_b32 v{41+2*i}, {sHI}, v{20+i}")


def Kp(t):
    return vr(40 + 2*(t + 3), 2)


for t in range(8):
    A(f"v_pk_mul_f32 {vr(96+2*t,2)}, v[16:17], {Kp(t-3)}")
for t in range(8):
    A(f"v_pk_fma_f32 {vr(96+2*t,2)}, v[14:15], {Kp(t-2)}, {vr(96+2*t,2)}")
for t in range(8):
    A(f"v_pk_fma_f32 {vr(96+2*t,2)}, v[12:13], {Kp(t-1)}, {vr(96+2*t,2)}")
for t in range(8):
    A(f"v_pk_fma_f32 {vr(96+2*t,2)}, v[10:11], {Kp(t)}, {vr(96+2*t,2)}")
A("s_waitcnt lgkmcnt(0)")
for t in range(8):
    A(f"v_lshlrev_b32 v{62+2*t}, 16, v{32+t}")
    A(f"v_and_b32 v{63+2*t}, {sHI}, v{32+t}")
for t in range(8):
    A(f"v_pk_mul_f32 {vr(96+2*t,2)}, {vr(96+2*t,2)}, {vr(62+2*t,2)}")
for c in range(2):
    for i in range(4):
        A(f"v_cvt_pk_bf16_f32 v{80+4*c+i}, v{96+2*(7-2*i)+c}, v{96+2*(6-2*i)+c}")
    A(f"buffer_store_dwordx4 {vr(80+4*c,4)}, v{5+c}, {WS}, 0 offen")
A("s_waitcnt vmcnt(2)")
A("ds_read2_b64 v[88:91], v3 offset0:0 offset1:8")
A("ds_read2_b64 v[92:95], v3 offset0:2 offset1:10")
A(f"s_mul_i32 s55, {sX}, 5")
A(f"s_add_u32 s55, s55, {sW}")
A("s_lshl_b32 s55, s55, 5")
A(f"s_add_u32 s55, s55, {sJ}")
A("s_lshl_b32 s58, s55, 3")
A(f"v_mov_b32 v10, {sTAG}")
A(f"v_mov_b32 v11, {sXCC}")
A("v_mov_b32 v12, s58")
A("s_waitcnt lgkmcnt(1)")
A(f"buffer_store_dwordx4 v[88:91], v7, {WS}, 0 offen")
A("s_waitcnt lgkmcnt(0)")
A(f"buffer_store_dwordx4 v[92:95], v8, {WS}, 0 offen")
A(f"s_mov_b32 s55, {FLAGL}")
A(f"s_mov_b32 s57, {FLAGG}")
stamp(3)
A("s_waitcnt vmcnt(0)")
A("s_mov_b64 exec, 1")
A(f"buffer_store_dwordx2 v[10:11], v12, {WS}, s55 offen")
A(f"buffer_store_dwordx2 v[10:11], v12, {WS}, s57 offen sc1")
A("s_mov_b64 exec, -1")
stamp(4)

A(f"s_lshr_b32 s55, {sJ}, 2")
A(f"s_cmp_lt_u32 {sJ}, 20")
A(f"s_cselect_b32 s55, s55, {sW}")
A(f"s_mul_i32 s57, {sX}, 5")
A("s_add_u32 s55, s55, s57")
A("s_lshl_b32 s55, s55, 8")
A("v_and_b32 v1, 31, v0")
A("v_lshl_add_u32 v1, v1, 3, s55")
A(f"s_mov_b32 s55, {FLAGL}")
A("s_mov_b32 s59, 0")
A("L_poll:")
A(f"buffer_load_dwordx2 v[2:3], v1, {WS}, s55 offen sc1")
A("s_add_u32 s59, s59, 1")
A("s_waitcnt vmcnt(0)")
A("v_cmp_eq_u64 vcc, s[6:7], v[2:3]")
A("s_cmp_eq_u64 vcc, -1")
A("s_cbranch_scc1 L_synced")
A("s_and_b32 s57, s59, 15")
A("s_cmp_lg_u32 s57, 0")
A("s_cbranch_scc1 L_poll")
A("s_branch L_slowsync")
A("L_synced:")
stamp(5)
A(f"s_cmp_ge_u32 {sJ}, 20")
A("s_cbranch_scc1 L_nonconv")
A(f"s_cmp_eq_u32 {sW}, 4")
A("s_cbranch_scc1 L_mfma")

A(f"s_mul_i32 s53, {sX}, 20")
A(f"s_add_u32 s53, s53, {sJ}")
A("s_lshl_b32 s54, s53, 2")
A(f"s_add_u32 s54, s54, {sW}")
A("s_lshl_b32 s54, s54, 12")
A(f"s_add_u32 s54, s54, {KVT}")
A("v_lshl_add_u32 v1, v0, 4, s54")
A("v_subrev_u32 v2, 16, v1")
A("v_cmp_eq_u32 vcc, 0, v0")
A("v_mov_b32 v3, 0x7ffffff0")
A("v_cndmask_b32 v2, v2, v3, vcc")
for i in range(4):
    A(f"buffer_load_dwordx4 {vr(16+4*i,4)}, v1, {WS}, 0 offen offset:{1024*i} sc1")
    if i == 0:
        A(f"buffer_load_dword v32, v2, {WS}, 0 offen sc1")
    else:
        A(f"buffer_load_dword v{32+i}, v1, {WS}, 0 offen offset:{1024*i-16} sc1")
A("v_bfe_u32 v4, v0, 1, 3")
A("v_lshrrev_b32 v5, 4, v0")
A("v_lshl_add_u32 v4, v4, 2, v5")
A("v_and_b32 v5, 1, v0")
A("v_lshlrev_b32 v6, 6, v4")
A("v_lshl_add_u32 v6, v5, 5, v6")
A(f"s_lshl_b32 s55, {sW}, 11")
A("v_add_u32 v6, s55, v6")
A("s_lshl_b32 s55, s53, 14")
A(f"s_add_u32 s55, s55, {XB}")
A("s_add_u32 s56, s55, 8192")
A(f"s_mov_b32 s57, {STATS}")
A(f"s_mov_b32 s60, {STATS+8192}")
XR, SR = (40, 56), (48, 8)
A(f"buffer_load_dwordx4 v[40:43], v6, {WS}, s55 offen sc1")
A(f"buffer_load_dwordx4 v[44:47], v6, {WS}, s55 offen offset:16 sc1")
A(f"buffer_load_dwordx4 v[48:51], v6, {WS}, s57 offen sc1")
A(f"buffer_load_dwordx4 v[52:55], v6, {WS}, s57 offen offset:16 sc1")
A(f"buffer_load_dwordx4 v[56:59], v6, {WS}, s56 offen sc1")
A(f"buffer_load_dwordx4 v[60:63], v6, {WS}, s56 offen offset:16 sc1")
A(f"buffer_load_dwordx4 v[8:11], v6, {WS}, s60 offen sc1")
A(f"buffer_load_dwordx4 v[12:15], v6, {WS}, s60 offen offset:16 sc1")
A("s_lshl_b32 s61, s53, 3")
A(f"s_load_dwordx2 s[62:63], {sp(pD)}, s61")
A(f"s_mul_i32 s55, {sW}, {U_C}")
A(f"s_add_u32 s55, s55, {LU + 28*16}")
A("v_lshl_add_u32 v7, v0, 4, s55")
for i in range(4):
    A(f"s_waitcnt vmcnt({8 + 2*(3-i)})")
    b = 16 + 4*i
    A(f"ds_write_b128 v7, {vr(b,4)} offset:{U_P + 1024*i}")
    A(f"v_alignbyte_b32 v36, v{b+1}, v{b}, 2")
    A(f"v_alignbyte_b32 v37, v{b+2}, v{b+1}, 2")
    A(f"v_alignbyte_b32 v38, v{b+3}, v{b+2}, 2")
    A(f"v_alignbyte_b32 v39, v{32+i}, v{b+3}, 2")
    A(f"ds_write_b128 v7, v[36:39] offset:{1024*i}")
stamp(6)
A("s_waitcnt lgkmcnt(0)")
A("s_barrier")
srd(40, pOUT, TBYTES)
A("s_lshl_b32 s44, s62, 16")
A(f"s_and_b32 s45, s62, {sHI}")
A("s_lshl_b32 s46, s63, 16")
A(f"s_and_b32 s47, s63, {sHI}")
A(f"v_mul_u32_u24 v1, {U_P}, v5")
A("v_lshl_add_u32 v1, v4, 4, v1")
A(f"s_lshl_b32 s55, {sW}, 9")
A(f"s_add_u32 s55, s55, {LU + 28*16}")
A("v_add_u32 v1, s55, v1")
A(f"s_lshl_b32 s55, {sW}, 12")
A(f"s_add_u32 s55, s55, {LY}")
A("v_lshl_add_u32 v2, v0, 4, s55")
A("v_lshl_add_u32 v3, v4, 3, v5")
A("v_mul_u32_u24 v3, 1280, v3")
A(f"s_mul_i32 s55, {sW}, {256*1280}")
A("s_add_u32 s55, s55, s61")
A("v_add_u32 v3, s55, v3")
A(f"v_mov_b32 v4, {LF}")
A("s_mov_b32 s48, 0")
A("s_mov_b32 s49, 5120")
A(f"s_mov_b32 s50, {1024*1280}")
A(f"s_mov_b32 s51, {1024*1280 + 5120}")
XN, CC = (64, 96), (80, 112)


def precompute(task):
    xr, sr, xn, cc = XR[task], SR[task], XN[task], CC[task]
    for c in range(4):
        A(f"ds_read_b128 {vr(16+4*c,4)}, v1 offset:{c*U_C + task*2048}")
    A(f"s_waitcnt vmcnt({4 if task == 0 else 4})")
    A(f"L_st{task}:")
    A(f"v_xor_b32 v32, {sTAG}, v{sr+1}")
    A(f"v_xor_b32 v33, {sTAG}, v{sr+3}")
    A(f"v_xor_b32 v34, {sTAG}, v{sr+5}")
    A(f"v_xor_b32 v35, {sTAG}, v{sr+7}")
    A("v_or3_b32 v32, v32, v33, v34")
    A("v_or_b32 v32, v32, v35")
    A("v_cmp_ne_u32 vcc, 0, v32")
    A(f"s_cbranch_vccz L_stok{task}")
    so = "s57" if task == 0 else "s60"
    A(f"buffer_load_dwordx4 {vr(sr,4)}, v6, {WS}, {so} offen sc1")
    A(f"buffer_load_dwordx4 {vr(sr+4,4)}, v6, {WS}, {so} offen offset:16 sc1")
    A("s_add_u32 s59, s59, 1")
    A(f"s_cmp_lt_u32 s59, {POLL_LIMIT}")
    A("s_waitcnt vmcnt(0)")
    A(f"s_cbranch_scc1 L_st{task}")
    A(f"L_stok{task}:")
    A("s_waitcnt lgkmcnt(0)")
    for t in range(4):
        st = sr + 2*t
        A(f"v_and_b32 v{st+1}, {sHI}, v{st}")
        A(f"v_lshlrev_b32 v{st}, 16, v{st}")
        A(f"v_rcp_f32 v{st+1}, v{st+1}")
        for h in range(2):
            x = xr + 2*t + h
            o = cc + 4*t + 2*h
            A(f"v_lshlrev_b32 v{o}, 16, v{x}")
            A(f"v_and_b32 v{o+1}, {sHI}, v{x}")
        for h in range(2):
            o = cc + 4*t + 2*h
            n = xn + 4*t + 2*h
            A(f"v_pk_add_f32 {vr(n,2)}, {vr(o,2)}, {vr(st,2)} op_sel_hi:[1,0] neg_lo:[0,1] neg_hi:[0,1]")
        for h in range(2):
            n = xn + 4*t + 2*h
            A(f"v_cvt_pk_bf16_f32 v{32+h}, v{n}, v{n+1}")
        for h in range(2):
            n = xn + 4*t + 2*h
            A(f"v_lshlrev_b32 v{n}, 16, v{32+h}")
            A(f"v_and_b32 v{n+1}, {sHI}, v{32+h}")
        for h in range(2):
            n = xn + 4*t + 2*h
            A(f"v_mul_f32 v{n}, v{n}, v{st+1}")
            A(f"v_mul_f32 v{n+1}, v{n+1}, v{st+1}")
        for h in range(2):
            n = xn + 4*t + 2*h
            A(f"v_cvt_pk_bf16_f32 v{32+h}, v{n}, v{n+1}")
        for c in range(4):
            A(f"v_lshlrev_b32 v{36+c}, 16, v{16+4*c+3-t}")
        for h in range(2):
            n = xn + 4*t + 2*h
            A(f"v_lshlrev_b32 v{n}, 16, v{32+h}")
            A(f"v_and_b32 v{n+1}, {sHI}, v{32+h}")
        for h in range(2):
            A(f"v_pk_fma_f32 {vr(36+2*h,2)}, {vr(36+2*h,2)}, s[{44+2*h}:{45+2*h}], 1.0 op_sel_hi:[1,1,0]")
        for h in range(2):
            o = cc + 4*t + 2*h
            n = xn + 4*t + 2*h
            A(f"v_pk_fma_f32 {vr(o,2)}, {vr(n,2)}, {vr(36+2*h,2)}, {vr(o,2)}")


def finalize(task):
    xn, cc = XN[task], CC[task]
    if task == 1:
        A(f"s_lshr_b32 s55, {sW}, 1")
        A("s_lshl_b32 s55, s55, 4")
        A(f"s_add_u32 s55, s55, {LF + 16}")
        A("v_mov_b32 v4, s55")
    A("s_mov_b32 s59, 0")
    A(f"L_yw{task}:")
    A("ds_read_b128 v[32:35], v4")
    A("s_add_u32 s59, s59, 1")
    A("s_waitcnt lgkmcnt(0)")
    A("v_and_b32 v32, v32, v33")
    A("v_and_b32 v34, v34, v35")
    A("v_and_b32 v32, v32, v34")
    A("v_cmp_ne_u32 vcc, 0, v32")
    A(f"s_cbranch_vccnz L_yok{task}")
    A("s_sleep 1")
    A(f"s_cmp_lt_u32 s59, {POLL_LIMIT}")
    A(f"s_cbranch_scc1 L_yw{task}")
    A(f"L_yok{task}:")
    for c in range(4):
        A(f"ds_read_b128 {vr(16+4*c,4)}, v2 offset:{c*1024 + task*16384}")
    for c in range(4):
        A(f"s_waitcnt lgkmcnt({3-c})")
        for t in range(4):
            A(f"v_fmac_f32 v{cc+4*t+c}, v{xn+4*t+c}, v{16+4*c+t}")
    for t in range(4):
        A(f"v_cvt_pk_bf16_f32 v{32+2*t}, v{cc+4*t}, v{cc+4*t+1}")
        A(f"v_cvt_pk_bf16_f32 v{33+2*t}, v{cc+4*t+2}, v{cc+4*t+3}")
        A(f"buffer_store_dwordx2 {vr(32+2*t,2)}, v3, s[40:43], s{48 + 2*task + (t>>1)} offen offset:{2560*(t&1)}")


def top2(lbl, t0):
    A(f"v_lshlrev_b32 v{t0+16}, 4, v0")
    A(f"s_mov_b32 s55, {CAND}")
    A("s_mov_b32 s59, 0")
    A(f"{lbl}:")
    for i in range(4):
        A(f"buffer_load_dwordx4 {vr(t0+4*i,4)}, v{t0+16}, {WS}, s55 offen offset:{1024*i} sc1")
    A("s_add_u32 s59, s59, 1")
    A("s_waitcnt vmcnt(0)")
    for i in range(8):
        A(f"v_xor_b32 v{t0+2*i+1}, {sTAG}, v{t0+2*i+1}")
    A(f"v_or3_b32 v{t0+1}, v{t0+1}, v{t0+3}, v{t0+5}")
    A(f"v_or3_b32 v{t0+7}, v{t0+7}, v{t0+9}, v{t0+11}")
    A(f"v_or3_b32 v{t0+1}, v{t0+1}, v{t0+13}, v{t0+15}")
    A(f"v_or_b32 v{t0+1}, v{t0+1}, v{t0+7}")
    A(f"v_cmp_ne_u32 vcc, 0, v{t0+1}")
    A(f"s_cbranch_vccz {lbl}_ok")
    A(f"s_cmp_lt_u32 s59, {POLL_LIMIT}")
    A(f"s_cbranch_scc1 {lbl}")
    A(f"{lbl}_ok:")

    def merge(a, b, tmp):
        A(f"v_min_u32 v{tmp}, v{a}, v{b}")
        A(f"v_max_u32 v{a}, v{a}, v{b}")
        A(f"v_max3_u32 v{a+2}, v{a+2}, v{b+2}, v{tmp}")
    merge(t0, t0+4, t0+1)
    merge(t0+8, t0+12, t0+3)
    merge(t0, t0+8, t0+1)
    for r in (1, 2, 4, 8):
        d = f"row_ror:{r} row_mask:0xf bank_mask:0xf"
        A(f"v_min_u32_dpp v{t0+1}, v{t0}, v{t0} {d}")
        A(f"v_max_u32_dpp v{t0+3}, v{t0+2}, v{t0+2} {d}")
        A(f"v_max_u32_dpp v{t0}, v{t0}, v{t0} {d}")
        A(f"v_max_u32 v{t0+2}, v{t0+1}, v{t0+3}")
    A(f"v_readlane_b32 s54, v{t0}, 0")
    A(f"v_readlane_b32 s55, v{t0+2}, 0")
    for row in (16, 32, 48):
        A(f"v_readlane_b32 s56, v{t0}, {row}")
        A(f"v_readlane_b32 s59, v{t0+2}, {row}")
        A("s_max_u32 s55, s55, s59")
        A("s_min_u32 s59, s54, s56")
        A("s_max_u32 s54, s54, s56")
        A("s_max_u32 s55, s55, s59")


precompute(0)
stamp(7)
finalize(0)
stamp(8)
precompute(1)
top2("L_cand_c", 16)
A("s_andn2_b32 s62, 0x7ff, s54")
A("s_andn2_b32 s63, 0x7ff, s55")
PR = ((40, 44, 48, 52), (56, 60, 8, 12))
A("v_mul_u32_u24 v7, 10240, v0")
A("s_lshl_b32 s55, s53, 5")
A(f"s_add_u32 s55, s55, {PART}")
A("v_add_u32 v7, s55, v7")
A("s_mov_b32 s44, 0")
A("s_mov_b32 s45, 5120")
A(f"s_mov_b32 s46, {64*10240}")
A(f"s_mov_b32 s47, {64*10240 + 5120}")


def part_loads(k):
    r = PR[k]
    A(f"buffer_load_dwordx4 {vr(r[0],4)}, v7, {WS}, s{44+k} offen sc1")
    A(f"buffer_load_dwordx4 {vr(r[1],4)}, v7, {WS}, s{44+k} offen offset:16 sc1")
    A(f"s_mov_b64 exec, {(1 << (NMOE-64)) - 1:#x}")
    A(f"buffer_load_dwordx4 {vr(r[2],4)}, v7, {WS}, s{46+k} offen sc1")
    A(f"buffer_load_dwordx4 {vr(r[3],4)}, v7, {WS}, s{46+k} offen offset:16 sc1")
    A("s_mov_b64 exec, -1")


for k in range(2):
    A(f"s_bfe_u32 s55, s{62+k}, 0x20008")
    A(f"s_cmp_lg_u32 s55, {sW}")
    A(f"s_cbranch_scc1 L_np{k}")
    for r in PR[k][2:]:
        A(f"v_mov_b32 v{r}, 0")
        A(f"v_mov_b32 v{r+1}, {sTAG}")
        A(f"v_mov_b32 v{r+2}, 0")
        A(f"v_mov_b32 v{r+3}, {sTAG}")
    part_loads(k)
    A(f"L_np{k}:")
stamp(9)
finalize(1)
stamp(10)
for k in range(2):
    r = PR[k]
    A(f"s_bfe_u32 s55, s{62+k}, 0x20008")
    A(f"s_cmp_lg_u32 s55, {sW}")
    A(f"s_cbranch_scc1 L_nf{k}")
    A("s_mov_b32 s59, 0")
    A("s_waitcnt vmcnt(4)" if k == 0 else "s_waitcnt vmcnt(4)")
    A(f"L_pp{k}:")
    for q in range(4):
        A(f"v_xor_b32 v{16+2*q}, {sTAG}, v{r[q]+1}")
        A(f"v_xor_b32 v{17+2*q}, {sTAG}, v{r[q]+3}")
    A("v_or3_b32 v16, v16, v17, v18")
    A("v_or3_b32 v19, v19, v20, v21")
    A("v_or3_b32 v16, v16, v22, v23")
    A("v_or_b32 v16, v16, v19")
    A("v_cmp_ne_u32 vcc, 0, v16")
    A(f"s_cbranch_vccz L_ppok{k}")
    part_loads(k)
    A("s_add_u32 s59, s59, 1")
    A(f"s_cmp_lt_u32 s59, {POLL_LIMIT}")
    A("s_waitcnt vmcnt(0)")
    A(f"s_cbranch_scc1 L_pp{k}")
    A(f"L_ppok{k}:")
    A(f"v_add_f32 v16, v{r[0]}, v{r[2]}")
    A(f"v_add_f32 v17, v{r[0]+2}, v{r[2]+2}")
    A(f"v_add_f32 v18, v{r[1]}, v{r[3]}")
    A(f"v_add_f32 v19, v{r[1]+2}, v{r[3]+2}")
    for d in ("row_shr:1 row_mask:0xf", "row_shr:2 row_mask:0xf", "row_shr:4 row_mask:0xf", "row_shr:8 row_mask:0xf",
              "row_bcast:15 row_mask:0xa", "row_bcast:31 row_mask:0xc"):
        for c in range(4):
            A(f"v_add_f32_dpp v{16+c}, v{16+c}, v{16+c} {d} bank_mask:0xf")
    for c in range(4):
        A(f"v_readlane_b32 s{48+c if False else 96+c}, v{16+c}, 63")
    A(f"s_lshr_b32 s55, s{62+k}, 10")
    A(f"s_bfe_u32 s56, s{62+k}, 0x20001")
    A("s_lshl2_add_u32 s55, s55, s56")
    for sel in range(8):
        cc = CC[sel >> 2] + 4*(sel & 3)
        if sel < 7:
            A(f"s_cmp_lg_u32 s55, {sel}")
            A(f"s_cbranch_scc1 L_sel{k}_{sel}")
        for c in range(4):
            A(f"v_add_f32 v{16+c}, s{96+c}, v{cc+c}")
        if sel < 7:
            A(f"s_branch L_seld{k}")
            A(f"L_sel{k}_{sel}:")
    A(f"L_seld{k}:")
    A("v_cvt_pk_bf16_f32 v16, v16, v17")
    A("v_cvt_pk_bf16_f32 v17, v18, v19")
    A(f"s_bfe_u32 s55, s{62+k}, 0x30005")
    A("s_lshl_b32 s55, s55, 1")
    A(f"s_and_b32 s56, s{62+k}, 1")
    A("s_add_u32 s55, s55, s56")
    A(f"s_bfe_u32 s56, s{62+k}, 0x20003")
    A("s_lshl_b32 s56, s56, 4")
    A("s_add_u32 s55, s55, s56")
    A(f"s_mul_i32 s56, s{62+k}, 1280")
    A("s_add_u32 s56, s56, s61")
    A("v_mov_b32 v18, s56")
    A("s_lshl_b64 exec, 1, s55")
    A("buffer_store_dwordx2 v[16:17], v18, s[40:43], 0 offen")
    A("s_mov_b64 exec, -1")
    A(f"L_nf{k}:")
stamp(11)
A("s_branch L_fin")

A("L_slowsync:")
A(f"s_mov_b32 s57, {FLAGG}")
A(f"buffer_load_dwordx2 v[2:3], v1, {WS}, s57 offen sc1")
A("s_waitcnt vmcnt(0)")
A(f"v_cmp_eq_u32 vcc, {sTAG}, v2")
A("s_cmp_eq_u64 vcc, -1")
A("s_cbranch_scc1 L_allg")
A(f"s_cmp_lt_u32 s59, {POLL_LIMIT}")
A("s_cbranch_scc1 L_poll")
A("s_branch L_synced")
A("L_allg:")
A(f"v_cmp_eq_u32 vcc, {sXCC}, v3")
A("s_cmp_eq_u64 vcc, -1")
A("s_cbranch_scc1 L_synced")
A("buffer_wbl2 sc1")
A("s_waitcnt vmcnt(0)")
A(f"s_mov_b32 s57, {FLAGB}")
A("s_mov_b64 exec, 1")
A(f"buffer_store_dwordx2 v[10:11], v12, {WS}, s57 offen sc1")
A("s_mov_b64 exec, -1")
A(f"s_cmp_ge_u32 {sJ}, 20")
A("s_cbranch_scc1 L_synced")
A("s_mov_b32 s59, 0")
A("L_pollb:")
A(f"buffer_load_dwordx2 v[2:3], v1, {WS}, s57 offen sc1")
A("s_add_u32 s59, s59, 1")
A("s_waitcnt vmcnt(0)")
A(f"v_cmp_eq_u32 vcc, {sTAG}, v2")
A("s_cmp_eq_u64 vcc, -1")
A("s_cbranch_scc1 L_bok")
A("s_sleep 2")
A(f"s_cmp_lt_u32 s59, {POLL_LIMIT}")
A("s_cbranch_scc1 L_pollb")
A("L_bok:")
A("buffer_inv sc1")
A("s_waitcnt vmcnt(0)")
A("s_branch L_synced")

A("L_notkv:")
A(f"s_cmp_eq_u32 {sW}, 7")
A("s_cbranch_scc1 L_ln")
if OPT["codewarm"]:
    A("s_getpc_b64 s[54:55]")
    A("L_pc:")
    A(f"s_sub_u32 s54, s54, L_pc-{NAME}_kernel")
    A("s_subb_u32 s55, s55, 0")
    A(f"s_sub_u32 s56, {sW}, 5")
    A("s_lshl_b32 s56, s56, 13")
    A("v_lshl_add_u32 v1, v0, 7, s56")
    A(f"v_min_u32 v1, L_codeend-{NAME}_kernel-4, v1")
    A("global_load_dword v95, v1, s[54:55]")
A(f"s_sub_u32 s56, {sW}, 5")
A("s_lshl_b32 s57, s56, 6")
A("v_add_u32 v2, s57, v0")
A(f"s_mul_i32 s53, {sX}, 80")
A("s_lshl_b32 s53, s53, 12")
A(f"s_lshl_b32 s57, {sJ}, 7")
A("s_add_u32 s54, s53, s57")
A(f"s_add_u32 s54, s54, {KVT}")
A("v_lshl_add_u32 v3, v2, 12, s54")
A(f"s_mul_i32 s57, {sX}, 1280")
A(f"s_add_u32 s57, s57, {FLAGL - 80*128}")
A("v_min_u32 v4, 89, v2")
A("v_lshl_add_u32 v4, v4, 7, s57")
A("v_cmp_gt_u32 vcc, 80, v2")
A("v_cndmask_b32 v3, v4, v3, vcc")
A("v_min_u32 v2, 79, v2")
A("v_lshrrev_b32 v4, 2, v2")
A("v_and_b32 v2, 3, v2")
A("v_lshlrev_b32 v4, 14, v4")
A("v_lshl_add_u32 v4, v2, 7, v4")
A(f"s_lshl_b32 s57, {sJ}, 9")
A("s_add_u32 s54, s53, s57")
A(f"s_add_u32 s54, s54, {XB}")
A("v_add_u32 v4, s54, v4")
A("v_lshlrev_b32 v5, 4, v0")
after_kernarg()
if OPT["pretouch"]:
    A(f"buffer_load_dword v95, v3, {WS}, 0 offen sc1")
A(f"s_cmp_ge_u32 {sJ}, 20")
A("s_cbranch_scc1 L_wload")
srd(40, pH, TBYTES)
A(f"s_mul_i32 s53, {sX}, 20")
A(f"s_add_u32 s53, s53, {sJ}")
A("s_lshl_b32 s53, s53, 14")
A(f"s_cmp_eq_u32 {sW}, 6")
A("s_cbranch_scc1 L_zero")
A("v_lshrrev_b32 v6, 4, v0")
A("v_bfe_u32 v7, v0, 2, 2")
A("v_and_b32 v8, 3, v0")
A("v_lshl_add_u32 v9, v8, 2, v7")
A("v_lshl_add_u32 v10, v6, 12, s53")
A("v_mov_b32 v12, 0x7ffffff0")
for i in range(4):
    A(f"v_subrev_u32 v11, {15-i}, v9")
    A("v_cmp_gt_i32 vcc, 0, v11")
    A("v_lshl_add_u32 v11, v11, 2, v10")
    A("v_cndmask_b32 v11, v11, v12, vcc")
    A(f"buffer_load_dword v{16+i}, v11, s[40:43], 0 offen")
A(f"v_mul_u32_u24 v6, {A_C}, v6")
A(f"v_mul_u32_u24 v7, {A_CP}, v7")
A("v_add_u32 v6, v6, v7")
A("v_lshl_add_u32 v6, v8, 4, v6")
A("s_branch L_hdma")
A("L_zero:")
A("v_mov_b32 v16, 0")
A("v_mov_b32 v17, 0")
A("v_mov_b32 v18, 0")
A("v_mov_b32 v19, 0")
A("v_lshrrev_b32 v6, 5, v0")
A(f"v_mul_u32_u24 v6, {U_P}, v6")
A("v_and_b32 v7, 31, v0")
A("v_min_u32 v7, 27, v7")
A("v_lshl_add_u32 v6, v7, 4, v6")
A(f"v_add_u32 v6, {LU}, v6")
for c in range(3):
    A(f"ds_write_b128 v6, v[16:19] offset:{c*U_C}")
A(f"v_mov_b32 v7, {LF}")
for p in range(3):
    A(f"ds_write_b128 v7, v[16:19] offset:{16*p}")
A(f"v_add_u32 v6, {3*U_C}, v6")
A("L_hdma:")
make_tag_and_b0()
A("s_lshl_b32 s57, s56, 13")
A("s_add_u32 s53, s53, s57")
A(f"s_mul_i32 s54, s56, {2*A_C}")
for c in range(2):
    for cc in range(4):
        A(f"s_add_u32 m0, s54, {LA + c*A_C + cc*A_CP + 64}")
        A(f"s_add_u32 s55, s53, {c*4096 + 4*(cc+1)}")
        for i in range(4):
            A(f"buffer_load_dwordx4 v5, s[40:43], s55 offen offset:{1024*i} lds")
nx = 0
if OPT["xtouch"]:
    A(f"buffer_load_dword v95, v4, {WS}, 0 offen sc1")
    nx = 1
stamp(1)
A(f"s_waitcnt vmcnt({32+nx})")
A("ds_write_b128 v6, v[16:19]")
A(f"s_waitcnt vmcnt({nx})")
stamp(2)
A("s_branch L_mfma")

A("L_wload:")
A(f"s_cmp_ge_u32 {sJ}, 29")
A("s_cbranch_scc1 L_idle56")
A(f"s_mul_i32 s53, {sX}, 9")
A(f"s_add_u32 s53, s53, {sJ}")
A("s_sub_u32 s53, s53, 20")
A(f"s_cmp_eq_u32 {sW}, 5")
A(f"s_cselect_b32 s40, s{pWG}, s{pWU}")
A(f"s_cselect_b32 s41, s{pWG+1}, s{pWU+1}")
A(f"s_mov_b32 s42, {WBYTES}")
A("s_mov_b32 s43, 0x20000")
srd(44, pWD, WBYTES)
for i in range(3):
    A(f"v_add_u32 v6, {64*i}, v0")
    A("v_mul_u32_u24 v7, 171, v6")
    A("v_lshrrev_b32 v7, 9, v7")
    A("v_mul_u32_u24 v8, 3, v7")
    A("v_sub_u32 v6, v6, v8")
    A("v_mul_u32_u24 v7, 3456, v7")
    A(f"v_lshl_add_u32 v{10+i}, v6, 4, v7")
    if i:
        A(f"v_subrev_u32 v{10+i}, {1024*i}, v{10+i}")
A("s_mul_i32 s55, s53, 48")
A(f"s_mul_i32 s54, s56, {LWU}")


def wl_gu(g):
    A(f"s_add_u32 m0, s54, {3072*g}")
    for i in range(3):
        A(f"buffer_load_dwordx4 v{10+i}, s[40:43], s55 offen offset:{1024*i} lds")
    A(f"s_add_u32 s55, s55, {64*3456}")


for g in range(3):
    wl_gu(g)
make_tag_and_b0()
for g in range(3, 10):
    wl_gu(g)
A("s_mul_i32 s55, s53, 30720")
A("s_mul_i32 s54, s56, 15360")
A("s_add_u32 s55, s55, s54")
for g in range(4):
    A(f"s_add_u32 m0, s54, {LWD + 4096*g}")
    for i in range(4 if g < 3 else 3):
        A(f"buffer_load_dwordx4 v5, s[44:47], s55 offen offset:{1024*i} lds")
    A("s_add_u32 s55, s55, 4096")
if OPT["xtouch"]:
    A(f"buffer_load_dword v95, v4, {WS}, 0 offen sc1")
stamp(1)
A("s_branch L_moe")
A("L_idle56:")
make_tag_and_b0()
if OPT["xtouch"]:
    A(f"buffer_load_dword v95, v4, {WS}, 0 offen sc1")
A("s_branch L_fin")

A("L_ln:")
A("v_and_b32 v1, 7, v0")
A("v_bfe_u32 v2, v0, 3, 1")
A("v_lshrrev_b32 v3, 4, v0")
A("v_mul_u32_u24 v4, 1280, v1")
A("v_mul_u32_u24 v5, 640, v2")
A("v_add_u32 v4, v4, v5")
A("v_lshl_add_u32 v4, v3, 4, v4")
A("s_mul_i32 s53, s2, 10240")
A("v_add_u32 v4, s53, v4")
A("v_and_b32 v5, 15, v0")
A("v_cmp_lt_u32 vcc, 1, v5")
A("v_mov_b32 v6, 640")
A("v_cndmask_b32 v6, 0, v6, vcc")
A("v_lshl_add_u32 v6, v3, 4, v6")
A("s_mov_b32 s53, 0x3f803f80")
for i in range(44):
    A(f"v_mov_b32 v{56+i}, s53")
after_kernarg()
for s in range(10):
    A(f"global_load_dwordx4 {vr(16+4*s,4)}, v4, {sp(pQ)} offset:{64*s}")
A("s_mov_b32 exec_lo, 0xfffefffe")
A("s_mov_b32 exec_hi, 0xfffefffe")
for s in range(10):
    A(f"global_load_dwordx4 {vr(56+4*s,4)}, v6, {sp(pWR)} offset:{64*s}")
A("s_mov_b64 exec, -1")
stamp(1)
A("v_lshrrev_b32 v7, 2, v5")
A("v_lshl_add_u32 v7, v7, 4, v5")
A("v_lshlrev_b32 v7, 2, v7")
A("v_and_b32 v8, 1, v1")
A("v_lshrrev_b32 v9, 1, v1")
A("v_lshl_add_u32 v8, v8, 2, v9")
A("s_lshl_b32 s53, s2, 6")
A(f"s_add_u32 s53, s53, {STATS}")
A("v_lshl_add_u32 v8, v8, 3, s53")
A("s_lshl_b32 s53, s2, 3")
A("s_sub_u32 s53, 2047, s53")
A("v_sub_u32 v9, s53, v1")
A("s_mov_b32 s54, 0x22222222")
A("s_mov_b32 s55, 0x22222222")
A("s_mov_b32 s56, 0x44444444")
A("s_mov_b32 s57, 0x44444444")
A("s_mov_b32 s60, 0x88888888")
A("s_mov_b32 s61, 0x88888888")
A("s_mov_b32 s62, 0xff00ff00")
A("s_mov_b32 s63, 0xff00ff00")
make_tag_and_b0()
for s in range(10):
    A(f"s_waitcnt vmcnt({19-s})")
    c = "0" if s == 0 else "v[100:103]"
    A(f"v_mfma_f32_16x16x32_bf16 v[100:103], {vr(16+4*s,4)}, {vr(16+4*s,4)}, {c}")
stamp(2)
for s in range(10):
    A(f"s_waitcnt vmcnt({9-s})")
    c = "0" if s == 0 else "v[104:107]"
    A(f"v_mfma_f32_16x16x32_bf16 v[104:107], {vr(56+4*s,4)}, {vr(16+4*s,4)}, {c}")
    c = "0" if s == 0 else "v[108:111]"
    A(f"v_mfma_f32_16x16x32_bf16 v[108:111], {vr(56+4*s,4)}, v[96:99], {c}")
    if s == 4:
        A("v_cndmask_b32 v100, v100, v101, s[54:55]")
        A("v_cndmask_b32 v100, v100, v102, s[56:57]")
        A("v_cndmask_b32 v100, v100, v103, s[60:61]")
        A("ds_bpermute_b32 v100, v7, v100")
A("v_cndmask_b32 v105, v105, v106, s[62:63]")
A("v_add_f32 v109, v109, v110")
A("s_waitcnt lgkmcnt(0)")
ROR8 = "row_ror:8 row_mask:0xf bank_mask:0xf"
A(f"v_add_f32_dpp v104, v104, v104 {ROR8}")
A(f"v_add_f32_dpp v100, v100, v100 {ROR8}")
A(f"v_add_f32_dpp v105, v105, v105 {ROR8}")
A("v_mul_f32 v104, 0x3acccccd, v104")
A("v_mul_f32 v100, 0x3acccccd, v100")
A("v_fma_f32 v100, -v104, v104, v100")
A("v_max_f32 v100, 0, v100")
A("v_cvt_pk_bf16_f32 v104, v104, v100")
A(f"v_and_b32 v100, {sHI}, v104")
A("v_add_f32 v100, 0x3727c5ac, v100")
A("v_cvt_pk_bf16_f32 v100, v100, v100")
A(f"v_and_b32 v100, {sHI}, v100")
A("v_sqrt_f32 v100, v100")
A("v_lshlrev_b32 v106, 16, v104")
A("v_cvt_pk_bf16_f32 v10, v106, v100")
A(f"v_mov_b32 v11, {sTAG}")
A(f"v_and_b32 v100, {sHI}, v10")
A("v_rcp_f32 v100, v100")
A("v_fma_f32 v105, -v106, v109, v105")
A("s_mov_b64 exec, 0xff")
A(f"buffer_store_dwordx2 v[10:11], v8, {WS}, 0 offen sc1")
A("s_mov_b64 exec, -1")
A("v_mul_f32 v105, v105, v100")
A("v_cvt_pk_bf16_f32 v105, v105, v105")
A("v_ashrrev_i32 v106, 31, v105")
A("v_or_b32 v106, 0x80000000, v106")
A("v_xor_b32 v105, v105, v106")
A(f"v_and_or_b32 v12, v105, {sHI}, v9")
A("v_mov_b32 v14, 0")
for r in (1, 2, 4):
    d = f"row_ror:{r} row_mask:0xf bank_mask:0xf"
    A(f"v_min_u32_dpp v13, v12, v12 {d}")
    A(f"v_max_u32_dpp v15, v14, v14 {d}")
    A(f"v_max_u32_dpp v12, v12, v12 {d}")
    A("v_max_u32 v14, v13, v15")
A(f"v_mov_b32 v13, {sTAG}")
A(f"v_mov_b32 v15, {sTAG}")
A("s_lshl_b32 s53, s2, 4")
A(f"s_add_u32 s53, s53, {CAND}")
A("v_mov_b32 v8, s53")
A("s_mov_b64 exec, 1")
A(f"buffer_store_dwordx4 v[12:15], v8, {WS}, 0 offen sc1")
A("s_mov_b64 exec, -1")
stamp(3)
A(f"s_cmp_ge_u32 {sJ}, 20")
A("s_cbranch_scc1 L_nonconv")

A("L_mfma:")
A(f"s_sub_u32 s53, {sW}, 4")
A("v_and_b32 v6, 3, v0")
A(f"v_mul_u32_u24 v1, {A_CP}, v6")
A("v_bfe_u32 v6, v0, 2, 2")
A("v_lshrrev_b32 v7, 4, v0")
A("v_add_u32 v6, v6, v7")
A("v_lshl_add_u32 v1, v6, 4, v1")
A(f"s_mul_i32 s54, s53, {A_C}")
A("v_add_u32 v1, s54, v1")
A("v_and_b32 v6, 1, v0")
A(f"v_mul_u32_u24 v2, {U_P}, v6")
A("v_bfe_u32 v6, v0, 1, 3")
A("v_lshlrev_b32 v6, 2, v6")
A("v_sub_u32 v6, v6, v7")
A("v_lshl_add_u32 v2, v6, 4, v2")
A(f"s_mul_i32 s54, s53, {U_C}")
A(f"s_add_u32 s54, s54, {LU + 48}")
A("v_add_u32 v2, s54, v2")
A("s_lshl_b32 s54, s53, 10")
A(f"s_add_u32 s54, s54, {LY}")
A("v_lshl_add_u32 v3, v0, 4, s54")
A("s_lshl_b32 s54, s53, 2")
A(f"s_add_u32 s54, s54, {LF}")
A("v_mov_b32 v4, s54")
A("v_mov_b32 v5, 1")
A("s_setprio 2")
A("s_waitcnt lgkmcnt(0)")
A("s_barrier")
stamp(6)


def mfma_schedule():
    passes = [(0, 1, 2, 3), (4, 5), (6, 7)]
    seq = []
    for pi, tiles in enumerate(passes):
        for rho in range(8):
            for b in range(max(tiles) + 1):
                for n in tiles:
                    if n >= b:
                        a = n - b
                        ak = ("A", a, rho) if a <= 3 else ("A", a, rho, pi)
                        seq.append((pi, n, ak, ("B", b, rho, pi)))
    first, last = {}, {}
    for i, (_, _, ak, bk) in enumerate(seq):
        for k in (bk, ak):
            first.setdefault(k, i)
            last[k] = i
    loads = sorted(first, key=lambda k: (first[k], k[0] != "B"))
    free = [16 + 4*s for s in range(19)]
    reg = {}
    issued = []
    pos = {}
    done_upto = 0
    li = 0
    LOOK, SETTLE = 12, 7
    started = set()
    pend_y = []

    def issue_loads(i, maxn):
        nonlocal li
        cnt = 0
        while li < len(loads) and cnt < maxn:
            k = loads[li]
            if first[k] > i + LOOK or len(issued) - done_upto >= 14:
                break
            if len(k) == 3:
                r = f"a[{(k[2]*4 + k[1])*4}:{(k[2]*4 + k[1])*4 + 3}]"
            else:
                if not free:
                    break
                b = free.pop(0)
                reg[k] = b
                r = vr(b, 4)
            if k[0] == "A":
                A(f"ds_read_b128 {r}, v1 offset:{64*k[2] + 512*k[1]}")
            else:
                A(f"ds_read_b128 {r}, v2 offset:{512*k[1] + 64*(7-k[2])}")
            pos[k] = len(issued)
            issued.append((k, i))
            li += 1
            cnt += 1

    def rname(k):
        if len(k) == 3:
            return f"a[{(k[2]*4 + k[1])*4}:{(k[2]*4 + k[1])*4 + 3}]"
        return vr(reg[k], 4)

    def write_y(pi):
        for n in passes[pi]:
            A(f"ds_write_b128 v3, {vr(96+4*n,4)} offset:{4096*n}")
            issued.append((None, cur))
        A(f"ds_write_b32 v4, v5 offset:{16*pi}")
        issued.append((None, cur))

    cur = -1
    issue_loads(-1, 12)
    for i, (pi, n, ak, bk) in enumerate(seq):
        cur = i
        needp = max(pos[ak], pos[bk]) + 1
        if needp > done_upto:
            tgt = needp
            while tgt < len(issued) and issued[tgt][1] <= i - SETTLE:
                tgt += 1
            A(f"s_waitcnt lgkmcnt({len(issued) - tgt})")
            done_upto = tgt
        acc = vr(96 + 4*n, 4)
        c = acc if n in started else "0"
        started.add(n)
        A(f"v_mfma_f32_16x16x32_bf16 {acc}, {rname(ak)}, {rname(bk)}, {c}")
        for k in (ak, bk):
            if last[k] == i and len(k) == 4:
                free.append(reg[k])
        if i + 1 < len(seq) and seq[i+1][0] != pi:
            pend_y.append((i + 6, pi))
        if pend_y and pend_y[0][0] == i:
            if len(issued) - done_upto > 9:
                tgt = len(issued) - 9
                A("s_waitcnt lgkmcnt(9)")
                done_upto = tgt
            write_y(pend_y.pop(0)[1])
        else:
            issue_loads(i, 2)
    write_y(2)


mfma_schedule()
stamp(7)
A("s_branch L_fin")

A("L_nonconv:")
A(f"s_cmp_ge_u32 {sJ}, 29")
A("s_cbranch_scc1 L_fin")
A("L_moe:")
A(f"s_mul_i32 s53, {sX}, 9")
A(f"s_add_u32 s53, s53, {sJ}")
A("s_sub_u32 s53, s53, 20")
A("s_mov_b32 s57, 0x3f803f80")
for i in range(40):
    A(f"v_mov_b32 v{40+i}, s57")
top2("L_cand_m", 16)
stamp(6)
A("s_andn2_b32 s62, 0x7ff, s54")
A("s_andn2_b32 s63, 0x7ff, s55")
A("v_and_b32 v1, 1, v0")
A("v_lshrrev_b32 v2, 4, v0")
A("v_cmp_eq_u32 vcc, 1, v1")
A("v_mov_b32 v3, s62")
A("v_mov_b32 v4, s63")
A("v_cndmask_b32 v3, v3, v4, vcc")
A("v_mov_b32 v5, s54")
A("v_mov_b32 v4, s55")
A("v_cndmask_b32 v5, v5, v4, vcc")
A(f"s_cmp_eq_u32 {sW}, 7")
A(f"s_cselect_b32 s60, 5, {sW}")
A(f"s_cselect_b32 s61, 0, {sW}")
A("s_cmp_ge_u32 s61, 5")
A("s_cbranch_scc1 L_nox")
A("v_mul_u32_u24 v6, 1280, v3")
A("v_lshl_add_u32 v6, v2, 4, v6")
A("s_and_b32 s57, s60, 1")
A("s_mul_i32 s57, s57, 640")
A("v_add_u32 v6, s57, v6")
A("s_mov_b32 exec_lo, 0x00030003")
A("s_mov_b32 exec_hi, 0x00030003")
for s in range(10):
    A(f"global_load_dwordx4 {vr(40+4*s,4)}, v6, {sp(pQ)} offset:{64*s}")
A("s_mov_b64 exec, -1")
A("L_nox:")
A("v_lshrrev_b32 v7, 3, v3")
A("v_lshlrev_b32 v7, 3, v7")
A("v_and_b32 v8, 1, v3")
A("v_lshl_add_u32 v7, v8, 2, v7")
A("v_bfe_u32 v8, v3, 1, 2")
A("v_add_u32 v7, v7, v8")
A("v_lshlrev_b32 v7, 3, v7")
A(f"s_mov_b32 s57, {STATS}")
A(f"buffer_load_dwordx2 v[8:9], v7, {WS}, s57 offen sc1")
A(f"s_or_b32 s56, s53, {sW}")
A("s_cmp_lg_u32 s56, 0")
A("s_cbranch_scc1 L_noep")
A(f"v_mov_b32 v10, {sTAG}")
A(f"v_mov_b32 v11, {EPOCH}")
A("s_mov_b64 exec, 1")
A(f"buffer_store_dword v10, v11, {WS}, 0 offen sc1")
A("s_mov_b64 exec, -1")
A("L_noep:")
A(f"v_and_b32 v5, {sHI}, v5")
A("v_ashrrev_i32 v10, 31, v5")
A("v_not_b32 v10, v10")
A("v_or_b32 v10, 0x80000000, v10")
A("v_xor_b32 v5, v5, v10")
A(f"v_and_b32 v5, {sHI}, v5")
A("v_mul_f32 v5, 0xbfb8aa3b, v5")
A("v_exp_f32 v5, v5")
A("v_add_f32 v5, 1.0, v5")
A("v_rcp_f32 v5, v5")
A("v_bfe_u32 v10, v0, 2, 2")
A("v_and_b32 v11, 3, v0")
A("v_mul_u32_u24 v12, 6, v2")
A("v_add_u32 v12, v12, v10")
A("v_add_u32 v13, 4, v12")
A("v_min_u32 v13, 23, v13")
A("v_mul_u32_u24 v12, 1280, v12")
A("v_mul_u32_u24 v13, 1280, v13")
A(f"s_mul_i32 s57, {sW}, 160")
A(f"s_add_u32 s57, s57, {LWD}")
A("v_lshl_add_u32 v14, v11, 3, s57")
A("v_add_u32 v12, v12, v14")
A("v_add_u32 v13, v13, v14")
A("v_lshl_add_u32 v14, v2, 3, v10")
A("v_mul_u32_u24 v14, 48, v14")
A("v_lshrrev_b32 v15, 1, v11")
A(f"v_mul_u32_u24 v15, {LWU}, v15")
A("v_add_u32 v14, v14, v15")
A("v_and_b32 v15, 1, v11")
A("v_lshl_add_u32 v14, v15, 3, v14")
A("s_and_b32 s57, s60, 1")
A(f"s_mul_i32 s57, s57, {320*48}")
A("s_lshr_b32 s56, s60, 1")
A("s_lshl_b32 s59, s56, 4")
A("s_add_u32 s57, s57, s59")
A("v_add_u32 v14, s57, v14")
A("s_barrier")
stamp(7)
for t in range(5):
    A(f"ds_read_b64_tr_b16 a[{40+4*t}:{41+4*t}], v12 offset:{32*t}")
    A(f"ds_read_b64_tr_b16 a[{42+4*t}:{43+4*t}], v13 offset:{32*t}")
A("v_bfe_u32 v10, v0, 1, 3")
A("v_mul_u32_u24 v11, 6, v2")
A("v_add_u32 v11, v11, v10")
A("v_min_u32 v11, 23, v11")
A("v_lshlrev_b32 v11, 2, v11")
A("v_mul_u32_u24 v16, 192, v1")
A(f"v_add_u32 v17, {LRED + 384}, v11")
A(f"v_add3_u32 v16, v16, v11, v11")
A("v_sub_u32 v16, v16, v11")
A(f"v_add_u32 v16, {LRED}, v16")
A("v_and_b32 v18, 1, v10")
A("v_mov_b32 v19, 0xffff")
A(f"v_mov_b32 v20, {sHI}")
A("v_cmp_eq_u32 vcc, 1, v18")
A("v_cndmask_b32 v18, v19, v20, vcc")
A("v_lshrrev_b32 v10, 1, v10")
for i in range(3):
    A(f"v_cmp_eq_u32 vcc, {i}, v10")
    A(f"v_cndmask_b32 v{20+i}, 0, v18, vcc")
A("s_cmp_ge_u32 s61, 5")
A("s_cbranch_scc1 L_nogu")
A("s_waitcnt lgkmcnt(0)")
for s in range(10):
    A(f"ds_read_b64_tr_b16 a[{4*s}:{4*s+1}], v14 offset:{1536*s}")
    A(f"ds_read_b64_tr_b16 a[{4*s+2}:{4*s+3}], v14 offset:{1536*s + 192}")
    if s == 6:
        A("s_waitcnt lgkmcnt(4)")
A("v_and_b32 v24, 15, v0")
A("v_mul_u32_u24 v24, 192, v24")
A("v_lshrrev_b32 v25, 1, v2")
A("v_mul_u32_u24 v25, 96, v25")
A("v_add_u32 v24, v24, v25")
A("v_and_b32 v25, 1, v2")
A("v_lshl_add_u32 v24, v25, 4, v24")
A("s_and_b32 s57, s60, 1")
A("s_mul_i32 s57, s57, 576")
A("s_lshl_b32 s59, s56, 5")
A("s_add_u32 s57, s57, s59")
A(f"s_add_u32 s57, s57, {LRED}")
A("v_add_u32 v24, s57, v24")
A("s_waitcnt vmcnt(0) lgkmcnt(0)")
stamp(8)
for s in range(10):
    c = "0" if s == 0 else "v[28:31]"
    A(f"v_mfma_f32_16x16x32_bf16 v[28:31], a[{4*s}:{4*s+3}], {vr(40+4*s,4)}, {c}")
A("s_mov_b32 exec_lo, 0x00070007")
A("s_mov_b32 exec_hi, 0x00070007")
A("ds_write_b128 v24, v[28:31]")
A("s_mov_b64 exec, -1")
A("L_nogu:")
A(f"s_mov_b32 s57, {STATS}")
A("s_mov_b32 s59, 0")
A("s_waitcnt vmcnt(0)")
A("L_mst:")
A(f"v_cmp_ne_u32 vcc, {sTAG}, v9")
A("s_cbranch_vccz L_mstok")
A(f"buffer_load_dwordx2 v[8:9], v7, {WS}, s57 offen sc1")
A("s_add_u32 s59, s59, 1")
A(f"s_cmp_lt_u32 s59, {POLL_LIMIT}")
A("s_waitcnt vmcnt(0)")
A("s_cbranch_scc1 L_mst")
A("L_mstok:")
A(f"v_and_b32 v9, {sHI}, v8")
A("v_lshlrev_b32 v8, 16, v8")
A("v_rcp_f32 v9, v9")
A("s_waitcnt lgkmcnt(0)")
A("s_barrier")
A("ds_read2_b32 v[28:29], v16 offset0:0 offset1:24")
A("ds_read2_b32 v[30:31], v16 offset0:144 offset1:168")
A("ds_read2_b32 v[32:33], v17 offset0:0 offset1:24")
A("ds_read2_b32 v[34:35], v17 offset0:144 offset1:168")
A("v_mul_u32_u24 v24, 5120, v1")
A("v_bfe_u32 v25, v0, 1, 3")
A("v_lshl_add_u32 v24, v25, 7, v24")
A("v_lshl_add_u32 v24, v2, 5, v24")
A("s_mul_i32 s57, s53, 10240")
A(f"s_mul_i32 s59, {sW}, 640")
A("s_add_u32 s57, s57, s59")
A(f"s_add_u32 s57, s57, {PART}")
A("v_add_u32 v24, s57, v24")
A("s_waitcnt lgkmcnt(2)")
A("v_pk_add_f32 v[28:29], v[28:29], v[30:31]")
A("s_waitcnt lgkmcnt(0)")
A("v_pk_add_f32 v[32:33], v[32:33], v[34:35]")
A("v_fma_f32 v28, -v8, v32, v28")
A("v_fma_f32 v29, -v8, v33, v29")
A("v_mul_f32 v28, v28, v9")
A("v_mul_f32 v29, v29, v9")
A("v_mul_f32 v30, 0xbfb8aa3b, v28")
A("v_exp_f32 v30, v30")
A("v_mul_f32 v29, v29, v28")
A("v_add_f32 v30, 1.0, v30")
A("v_rcp_f32 v30, v30")
A("v_mul_f32 v29, v29, v30")
A("v_cvt_pk_bf16_f32 v29, v29, v29")
for i in range(3):
    A(f"v_and_b32 v{32+i}, v29, v{20+i}")
A("v_mov_b32 v35, 0")
for r in (2, 4, 8):
    for i in range(3):
        A(f"v_or_b32_dpp v{32+i}, v{32+i}, v{32+i} row_ror:{r} row_mask:0xf bank_mask:0xf")
for t in range(5):
    A(f"v_mfma_f32_16x16x32_bf16 {vr(40+4*t,4)}, a[{40+4*t}:{43+4*t}], v[32:35], 0")
for t in range(1, 5):
    m = (3 << (2*t)) * 0x00010001
    A(f"s_mov_b32 s{40+2*t}, {m:#x}")
    A(f"s_mov_b32 s{41+2*t}, {m:#x}")
for i in range(4):
    A(f"v_mov_b32 v{61+2*i}, {sTAG}")
for t in range(1, 5):
    for i in range(4):
        A(f"v_cndmask_b32 v{40+i}, v{40+i}, v{40+4*t+i}, s[{40+2*t}:{41+2*t}]")
for i in range(4):
    A(f"v_mul_f32 v{60+2*i}, v{40+i}, v5")
A("s_mov_b32 exec_lo, 0x03ff03ff")
A("s_mov_b32 exec_hi, 0x03ff03ff")
A(f"buffer_store_dwordx4 v[60:63], v24, {WS}, 0 offen sc1")
A(f"buffer_store_dwordx4 v[64:67], v24, {WS}, 0 offen offset:16 sc1")
A("s_mov_b64 exec, -1")
stamp(9)

A("L_fin:")
if PROF:
    A("s_waitcnt vmcnt(0)")
    stamp(15)
    A("s_waitcnt lgkmcnt(0)")
    A("s_lshl_b32 s53, s2, 3")
    A(f"s_add_u32 s53, s53, {sW}")
    A("s_lshl_b32 s53, s53, 6")
    A(f"s_add_u32 s53, s53, {PROFB}")
    A("v_mov_b32 v1, s53")
    A("s_mov_b64 exec, 1")
    for k in range(16):
        A(f"v_mov_b32 v2, s{64+2*k}")
        A(f"buffer_store_dword v2, v1, {WS}, 0 offen offset:{4*k}")
A("L_end:")
A("s_endpgm")
A("L_codeend:")

hdr = open(os.path.join(os.path.dirname(os.path.abspath(__file__)), "..", "cdna_kernels", NAME + ".s.ref")).read().split("\n")
hdr = [l for l in hdr if l.startswith(";") and "@launch" not in l]
out = hdr + [f"; @launch grid=(256,1,1) block=(512,1,1) lds={LDS_BYTES}",
             '.amdgcn_target "amdgcn-amd-amdhsa--gfx950"', ".text", f".globl {NAME}_kernel", ".p2align 8",
             f".type {NAME}_kernel,@function"]
out += A.padded()
out += ['.section .rodata,"a"', ".p2align 6", f".amdhsa_kernel {NAME}_kernel",
        "  .amdhsa_next_free_vgpr 256", "  .amdhsa_next_free_sgpr 102", "  .amdhsa_accum_offset 128",
        "  .amdhsa_group_segment_fixed_size 0", "  .amdhsa_kernarg_size 112", "  .amdhsa_user_sgpr_count 2",
        "  .amdhsa_user_sgpr_kernarg_segment_ptr 1", "  .amdhsa_system_sgpr_workgroup_id_x 1",
        "  .amdhsa_float_denorm_mode_32 3", ".end_amdhsa_kernel", ""]
open(sys.argv[1], "w").write("\n".join(out))
```

```python
import sys, os
sys.path.insert(0, os.path.dirname(os.path.abspath(__file__)))
from asmlib import Asm

NAME = "parallel_sum__ssm_conv_h3__moe_arch_mod__prompt"
OPT = dict(prof=0, pretouch=1, xtouch=1, codewarm=1, wwarm=0, force_fb=0, diag=-1, dmul=4)
for a in sys.argv[2:]:
    k, v = a.split("=")
    OPT[k] = int(v)
PROF = OPT["prof"]

EPOCH, FLAGL, FLAGG, FLAGB = 0, 0x1000, 0x4000, 0x7000
CAND, STATS, PART = 0xA000, 0xC000, 0x10000
KVT, XB, PROFB = 0x100000, 0x400000, 0x800000
WS_BYTES = 0x1000000
TBYTES = 2621440
WBYTES = 2211840
NMOE = 72
LA, A_C, A_CP = 0, 16640, 4160
LU, U_C, U_P = 66560, 9120, 4576
LY = 103040
LS, S_W, S_T = 103040, 7344, 2448
LF = 139776
LDS_BYTES = 140032
LWG, LWU, LWD, LRED = 0, 30720, 61440, 92160
POLL_LIMIT = 1 << 16

sX, sJ, sW, sTAG, sXCC = "s3", "s4", "s5", "s6", "s7"
pQ, pK, pV, pSH, pH, pD, pWR, pWG, pWU, pWD, pOUT, pWS = 8, 10, 12, 14, 16, 18, 22, 24, 26, 28, 30, 34
WS = "s[36:39]"
sHI = "s52"

A = Asm()


def sp(p):
    return f"s[{p}:{p+1}]"


def srd(reg, ptr, nbytes):
    A(f"s_mov_b32 s{reg}, s{ptr}")
    A(f"s_mov_b32 s{reg+1}, s{ptr+1}")
    A(f"s_mov_b32 s{reg+2}, {nbytes:#x}")
    A(f"s_mov_b32 s{reg+3}, 0x20000")


def stamp(k):
    if PROF:
        A(f"s_memrealtime s[{64+2*k}:{65+2*k}]")


def vr(b, n):
    return f"v[{b}:{b+n-1}]"


def after_kernarg():
    A("s_waitcnt lgkmcnt(0)")
    A(f"s_load_dword {sTAG}, {sp(pWS)}, {EPOCH}")
    srd(36, pWS, WS_BYTES)


def make_tag_and_b0():
    A("s_waitcnt lgkmcnt(0)")
    A(f"s_mul_i32 {sTAG}, {sTAG}, 0x9E3779B1")
    A(f"s_add_u32 {sTAG}, {sTAG}, 0x7F4A7C15")
    A("s_barrier")


A(f"{NAME}_kernel:")
A("s_cmp_ge_u32 s2, 256")
A("s_cbranch_scc1 L_end")
A("s_load_dwordx16 s[8:23], s[0:1], 0")
A("s_load_dwordx8 s[24:31], s[0:1], 64")
A("s_load_dwordx4 s[32:35], s[0:1], 96")
A("v_lshrrev_b32 v1, 6, v0")
A("v_and_b32 v0, 63, v0")
A(f"s_and_b32 {sX}, s2, 7")
A(f"s_lshr_b32 {sJ}, s2, 3")
A(f"v_readfirstlane_b32 {sW}, v1")
A(f"s_getreg_b32 {sXCC}, hwreg(HW_REG_XCC_ID)")
if OPT["force_fb"]:
    A(f"s_add_u32 {sXCC}, {sXCC}, {sJ}")
A(f"s_mov_b32 {sHI}, 0xffff0000")
if PROF:
    for k in range(64, 96):
        A(f"s_mov_b32 s{k}, 0")
stamp(0)
A(f"s_cmp_ge_u32 {sW}, 5")
A("s_cbranch_scc1 L_notkv")

A(f"s_mul_i32 s53, {sJ}, {64*1280}")
A(f"s_mul_i32 s54, {sX}, 160")
A("s_add_u32 s53, s53, s54")
A(f"s_lshl_b32 s54, {sW}, 5")
A("s_add_u32 s53, s53, s54")
A(f"s_sub_u32 s53, s53, {8*1280}")
for i in range(3):
    d = 1 + i
    A(f"v_add_u32 v4, {10+64*i}, v0")
    A("v_mul_u32_u24 v5, 241, v4")
    A("v_lshrrev_b32 v5, 12, v5")
    A("v_mul_u32_u24 v6, 17, v5")
    A("v_sub_u32 v4, v4, v6")
    A("v_lshrrev_b32 v6, 1, v4")
    A("v_lshl_add_u32 v5, v5, 3, v6")
    A("v_mul_u32_u24 v5, 1280, v5")
    A("v_and_b32 v4, 1, v4")
    A("v_lshl_add_u32 v5, v4, 4, v5")
    if i:
        A(f"v_subrev_u32 v5, {1024*i}, v5")
    A(f"v_add_u32 v{d}, s53, v5")
A("v_lshrrev_b32 v7, 3, v0")
A("v_and_b32 v8, 7, v0")
A(f"s_mul_i32 s54, {sX}, 80")
A(f"s_lshl_b32 s55, {sW}, 4")
A("s_add_u32 s54, s54, s55")
A("s_lshl_b32 s55, s54, 3")
A("v_lshl_add_u32 v9, v7, 4, s55")
A(f"s_mul_i32 s56, {sW}, {S_W}")
A(f"s_add_u32 s56, s56, {LS}")
after_kernarg()
A(f"global_load_dwordx4 v[20:23], v9, {sp(pSH)}")
srd(40, pK, TBYTES)
srd(44, pV, TBYTES)
srd(48, pQ, TBYTES)
for t, r in enumerate((40, 44, 48)):
    A(f"s_add_u32 m0, s56, {160 + t*S_T}")
    A(f"buffer_load_dwordx4 v1, s[{r}:{r+3}], 0 offen lds")
    A(f"buffer_load_dwordx4 v2, s[{r}:{r+3}], 0 offen offset:1024 lds")
    A("s_mov_b64 exec, 0x3fff")
    A(f"buffer_load_dwordx4 v3, s[{r}:{r+3}], 0 offen offset:2048 lds")
    A("s_mov_b64 exec, -1")
stamp(1)
A("v_mul_u32_u24 v1, 272, v8")
A("v_lshl_add_u32 v1, v7, 2, v1")
A("v_add_u32 v1, s56, v1")
A(f"v_add_u32 v2, {S_T}, v1")
A("v_bfe_u32 v4, v0, 2, 3")
A("v_mul_u32_u24 v3, 272, v4")
A("v_and_b32 v4, 1, v0")
A("v_lshl_add_u32 v3, v4, 7, v3")
A("v_bfe_u32 v4, v0, 1, 1")
A("v_lshl_add_u32 v3, v4, 5, v3")
A("v_lshrrev_b32 v4, 5, v0")
A("v_lshl_add_u32 v3, v4, 3, v3")
A(f"s_add_u32 s55, s56, {2*S_T + 272}")
A("v_add_u32 v3, s55, v3")
A("s_lshl_b32 s55, s54, 12")
A(f"s_lshl_b32 s57, {sJ}, 7")
A("s_add_u32 s55, s55, s57")
A(f"s_add_u32 s55, s55, {KVT}")
A("v_lshlrev_b32 v5, 13, v7")
A("v_lshl_add_u32 v5, v8, 4, v5")
A("v_add_u32 v5, s55, v5")
A("v_add_u32 v6, 4096, v5")
A("s_lshl_b32 s55, s54, 12")
A(f"s_lshl_b32 s57, {sJ}, 9")
A("s_add_u32 s55, s55, s57")
A(f"s_add_u32 s55, s55, {XB}")
A("v_lshlrev_b32 v7, 14, v4")
A("v_and_b32 v8, 31, v0")
A("v_lshl_add_u32 v7, v8, 4, v7")
A("v_add_u32 v7, s55, v7")
A("v_add_u32 v8, 32768, v7")
make_tag_and_b0()
A("s_waitcnt vmcnt(9)")
A("v_lshlrev_b32 v10, 16, v20")
A("v_lshlrev_b32 v11, 16, v22")
A(f"v_and_b32 v12, {sHI}, v20")
A(f"v_and_b32 v13, {sHI}, v22")
A("v_lshlrev_b32 v14, 16, v21")
A("v_lshlrev_b32 v15, 16, v23")
A(f"v_and_b32 v16, {sHI}, v21")
A(f"v_and_b32 v17, {sHI}, v23")
A("s_waitcnt vmcnt(3)")
stamp(2)


def koff(t):
    return (68 + 8*t) if t >= 0 else 8*(8 + t)


rows = list(range(-3, 8))
for i in range(5):
    A(f"ds_read2_b32 v[{20+2*i}:{21+2*i}], v1 offset0:{koff(rows[2*i])} offset1:{koff(rows[2*i+1])}")
A(f"ds_read_b32 v30, v1 offset:{4*koff(7)}")
for i in range(4):
    A(f"ds_read2_b32 v[{32+2*i}:{33+2*i}], v2 offset0:{koff(2*i)} offset1:{koff(2*i+1)}")
A("s_waitcnt lgkmcnt(4)")
for i in range(11):
    A(f"v_lshlrev_b32 v{40+2*i}, 16, v{20+i}")
    A(f"v_and_b32 v{41+2*i}, {sHI}, v{20+i}")


def Kp(t):
    return vr(40 + 2*(t + 3), 2)


for t in range(8):
    A(f"v_pk_mul_f32 {vr(96+2*t,2)}, v[16:17], {Kp(t-3)}")
for t in range(8):
    A(f"v_pk_fma_f32 {vr(96+2*t,2)}, v[14:15], {Kp(t-2)}, {vr(96+2*t,2)}")
for t in range(8):
    A(f"v_pk_fma_f32 {vr(96+2*t,2)}, v[12:13], {Kp(t-1)}, {vr(96+2*t,2)}")
for t in range(8):
    A(f"v_pk_fma_f32 {vr(96+2*t,2)}, v[10:11], {Kp(t)}, {vr(96+2*t,2)}")
A("s_waitcnt lgkmcnt(0)")
for t in range(8):
    A(f"v_lshlrev_b32 v{62+2*t}, 16, v{32+t}")
    A(f"v_and_b32 v{63+2*t}, {sHI}, v{32+t}")
for t in range(8):
    A(f"v_pk_mul_f32 {vr(96+2*t,2)}, {vr(96+2*t,2)}, {vr(62+2*t,2)}")
for c in range(2):
    for i in range(4):
        A(f"v_cvt_pk_bf16_f32 v{80+4*c+i}, v{96+2*(7-2*i)+c}, v{96+2*(6-2*i)+c}")
    A(f"buffer_store_dwordx4 {vr(80+4*c,4)}, v{5+c}, {WS}, 0 offen")
A("s_waitcnt vmcnt(2)")
A("ds_read2_b64 v[88:91], v3 offset0:0 offset1:8")
A("ds_read2_b64 v[92:95], v3 offset0:2 offset1:10")
A(f"s_mul_i32 s55, {sX}, 5")
A(f"s_add_u32 s55, s55, {sW}")
A("s_lshl_b32 s55, s55, 5")
A(f"s_add_u32 s55, s55, {sJ}")
A("s_lshl_b32 s58, s55, 3")
A(f"v_mov_b32 v10, {sTAG}")
A(f"v_mov_b32 v11, {sXCC}")
A("v_mov_b32 v12, s58")
A("s_waitcnt lgkmcnt(1)")
A(f"buffer_store_dwordx4 v[88:91], v7, {WS}, 0 offen")
A("s_waitcnt lgkmcnt(0)")
A(f"buffer_store_dwordx4 v[92:95], v8, {WS}, 0 offen")
A(f"s_mov_b32 s55, {FLAGL}")
A(f"s_mov_b32 s57, {FLAGG}")
stamp(3)
A("s_waitcnt vmcnt(0)")
A("s_mov_b64 exec, 1")
A(f"buffer_store_dwordx2 v[10:11], v12, {WS}, s55 offen")
A(f"buffer_store_dwordx2 v[10:11], v12, {WS}, s57 offen sc1")
A("s_mov_b64 exec, -1")
stamp(4)

A(f"s_lshr_b32 s55, {sJ}, 2")
A(f"s_cmp_lt_u32 {sJ}, 20")
A(f"s_cselect_b32 s55, s55, {sW}")
A(f"s_mul_i32 s57, {sX}, 5")
A("s_add_u32 s55, s55, s57")
A("s_lshl_b32 s55, s55, 8")
A("v_and_b32 v1, 31, v0")
A("v_lshl_add_u32 v1, v1, 3, s55")
A(f"s_mov_b32 s55, {FLAGL}")
A("s_mov_b32 s59, 0")
A("L_poll:")
A(f"buffer_load_dwordx2 v[2:3], v1, {WS}, s55 offen sc1")
A("s_add_u32 s59, s59, 1")
A("s_waitcnt vmcnt(0)")
A("v_cmp_eq_u64 vcc, s[6:7], v[2:3]")
A("s_cmp_eq_u64 vcc, -1")
A("s_cbranch_scc1 L_synced")
A("s_and_b32 s57, s59, 15")
A("s_cmp_lg_u32 s57, 0")
A("s_cbranch_scc1 L_poll")
A("s_branch L_slowsync")
A("L_synced:")
stamp(5)
A(f"s_cmp_ge_u32 {sJ}, 20")
A("s_cbranch_scc1 L_nonconv")
A(f"s_cmp_eq_u32 {sW}, 4")
A("s_cbranch_scc1 L_mfma")

A(f"s_mul_i32 s53, {sX}, 20")
A(f"s_add_u32 s53, s53, {sJ}")
A("s_lshl_b32 s54, s53, 2")
A(f"s_add_u32 s54, s54, {sW}")
A("s_lshl_b32 s54, s54, 12")
A(f"s_add_u32 s54, s54, {KVT}")
A("v_lshl_add_u32 v1, v0, 4, s54")
A("v_subrev_u32 v2, 16, v1")
A("v_cmp_eq_u32 vcc, 0, v0")
A("v_mov_b32 v3, 0x7ffffff0")
A("v_cndmask_b32 v2, v2, v3, vcc")
for i in range(4):
    A(f"buffer_load_dwordx4 {vr(16+4*i,4)}, v1, {WS}, 0 offen offset:{1024*i} sc1")
    if i == 0:
        A(f"buffer_load_dword v32, v2, {WS}, 0 offen sc1")
    else:
        A(f"buffer_load_dword v{32+i}, v1, {WS}, 0 offen offset:{1024*i-16} sc1")
A("v_bfe_u32 v4, v0, 1, 3")
A("v_lshrrev_b32 v5, 4, v0")
A("v_lshl_add_u32 v4, v4, 2, v5")
A("v_and_b32 v5, 1, v0")
A("v_lshlrev_b32 v6, 6, v4")
A("v_lshl_add_u32 v6, v5, 5, v6")
A(f"s_lshl_b32 s55, {sW}, 11")
A("v_add_u32 v6, s55, v6")
A("s_lshl_b32 s55, s53, 14")
A(f"s_add_u32 s55, s55, {XB}")
A("s_add_u32 s56, s55, 8192")
A(f"s_mov_b32 s57, {STATS}")
A(f"s_mov_b32 s60, {STATS+8192}")
XR, SR = (40, 56), (48, 8)
A(f"buffer_load_dwordx4 v[40:43], v6, {WS}, s55 offen sc1")
A(f"buffer_load_dwordx4 v[44:47], v6, {WS}, s55 offen offset:16 sc1")
A(f"buffer_load_dwordx4 v[48:51], v6, {WS}, s57 offen sc1")
A(f"buffer_load_dwordx4 v[52:55], v6, {WS}, s57 offen offset:16 sc1")
A(f"buffer_load_dwordx4 v[56:59], v6, {WS}, s56 offen sc1")
A(f"buffer_load_dwordx4 v[60:63], v6, {WS}, s56 offen offset:16 sc1")
A(f"buffer_load_dwordx4 v[8:11], v6, {WS}, s60 offen sc1")
A(f"buffer_load_dwordx4 v[12:15], v6, {WS}, s60 offen offset:16 sc1")
A("s_lshl_b32 s61, s53, 3")
A(f"s_load_dwordx2 s[62:63], {sp(pD)}, s61")
A(f"s_mul_i32 s55, {sW}, {U_C}")
A(f"s_add_u32 s55, s55, {LU + 28*16}")
A("v_lshl_add_u32 v7, v0, 4, s55")
for i in range(4):
    A(f"s_waitcnt vmcnt({8 + 2*(3-i)})")
    b = 16 + 4*i
    A(f"ds_write_b128 v7, {vr(b,4)} offset:{U_P + 1024*i}")
    A(f"v_alignbyte_b32 v36, v{b+1}, v{b}, 2")
    A(f"v_alignbyte_b32 v37, v{b+2}, v{b+1}, 2")
    A(f"v_alignbyte_b32 v38, v{b+3}, v{b+2}, 2")
    A(f"v_alignbyte_b32 v39, v{32+i}, v{b+3}, 2")
    A(f"ds_write_b128 v7, v[36:39] offset:{1024*i}")
stamp(6)
A("s_waitcnt lgkmcnt(0)")
A("s_barrier")
srd(40, pOUT, TBYTES)
A("s_lshl_b32 s44, s62, 16")
A(f"s_and_b32 s45, s62, {sHI}")
A("s_lshl_b32 s46, s63, 16")
A(f"s_and_b32 s47, s63, {sHI}")
A(f"v_mul_u32_u24 v1, {U_P}, v5")
A("v_lshl_add_u32 v1, v4, 4, v1")
A(f"s_lshl_b32 s55, {sW}, 9")
A(f"s_add_u32 s55, s55, {LU + 28*16}")
A("v_add_u32 v1, s55, v1")
A(f"s_lshl_b32 s55, {sW}, 12")
A(f"s_add_u32 s55, s55, {LY}")
A("v_lshl_add_u32 v2, v0, 4, s55")
A("v_lshl_add_u32 v3, v4, 3, v5")
A("v_mul_u32_u24 v3, 1280, v3")
A(f"s_mul_i32 s55, {sW}, {256*1280}")
A("s_add_u32 s55, s55, s61")
A("v_add_u32 v3, s55, v3")
A(f"v_mov_b32 v4, {LF}")
A("s_mov_b32 s48, 0")
A("s_mov_b32 s49, 5120")
A(f"s_mov_b32 s50, {1024*1280}")
A(f"s_mov_b32 s51, {1024*1280 + 5120}")
XN, CC = (64, 96), (80, 112)


def precompute(task):
    xr, sr, xn, cc = XR[task], SR[task], XN[task], CC[task]
    for c in range(4):
        A(f"ds_read_b128 {vr(16+4*c,4)}, v1 offset:{c*U_C + task*2048}")
    A(f"s_waitcnt vmcnt({4 if task == 0 else 4})")
    A(f"L_st{task}:")
    A(f"v_xor_b32 v32, {sTAG}, v{sr+1}")
    A(f"v_xor_b32 v33, {sTAG}, v{sr+3}")
    A(f"v_xor_b32 v34, {sTAG}, v{sr+5}")
    A(f"v_xor_b32 v35, {sTAG}, v{sr+7}")
    A("v_or3_b32 v32, v32, v33, v34")
    A("v_or_b32 v32, v32, v35")
    A("v_cmp_ne_u32 vcc, 0, v32")
    A(f"s_cbranch_vccz L_stok{task}")
    so = "s57" if task == 0 else "s60"
    A(f"buffer_load_dwordx4 {vr(sr,4)}, v6, {WS}, {so} offen sc1")
    A(f"buffer_load_dwordx4 {vr(sr+4,4)}, v6, {WS}, {so} offen offset:16 sc1")
    A("s_add_u32 s59, s59, 1")
    A(f"s_cmp_lt_u32 s59, {POLL_LIMIT}")
    A("s_waitcnt vmcnt(0)")
    A(f"s_cbranch_scc1 L_st{task}")
    A(f"L_stok{task}:")
    A("s_waitcnt lgkmcnt(0)")
    for t in range(4):
        st = sr + 2*t
        A(f"v_and_b32 v{st+1}, {sHI}, v{st}")
        A(f"v_lshlrev_b32 v{st}, 16, v{st}")
        A(f"v_rcp_f32 v{st+1}, v{st+1}")
        for h in range(2):
            x = xr + 2*t + h
            o = cc + 4*t + 2*h
            A(f"v_lshlrev_b32 v{o}, 16, v{x}")
            A(f"v_and_b32 v{o+1}, {sHI}, v{x}")
        for h in range(2):
            o = cc + 4*t + 2*h
            n = xn + 4*t + 2*h
            A(f"v_pk_add_f32 {vr(n,2)}, {vr(o,2)}, {vr(st,2)} op_sel_hi:[1,0] neg_lo:[0,1] neg_hi:[0,1]")
        for h in range(2):
            n = xn + 4*t + 2*h
            A(f"v_cvt_pk_bf16_f32 v{32+h}, v{n}, v{n+1}")
        for h in range(2):
            n = xn + 4*t + 2*h
            A(f"v_lshlrev_b32 v{n}, 16, v{32+h}")
            A(f"v_and_b32 v{n+1}, {sHI}, v{32+h}")
        for h in range(2):
            n = xn + 4*t + 2*h
            A(f"v_mul_f32 v{n}, v{n}, v{st+1}")
            A(f"v_mul_f32 v{n+1}, v{n+1}, v{st+1}")
        for h in range(2):
            n = xn + 4*t + 2*h
            A(f"v_cvt_pk_bf16_f32 v{32+h}, v{n}, v{n+1}")
        for c in range(4):
            A(f"v_lshlrev_b32 v{36+c}, 16, v{16+4*c+3-t}")
        for h in range(2):
            n = xn + 4*t + 2*h
            A(f"v_lshlrev_b32 v{n}, 16, v{32+h}")
            A(f"v_and_b32 v{n+1}, {sHI}, v{32+h}")
        for h in range(2):
            A(f"v_pk_fma_f32 {vr(36+2*h,2)}, {vr(36+2*h,2)}, s[{44+2*h}:{45+2*h}], 1.0 op_sel_hi:[1,1,0]")
        for h in range(2):
            o = cc + 4*t + 2*h
            n = xn + 4*t + 2*h
            A(f"v_pk_fma_f32 {vr(o,2)}, {vr(n,2)}, {vr(36+2*h,2)}, {vr(o,2)}")


def finalize(task):
    xn, cc = XN[task], CC[task]
    if task == 1:
        A(f"s_lshr_b32 s55, {sW}, 1")
        A("s_lshl_b32 s55, s55, 4")
        A(f"s_add_u32 s55, s55, {LF + 16}")
        A("v_mov_b32 v4, s55")
    A("s_mov_b32 s59, 0")
    A(f"L_yw{task}:")
    A("ds_read_b128 v[32:35], v4")
    A("s_add_u32 s59, s59, 1")
    A("s_waitcnt lgkmcnt(0)")
    A("v_and_b32 v32, v32, v33")
    A("v_and_b32 v34, v34, v35")
    A("v_and_b32 v32, v32, v34")
    A("v_cmp_ne_u32 vcc, 0, v32")
    A(f"s_cbranch_vccnz L_yok{task}")
    A("s_sleep 1")
    A(f"s_cmp_lt_u32 s59, {POLL_LIMIT}")
    A(f"s_cbranch_scc1 L_yw{task}")
    A(f"L_yok{task}:")
    for c in range(4):
        A(f"ds_read_b128 {vr(16+4*c,4)}, v2 offset:{c*1024 + task*16384}")
    for c in range(4):
        A(f"s_waitcnt lgkmcnt({3-c})")
        for t in range(4):
            A(f"v_fmac_f32 v{cc+4*t+c}, v{xn+4*t+c}, v{16+4*c+t}")
    for t in range(4):
        A(f"v_cvt_pk_bf16_f32 v{32+2*t}, v{cc+4*t}, v{cc+4*t+1}")
        A(f"v_cvt_pk_bf16_f32 v{33+2*t}, v{cc+4*t+2}, v{cc+4*t+3}")
        A(f"buffer_store_dwordx2 {vr(32+2*t,2)}, v3, s[40:43], s{48 + 2*task + (t>>1)} offen offset:{2560*(t&1)}")


def top2(lbl, t0):
    A(f"v_lshlrev_b32 v{t0+16}, 4, v0")
    A(f"s_mov_b32 s55, {CAND}")
    A("s_mov_b32 s59, 0")
    A(f"{lbl}:")
    for i in range(4):
        A(f"buffer_load_dwordx4 {vr(t0+4*i,4)}, v{t0+16}, {WS}, s55 offen offset:{1024*i} sc1")
    A("s_add_u32 s59, s59, 1")
    A("s_waitcnt vmcnt(0)")
    for i in range(8):
        A(f"v_xor_b32 v{t0+2*i+1}, {sTAG}, v{t0+2*i+1}")
    A(f"v_or3_b32 v{t0+1}, v{t0+1}, v{t0+3}, v{t0+5}")
    A(f"v_or3_b32 v{t0+7}, v{t0+7}, v{t0+9}, v{t0+11}")
    A(f"v_or3_b32 v{t0+1}, v{t0+1}, v{t0+13}, v{t0+15}")
    A(f"v_or_b32 v{t0+1}, v{t0+1}, v{t0+7}")
    A(f"v_cmp_ne_u32 vcc, 0, v{t0+1}")
    A(f"s_cbranch_vccz {lbl}_ok")
    A(f"s_cmp_lt_u32 s59, {POLL_LIMIT}")
    A(f"s_cbranch_scc1 {lbl}")
    A(f"{lbl}_ok:")

    def merge(a, b, tmp):
        A(f"v_min_u32 v{tmp}, v{a}, v{b}")
        A(f"v_max_u32 v{a}, v{a}, v{b}")
        A(f"v_max3_u32 v{a+2}, v{a+2}, v{b+2}, v{tmp}")
    merge(t0, t0+4, t0+1)
    merge(t0+8, t0+12, t0+3)
    merge(t0, t0+8, t0+1)
    for r in (1, 2, 4, 8):
        d = f"row_ror:{r} row_mask:0xf bank_mask:0xf"
        A(f"v_min_u32_dpp v{t0+1}, v{t0}, v{t0} {d}")
        A(f"v_max_u32_dpp v{t0+3}, v{t0+2}, v{t0+2} {d}")
        A(f"v_max_u32_dpp v{t0}, v{t0}, v{t0} {d}")
        A(f"v_max_u32 v{t0+2}, v{t0+1}, v{t0+3}")
    A(f"v_readlane_b32 s54, v{t0}, 0")
    A(f"v_readlane_b32 s55, v{t0+2}, 0")
    for row in (16, 32, 48):
        A(f"v_readlane_b32 s56, v{t0}, {row}")
        A(f"v_readlane_b32 s59, v{t0+2}, {row}")
        A("s_max_u32 s55, s55, s59")
        A("s_min_u32 s59, s54, s56")
        A("s_max_u32 s54, s54, s56")
        A("s_max_u32 s55, s55, s59")


precompute(0)
stamp(7)
finalize(0)
stamp(8)
precompute(1)
top2("L_cand_c", 16)
A("s_andn2_b32 s62, 0x7ff, s54")
A("s_andn2_b32 s63, 0x7ff, s55")
PR = ((40, 44, 48, 52), (56, 60, 8, 12))
A("v_mul_u32_u24 v7, 10240, v0")
A("s_lshl_b32 s55, s53, 5")
A(f"s_add_u32 s55, s55, {PART}")
A("v_add_u32 v7, s55, v7")
A("s_mov_b32 s44, 0")
A("s_mov_b32 s45, 5120")
A(f"s_mov_b32 s46, {64*10240}")
A(f"s_mov_b32 s47, {64*10240 + 5120}")


def part_loads(k):
    r = PR[k]
    A(f"buffer_load_dwordx4 {vr(r[0],4)}, v7, {WS}, s{44+k} offen sc1")
    A(f"buffer_load_dwordx4 {vr(r[1],4)}, v7, {WS}, s{44+k} offen offset:16 sc1")
    A(f"s_mov_b64 exec, {(1 << (NMOE-64)) - 1:#x}")
    A(f"buffer_load_dwordx4 {vr(r[2],4)}, v7, {WS}, s{46+k} offen sc1")
    A(f"buffer_load_dwordx4 {vr(r[3],4)}, v7, {WS}, s{46+k} offen offset:16 sc1")
    A("s_mov_b64 exec, -1")


for k in range(2):
    A(f"s_bfe_u32 s55, s{62+k}, 0x20008")
    A(f"s_cmp_lg_u32 s55, {sW}")
    A(f"s_cbranch_scc1 L_np{k}")
    for r in PR[k][2:]:
        A(f"v_mov_b32 v{r}, 0")
        A(f"v_mov_b32 v{r+1}, {sTAG}")
        A(f"v_mov_b32 v{r+2}, 0")
        A(f"v_mov_b32 v{r+3}, {sTAG}")
    part_loads(k)
    A(f"L_np{k}:")
stamp(9)
finalize(1)
stamp(10)
for k in range(2):
    r = PR[k]
    A(f"s_bfe_u32 s55, s{62+k}, 0x20008")
    A(f"s_cmp_lg_u32 s55, {sW}")
    A(f"s_cbranch_scc1 L_nf{k}")
    A("s_mov_b32 s59, 0")
    A("s_waitcnt vmcnt(4)" if k == 0 else "s_waitcnt vmcnt(4)")
    A(f"L_pp{k}:")
    for q in range(4):
        A(f"v_xor_b32 v{16+2*q}, {sTAG}, v{r[q]+1}")
        A(f"v_xor_b32 v{17+2*q}, {sTAG}, v{r[q]+3}")
    A("v_or3_b32 v16, v16, v17, v18")
    A("v_or3_b32 v19, v19, v20, v21")
    A("v_or3_b32 v16, v16, v22, v23")
    A("v_or_b32 v16, v16, v19")
    A("v_cmp_ne_u32 vcc, 0, v16")
    A(f"s_cbranch_vccz L_ppok{k}")
    part_loads(k)
    A("s_add_u32 s59, s59, 1")
    A(f"s_cmp_lt_u32 s59, {POLL_LIMIT}")
    A("s_waitcnt vmcnt(0)")
    A(f"s_cbranch_scc1 L_pp{k}")
    A(f"L_ppok{k}:")
    A(f"v_add_f32 v16, v{r[0]}, v{r[2]}")
    A(f"v_add_f32 v17, v{r[0]+2}, v{r[2]+2}")
    A(f"v_add_f32 v18, v{r[1]}, v{r[3]}")
    A(f"v_add_f32 v19, v{r[1]+2}, v{r[3]+2}")
    for d in ("row_shr:1 row_mask:0xf", "row_shr:2 row_mask:0xf", "row_shr:4 row_mask:0xf", "row_shr:8 row_mask:0xf",
              "row_bcast:15 row_mask:0xa", "row_bcast:31 row_mask:0xc"):
        for c in range(4):
            A(f"v_add_f32_dpp v{16+c}, v{16+c}, v{16+c} {d} bank_mask:0xf")
    for c in range(4):
        A(f"v_readlane_b32 s{48+c if False else 96+c}, v{16+c}, 63")
    A(f"s_lshr_b32 s55, s{62+k}, 10")
    A(f"s_bfe_u32 s56, s{62+k}, 0x20001")
    A("s_lshl2_add_u32 s55, s55, s56")
    for sel in range(8):
        cc = CC[sel >> 2] + 4*(sel & 3)
        if sel < 7:
            A(f"s_cmp_lg_u32 s55, {sel}")
            A(f"s_cbranch_scc1 L_sel{k}_{sel}")
        for c in range(4):
            A(f"v_add_f32 v{16+c}, s{96+c}, v{cc+c}")
        if sel < 7:
            A(f"s_branch L_seld{k}")
            A(f"L_sel{k}_{sel}:")
    A(f"L_seld{k}:")
    A("v_cvt_pk_bf16_f32 v16, v16, v17")
    A("v_cvt_pk_bf16_f32 v17, v18, v19")
    A(f"s_bfe_u32 s55, s{62+k}, 0x30005")
    A("s_lshl_b32 s55, s55, 1")
    A(f"s_and_b32 s56, s{62+k}, 1")
    A("s_add_u32 s55, s55, s56")
    A(f"s_bfe_u32 s56, s{62+k}, 0x20003")
    A("s_lshl_b32 s56, s56, 4")
    A("s_add_u32 s55, s55, s56")
    A(f"s_mul_i32 s56, s{62+k}, 1280")
    A("s_add_u32 s56, s56, s61")
    A("v_mov_b32 v18, s56")
    A("s_lshl_b64 exec, 1, s55")
    A("buffer_store_dwordx2 v[16:17], v18, s[40:43], 0 offen")
    A("s_mov_b64 exec, -1")
    A(f"L_nf{k}:")
stamp(11)
A("s_branch L_fin")

A("L_slowsync:")
A(f"s_mov_b32 s57, {FLAGG}")
A(f"buffer_load_dwordx2 v[2:3], v1, {WS}, s57 offen sc1")
A("s_waitcnt vmcnt(0)")
A(f"v_cmp_eq_u32 vcc, {sTAG}, v2")
A("s_cmp_eq_u64 vcc, -1")
A("s_cbranch_scc1 L_allg")
A(f"s_cmp_lt_u32 s59, {POLL_LIMIT}")
A("s_cbranch_scc1 L_poll")
A("s_branch L_synced")
A("L_allg:")
A(f"v_cmp_eq_u32 vcc, {sXCC}, v3")
A("s_cmp_eq_u64 vcc, -1")
A("s_cbranch_scc1 L_synced")
A("buffer_wbl2 sc1")
A("s_waitcnt vmcnt(0)")
A(f"s_mov_b32 s57, {FLAGB}")
A("s_mov_b64 exec, 1")
A(f"buffer_store_dwordx2 v[10:11], v12, {WS}, s57 offen sc1")
A("s_mov_b64 exec, -1")
A(f"s_cmp_ge_u32 {sJ}, 20")
A("s_cbranch_scc1 L_synced")
A("s_mov_b32 s59, 0")
A("L_pollb:")
A(f"buffer_load_dwordx2 v[2:3], v1, {WS}, s57 offen sc1")
A("s_add_u32 s59, s59, 1")
A("s_waitcnt vmcnt(0)")
A(f"v_cmp_eq_u32 vcc, {sTAG}, v2")
A("s_cmp_eq_u64 vcc, -1")
A("s_cbranch_scc1 L_bok")
A("s_sleep 2")
A(f"s_cmp_lt_u32 s59, {POLL_LIMIT}")
A("s_cbranch_scc1 L_pollb")
A("L_bok:")
A("buffer_inv sc1")
A("s_waitcnt vmcnt(0)")
A("s_branch L_synced")

A("L_notkv:")
A(f"s_cmp_eq_u32 {sW}, 7")
A("s_cbranch_scc1 L_ln")
if OPT["codewarm"]:
    A("s_getpc_b64 s[54:55]")
    A("L_pc:")
    A(f"s_sub_u32 s54, s54, L_pc-{NAME}_kernel")
    A("s_subb_u32 s55, s55, 0")
    A(f"s_sub_u32 s56, {sW}, 5")
    A("s_lshl_b32 s56, s56, 13")
    A("v_lshl_add_u32 v1, v0, 7, s56")
    A(f"v_min_u32 v1, L_codeend-{NAME}_kernel-4, v1")
    A("global_load_dword v95, v1, s[54:55]")
A(f"s_sub_u32 s56, {sW}, 5")
A("s_lshl_b32 s57, s56, 6")
A("v_add_u32 v2, s57, v0")
A(f"s_mul_i32 s53, {sX}, 80")
A("s_lshl_b32 s53, s53, 12")
A(f"s_lshl_b32 s57, {sJ}, 7")
A("s_add_u32 s54, s53, s57")
A(f"s_add_u32 s54, s54, {KVT}")
A("v_lshl_add_u32 v3, v2, 12, s54")
A(f"s_mul_i32 s57, {sX}, 1280")
A(f"s_add_u32 s57, s57, {FLAGL - 80*128}")
A("v_min_u32 v4, 89, v2")
A("v_lshl_add_u32 v4, v4, 7, s57")
A("v_cmp_gt_u32 vcc, 80, v2")
A("v_cndmask_b32 v3, v4, v3, vcc")
A("v_min_u32 v2, 79, v2")
A("v_lshrrev_b32 v4, 2, v2")
A("v_and_b32 v2, 3, v2")
A("v_lshlrev_b32 v4, 14, v4")
A("v_lshl_add_u32 v4, v2, 7, v4")
A(f"s_lshl_b32 s57, {sJ}, 9")
A("s_add_u32 s54, s53, s57")
A(f"s_add_u32 s54, s54, {XB}")
A("v_add_u32 v4, s54, v4")
A("v_lshlrev_b32 v5, 4, v0")
after_kernarg()
if OPT["pretouch"]:
    A(f"buffer_load_dword v95, v3, {WS}, 0 offen sc1")
A(f"s_cmp_ge_u32 {sJ}, 20")
A("s_cbranch_scc1 L_wload")
srd(40, pH, TBYTES)
A(f"s_mul_i32 s53, {sX}, 20")
A(f"s_add_u32 s53, s53, {sJ}")
A("s_lshl_b32 s53, s53, 14")
A(f"s_cmp_eq_u32 {sW}, 6")
A("s_cbranch_scc1 L_zero")
A("v_lshrrev_b32 v6, 4, v0")
A("v_bfe_u32 v7, v0, 2, 2")
A("v_and_b32 v8, 3, v0")
A("v_lshl_add_u32 v9, v8, 2, v7")
A("v_lshl_add_u32 v10, v6, 12, s53")
A("v_mov_b32 v12, 0x7ffffff0")
for i in range(4):
    A(f"v_subrev_u32 v11, {15-i}, v9")
    A("v_cmp_gt_i32 vcc, 0, v11")
    A("v_lshl_add_u32 v11, v11, 2, v10")
    A("v_cndmask_b32 v11, v11, v12, vcc")
    A(f"buffer_load_dword v{16+i}, v11, s[40:43], 0 offen")
A(f"v_mul_u32_u24 v6, {A_C}, v6")
A(f"v_mul_u32_u24 v7, {A_CP}, v7")
A("v_add_u32 v6, v6, v7")
A("v_lshl_add_u32 v6, v8, 4, v6")
A("s_branch L_hdma")
A("L_zero:")
A("v_mov_b32 v16, 0")
A("v_mov_b32 v17, 0")
A("v_mov_b32 v18, 0")
A("v_mov_b32 v19, 0")
A("v_lshrrev_b32 v6, 5, v0")
A(f"v_mul_u32_u24 v6, {U_P}, v6")
A("v_and_b32 v7, 31, v0")
A("v_min_u32 v7, 27, v7")
A("v_lshl_add_u32 v6, v7, 4, v6")
A(f"v_add_u32 v6, {LU}, v6")
for c in range(3):
    A(f"ds_write_b128 v6, v[16:19] offset:{c*U_C}")
A(f"v_mov_b32 v7, {LF}")
for p in range(3):
    A(f"ds_write_b128 v7, v[16:19] offset:{16*p}")
A(f"v_add_u32 v6, {3*U_C}, v6")
A("L_hdma:")
make_tag_and_b0()
A("s_lshl_b32 s57, s56, 13")
A("s_add_u32 s53, s53, s57")
A(f"s_mul_i32 s54, s56, {2*A_C}")
for c in range(2):
    for cc in range(4):
        A(f"s_add_u32 m0, s54, {LA + c*A_C + cc*A_CP + 64}")
        A(f"s_add_u32 s55, s53, {c*4096 + 4*(cc+1)}")
        for i in range(4):
            A(f"buffer_load_dwordx4 v5, s[40:43], s55 offen offset:{1024*i} lds")
nx = 0
if OPT["xtouch"]:
    A(f"buffer_load_dword v95, v4, {WS}, 0 offen sc1")
    nx = 1
stamp(1)
A(f"s_waitcnt vmcnt({32+nx})")
A("ds_write_b128 v6, v[16:19]")
A(f"s_waitcnt vmcnt({nx})")
stamp(2)
A("s_branch L_mfma")

A("L_wload:")
A(f"s_cmp_ge_u32 {sJ}, 29")
A("s_cbranch_scc1 L_idle56")
A(f"s_mul_i32 s53, {sX}, 9")
A(f"s_add_u32 s53, s53, {sJ}")
A("s_sub_u32 s53, s53, 20")
A(f"s_cmp_eq_u32 {sW}, 5")
A(f"s_cselect_b32 s40, s{pWG}, s{pWU}")
A(f"s_cselect_b32 s41, s{pWG+1}, s{pWU+1}")
A(f"s_mov_b32 s42, {WBYTES}")
A("s_mov_b32 s43, 0x20000")
srd(44, pWD, WBYTES)
for i in range(3):
    A(f"v_add_u32 v6, {64*i}, v0")
    A("v_mul_u32_u24 v7, 171, v6")
    A("v_lshrrev_b32 v7, 9, v7")
    A("v_mul_u32_u24 v8, 3, v7")
    A("v_sub_u32 v6, v6, v8")
    A("v_mul_u32_u24 v7, 3456, v7")
    A(f"v_lshl_add_u32 v{10+i}, v6, 4, v7")
    if i:
        A(f"v_subrev_u32 v{10+i}, {1024*i}, v{10+i}")
A("s_mul_i32 s55, s53, 48")
A(f"s_mul_i32 s54, s56, {LWU}")


def wl_gu(g):
    A(f"s_add_u32 m0, s54, {3072*g}")
    for i in range(3):
        A(f"buffer_load_dwordx4 v{10+i}, s[40:43], s55 offen offset:{1024*i} lds")
    A(f"s_add_u32 s55, s55, {64*3456}")


for g in range(3):
    wl_gu(g)
make_tag_and_b0()
for g in range(3, 10):
    wl_gu(g)
A("s_mul_i32 s55, s53, 30720")
A("s_mul_i32 s54, s56, 15360")
A("s_add_u32 s55, s55, s54")
for g in range(4):
    A(f"s_add_u32 m0, s54, {LWD + 4096*g}")
    for i in range(4 if g < 3 else 3):
        A(f"buffer_load_dwordx4 v5, s[44:47], s55 offen offset:{1024*i} lds")
    A("s_add_u32 s55, s55, 4096")
if OPT["xtouch"]:
    A(f"buffer_load_dword v95, v4, {WS}, 0 offen sc1")
stamp(1)
A("s_branch L_moe")
A("L_idle56:")
make_tag_and_b0()
if OPT["xtouch"]:
    A(f"buffer_load_dword v95, v4, {WS}, 0 offen sc1")
A("s_branch L_fin")

A("L_ln:")
A("v_and_b32 v1, 7, v0")
A("v_bfe_u32 v2, v0, 3, 1")
A("v_lshrrev_b32 v3, 4, v0")
A("v_mul_u32_u24 v4, 1280, v1")
A("v_mul_u32_u24 v5, 640, v2")
A("v_add_u32 v4, v4, v5")
A("v_lshl_add_u32 v4, v3, 4, v4")
A("s_mul_i32 s53, s2, 10240")
A("v_add_u32 v4, s53, v4")
A("v_and_b32 v5, 15, v0")
A("v_cmp_lt_u32 vcc, 1, v5")
A("v_mov_b32 v6, 640")
A("v_cndmask_b32 v6, 0, v6, vcc")
A("v_lshl_add_u32 v6, v3, 4, v6")
A("s_mov_b32 s53, 0x3f803f80")
for i in range(44):
    A(f"v_mov_b32 v{56+i}, s53")
after_kernarg()
for s in range(10):
    A(f"global_load_dwordx4 {vr(16+4*s,4)}, v4, {sp(pQ)} offset:{64*s}")
A("s_mov_b32 exec_lo, 0xfffefffe")
A("s_mov_b32 exec_hi, 0xfffefffe")
for s in range(10):
    A(f"global_load_dwordx4 {vr(56+4*s,4)}, v6, {sp(pWR)} offset:{64*s}")
A("s_mov_b64 exec, -1")
stamp(1)
A("v_lshrrev_b32 v7, 2, v5")
A("v_lshl_add_u32 v7, v7, 4, v5")
A("v_lshlrev_b32 v7, 2, v7")
A("v_and_b32 v8, 1, v1")
A("v_lshrrev_b32 v9, 1, v1")
A("v_lshl_add_u32 v8, v8, 2, v9")
A("s_lshl_b32 s53, s2, 6")
A(f"s_add_u32 s53, s53, {STATS}")
A("v_lshl_add_u32 v8, v8, 3, s53")
A("s_lshl_b32 s53, s2, 3")
A("s_sub_u32 s53, 2047, s53")
A("v_sub_u32 v9, s53, v1")
A("s_mov_b32 s54, 0x22222222")
A("s_mov_b32 s55, 0x22222222")
A("s_mov_b32 s56, 0x44444444")
A("s_mov_b32 s57, 0x44444444")
A("s_mov_b32 s60, 0x88888888")
A("s_mov_b32 s61, 0x88888888")
A("s_mov_b32 s62, 0xff00ff00")
A("s_mov_b32 s63, 0xff00ff00")
make_tag_and_b0()
for s in range(10):
    A(f"s_waitcnt vmcnt({19-s})")
    c = "0" if s == 0 else "v[100:103]"
    A(f"v_mfma_f32_16x16x32_bf16 v[100:103], {vr(16+4*s,4)}, {vr(16+4*s,4)}, {c}")
stamp(2)
for s in range(10):
    A(f"s_waitcnt vmcnt({9-s})")
    c = "0" if s == 0 else "v[104:107]"
    A(f"v_mfma_f32_16x16x32_bf16 v[104:107], {vr(56+4*s,4)}, {vr(16+4*s,4)}, {c}")
    c = "0" if s == 0 else "v[108:111]"
    A(f"v_mfma_f32_16x16x32_bf16 v[108:111], {vr(56+4*s,4)}, v[96:99], {c}")
    if s == 4:
        A("v_cndmask_b32 v100, v100, v101, s[54:55]")
        A("v_cndmask_b32 v100, v100, v102, s[56:57]")
        A("v_cndmask_b32 v100, v100, v103, s[60:61]")
        A("ds_bpermute_b32 v100, v7, v100")
A("v_cndmask_b32 v105, v105, v106, s[62:63]")
A("v_add_f32 v109, v109, v110")
A("s_waitcnt lgkmcnt(0)")
ROR8 = "row_ror:8 row_mask:0xf bank_mask:0xf"
A(f"v_add_f32_dpp v104, v104, v104 {ROR8}")
A(f"v_add_f32_dpp v100, v100, v100 {ROR8}")
A(f"v_add_f32_dpp v105, v105, v105 {ROR8}")
A("v_mul_f32 v104, 0x3acccccd, v104")
A("v_mul_f32 v100, 0x3acccccd, v100")
A("v_fma_f32 v100, -v104, v104, v100")
A("v_max_f32 v100, 0, v100")
A("v_cvt_pk_bf16_f32 v104, v104, v100")
A(f"v_and_b32 v100, {sHI}, v104")
A("v_add_f32 v100, 0x3727c5ac, v100")
A("v_cvt_pk_bf16_f32 v100, v100, v100")
A(f"v_and_b32 v100, {sHI}, v100")
A("v_sqrt_f32 v100, v100")
A("v_lshlrev_b32 v106, 16, v104")
A("v_cvt_pk_bf16_f32 v10, v106, v100")
A(f"v_mov_b32 v11, {sTAG}")
A(f"v_and_b32 v100, {sHI}, v10")
A("v_rcp_f32 v100, v100")
A("v_fma_f32 v105, -v106, v109, v105")
A("s_mov_b64 exec, 0xff")
A(f"buffer_store_dwordx2 v[10:11], v8, {WS}, 0 offen sc1")
A("s_mov_b64 exec, -1")
A("v_mul_f32 v105, v105, v100")
A("v_cvt_pk_bf16_f32 v105, v105, v105")
A("v_ashrrev_i32 v106, 31, v105")
A("v_or_b32 v106, 0x80000000, v106")
A("v_xor_b32 v105, v105, v106")
A(f"v_and_or_b32 v12, v105, {sHI}, v9")
A("v_mov_b32 v14, 0")
for r in (1, 2, 4):
    d = f"row_ror:{r} row_mask:0xf bank_mask:0xf"
    A(f"v_min_u32_dpp v13, v12, v12 {d}")
    A(f"v_max_u32_dpp v15, v14, v14 {d}")
    A(f"v_max_u32_dpp v12, v12, v12 {d}")
    A("v_max_u32 v14, v13, v15")
A(f"v_mov_b32 v13, {sTAG}")
A(f"v_mov_b32 v15, {sTAG}")
A("s_lshl_b32 s53, s2, 4")
A(f"s_add_u32 s53, s53, {CAND}")
A("v_mov_b32 v8, s53")
A("s_mov_b64 exec, 1")
A(f"buffer_store_dwordx4 v[12:15], v8, {WS}, 0 offen sc1")
A("s_mov_b64 exec, -1")
stamp(3)
A(f"s_cmp_ge_u32 {sJ}, 20")
A("s_cbranch_scc1 L_nonconv")

A("L_mfma:")
A(f"s_sub_u32 s53, {sW}, 4")
A("v_and_b32 v6, 3, v0")
A(f"v_mul_u32_u24 v1, {A_CP}, v6")
A("v_bfe_u32 v6, v0, 2, 2")
A("v_lshrrev_b32 v7, 4, v0")
A("v_add_u32 v6, v6, v7")
A("v_lshl_add_u32 v1, v6, 4, v1")
A(f"s_mul_i32 s54, s53, {A_C}")
A("v_add_u32 v1, s54, v1")
A("v_and_b32 v6, 1, v0")
A(f"v_mul_u32_u24 v2, {U_P}, v6")
A("v_bfe_u32 v6, v0, 1, 3")
A("v_lshlrev_b32 v6, 2, v6")
A("v_sub_u32 v6, v6, v7")
A("v_lshl_add_u32 v2, v6, 4, v2")
A(f"s_mul_i32 s54, s53, {U_C}")
A(f"s_add_u32 s54, s54, {LU + 48}")
A("v_add_u32 v2, s54, v2")
A("s_lshl_b32 s54, s53, 10")
A(f"s_add_u32 s54, s54, {LY}")
A("v_lshl_add_u32 v3, v0, 4, s54")
A("s_lshl_b32 s54, s53, 2")
A(f"s_add_u32 s54, s54, {LF}")
A("v_mov_b32 v4, s54")
A("v_mov_b32 v5, 1")
A("s_setprio 2")
A("s_waitcnt lgkmcnt(0)")
A("s_barrier")
stamp(6)


def mfma_schedule():
    passes = [(0, 1, 2, 3), (4, 5), (6, 7)]
    seq = []
    for pi, tiles in enumerate(passes):
        for rho in range(8):
            for b in range(max(tiles) + 1):
                for n in tiles:
                    if n >= b:
                        a = n - b
                        ak = ("A", a, rho) if a <= 3 else ("A", a, rho, pi)
                        seq.append((pi, n, ak, ("B", b, rho, pi)))
    first, last = {}, {}
    for i, (_, _, ak, bk) in enumerate(seq):
        for k in (bk, ak):
            first.setdefault(k, i)
            last[k] = i
    loads = sorted(first, key=lambda k: (first[k], k[0] != "B"))
    free = [16 + 4*s for s in range(19)]
    reg = {}
    issued = []
    pos = {}
    done_upto = 0
    li = 0
    LOOK, SETTLE = 12, 7
    started = set()
    pend_y = []

    def issue_loads(i, maxn):
        nonlocal li
        cnt = 0
        while li < len(loads) and cnt < maxn:
            k = loads[li]
            if first[k] > i + LOOK or len(issued) - done_upto >= 14:
                break
            if len(k) == 3:
                r = f"a[{(k[2]*4 + k[1])*4}:{(k[2]*4 + k[1])*4 + 3}]"
            else:
                if not free:
                    break
                b = free.pop(0)
                reg[k] = b
                r = vr(b, 4)
            if k[0] == "A":
                A(f"ds_read_b128 {r}, v1 offset:{64*k[2] + 512*k[1]}")
            else:
                A(f"ds_read_b128 {r}, v2 offset:{512*k[1] + 64*(7-k[2])}")
            pos[k] = len(issued)
            issued.append((k, i))
            li += 1
            cnt += 1

    def rname(k):
        if len(k) == 3:
            return f"a[{(k[2]*4 + k[1])*4}:{(k[2]*4 + k[1])*4 + 3}]"
        return vr(reg[k], 4)

    def write_y(pi):
        for n in passes[pi]:
            A(f"ds_write_b128 v3, {vr(96+4*n,4)} offset:{4096*n}")
            issued.append((None, cur))
        A(f"ds_write_b32 v4, v5 offset:{16*pi}")
        issued.append((None, cur))

    cur = -1
    issue_loads(-1, 12)
    for i, (pi, n, ak, bk) in enumerate(seq):
        cur = i
        needp = max(pos[ak], pos[bk]) + 1
        if needp > done_upto:
            tgt = needp
            while tgt < len(issued) and issued[tgt][1] <= i - SETTLE:
                tgt += 1
            A(f"s_waitcnt lgkmcnt({len(issued) - tgt})")
            done_upto = tgt
        acc = vr(96 + 4*n, 4)
        c = acc if n in started else "0"
        started.add(n)
        A(f"v_mfma_f32_16x16x32_bf16 {acc}, {rname(ak)}, {rname(bk)}, {c}")
        for k in (ak, bk):
            if last[k] == i and len(k) == 4:
                free.append(reg[k])
        if i + 1 < len(seq) and seq[i+1][0] != pi:
            pend_y.append((i + 6, pi))
        if pend_y and pend_y[0][0] == i:
            if len(issued) - done_upto > 9:
                tgt = len(issued) - 9
                A("s_waitcnt lgkmcnt(9)")
                done_upto = tgt
            write_y(pend_y.pop(0)[1])
        else:
            issue_loads(i, 2)
    write_y(2)


mfma_schedule()
stamp(7)
A("s_branch L_fin")

A("L_nonconv:")
A(f"s_cmp_ge_u32 {sJ}, 29")
A("s_cbranch_scc1 L_fin")
A("L_moe:")
A(f"s_mul_i32 s53, {sX}, 9")
A(f"s_add_u32 s53, s53, {sJ}")
A("s_sub_u32 s53, s53, 20")
A("s_mov_b32 s57, 0x3f803f80")
for i in range(40):
    A(f"v_mov_b32 v{40+i}, s57")
top2("L_cand_m", 16)
stamp(6)
A("s_andn2_b32 s62, 0x7ff, s54")
A("s_andn2_b32 s63, 0x7ff, s55")
A("v_and_b32 v1, 1, v0")
A("v_lshrrev_b32 v2, 4, v0")
A("v_cmp_eq_u32 vcc, 1, v1")
A("v_mov_b32 v3, s62")
A("v_mov_b32 v4, s63")
A("v_cndmask_b32 v3, v3, v4, vcc")
A("v_mov_b32 v5, s54")
A("v_mov_b32 v4, s55")
A("v_cndmask_b32 v5, v5, v4, vcc")
A(f"s_cmp_eq_u32 {sW}, 7")
A(f"s_cselect_b32 s60, 5, {sW}")
A(f"s_cselect_b32 s61, 0, {sW}")
A("s_cmp_ge_u32 s61, 5")
A("s_cbranch_scc1 L_nox")
A("v_mul_u32_u24 v6, 1280, v3")
A("v_lshl_add_u32 v6, v2, 4, v6")
A("s_and_b32 s57, s60, 1")
A("s_mul_i32 s57, s57, 640")
A("v_add_u32 v6, s57, v6")
A("s_mov_b32 exec_lo, 0x00030003")
A("s_mov_b32 exec_hi, 0x00030003")
for s in range(10):
    A(f"global_load_dwordx4 {vr(40+4*s,4)}, v6, {sp(pQ)} offset:{64*s}")
A("s_mov_b64 exec, -1")
A("L_nox:")
A("v_lshrrev_b32 v7, 3, v3")
A("v_lshlrev_b32 v7, 3, v7")
A("v_and_b32 v8, 1, v3")
A("v_lshl_add_u32 v7, v8, 2, v7")
A("v_bfe_u32 v8, v3, 1, 2")
A("v_add_u32 v7, v7, v8")
A("v_lshlrev_b32 v7, 3, v7")
A(f"s_mov_b32 s57, {STATS}")
A(f"buffer_load_dwordx2 v[8:9], v7, {WS}, s57 offen sc1")
A(f"s_or_b32 s56, s53, {sW}")
A("s_cmp_lg_u32 s56, 0")
A("s_cbranch_scc1 L_noep")
A(f"v_mov_b32 v10, {sTAG}")
A(f"v_mov_b32 v11, {EPOCH}")
A("s_mov_b64 exec, 1")
A(f"buffer_store_dword v10, v11, {WS}, 0 offen sc1")
A("s_mov_b64 exec, -1")
A("L_noep:")
A(f"v_and_b32 v5, {sHI}, v5")
A("v_ashrrev_i32 v10, 31, v5")
A("v_not_b32 v10, v10")
A("v_or_b32 v10, 0x80000000, v10")
A("v_xor_b32 v5, v5, v10")
A(f"v_and_b32 v5, {sHI}, v5")
A("v_mul_f32 v5, 0xbfb8aa3b, v5")
A("v_exp_f32 v5, v5")
A("v_add_f32 v5, 1.0, v5")
A("v_rcp_f32 v5, v5")
A("v_bfe_u32 v10, v0, 2, 2")
A("v_and_b32 v11, 3, v0")
A("v_mul_u32_u24 v12, 6, v2")
A("v_add_u32 v12, v12, v10")
A("v_add_u32 v13, 4, v12")
A("v_min_u32 v13, 23, v13")
A("v_mul_u32_u24 v12, 1280, v12")
A("v_mul_u32_u24 v13, 1280, v13")
A(f"s_mul_i32 s57, {sW}, 160")
A(f"s_add_u32 s57, s57, {LWD}")
A("v_lshl_add_u32 v14, v11, 3, s57")
A("v_add_u32 v12, v12, v14")
A("v_add_u32 v13, v13, v14")
A("v_lshl_add_u32 v14, v2, 3, v10")
A("v_mul_u32_u24 v14, 48, v14")
A("v_lshrrev_b32 v15, 1, v11")
A(f"v_mul_u32_u24 v15, {LWU}, v15")
A("v_add_u32 v14, v14, v15")
A("v_and_b32 v15, 1, v11")
A("v_lshl_add_u32 v14, v15, 3, v14")
A("s_and_b32 s57, s60, 1")
A(f"s_mul_i32 s57, s57, {320*48}")
A("s_lshr_b32 s56, s60, 1")
A("s_lshl_b32 s59, s56, 4")
A("s_add_u32 s57, s57, s59")
A("v_add_u32 v14, s57, v14")
A("s_barrier")
stamp(7)
for t in range(5):
    A(f"ds_read_b64_tr_b16 a[{40+4*t}:{41+4*t}], v12 offset:{32*t}")
    A(f"ds_read_b64_tr_b16 a[{42+4*t}:{43+4*t}], v13 offset:{32*t}")
A("v_bfe_u32 v10, v0, 1, 3")
A("v_mul_u32_u24 v11, 6, v2")
A("v_add_u32 v11, v11, v10")
A("v_min_u32 v11, 23, v11")
A("v_lshlrev_b32 v11, 2, v11")
A("v_mul_u32_u24 v16, 192, v1")
A(f"v_add_u32 v17, {LRED + 384}, v11")
A(f"v_add3_u32 v16, v16, v11, v11")
A("v_sub_u32 v16, v16, v11")
A(f"v_add_u32 v16, {LRED}, v16")
A("v_and_b32 v18, 1, v10")
A("v_mov_b32 v19, 0xffff")
A(f"v_mov_b32 v20, {sHI}")
A("v_cmp_eq_u32 vcc, 1, v18")
A("v_cndmask_b32 v18, v19, v20, vcc")
A("v_lshrrev_b32 v10, 1, v10")
for i in range(3):
    A(f"v_cmp_eq_u32 vcc, {i}, v10")
    A(f"v_cndmask_b32 v{20+i}, 0, v18, vcc")
A("s_cmp_ge_u32 s61, 5")
A("s_cbranch_scc1 L_nogu")
A("s_waitcnt lgkmcnt(0)")
for s in range(10):
    A(f"ds_read_b64_tr_b16 a[{4*s}:{4*s+1}], v14 offset:{1536*s}")
    A(f"ds_read_b64_tr_b16 a[{4*s+2}:{4*s+3}], v14 offset:{1536*s + 192}")
    if s == 6:
        A("s_waitcnt lgkmcnt(4)")
A("v_and_b32 v24, 15, v0")
A("v_mul_u32_u24 v24, 192, v24")
A("v_lshrrev_b32 v25, 1, v2")
A("v_mul_u32_u24 v25, 96, v25")
A("v_add_u32 v24, v24, v25")
A("v_and_b32 v25, 1, v2")
A("v_lshl_add_u32 v24, v25, 4, v24")
A("s_and_b32 s57, s60, 1")
A("s_mul_i32 s57, s57, 576")
A("s_lshl_b32 s59, s56, 5")
A("s_add_u32 s57, s57, s59")
A(f"s_add_u32 s57, s57, {LRED}")
A("v_add_u32 v24, s57, v24")
A("s_waitcnt vmcnt(0) lgkmcnt(0)")
stamp(8)
for s in range(10):
    c = "0" if s == 0 else "v[28:31]"
    A(f"v_mfma_f32_16x16x32_bf16 v[28:31], a[{4*s}:{4*s+3}], {vr(40+4*s,4)}, {c}")
A("s_mov_b32 exec_lo, 0x00070007")
A("s_mov_b32 exec_hi, 0x00070007")
A("ds_write_b128 v24, v[28:31]")
A("s_mov_b64 exec, -1")
A("L_nogu:")
A(f"s_mov_b32 s57, {STATS}")
A("s_mov_b32 s59, 0")
A("s_waitcnt vmcnt(0)")
A("L_mst:")
A(f"v_cmp_ne_u32 vcc, {sTAG}, v9")
A("s_cbranch_vccz L_mstok")
A(f"buffer_load_dwordx2 v[8:9], v7, {WS}, s57 offen sc1")
A("s_add_u32 s59, s59, 1")
A(f"s_cmp_lt_u32 s59, {POLL_LIMIT}")
A("s_waitcnt vmcnt(0)")
A("s_cbranch_scc1 L_mst")
A("L_mstok:")
A(f"v_and_b32 v9, {sHI}, v8")
A("v_lshlrev_b32 v8, 16, v8")
A("v_rcp_f32 v9, v9")
A("s_waitcnt lgkmcnt(0)")
A("s_barrier")
A("ds_read2_b32 v[28:29], v16 offset0:0 offset1:24")
A("ds_read2_b32 v[30:31], v16 offset0:144 offset1:168")
A("ds_read2_b32 v[32:33], v17 offset0:0 offset1:24")
A("ds_read2_b32 v[34:35], v17 offset0:144 offset1:168")
A("v_mul_u32_u24 v24, 5120, v1")
A("v_bfe_u32 v25, v0, 1, 3")
A("v_lshl_add_u32 v24, v25, 7, v24")
A("v_lshl_add_u32 v24, v2, 5, v24")
A("s_mul_i32 s57, s53, 10240")
A(f"s_mul_i32 s59, {sW}, 640")
A("s_add_u32 s57, s57, s59")
A(f"s_add_u32 s57, s57, {PART}")
A("v_add_u32 v24, s57, v24")
A("s_waitcnt lgkmcnt(2)")
A("v_pk_add_f32 v[28:29], v[28:29], v[30:31]")
A("s_waitcnt lgkmcnt(0)")
A("v_pk_add_f32 v[32:33], v[32:33], v[34:35]")
A("v_fma_f32 v28, -v8, v32, v28")
A("v_fma_f32 v29, -v8, v33, v29")
A("v_mul_f32 v28, v28, v9")
A("v_mul_f32 v29, v29, v9")
A("v_mul_f32 v30, 0xbfb8aa3b, v28")
A("v_exp_f32 v30, v30")
A("v_mul_f32 v29, v29, v28")
A("v_add_f32 v30, 1.0, v30")
A("v_rcp_f32 v30, v30")
A("v_mul_f32 v29, v29, v30")
A("v_cvt_pk_bf16_f32 v29, v29, v29")
for i in range(3):
    A(f"v_and_b32 v{32+i}, v29, v{20+i}")
A("v_mov_b32 v35, 0")
for r in (2, 4, 8):
    for i in range(3):
        A(f"v_or_b32_dpp v{32+i}, v{32+i}, v{32+i} row_ror:{r} row_mask:0xf bank_mask:0xf")
for t in range(5):
    A(f"v_mfma_f32_16x16x32_bf16 {vr(40+4*t,4)}, a[{40+4*t}:{43+4*t}], v[32:35], 0")
for t in range(1, 5):
    m = (3 << (2*t)) * 0x00010001
    A(f"s_mov_b32 s{40+2*t}, {m:#x}")
    A(f"s_mov_b32 s{41+2*t}, {m:#x}")
for i in range(4):
    A(f"v_mov_b32 v{61+2*i}, {sTAG}")
for t in range(1, 5):
    for i in range(4):
        A(f"v_cndmask_b32 v{40+i}, v{40+i}, v{40+4*t+i}, s[{40+2*t}:{41+2*t}]")
for i in range(4):
    A(f"v_mul_f32 v{60+2*i}, v{40+i}, v5")
A("s_mov_b32 exec_lo, 0x03ff03ff")
A("s_mov_b32 exec_hi, 0x03ff03ff")
A(f"buffer_store_dwordx4 v[60:63], v24, {WS}, 0 offen sc1")
A(f"buffer_store_dwordx4 v[64:67], v24, {WS}, 0 offen offset:16 sc1")
A("s_mov_b64 exec, -1")
stamp(9)

A("L_fin:")
if PROF:
    A("s_waitcnt vmcnt(0)")
    stamp(15)
    A("s_waitcnt lgkmcnt(0)")
    if OPT["diag"] >= 0:
        k = OPT["diag"]
        A(f"s_sub_u32 s53, s{64+2*k}, s64")
        A(f"s_cmp_eq_u32 s{64+2*k}, 0")
        A("s_cselect_b32 s53, 0, s53")
        A(f"s_mul_i32 s53, s53, {OPT['dmul']}")
        A("s_add_u32 s53, s53, 4000")
        A("L_diag:")
        A("s_sleep 4")
        A("s_memrealtime s[54:55]")
        A("s_waitcnt lgkmcnt(0)")
        A("s_sub_u32 s54, s54, s64")
        A("s_cmp_lt_u32 s54, s53")
        A("s_cbranch_scc1 L_diag")
    A("s_lshl_b32 s53, s2, 3")
    A(f"s_add_u32 s53, s53, {sW}")
    A("s_lshl_b32 s53, s53, 6")
    A(f"s_add_u32 s53, s53, {PROFB}")
    A("v_mov_b32 v1, s53")
    A("s_mov_b64 exec, 1")
    for k in range(16):
        A(f"v_mov_b32 v2, s{64+2*k}")
        A(f"buffer_store_dword v2, v1, {WS}, 0 offen offset:{4*k}")
A("L_end:")
A("s_endpgm")
A("L_codeend:")

hdr = open(os.path.join(os.path.dirname(os.path.abspath(__file__)), "..", "cdna_kernels", NAME + ".s.ref")).read().split("\n")
hdr = [l for l in hdr if l.startswith(";") and "@launch" not in l]
out = hdr + [f"; @launch grid=(256,1,1) block=(512,1,1) lds={LDS_BYTES}",
             '.amdgcn_target "amdgcn-amd-amdhsa--gfx950"', ".text", f".globl {NAME}_kernel", ".p2align 8",
             f".type {NAME}_kernel,@function"]
out += A.padded()
out += ['.section .rodata,"a"', ".p2align 6", f".amdhsa_kernel {NAME}_kernel",
        "  .amdhsa_next_free_vgpr 256", "  .amdhsa_next_free_sgpr 102", "  .amdhsa_accum_offset 128",
        "  .amdhsa_group_segment_fixed_size 0", "  .amdhsa_kernarg_size 112", "  .amdhsa_user_sgpr_count 2",
        "  .amdhsa_user_sgpr_kernarg_segment_ptr 1", "  .amdhsa_system_sgpr_workgroup_id_x 1",
        "  .amdhsa_float_denorm_mode_32 3", ".end_amdhsa_kernel", ""]
open(sys.argv[1], "w").write("\n".join(out))
```

```python
import sys, os
sys.path.insert(0, os.path.dirname(os.path.abspath(__file__)))
from asmlib import Asm

NAME = "parallel_sum__ssm_conv_h3__moe_arch_mod__prompt"
OPT = dict(prof=0, codewarm=1, force_fb=0, diag=-1, dmul=4, prio=2, look=16, settle=7, pace=4, polldelay=0,
           bq=1, resid=0, pace1=1, n1=6, noW=0, nopre=0, noh=0, maxn=1, ackgap=20, mp=5, noepi=0, noside=0)
for a in sys.argv[2:]:
    k, v = a.split("=")
    assert k in OPT, k
    OPT[k] = int(v)
PROF = OPT["prof"]

EPOCH, FLG, FLB, CAND, ARR, ESTAT, PART = 0, 0x1000, 0x5000, 0x9000, 0x10000, 0x18000, 0x20000
KVT, YT2, PROFB = 0x100000, 0x400000, 0x800000
WS_BYTES = 0x1000000
TBYTES = 2621440
WBYTES = 2211840
NMOE, NP1 = 54, 24
OOB = 0x7ffffff0
LA, A_C, A_CP = 0, 16640, 4160
LU, U_C, U_P = 66560, 9120, 4576
LY = 103040
LS, S_T = 103040, 15552
LF = 139776
LDS_BYTES = 140032
LWG, LWU, LWD, WD_P, LRED, LK, LX, X_P = 0, 40976, 81984, 1312, 123968, 125504, 125568, 1344
POLL_LIMIT = 1 << 16

sX, sJ, sW, sTAG, sXCC = "s3", "s4", "s5", "s6", "s7"
pQ, pK, pV, pSH, pH, pD, pWR, pWG, pWU, pWD, pOUT, pWS = 8, 10, 12, 14, 16, 18, 22, 24, 26, 28, 30, 34
WS = "s[36:39]"
sHI = "s52"
ALL = (1 << 64) - 1
A = Asm()


def sp(p):
    return f"s[{p}:{p+1}]"


def srd(reg, ptr, nbytes):
    A(f"s_mov_b32 s{reg}, s{ptr}")
    A(f"s_mov_b32 s{reg+1}, s{ptr+1}")
    A(f"s_mov_b32 s{reg+2}, {nbytes:#x}")
    A(f"s_mov_b32 s{reg+3}, 0x20000")


def stamp(k, wait=False):
    if PROF:
        A(f"s_memrealtime s[{64+2*k}:{65+2*k}]")
        if wait:
            A("s_waitcnt lgkmcnt(0)")


def vr(b, n):
    return f"v[{b}:{b+n-1}]"


def setexec(m):
    lo, hi = m & 0xffffffff, m >> 32
    if m == ALL:
        A("s_mov_b64 exec, -1")
    elif hi == 0 and lo < 0x80000000:
        A(f"s_mov_b64 exec, {lo:#x}")
    else:
        A(f"s_mov_b32 exec_lo, {lo:#x}")
        A(f"s_mov_b32 exec_hi, {hi:#x}")


def after_kernarg():
    A("s_waitcnt lgkmcnt(0)")
    A(f"s_load_dword {sTAG}, {sp(pWS)}, {EPOCH}")
    srd(36, pWS, WS_BYTES)


def make_tag():
    A("s_waitcnt lgkmcnt(0)")
    A(f"s_mul_i32 {sTAG}, {sTAG}, 0x9E3779B1")
    A(f"s_add_u32 {sTAG}, {sTAG}, 0x7F4A7C15")


def or_tree(regs):
    regs = list(regs)
    while len(regs) > 1:
        nxt = []
        i = 0
        while i < len(regs):
            if i + 2 < len(regs):
                A(f"v_or3_b32 v{regs[i]}, v{regs[i]}, v{regs[i+1]}, v{regs[i+2]}")
                nxt.append(regs[i]); i += 3
            elif i + 1 < len(regs):
                A(f"v_or_b32 v{regs[i]}, v{regs[i]}, v{regs[i+1]}")
                nxt.append(regs[i]); i += 2
            else:
                nxt.append(regs[i]); i += 1
        regs = nxt
    return regs[0]


def tag_check(lbl, tagregs, reissue, restore=None):
    A("s_mov_b32 s59, 0")
    A(f"{lbl}:")
    for r in tagregs:
        A(f"v_xor_b32 v{r}, {sTAG}, v{r}")
    r = or_tree(tagregs)
    A(f"v_cmp_ne_u32 vcc, 0, v{r}")
    A(f"s_cbranch_vccz {lbl}_ok")
    if restore:
        restore()
    reissue()
    A("s_add_u32 s59, s59, 1")
    A(f"s_cmp_lt_u32 s59, {POLL_LIMIT}")
    A("s_waitcnt vmcnt(0)")
    A(f"s_cbranch_scc1 {lbl}")
    A(f"{lbl}_ok:")


def merge_dpp(a, rs):
    for r in rs:
        d = f"row_ror:{r} row_mask:0xf bank_mask:0xf"
        A(f"v_min_u32_dpp v{a+1}, v{a}, v{a} {d}")
        A(f"v_max_u32_dpp v{a+3}, v{a+2}, v{a+2} {d}")
        A(f"v_max_u32_dpp v{a}, v{a}, v{a} {d}")
        A(f"v_max_u32 v{a+2}, v{a+1}, v{a+3}")


def cand_loads(t0, va, so, fl):
    for i in range(4):
        A(f"buffer_load_dwordx4 {vr(t0+4*i,4)}, v{va}, {WS}, {so} offen offset:{1024*i}{fl}")


def top2_merge(t0):
    def merge(a, b, tmp):
        A(f"v_min_u32 v{tmp}, v{a}, v{b}")
        A(f"v_max_u32 v{a}, v{a}, v{b}")
        A(f"v_max3_u32 v{a+2}, v{a+2}, v{b+2}, v{tmp}")
    merge(t0, t0+4, t0+1)
    merge(t0+8, t0+12, t0+3)
    merge(t0, t0+8, t0+1)
    merge_dpp(t0, (1, 2, 4, 8))
    A(f"v_readlane_b32 s54, v{t0}, 0")
    A(f"v_readlane_b32 s55, v{t0+2}, 0")
    for row in (16, 32, 48):
        A(f"v_readlane_b32 s56, v{t0}, {row}")
        A(f"v_readlane_b32 s59, v{t0+2}, {row}")
        A("s_max_u32 s55, s55, s59")
        A("s_min_u32 s59, s54, s56")
        A("s_max_u32 s54, s54, s56")
        A("s_max_u32 s55, s55, s59")


A(f"{NAME}_kernel:")
A("s_cmp_ge_u32 s2, 256")
A("s_cbranch_scc1 L_end")
A("s_load_dwordx16 s[8:23], s[0:1], 0")
A("s_load_dwordx8 s[24:31], s[0:1], 64")
A("s_load_dwordx4 s[32:35], s[0:1], 96")
A("v_lshrrev_b32 v1, 6, v0")
A("v_mov_b32 v9, v0")
A("v_and_b32 v0, 63, v0")
A(f"s_and_b32 {sX}, s2, 7")
A(f"s_lshr_b32 {sJ}, s2, 3")
A(f"v_readfirstlane_b32 {sW}, v1")
A(f"s_getreg_b32 {sXCC}, hwreg(HW_REG_XCC_ID)")
if OPT["force_fb"]:
    A(f"s_add_u32 {sXCC}, {sXCC}, {sJ}")
A(f"s_mov_b32 {sHI}, 0xffff0000")
if PROF:
    for k in range(64, 96):
        A(f"s_mov_b32 s{k}, 0")
stamp(0)
A(f"s_mul_i32 s53, {sX}, 20")
A(f"s_add_u32 s53, s53, {sJ}")
A(f"s_sub_u32 s63, {sJ}, 20")
A(f"s_sub_u32 s58, {sJ}, 8")
A(f"s_cmp_lt_u32 {sJ}, 20")
A(f"s_cselect_b32 s58, {sJ}, s58")
A(f"s_cmp_lg_u32 {sW}, 0")
A("s_cbranch_scc1 L_not7")

A("v_and_b32 v1, 7, v0")
A("v_bfe_u32 v2, v0, 3, 1")
A("v_lshrrev_b32 v3, 4, v0")
A("v_mul_u32_u24 v4, 1280, v1")
A("v_mul_u32_u24 v5, 640, v2")
A("v_add_u32 v4, v4, v5")
A("v_lshl_add_u32 v4, v3, 4, v4")
A("s_mul_i32 s55, s2, 10240")
A("v_add_u32 v4, s55, v4")
A("v_and_b32 v5, 15, v0")
A("v_cmp_lt_u32 vcc, 1, v5")
A("v_mov_b32 v6, 640")
A("v_cndmask_b32 v6, 0, v6, vcc")
A("v_lshl_add_u32 v6, v3, 4, v6")
A("s_mov_b32 s55, 0x3f803f80")
for i in range(44):
    A(f"v_mov_b32 v{56+i}, s55")
A("s_waitcnt lgkmcnt(0)")
for s in range(10):
    A(f"global_load_dwordx4 {vr(16+4*s,4)}, v4, {sp(pQ)} offset:{64*s}")
setexec(0x0006000600060006)
for s in range(10):
    A(f"global_load_dwordx4 {vr(56+4*s,4)}, v6, {sp(pWR)} offset:{64*s}")
setexec(ALL)
if OPT["bq"]:
    A("s_barrier")
after_kernarg()
stamp(1)
A("v_lshrrev_b32 v7, 2, v5")
A("v_lshl_add_u32 v7, v7, 4, v5")
A("v_lshlrev_b32 v7, 2, v7")
A("s_lshl_b32 s55, s2, 6")
A(f"s_add_u32 s55, s55, {ESTAT}")
A("v_lshl_add_u32 v122, v1, 3, s55")
A("s_lshl_b32 s56, s2, 3")
A("s_sub_u32 s56, 2047, s56")
A("v_sub_u32 v9, s56, v1")
for r, m in ((40, 0x22222222), (42, 0x44444444), (44, 0x88888888), (46, 0xff00ff00)):
    A(f"s_mov_b32 s{r}, {m:#x}")
    A(f"s_mov_b32 s{r+1}, {m:#x}")
A("s_lshl_b32 s55, s2, 4")
A(f"s_add_u32 s55, s55, {CAND}")
A("v_mov_b32 v8, s55")
for s in range(10):
    A(f"s_waitcnt vmcnt({19-s})")
    c = "0" if s == 0 else "v[100:103]"
    A(f"v_mfma_f32_16x16x32_bf16 v[100:103], {vr(16+4*s,4)}, {vr(16+4*s,4)}, {c}")
stamp(2)
for s in range(10):
    A(f"s_waitcnt vmcnt({9-s})")
    c = "0" if s == 0 else "v[104:107]"
    A(f"v_mfma_f32_16x16x32_bf16 v[104:107], {vr(56+4*s,4)}, {vr(16+4*s,4)}, {c}")
    c = "0" if s == 0 else "v[108:111]"
    A(f"v_mfma_f32_16x16x32_bf16 v[108:111], {vr(56+4*s,4)}, v[96:99], {c}")
    if s == 3:
        A("v_cndmask_b32 v100, v100, v101, s[40:41]")
        A("v_cndmask_b32 v100, v100, v102, s[42:43]")
        A("v_cndmask_b32 v100, v100, v103, s[44:45]")
        A("ds_bpermute_b32 v100, v7, v100")
stamp(9)
make_tag()
ROR8 = "row_ror:8 row_mask:0xf bank_mask:0xf"
A(f"v_add_f32_dpp v100, v100, v100 {ROR8}")
A("v_mul_f32 v100, 0x3acccccd, v100")
A(f"v_mov_b32 v121, {sTAG}")
A("v_mov_b32 v14, 0")
A(f"v_add_f32_dpp v104, v104, v104 {ROR8}")
A("v_cndmask_b32 v105, v105, v106, s[46:47]")
A("v_mul_f32 v104, 0x3acccccd, v104")
A("v_add_f32 v109, v109, v110")
A("v_fma_f32 v100, -v104, v104, v100")
A(f"v_add_f32_dpp v105, v105, v105 {ROR8}")
A("v_max_f32 v100, 0, v100")
A("v_cvt_pk_bf16_f32 v104, v104, v100")
A(f"v_and_b32 v100, {sHI}, v104")
A("v_add_f32 v100, 0x3727c5ac, v100")
A("v_cvt_pk_bf16_f32 v100, v100, v100")
A(f"v_and_b32 v100, {sHI}, v100")
A("v_sqrt_f32 v100, v100")
A("v_lshlrev_b32 v106, 16, v104")
A("v_cvt_pk_bf16_f32 v120, v106, v100")
A(f"v_and_b32 v100, {sHI}, v120")
A("v_rcp_f32 v100, v100")
A("v_fma_f32 v105, -v106, v109, v105")
A("v_mul_f32 v105, v105, v100")
A("v_cvt_pk_bf16_f32 v105, v105, v105")
A("v_ashrrev_i32 v106, 31, v105")
A("v_or_b32 v106, 0x80000000, v106")
A("v_xor_b32 v105, v105, v106")
A(f"v_and_or_b32 v12, v105, {sHI}, v9")
merge_dpp(12, (1, 2, 4))
A(f"v_mov_b32 v13, {sTAG}")
A(f"v_mov_b32 v15, {sTAG}")
setexec(1)
A(f"buffer_store_dwordx4 v[12:15], v8, {WS}, 0 offen sc1")
setexec(0xff)
A(f"buffer_store_dwordx2 v[120:121], v122, {WS}, 0 offen sc1")
setexec(ALL)
stamp(8)
A(f"s_cmp_ge_u32 {sJ}, 20")
A("s_cbranch_scc1 L_b1")
A("s_lshl_b32 s54, s53, 14")
A(f"s_add_u32 s55, s54, {KVT}")
A("v_lshl_add_u32 v2, v0, 7, s55")
A(f"s_lshl_b32 s55, {sX}, 11")
A(f"s_add_u32 s55, s55, {FLG}")
A("v_and_b32 v3, 15, v0")
A("v_lshl_add_u32 v3, v3, 7, s55")
A("s_movk_i32 s55, 8192")
if not OPT["nopre"]:
    A(f"buffer_load_dword v127, v2, {WS}, 0 offen sc1")
    A(f"buffer_load_dword v127, v2, {WS}, s55 offen sc1")
A(f"buffer_load_dword v127, v3, {WS}, 0 offen sc1")
srd(48, pH, TBYTES)
A("v_lshlrev_b32 v2, 4, v0")
for c in range(0 if OPT["noh"] else 4):
    A(f"s_mov_b32 m0, {LA + c*A_C + 3*A_CP + 48}")
    for i in range(4):
        A(f"buffer_load_dwordx4 v2, s[48:51], s54 offen offset:{1024*i} lds")
    A("s_add_u32 s54, s54, 4096")
stamp(11)
A("L_b1:")
A("s_lshl_b32 s59, s2, 7")
A(f"s_add_u32 s59, s59, {ARR}")
A(f"v_mov_b32 v10, {sTAG}")
A(f"v_mov_b32 v11, {sXCC}")
A("v_mov_b32 v12, s59")
A("s_barrier")
setexec(1)
A(f"buffer_store_dwordx2 v[10:11], v12, {WS}, 0 offen sc1")
setexec(ALL)
A("s_cmp_ge_u32 s63, 8")
A("s_cbranch_scc1 L_kvdone")
A("s_branch L_moe")

A("L_not7:")
A("s_cmp_lt_u32 s63, 8")
A("s_cbranch_scc1 L_nonp1")
A("v_subrev_u32 v9, 64, v9")
A("s_mul_i32 s60, s58, 11")
A("s_min_u32 s60, s60, 245")
A(f"s_mul_i32 s55, s60, {8*1280}")
A(f"s_mul_i32 s54, {sX}, 160")
A("s_add_u32 s55, s55, s54")
A(f"s_sub_u32 s55, s55, {8*1280}")
A(f"v_mov_b32 v7, {OOB:#x}")
for i in range(3):
    d = 1 + i
    A(f"v_add_u32 v4, {12+448*i}, v9")
    A("v_mul_u32_u24 v5, 1619, v4")
    A("v_lshrrev_b32 v5, 17, v5")
    A("v_mul_u32_u24 v6, 81, v5")
    if i == 0:
        A("v_cmp_gt_u32 vcc, 50, v4")
    A("v_sub_u32 v4, v4, v6")
    A("v_mul_u32_u24 v6, 205, v4")
    A("v_lshrrev_b32 v6, 11, v6")
    A("v_lshl_add_u32 v5, v5, 3, v6")
    A("v_mul_u32_u24 v6, 10, v6")
    A("v_sub_u32 v4, v4, v6")
    A("v_mul_u32_u24 v5, 1280, v5")
    A("v_lshl_add_u32 v5, v4, 4, v5")
    A(f"v_add_u32 v{d}, s55, v5")
    if i == 0:
        A("v_cndmask_b32 v1, v1, v7, vcc")
A("v_min_u32 v9, 439, v9")
A("v_mul_u32_u24 v7, 2979, v9")
A("v_lshrrev_b32 v7, 15, v7")
A("v_mul_u32_u24 v8, 11, v7")
A("v_sub_u32 v8, v9, v8")
A(f"s_mul_i32 s54, {sX}, 640")
A("v_lshl_add_u32 v9, v7, 4, s54")
A(f"s_lshl_b32 s56, {sW}, 10")
A(f"s_add_u32 s56, s56, {LS + 12*16 - 1024}")
after_kernarg()
srd(40, pK, TBYTES)
srd(44, pV, TBYTES)
if OPT["bq"]:
    A("s_barrier")
for i in range(3):
    if i == 2:
        A(f"s_cmp_lg_u32 {sW}, 1")
        A("s_cbranch_scc1 L_no3")
    for t, r in enumerate((40, 44)):
        A(f"s_add_u32 m0, s56, {t*S_T + 7168*i}")
        A(f"buffer_load_dwordx4 v{1+i}, s[{r}:{r+3}], 0 offen lds")
A("L_no3:")
A(f"global_load_dwordx4 v[20:23], v9, {sp(pSH)}")
A("s_lshl_b32 s62, s53, 2")
A(f"s_and_b32 s54, {sW}, 3")
A("s_add_u32 s62, s62, s54")
A("s_min_u32 s62, s62, 639")
A("s_lshl_b32 s54, s62, 1")
A("s_and_b32 s54, s54, -4")
A(f"s_load_dword s63, {sp(pD)}, s54")
stamp(1)
A("v_mul_u32_u24 v1, 1296, v8")
A("v_lshl_add_u32 v1, v7, 2, v1")
A(f"v_add_u32 v1, {LS}, v1")
A(f"s_mul_i32 s55, {sX}, {80*4096}")
A("s_lshl_b32 s57, s60, 4")
A("s_add_u32 s55, s55, s57")
A(f"s_add_u32 s55, s55, {KVT}")
A("v_lshlrev_b32 v5, 13, v7")
A("v_lshl_add_u32 v5, v8, 4, v5")
A("v_add_u32 v5, s55, v5")
A(f"s_cmp_lg_u32 {sW}, 3")
A("s_cbranch_scc1 L_nz")
for i in range(4):
    A(f"v_mov_b32 v{16+i}, 0")
A("v_lshrrev_b32 v2, 5, v0")
A(f"v_mul_u32_u24 v2, {U_P}, v2")
A("v_and_b32 v3, 31, v0")
A("v_min_u32 v3, 27, v3")
A("v_lshl_add_u32 v2, v3, 4, v2")
A(f"v_add_u32 v2, {LU}, v2")
for c in range(4):
    A(f"ds_write_b128 v2, v[16:19] offset:{c*U_C}")
A("v_lshrrev_b32 v2, 2, v0")
A(f"v_mul_u32_u24 v2, {A_CP}, v2")
A("v_and_b32 v3, 3, v0")
A("v_min_u32 v3, 2, v3")
A("v_lshl_add_u32 v2, v3, 4, v2")
A("ds_write_b128 v2, v[16:19]")
A("L_nz:")
make_tag()
A("s_waitcnt vmcnt(0)")
A("v_lshlrev_b32 v10, 16, v20")
A("v_lshlrev_b32 v11, 16, v22")
A(f"v_and_b32 v12, {sHI}, v20")
A(f"v_and_b32 v13, {sHI}, v22")
A("v_lshlrev_b32 v14, 16, v21")
A("v_lshlrev_b32 v15, 16, v23")
A(f"v_and_b32 v16, {sHI}, v21")
A(f"v_and_b32 v17, {sHI}, v23")
A("s_barrier")
stamp(2, True)


def koff(t):
    return (1296 + 160*t) if t >= 0 else 160*(8 + t)


def Kp(t):
    return vr(40 + 2*(t + 3), 2)


for i, t in enumerate(range(-3, 8)):
    A(f"ds_read_b32 v{20+i}, v1 offset:{koff(t)}")
for t in range(4):
    A(f"ds_read_b32 v{32+t}, v1 offset:{S_T + koff(t)}")
for i in range(11):
    if i in (0, 4, 8):
        A(f"s_waitcnt lgkmcnt({(11, 7, 8)[i//4]})")
    A(f"v_lshlrev_b32 v{40+2*i}, 16, v{20+i}")
    A(f"v_and_b32 v{41+2*i}, {sHI}, v{20+i}")
    if i == 7:
        for t in range(4, 8):
            A(f"ds_read_b32 v{32+t}, v1 offset:{S_T + koff(t)}")
for t in range(8):
    A(f"v_pk_mul_f32 {vr(96+2*t,2)}, v[16:17], {Kp(t-3)}")
for t in range(8):
    A(f"v_pk_fma_f32 {vr(96+2*t,2)}, v[14:15], {Kp(t-2)}, {vr(96+2*t,2)}")
for t in range(8):
    A(f"v_pk_fma_f32 {vr(96+2*t,2)}, v[12:13], {Kp(t-1)}, {vr(96+2*t,2)}")
for t in range(8):
    A(f"v_pk_fma_f32 {vr(96+2*t,2)}, v[10:11], {Kp(t)}, {vr(96+2*t,2)}")
A("s_waitcnt lgkmcnt(0)")
for t in range(8):
    A(f"v_lshlrev_b32 v{62+2*t}, 16, v{32+t}")
    A(f"v_and_b32 v{63+2*t}, {sHI}, v{32+t}")
for t in range(8):
    A(f"v_pk_mul_f32 {vr(96+2*t,2)}, {vr(96+2*t,2)}, {vr(62+2*t,2)}")
A("s_mov_b32 s55, 4096")
for c in range(2):
    for i in range(4):
        A(f"v_cvt_pk_bf16_f32 v{80+4*c+i}, v{96+2*(7-2*i)+c}, v{96+2*(6-2*i)+c}")
    A(f"buffer_store_dwordx4 {vr(80+4*c,4)}, v5, {WS}, {'s55' if c else '0'} offen")
stamp(3)
A("L_kvdone:")
A(f"s_lshl_b32 s55, {sX}, 11")
A("s_lshl_b32 s57, s58, 3")
A("s_add_u32 s57, s57, s55")
A(f"v_mov_b32 v10, {sTAG}")
A(f"v_mov_b32 v11, {sXCC}")
A("v_mov_b32 v12, s57")
A(f"v_min_u32 v1, {NP1-1}, v0")
A("v_lshl_add_u32 v1, v1, 3, s55")
A("s_lshl_b32 s54, s53, 2")
A(f"s_add_u32 s54, s54, {sW}")
A("s_lshl_b32 s54, s54, 12")
A(f"s_add_u32 s54, s54, {KVT}")
A("v_lshl_add_u32 v13, v0, 4, s54")
A("v_subrev_u32 v14, 16, v13")
A("v_cmp_eq_u32 vcc, 0, v0")
A(f"v_mov_b32 v3, {OOB:#x}")
A("v_cndmask_b32 v14, v14, v3, vcc")
A(f"s_mov_b32 s55, {FLG}")
A("s_mov_b32 s59, 0")
A(f"s_mov_b32 s60, {KVT}")
A(f"s_mov_b32 s61, {FLG}")
A("s_waitcnt vmcnt(0)")
A("s_barrier")
stamp(4, True)
A(f"s_cmp_ge_u32 {sW}, 4")
A("s_cbranch_scc1 L_hi4")
A(f"s_cmp_lg_u32 {sW}, 0")
A("s_cbranch_scc1 L_poll")
setexec(1)
A(f"buffer_store_dwordx2 v[10:11], v12, {WS}, s55 offen")
setexec(ALL)
A("L_poll:")
A(f"buffer_load_dwordx2 v[2:3], v1, {WS}, s55 offen sc1")
A("s_add_u32 s59, s59, 1")
A("s_waitcnt vmcnt(0)")
A("v_cmp_eq_u64 vcc, s[6:7], v[2:3]")
A("s_cmp_eq_u64 vcc, -1")
A("s_cbranch_scc1 L_synced")
A("s_and_b32 s57, s59, 15")
A("s_cmp_lg_u32 s57, 0")
A("s_cbranch_scc1 L_poll")
A("s_branch L_slowsync")
A("L_synced:")
stamp(5)
A(f"s_cmp_ge_u32 {sJ}, 20")
A("s_cbranch_scc1 L_final")

for i in range(4):
    A(f"buffer_load_dwordx4 {vr(16+4*i,4)}, v13, {WS}, 0 offen offset:{1024*i} sc1")
    if i == 0:
        A(f"buffer_load_dword v32, v14, {WS}, 0 offen sc1")
    else:
        A(f"buffer_load_dword v{32+i}, v13, {WS}, 0 offen offset:{1024*i-16} sc1")
A(f"s_mul_i32 s55, {sW}, {U_C}")
A(f"s_add_u32 s55, s55, {LU + 28*16}")
A("v_lshl_add_u32 v7, v0, 4, s55")
A(f"v_mov_b32 v2, {LF}")
A("v_mov_b32 v3, s61")
A("ds_write_b32 v2, v3")
for i in range(4):
    A(f"s_waitcnt vmcnt({2*(3-i)})")
    b = 16 + 4*i
    A(f"ds_write_b128 v7, {vr(b,4)} offset:{U_P + 1024*i}")
    A(f"v_alignbyte_b32 v{40+4*i}, v{b+1}, v{b}, 2")
    A(f"v_alignbyte_b32 v{41+4*i}, v{b+2}, v{b+1}, 2")
    A(f"v_alignbyte_b32 v{42+4*i}, v{b+3}, v{b+2}, 2")
    A(f"v_alignbyte_b32 v{43+4*i}, v{32+i}, v{b+3}, 2")
    A(f"ds_write_b128 v7, {vr(40+4*i,4)} offset:{1024*i}")
stamp(6)
A("s_waitcnt lgkmcnt(0)")
A("s_barrier")

A("L_final:")
if OPT["noepi"]:
    A("s_cmp_lt_u32 s58, 22")
    A("s_cbranch_scc1 L_fin")
A("s_cmp_ge_u32 s58, 22")
A("s_cbranch_scc1 L_special")
XR, SR = (48, 56), (16, 32)
XN, CC = (64, 96), (80, 112)
OCT, CPO, QOF = (1, 2), (3, 3), (5, 6)
A(f"s_mul_i32 s54, {sX}, 160")
A(f"s_lshl_b32 s55, {sW}, 6")
A("s_mul_i32 s56, s58, 6")
A("s_min_u32 s56, s56, 122")
A("v_add_u32 v8, s55, v0")
A("v_min_u32 v8, 239, v8")
A("v_mul_u32_u24 v9, 1639, v8")
A("v_lshrrev_b32 v9, 16, v9")
A("v_mul_u32_u24 v10, 40, v9")
A("v_sub_u32 v8, v8, v10")
A("v_add_u32 v1, s56, v9")
A("v_add_u32 v2, 128, v1")
A("v_lshlrev_b32 v3, 3, v8")
A("v_mul_u32_u24 v9, 10240, v1")
A("v_lshl_add_u32 v9, v8, 2, v9")
A("v_add_u32 v5, s54, v9")
A(f"v_add_u32 v6, {1024*1280}, v5")
srd(40, pQ, TBYTES)
A("s_movk_i32 s49, 5120")
A(f"s_mov_b32 s57, {ESTAT}")
A(f"s_mov_b32 s58, {CAND}")
A("v_lshlrev_b32 v7, 4, v0")
A(f"v_lshlrev_b32 v8, 6, v{OCT[0]}")
A(f"v_lshlrev_b32 v9, 6, v{OCT[1]}")


def stat_loads(fl):
    for task in range(2):
        for i in range(4):
            A(f"buffer_load_dwordx4 {vr(SR[task]+4*i,4)}, v{8+task}, {WS}, s57 offen offset:{16*i}{fl}")


def rows(op, reg, task):
    for t in range(8):
        A(f"buffer_{op}_dword v{reg+t}, v{QOF[task]}, s[40:43], {'s49' if t >= 4 else '0'} offen offset:{1280*(t&3)}")


stat_loads("")
cand_loads(96, 7, "s58", "")
rows("load", XR[0], 0)
rows("load", XR[1], 1)
A(f"s_mov_b32 s40, s{pOUT}")
A(f"s_mov_b32 s41, s{pOUT+1}")
A("s_waitcnt vmcnt(20)")
tag_check("L_st", [17 + 2*i for i in range(16)], lambda: stat_loads(" sc1"))
for t in range(16):
    st = 16 + 2*t
    A(f"v_and_b32 v{st+1}, {sHI}, v{st}")
    A(f"v_rcp_f32 v{st+1}, v{st+1}")
    A(f"v_lshlrev_b32 v{st}, 16, v{st}")
for t in range(16):
    st = 16 + 2*t
    A(f"v_mul_f32 v{st}, v{st}, v{st+1}")
A("s_waitcnt vmcnt(16)")
tag_check("L_cc", [97 + 2*i for i in range(8)], lambda: cand_loads(96, 7, "s58", " sc1"))
top2_merge(96)
A("s_andn2_b32 s62, 0x7ff, s54")
A("s_andn2_b32 s63, 0x7ff, s55")
stamp(12)
for task in range(2):
    A(f"s_waitcnt vmcnt({8 - 8*task})")
    for t in range(8):
        st, xn, cc = SR[task] + 2*t, XN[task] + 2*t, CC[task] + 2*t
        A(f"v_lshlrev_b32 v{cc}, 16, v{XR[task]+t}")
        A(f"v_and_b32 v{cc+1}, {sHI}, v{XR[task]+t}")
        A(f"v_fma_f32 v{xn}, v{cc}, v{st+1}, -v{st}")
        A(f"v_fma_f32 v{xn+1}, v{cc+1}, v{st+1}, -v{st}")
        A(f"v_add_f32 v{cc}, v{cc}, v{xn}")
        A(f"v_add_f32 v{cc+1}, v{cc+1}, v{xn+1}")
stamp(7)
A(f"s_mul_i32 s54, {sX}, {80*4096}")
A("s_add_u32 s60, s60, s54")
A("s_add_u32 s48, s60, 4096")
A(f"s_lshl_b32 s54, {sX}, 11")
A("s_add_u32 s61, s61, s54")
A("s_add_u32 s61, s61, 512")


def yflag_poll(lbl, va, so):
    A("s_mov_b32 s59, 0")
    A(f"{lbl}:")
    A(f"buffer_load_dwordx2 v[10:11], v{va}, {WS}, {so} offen sc1")
    A("s_add_u32 s59, s59, 1")
    A("s_waitcnt vmcnt(0)")
    A(f"v_cmp_ne_u32 vcc, {sTAG}, v10")
    A(f"v_cmp_ne_u32 s[54:55], {sTAG}, v11")
    A("s_or_b64 vcc, vcc, s[54:55]")
    A(f"s_cbranch_scc0 {lbl}_ok")
    A(f"s_cmp_lt_u32 s59, {POLL_LIMIT}")
    A(f"s_cbranch_scc1 {lbl}")
    A(f"{lbl}_ok:")


for task in range(2):
    if task == 1:
        A("s_add_u32 s61, s61, 512")
    A(f"v_lshlrev_b32 v8, 10, v{CPO[task]}")
    A(f"v_lshl_add_u32 v8, v{OCT[task]}, 4, v8")
    A("s_lshr_b32 s56, s62, 3")
    A("s_lshr_b32 s57, s63, 3")
    A(f"v_cmp_eq_u32 s[44:45], s56, v{OCT[task]}")
    A(f"v_cmp_eq_u32 s[46:47], s57, v{OCT[task]}")
    yflag_poll(f"L_yf{task}", CPO[task], "s61")
    A(f"buffer_load_dwordx4 v[16:19], v8, {WS}, s60 offen sc1")
    A(f"buffer_load_dwordx4 v[20:23], v8, {WS}, s48 offen sc1")
    stamp(8 + 2*task)
    for c in range(2):
        A(f"s_waitcnt vmcnt({1-c})")
        for i in range(4):
            A(f"v_lshlrev_b32 v{24+2*i}, 16, v{16+4*c+i}")
            A(f"v_and_b32 v{25+2*i}, {sHI}, v{16+4*c+i}")
        for pos in range(8):
            t = 2*(pos & 3) + (pos >> 2)
            A(f"v_fmac_f32 v{CC[task]+2*t+c}, v{XN[task]+2*t+c}, v{24+pos}")
    for t in range(8):
        A(f"v_cvt_pk_bf16_f32 v{32+8*task+t}, v{CC[task]+2*t}, v{CC[task]+2*t+1}")
    A("s_or_b64 s[54:55], s[44:45], s[46:47]")
    A(f"s_cbranch_scc1 L_msk{task}")
    rows("store", 32 + 8*task, task)
    A(f"L_mskd{task}:")
    stamp(9 + 2*task)
A("s_branch L_fin")
for task in range(2):
    A(f"L_msk{task}:")
    A("s_and_b32 s56, s62, 7")
    A("s_and_b32 s57, s63, 7")
    for t in range(8):
        A(f"s_cmp_eq_u32 s56, {t}")
        A("s_cselect_b64 s[54:55], s[44:45], 0")
        A(f"s_cmp_eq_u32 s57, {t}")
        A("s_cselect_b64 vcc, s[46:47], 0")
        A("s_nor_b64 exec, s[54:55], vcc")
        A(f"s_cbranch_execz L_ms{task}_{t}")
        A(f"buffer_store_dword v{32+8*task+t}, v{QOF[task]}, s[40:43], {'s49' if t >= 4 else '0'} offen offset:{1280*(t&3)}")
        A(f"L_ms{task}_{t}:")
    setexec(ALL)
    A(f"s_branch L_mskd{task}")

A("L_special:")
A("v_min_u32 v1, 39, v0")
A(f"s_cmp_lg_u32 {sW}, 0")
A("s_cbranch_scc1 L_sp1")
A("v_lshlrev_b32 v7, 4, v0")
A(f"s_mov_b32 s58, {CAND}")
cand_loads(16, 7, "s58", " sc1")
A("s_waitcnt vmcnt(0)")
tag_check("L_sc", [17 + 2*i for i in range(8)], lambda: cand_loads(16, 7, "s58", " sc1"))
top2_merge(16)
A(f"s_cmp_eq_u32 {sJ}, 30")
A("s_cselect_b32 s62, s54, s55")
A("s_andn2_b32 s62, 0x7ff, s62")
srd(40, pQ, TBYTES)
A("s_mul_i32 s54, s62, 1280")
A(f"s_mul_i32 s55, {sX}, 160")
A("s_add_u32 s54, s54, s55")
A("v_lshl_add_u32 v2, v1, 2, s54")
A("buffer_load_dword v4, v2, s[40:43], 0 offen")
A("s_lshl_b32 s54, s62, 3")
A(f"s_add_u32 s54, s54, {ESTAT}")
A("v_mov_b32 v3, s54")


def sstat():
    A(f"buffer_load_dwordx2 v[8:9], v3, {WS}, 0 offen sc1")


sstat()
A("s_waitcnt vmcnt(0)")
tag_check("L_ss", [9], sstat)
A(f"v_and_b32 v9, {sHI}, v8")
A("v_rcp_f32 v9, v9")
A("v_lshlrev_b32 v8, 16, v8")
A("v_lshlrev_b32 v50, 16, v4")
A(f"v_and_b32 v51, {sHI}, v4")
A("v_sub_f32 v48, v50, v8")
A("v_sub_f32 v49, v51, v8")
A("v_mul_f32 v48, v48, v9")
A("v_mul_f32 v49, v49, v9")
A("v_add_f32 v50, v50, v48")
A("v_add_f32 v51, v51, v49")
A(f"s_lshl_b32 s55, {sX}, 11")
A("s_add_u32 s61, s61, s55")
A("s_add_u32 s58, s61, 512")
A("v_lshlrev_b32 v3, 3, v1")
yflag_poll("L_s0", 3, "s58")
A("L_sp1:")
A(f"s_sub_u32 s54, {sJ}, 30")
A("s_mul_i32 s54, s54, 640")
A(f"s_mul_i32 s55, {sX}, 1280")
A("s_add_u32 s54, s54, s55")
A(f"s_mul_i32 s55, {sW}, 10240")
A("s_add_u32 s54, s54, s55")
A(f"s_add_u32 s54, s54, {PART}")
A("v_lshl_add_u32 v5, v1, 4, s54")
A(f"s_cmp_lt_u32 {sW}, 6")
A("s_cselect_b32 s57, 6, 5")
A("s_cselect_b32 s58, 1.0, 0")
A("s_mul_i32 s57, s57, 81920")


def part_loads():
    A("s_mov_b32 s56, 0")
    for i in range(7):
        A(f"buffer_load_dwordx4 {vr(16+4*i,4)}, v5, {WS}, {'s57' if i == 6 else 's56'} offen sc1")
        if i < 5:
            A("s_add_u32 s56, s56, 81920")


A("s_barrier")
part_loads()
A("s_waitcnt vmcnt(0)")
tag_check("L_pp", [17 + 2*i for i in range(14)], part_loads)
stamp(8)
for c in range(2):
    A(f"v_mul_f32 v{40+2*c}, s58, v{40+2*c}")
for i in (4, 2, 0):
    for c in range(2):
        A(f"v_add_f32 v{16+4*i+2*c}, v{16+4*i+2*c}, v{20+4*i+2*c}")
    for c in range(2):
        A(f"v_add_f32 v{40+2*c}, v{40+2*c}, v{16+4*i+2*c}")
A("v_mov_b32 v41, v42")
A(f"s_lshl_b32 s54, {sW}, 9")
A("v_lshl_add_u32 v6, v0, 3, s54")
A("ds_write_b64 v6, v[40:41]")
A("s_waitcnt lgkmcnt(0)")
A("s_barrier")
A(f"s_cmp_lg_u32 {sW}, 0")
A("s_cbranch_scc1 L_fin")
A("v_lshrrev_b32 v6, 3, v1")
A("v_bfe_u32 v7, v1, 1, 2")
A("v_mad_u32_u24 v6, v7, 5, v6")
A("v_and_b32 v7, 1, v1")
A("v_mad_u32_u24 v6, v7, 20, v6")
A("v_lshlrev_b32 v6, 3, v6")
for i in range(8):
    A(f"ds_read_b64 {vr(16+2*i,2)}, v6 offset:{512*i}")
A("s_lshr_b32 s54, s62, 10")
A("s_add_u32 s54, s54, 1")
A("s_lshl_b32 s54, s54, 9")
A("s_add_u32 s61, s61, s54")
A(f"s_mul_i32 s54, {sX}, {80*4096}")
A("s_add_u32 s60, s60, s54")
A("s_lshr_b32 s54, s62, 3")
A("s_lshl_b32 s54, s54, 4")
A("s_add_u32 s60, s60, s54")
A("s_and_b32 s54, s62, 1")
A("s_lshl_b32 s54, s54, 3")
A("s_add_u32 s60, s60, s54")
A("s_and_b32 s54, s62, 6")
A("s_add_u32 s60, s60, s54")
A("s_add_u32 s48, s60, 4096")
A("v_lshlrev_b32 v7, 13, v1")
A("s_waitcnt lgkmcnt(0)")
for i in range(1, 8):
    A(f"v_add_f32 v16, v16, v{16+2*i}")
    A(f"v_add_f32 v17, v17, v{17+2*i}")
A("v_add_f32 v50, v50, v16")
A("v_add_f32 v51, v51, v17")
yflag_poll("L_sy", 3, "s61")
A(f"buffer_load_ushort v16, v7, {WS}, s60 offen sc1")
A(f"buffer_load_ushort v17, v7, {WS}, s48 offen sc1")
A("s_waitcnt vmcnt(0)")
A("v_lshlrev_b32 v16, 16, v16")
A("v_lshlrev_b32 v17, 16, v17")
A("v_fmac_f32 v50, v48, v16")
A("v_fmac_f32 v51, v49, v17")
A("v_cvt_pk_bf16_f32 v50, v50, v51")
srd(40, pOUT, TBYTES)
A("buffer_store_dword v50, v2, s[40:43], 0 offen")
stamp(9)
A("s_branch L_fin")

A("L_slowsync:")
A(f"v_min_u32 v4, {NP1-1}, v0")
A("v_add_u32 v5, 8, v4")
A("v_cmp_gt_u32 vcc, 20, v4")
A("v_cndmask_b32 v4, v5, v4, vcc")
A("v_lshlrev_b32 v4, 10, v4")
A(f"s_lshl_b32 s57, {sX}, 7")
A(f"s_add_u32 s57, s57, {ARR}")
A(f"buffer_load_dwordx2 v[2:3], v4, {WS}, s57 offen sc1")
A("s_waitcnt vmcnt(0)")
A(f"v_cmp_eq_u32 vcc, {sTAG}, v2")
A(f"v_cmp_ne_u32 s[56:57], {sXCC}, v3")
A("s_and_b64 vcc, vcc, s[56:57]")
A("s_cbranch_scc1 L_fb")
A(f"s_cmp_lt_u32 s59, {POLL_LIMIT}")
A("s_cbranch_scc1 L_poll")
A("s_branch L_synced")
A("L_fb:")
A(f"s_mov_b32 s57, {FLB}")
A(f"s_mov_b32 s60, {YT2}")
A(f"s_mov_b32 s61, {FLB}")
A(f"s_cmp_lg_u32 {sW}, 0")
A("s_cbranch_scc1 L_nowb")
A("buffer_wbl2 sc1")
A("s_waitcnt vmcnt(0)")
setexec(1)
A(f"buffer_store_dwordx2 v[10:11], v12, {WS}, s57 offen sc1")
setexec(ALL)
A("L_nowb:")
A(f"s_cmp_ge_u32 {sJ}, 20")
A("s_cbranch_scc1 L_synced")
A("s_mov_b32 s59, 0")
A("L_pollb:")
A(f"buffer_load_dwordx2 v[2:3], v1, {WS}, s57 offen sc1")
A("s_add_u32 s59, s59, 1")
A("s_waitcnt vmcnt(0)")
A(f"v_cmp_eq_u32 vcc, {sTAG}, v2")
A("s_cmp_eq_u64 vcc, -1")
A("s_cbranch_scc1 L_bok")
A("s_sleep 2")
A(f"s_cmp_lt_u32 s59, {POLL_LIMIT}")
A("s_cbranch_scc1 L_pollb")
A("L_bok:")
A("buffer_inv sc1")
A("s_waitcnt vmcnt(0)")
A("s_branch L_synced")

A("L_hi4:")
A(f"s_cmp_lt_u32 {sJ}, 20")
A("s_cbranch_scc1 L_mfma")
A(f"s_cmp_ge_u32 {sJ}, 30")
A("s_cbranch_scc1 L_special")
A(f"s_cmp_lg_u32 s2, {28*8}")
A("s_cbranch_scc1 L_fin")
A(f"s_cmp_lg_u32 {sW}, 7")
A("s_cbranch_scc1 L_fin")
A("v_lshlrev_b32 v1, 7, v0")
for i in range(4):
    A(f"s_mov_b32 s{54+i}, {ARR + 8192*i}")


def arr_loads():
    A("s_sleep 8")
    for i in range(4):
        A(f"buffer_load_dword v{6+i}, v1, {WS}, s{54+i} offen sc1")


arr_loads()
A("s_waitcnt vmcnt(0)")
tag_check("L_ep", [6, 7, 8, 9], arr_loads)
A(f"v_mov_b32 v10, {sTAG}")
A(f"v_mov_b32 v11, {EPOCH}")
setexec(1)
A(f"buffer_store_dword v10, v11, {WS}, 0 offen sc1")
setexec(ALL)
A("s_branch L_fin")

A("L_mfma:")
A(f"s_sub_u32 s53, {sW}, 4")
A(f"s_mul_i32 s54, s53, {A_C}")
A("v_lshl_add_u32 v8, v0, 4, s54")
for i in range(4):
    A(f"ds_read_b128 {vr(16+16*i,4)}, v8 offset:{3*A_CP + 32 + 1024*i}")
    A(f"ds_read_b128 {vr(20+16*i,4)}, v8 offset:{3*A_CP + 48 + 1024*i}")
for i in range(4):
    b = 16 + 16*i
    A(f"s_waitcnt lgkmcnt({6 + i})")
    A(f"ds_write_b128 v8, {vr(b+2,4)} offset:{A_CP + 48 + 1024*i}")
    for q in range(6):
        A(f"v_mov_b32 v{b+8+q}, v{b+1+q}")
    A(f"ds_write_b128 v8, {vr(b+8,4)} offset:{48 + 1024*i}")
    A(f"ds_write_b128 v8, {vr(b+10,4)} offset:{2*A_CP + 48 + 1024*i}")
A("v_and_b32 v6, 3, v0")
A(f"v_mul_u32_u24 v1, {A_CP}, v6")
A("v_bfe_u32 v6, v0, 2, 2")
A("v_lshrrev_b32 v7, 4, v0")
A("v_add_u32 v6, v6, v7")
A("v_lshl_add_u32 v1, v6, 4, v1")
A("v_add_u32 v1, s54, v1")
A("v_and_b32 v6, 1, v0")
A(f"v_mul_u32_u24 v2, {U_P}, v6")
A("v_bfe_u32 v6, v0, 1, 3")
A("v_lshlrev_b32 v6, 2, v6")
A("v_sub_u32 v6, v6, v7")
A("v_lshl_add_u32 v2, v6, 4, v2")
A(f"s_mul_i32 s54, s53, {U_C}")
A(f"s_add_u32 s54, s54, {LU + 48}")
A("v_add_u32 v2, s54, v2")
A("v_bfe_u32 v6, v0, 1, 3")
A("v_lshl_add_u32 v6, v6, 2, v7")
A("v_and_b32 v5, 1, v0")
A("v_lshlrev_b32 v4, 4, v6")
A("v_lshl_add_u32 v4, v5, 3, v4")
A("s_lshl_b32 s54, s62, 12")
A("v_add_u32 v4, s54, v4")
A(f"s_mul_i32 s54, {sX}, {2048 - 320}")
A("s_lshl_b32 s55, s62, 2")
A("s_add_u32 s54, s54, s55")
A("v_mov_b32 v5, s54")
A(f"v_mov_b32 v6, {sTAG}")
A(f"v_mov_b32 v7, {LF}")
A("s_bitcmp1_b32 s62, 0")
A("s_cselect_b32 s54, 16, 0")
A("s_lshr_b32 s63, s63, s54")
A("s_and_b32 s63, s63, 0xffff")
A("v_lshrrev_b32 v12, 4, v0")
A("v_and_b32 v13, 15, v0")
A("v_lshl_add_u32 v12, v12, 2, v13")
A("v_mov_b32 v13, s63")
for i in range(4):
    A(f"v_cmp_eq_u32 vcc, {15-i}, v12")
    A(f"v_cndmask_b32 v{8+i}, 0, v13, vcc")
A(f"s_mov_b32 s60, {KVT}")
A(f"s_mov_b32 s61, {FLG}")
A(f"s_mov_b32 s56, {YT2}")
A(f"s_mov_b32 s57, {FLB}")
A("s_waitcnt lgkmcnt(0)")
n = 0
for rho in range(OPT["resid"]):
    for a in range(4):
        A(f"ds_read_b128 a[{(rho*4+a)*4}:{(rho*4+a)*4+3}], v1 offset:{64*rho + 512*a}")
        n += 1
        if n % 8 == 0:
            A("s_waitcnt lgkmcnt(7)")
stamp(5)
if OPT["prio"]:
    A(f"s_setprio {OPT['prio']}")
A("s_waitcnt lgkmcnt(0)")
A("s_barrier")
if PROF:
    A("s_memtime s[90:91]")
stamp(6, True)


slow_sites = []


def ystore(txt_fast, txt_slow):
    k = len(slow_sites)
    slow_sites.append(txt_slow)
    return f"s_cbranch_scc1 L_ys{k}\n{txt_fast}\nL_yr{k}:"


def mfma_schedule():
    passes = [(0, 1, 2, 3), (4, 5, 6, 7)]
    seq = []
    for pi, tiles in enumerate(passes):
        for rho in range(8):
            for b in range(max(tiles) + 1):
                for n in tiles:
                    if n >= b:
                        a = n - b
                        ak = ("A", a, rho) if a <= 3 else ("A", a, rho, pi)
                        seq.append((pi, n, ak, ("B", b, rho, pi)))
                        if a == 0 and rho == 0:
                            seq.append((pi, n, ("D",), ("B", b, rho, pi)))
    N = len(seq)
    end = [max(i for i, e in enumerate(seq) if e[0] == pi) for pi in range(2)]
    reg, pos = {}, {}
    side = {}

    def put(i, key, fn):
        while len(side.get(i, [])) >= 1 and i < N - 1:
            i += 1
        side.setdefault(i, []).append((key, fn))
        return i

    def acc(n, t):
        return 96 + 4*n + t

    def pack_store(n, i):
        i = put(i, None, lambda n=n: f"v_cvt_pk_bf16_f32 v{acc(n,0)}, v{acc(n,0)}, v{acc(n,1)}")
        i = put(i, None, lambda n=n: f"v_cvt_pk_bf16_f32 v{acc(n,1)}, v{acc(n,2)}, v{acc(n,3)}")
        return put(i, None, lambda n=n: ystore(
            f"buffer_store_dwordx2 {vr(acc(n,0),2)}, v4, {WS}, s60 offen offset:{512*n}",
            f"buffer_store_dwordx2 {vr(acc(n,0),2)}, v4, {WS}, s56 offen offset:{512*n} sc1"))

    def flag(pi, i):
        return put(i, None, lambda pi=pi: "s_waitcnt vmcnt(0)\ns_mov_b64 exec, 1\n" + ystore(
            f"buffer_store_dword v6, v5, {WS}, s61 offen offset:{512*(pi+1)}",
            f"buffer_store_dword v6, v5, {WS}, s57 offen offset:{512*(pi+1)} sc1") + "\ns_mov_b64 exec, -1")

    put(24, ("M",), lambda: f"v_readfirstlane_b32 s54, v15\ns_cmp_lg_u32 s54, {FLG}")
    i = end[0] + 5
    for n in passes[0]:
        i = pack_store(n, i)
    flag(0, i + OPT["ackgap"])

    first, last = {}, {}
    for i, (_, _, ak, bk) in enumerate(seq):
        ks = [k for k in (bk, ak) if len(k) == 4 or (len(k) == 3 and k[2] >= OPT["resid"])]
        ks += [k for k, _ in side.get(i, []) if k and k[0] == "K"]
        for k in ks:
            first.setdefault(k, i)
            last[k] = i
    loads = sorted(first, key=lambda k: (first[k], k[0] != "B"))
    free = [16 + 4*s for s in range(20)]
    issued = []
    st = dict(done=0, li=0)
    LOOK, SETTLE = OPT["look"], OPT["settle"]
    started = set()

    def rname(k):
        if len(k) == 1:
            return "v[8:11]"
        if len(k) == 3:
            return f"a[{(k[2]*4 + k[1])*4}:{(k[2]*4 + k[1])*4 + 3}]"
        return vr(reg[k], 4)

    def issue_loads(i, maxn):
        cnt = 0
        while st["li"] < len(loads) and cnt < maxn:
            k = loads[st["li"]]
            if first[k] > i + LOOK or len(issued) - st["done"] >= 14 or not free:
                break
            if len(k) == 4:
                reg[k] = free.pop(0)
            if k[0] == "A":
                A(f"ds_read_b128 {rname(k)}, v1 offset:{64*k[2] + 512*k[1]}")
            elif k[0] == "B":
                A(f"ds_read_b128 {rname(k)}, v2 offset:{512*k[1] + 64*(7-k[2])}")
            else:
                A(f"ds_read_b128 {rname(k)}, v3 offset:{512*k[1]}")
            pos[k] = len(issued)
            issued.append((k, i))
            st["li"] += 1
            cnt += 1

    def wait_for(keys, i):
        needp = max([pos[k] for k in keys if k in pos] + [-1]) + 1
        for k in keys:
            assert k in pos or k not in first, (k, i)
        if needp > st["done"]:
            tgt = needp
            while tgt < len(issued) and issued[tgt][1] <= i - SETTLE:
                tgt += 1
            A(f"s_waitcnt lgkmcnt({len(issued) - tgt})")
            st["done"] = tgt

    issue_loads(-1, 10)
    A("ds_read_b32 v15, v7")
    pos[("M",)] = len(issued)
    issued.append((None, -1))
    for i, (pi, n, ak, bk) in enumerate(seq):
        wait_for([ak, bk] + [k for k, _ in side.get(i, []) if k], i)
        a_ = vr(96 + 4*n, 4)
        c = a_ if n in started else "0"
        started.add(n)
        A(f"v_mfma_f32_16x16x32_bf16 {a_}, {rname(ak)}, {rname(bk)}, {c}")
        for k, fn in side.get(i, []):
            t_ = fn()
            if not (OPT["noside"] and t_.startswith("v_") and "readfirst" not in t_):
                A(t_)
        for k in list(reg):
            if last[k] == i:
                free.append(reg[k])
        behind = st["li"] < len(loads) and first[loads[st["li"]]] <= i + 8
        issue_loads(i, OPT["maxn"] + (1 if behind else 0))
    side.clear()
    i = N - 1
    for n in passes[1]:
        pack_store(n, i)
    flag(1, i)
    if PROF:
        A("s_memtime s[92:93]")
    stamp(8)
    for k, fn in side[N-1]:
        A(fn())


mfma_schedule()
stamp(7)
A("s_branch L_fin")
for k, t in enumerate(slow_sites):
    A(f"L_ys{k}:")
    A(t)
    A(f"s_branch L_yr{k}")

A("L_nonp1:")
A("v_lshrrev_b32 v1, 2, v0")
A("v_mul_u32_u24 v1, 3456, v1")
A("v_lshrrev_b32 v2, 4, v0")
A("v_and_b32 v2, 2, v2")
A("v_and_b32 v3, 3, v0")
A("v_xor_b32 v2, v2, v3")
A("v_lshl_add_u32 v100, v2, 4, v1")
A("v_subrev_u32 v9, 64, v9")
for k in range(11):
    A(f"v_add_u32 v1, {256*k}, v9")
    A("v_mul_u32_u24 v2, 1599, v1")
    A("v_lshrrev_b32 v2, 17, v2")
    A("v_mul_u32_u24 v3, 82, v2")
    A("v_sub_u32 v1, v1, v3")
    A("v_min_u32 v1, 79, v1")
    A("v_mul_u32_u24 v2, 1280, v2")
    A(f"v_lshl_add_u32 v{101+k}, v1, 4, v2")
after_kernarg()
if OPT["bq"]:
    A("s_barrier")
if OPT["codewarm"]:
    A("s_getpc_b64 s[54:55]")
    A("L_pc:")
    A(f"s_sub_u32 s54, s54, L_pc-{NAME}_kernel")
    A("s_subb_u32 s55, s55, 0")
    A("v_lshlrev_b32 v1, 7, v9")
    A(f"v_cmp_gt_u32 vcc, L_codeend-{NAME}_kernel, v1")
    A("s_and_saveexec_b64 s[56:57], vcc")
    A("s_cbranch_execz L_nocw")
    A("global_load_dword v127, v1, s[54:55]")
    A("L_nocw:")
    setexec(ALL)
make_tag()
A("s_barrier")

A("L_moe:")
A(f"s_cmp_lt_u32 {sX}, 3")
A("s_cselect_b32 s54, 8, 6")
A("s_cselect_b32 s55, 0, 6")
A("s_cmp_ge_u32 s63, s54")
A("s_cbranch_scc1 L_fin")
A(f"s_mul_i32 s56, {sX}, s54")
A("s_add_u32 s56, s56, s55")
A("s_add_u32 s53, s63, s56")
A("s_mov_b32 s57, 0x3f803f80")
for i in range(4):
    A(f"v_mov_b32 v{16+i}, s57")
A(f"s_mov_b32 s57, {LX + 2*X_P}")
A("v_lshl_add_u32 v2, v0, 4, s57")
A("ds_write_b128 v2, v[16:19]")
A("ds_write_b128 v2, v[16:19] offset:256")
A("v_bfe_u32 v1, v0, 3, 1")
A("v_lshrrev_b32 v2, 4, v0")
A("v_bfe_u32 v10, v0, 2, 2")
A("v_and_b32 v11, 3, v0")
A("v_lshl_add_u32 v14, v2, 3, v10")
A(f"v_mul_u32_u24 v12, {WD_P}, v14")
A(f"s_mul_i32 s57, {sW}, 160")
A(f"s_add_u32 s57, s57, {LWD}")
A("v_lshl_add_u32 v13, v11, 3, s57")
A("v_add_u32 v12, v12, v13")
A(f"s_and_b32 s60, {sW}, 1")
A(f"s_lshr_b32 s61, {sW}, 1")
A("v_lshlrev_b32 v14, 6, v14")
A("v_lshrrev_b32 v15, 1, v11")
A(f"v_mul_u32_u24 v15, {LWU}, v15")
A("v_add_u32 v14, v14, v15")
A("v_and_b32 v15, 1, v11")
A("v_lshl_add_u32 v14, v15, 3, v14")
A("v_and_b32 v15, 1, v2")
A("v_lshlrev_b32 v15, 1, v15")
A("v_xor_b32 v15, s61, v15")
A("v_lshl_add_u32 v14, v15, 4, v14")
A(f"s_mul_i32 s57, s60, {320*64}")
A("v_add_u32 v14, s57, v14")
A("v_and_b32 v10, 7, v0")
A("v_lshl_add_u32 v11, v2, 3, v10")
A("v_lshlrev_b32 v11, 2, v11")
A(f"v_add_u32 v37, {LRED + 512}, v11")
A("v_lshl_add_u32 v36, v1, 8, v11")
A(f"v_add_u32 v36, {LRED}, v36")
A("v_and_b32 v18, 1, v10")
A("v_mov_b32 v19, 0xffff")
A(f"v_mov_b32 v20, {sHI}")
A("v_cmp_eq_u32 vcc, 1, v18")
A("v_cndmask_b32 v18, v19, v20, vcc")
A("v_lshrrev_b32 v13, 1, v10")
for i in range(4):
    A(f"v_cmp_eq_u32 vcc, {i}, v13")
    A(f"v_cndmask_b32 v{80+i}, 0, v18, vcc")
A("v_and_b32 v38, 15, v0")
A("v_lshlrev_b32 v38, 8, v38")
A("v_lshrrev_b32 v39, 1, v2")
A("v_lshl_add_u32 v38, v39, 7, v38")
A("v_and_b32 v39, 1, v2")
A("v_lshl_add_u32 v38, v39, 4, v38")
A("s_mul_i32 s57, s60, 768")
A("s_lshl_b32 s59, s61, 5")
A("s_add_u32 s57, s57, s59")
A(f"s_add_u32 s57, s57, {LRED}")
A("v_add_u32 v38, s57, v38")
A("v_mul_u32_u24 v39, 640, v1")
A("v_lshl_add_u32 v39, v10, 4, v39")
A("v_mul_u32_u24 v15, 80, v2")
A("v_add_u32 v39, v39, v15")
A("s_mul_i32 s57, s53, 10240")
A(f"s_mul_i32 s59, {sW}, 1280")
A("s_add_u32 s57, s57, s59")
A(f"s_add_u32 s57, s57, {PART}")
A("v_add_u32 v39, s57, v39")
A(f"s_mov_b32 s57, {LK}")
A("v_lshl_add_u32 v13, v1, 2, s57")
A("v_and_b32 v6, 15, v0")
A("v_min_u32 v6, 2, v6")
A(f"v_mul_u32_u24 v6, {X_P}, v6")
A("s_mul_i32 s57, s60, 640")
A(f"s_add_u32 s57, s57, {LX}")
A("v_lshl_add_u32 v7, v2, 4, s57")
A("v_add_u32 v6, v6, v7")
for i in range(4):
    A(f"v_mov_b32 v{85+2*i}, {sTAG}")
A(f"s_sub_u32 s58, {sW}, 1")
A(f"s_cmp_ge_u32 s58, {0 if OPT['noW'] else 4}")
A("s_cbranch_scc1 L_noload")
srd(40, pWG, WBYTES)
srd(44, pWU, WBYTES)
srd(48, pWD, WBYTES)
A(f"s_mul_i32 s55, s58, {160*3456}")
A("s_lshl_b32 s56, s53, 6")
A("s_add_u32 s55, s55, s56")
A("s_mul_i32 s54, s58, 10240")
for i in range(10):
    A(f"s_add_u32 m0, s54, {LWG + 1024*i}")
    A("buffer_load_dwordx4 v100, s[40:43], s55 offen lds")
    pc = OPT["pace1"] if 2*i + 1 <= OPT["n1"] else OPT["pace"]
    A(f"s_waitcnt vmcnt({pc})")
    A(f"s_add_u32 m0, s54, {LWU + 1024*i}")
    A("buffer_load_dwordx4 v100, s[44:47], s55 offen lds")
    pc = OPT["pace1"] if 2*i + 2 <= OPT["n1"] else OPT["pace"]
    A(f"s_waitcnt vmcnt({pc})")
    A(f"s_add_u32 s55, s55, {16*3456}")
    if i == OPT["mp"] - 1:
        A("s_barrier")
A("s_mul_i32 s55, s53, 40960")
A("s_lshl_b32 s54, s58, 10")
A("s_cmp_lg_u32 s58, 0")
A("s_cbranch_scc1 L_nod11")
A(f"s_mov_b32 m0, {LWD + 40960}")
A("buffer_load_dwordx4 v111, s[48:51], s55 offen lds")
A("L_nod11:")
for k in range(10):
    A(f"s_add_u32 m0, s54, {LWD + 4096*k}")
    A(f"buffer_load_dwordx4 v{101+k}, s[48:51], s55 offen lds")
stamp(4)
A("s_branch L_nopoll")
A("L_noload:")
A("s_barrier")
A(f"s_cmp_lg_u32 {sW}, 0")
A("s_cbranch_scc1 L_nopoll")
A("v_lshlrev_b32 v32, 4, v0")
A(f"s_mov_b32 s58, {CAND}")
if OPT["polldelay"]:
    A(f"s_sleep {OPT['polldelay']}")
cand_loads(16, 32, "s58", " sc1")
srd(40, pQ, TBYTES)
A("s_waitcnt vmcnt(0)")
tag_check("L_cm", [17 + 2*i for i in range(8)], lambda: cand_loads(16, 32, "s58", " sc1"))
top2_merge(16)
stamp(7)
A("s_andn2_b32 s56, 0x7ff, s54")
A("s_andn2_b32 s57, 0x7ff, s55")
A("s_mul_i32 s56, s56, 1280")
A("s_mul_i32 s57, s57, 1280")
A(f"s_mov_b32 m0, {LX}")
A("buffer_load_dwordx4 v32, s[40:43], s56 offen lds")
setexec(0xffff)
A("buffer_load_dwordx4 v32, s[40:43], s56 offen offset:1024 lds")
setexec(ALL)
A(f"s_mov_b32 m0, {LX + X_P}")
A("buffer_load_dwordx4 v32, s[40:43], s57 offen lds")
setexec(0xffff)
A("buffer_load_dwordx4 v32, s[40:43], s57 offen offset:1024 lds")
setexec(ALL)
A("v_mov_b32 v16, s54")
A("v_mov_b32 v17, s55")
A("v_cmp_eq_u32 vcc, 1, v1")
A("v_cndmask_b32 v5, v16, v17, vcc")
A("v_not_b32 v3, v5")
A("v_and_b32 v7, 0x7ff, v3")
A("v_lshlrev_b32 v7, 3, v7")
A(f"s_mov_b32 s57, {ESTAT}")


def mstat():
    A(f"buffer_load_dwordx2 v[8:9], v7, {WS}, s57 offen sc1")


mstat()
A(f"v_and_b32 v5, {sHI}, v5")
A("v_ashrrev_i32 v10, 31, v5")
A("v_not_b32 v10, v10")
A("v_or_b32 v10, 0x80000000, v10")
A("v_xor_b32 v5, v5, v10")
A(f"v_and_b32 v5, {sHI}, v5")
A("v_mul_f32 v5, 0xbfb8aa3b, v5")
A("v_exp_f32 v5, v5")
A("v_add_f32 v5, 1.0, v5")
A("v_rcp_f32 v5, v5")
A("s_waitcnt vmcnt(0)")
tag_check("L_ms", [9], mstat)
A("ds_write2_b32 v13, v5, v8 offset0:0 offset1:2")
stamp(11)
A("L_nopoll:")
for t in range(1, 5):
    m = (1 << t) * 0x01010101
    A(f"s_mov_b32 s{40+2*t}, {m:#x}")
    A(f"s_mov_b32 s{41+2*t}, {m:#x}")
A("s_waitcnt vmcnt(10) lgkmcnt(0)")
stamp(5)
A("s_barrier")
stamp(6, True)
for s in range(10):
    A(f"ds_read_b64_tr_b16 a[{4*s}:{4*s+1}], v14 offset:{2048*s}")
    A(f"ds_read_b64_tr_b16 a[{4*s+2}:{4*s+3}], v14 offset:{2048*s + 256}")
    A(f"ds_read_b128 {vr(40+4*s,4)}, v6 offset:{64*s}")
    if s >= 4:
        q = s - 4
        A("s_waitcnt lgkmcnt(12)")
        c = "0" if q == 0 else "v[28:31]"
        A(f"v_mfma_f32_16x16x32_bf16 v[28:31], a[{4*q}:{4*q+3}], {vr(40+4*q,4)}, {c}")
A("ds_read2_b32 v[4:5], v13 offset0:2 offset1:0")
for q in range(6, 10):
    A(f"s_waitcnt lgkmcnt({3*(9-q) + 1})")
    A(f"v_mfma_f32_16x16x32_bf16 v[28:31], a[{4*q}:{4*q+3}], {vr(40+4*q,4)}, v[28:31]")
A("s_waitcnt lgkmcnt(0)")
A(f"v_and_b32 v9, {sHI}, v4")
A("v_lshlrev_b32 v8, 16, v4")
A("v_rcp_f32 v9, v9")
setexec(0x0007000700070007)
A("ds_write_b128 v38, v[28:31]")
setexec(ALL)
A("s_waitcnt vmcnt(0) lgkmcnt(0)")
A("s_barrier")
stamp(3, True)
A("ds_read2_b32 v[28:29], v36 offset0:0 offset1:32")
A("ds_read2_b32 v[30:31], v36 offset0:192 offset1:224")
A("ds_read2_b32 v[32:33], v37 offset0:0 offset1:32")
A("ds_read2_b32 v[34:35], v37 offset0:192 offset1:224")
for t in range(5):
    A(f"ds_read_b64_tr_b16 a[{40+4*t}:{41+4*t}], v12 offset:{32*t}")
    A(f"ds_read_b64_tr_b16 a[{42+4*t}:{43+4*t}], v12 offset:{32*t + 4*WD_P}")
A("s_waitcnt lgkmcnt(12)")
A("v_add_f32 v28, v28, v30")
A("v_add_f32 v29, v29, v31")
A("s_waitcnt lgkmcnt(10)")
A("v_add_f32 v32, v32, v34")
A("v_add_f32 v33, v33, v35")
A("v_fma_f32 v28, -v8, v32, v28")
A("v_fma_f32 v29, -v8, v33, v29")
A("v_mul_f32 v28, v28, v9")
A("v_mul_f32 v29, v29, v9")
A("v_mul_f32 v30, 0xbfb8aa3b, v28")
A("v_exp_f32 v30, v30")
A("v_mul_f32 v29, v29, v28")
A("v_add_f32 v30, 1.0, v30")
A("v_rcp_f32 v30, v30")
A("v_mul_f32 v29, v29, v30")
A("v_cvt_pk_bf16_f32 v29, v29, v29")
for i in range(4):
    A(f"v_and_b32 v{32+i}, v29, v{80+i}")
for r in ("quad_perm:[1,0,3,2]", "quad_perm:[2,3,0,1]", "row_half_mirror"):
    for i in range(4):
        A(f"v_or_b32_dpp v{32+i}, v{32+i}, v{32+i} {r} row_mask:0xf bank_mask:0xf")
A("s_waitcnt lgkmcnt(0)")
for t in range(5):
    A(f"v_mfma_f32_16x16x32_bf16 {vr(40+4*t,4)}, a[{40+4*t}:{43+4*t}], v[32:35], 0")
for t in range(1, 5):
    for i in range(4):
        A(f"v_cndmask_b32 v{40+i}, v{40+i}, v{40+4*t+i}, s[{40+2*t}:{41+2*t}]")
for i in range(4):
    A(f"v_mul_f32 v{84+2*i}, v{40+i}, v5")
setexec(0x1f1f1f1f1f1f1f1f)
A(f"buffer_store_dwordx4 v[84:87], v39, {WS}, 0 offen sc1")
A(f"buffer_store_dwordx4 v[88:91], v39, {WS}, 0 offen offset:320 sc1")
setexec(ALL)
stamp(12)

A("L_fin:")
if PROF:
    A("s_waitcnt vmcnt(0)")
    stamp(15)
    A("s_waitcnt lgkmcnt(0)")
    if OPT["diag"] >= 0:
        k = OPT["diag"]
        A(f"s_sub_u32 s53, s{64+2*k}, s64")
        A(f"s_cmp_eq_u32 s{64+2*k}, 0")
        A("s_cselect_b32 s53, 0, s53")
        A(f"s_mul_i32 s53, s53, {OPT['dmul']}")
        A("s_add_u32 s53, s53, 4000")
        A("L_diag:")
        A("s_sleep 4")
        A("s_memrealtime s[54:55]")
        A("s_waitcnt lgkmcnt(0)")
        A("s_sub_u32 s54, s54, s64")
        A("s_cmp_lt_u32 s54, s53")
        A("s_cbranch_scc1 L_diag")
    A("s_lshl_b32 s53, s2, 3")
    A(f"s_add_u32 s53, s53, {sW}")
    A("s_lshl_b32 s53, s53, 6")
    A(f"s_add_u32 s53, s53, {PROFB}")
    A("v_mov_b32 v1, s53")
    setexec(1)
    for k in range(16):
        A(f"v_mov_b32 v2, s{64+2*k}")
        A(f"buffer_store_dword v2, v1, {WS}, 0 offen offset:{4*k}")
A("L_end:")
A("s_endpgm")
A("L_codeend:")

hdr = open(os.path.join(os.path.dirname(os.path.abspath(__file__)), "..", "cdna_kernels", NAME + ".s.ref")).read().split("\n")
hdr = [l for l in hdr if l.startswith(";") and "@launch" not in l]
out = hdr + [f"; @launch grid=(256,1,1) block=(512,1,1) lds={LDS_BYTES}",
             '.amdgcn_target "amdgcn-amd-amdhsa--gfx950"', ".text", f".globl {NAME}_kernel", ".p2align 8",
             f".type {NAME}_kernel,@function"]
out += A.padded()
out += ['.section .rodata,"a"', ".p2align 6", f".amdhsa_kernel {NAME}_kernel",
        "  .amdhsa_next_free_vgpr 256", "  .amdhsa_next_free_sgpr 102", "  .amdhsa_accum_offset 128",
        "  .amdhsa_group_segment_fixed_size 0", "  .amdhsa_kernarg_size 112", "  .amdhsa_user_sgpr_count 2",
        "  .amdhsa_user_sgpr_kernarg_segment_ptr 1", "  .amdhsa_system_sgpr_workgroup_id_x 1",
        "  .amdhsa_float_denorm_mode_32 3", ".end_amdhsa_kernel", ""]
open(sys.argv[1], "w").write("\n".join(out))
```

```python
import sys, os
sys.path.insert(0, os.path.dirname(os.path.abspath(__file__)))
from asmlib import Asm

NAME = "parallel_sum__ssm_conv_h3__moe_arch_mod__prompt"
OPT = dict(prof=0, codewarm=1, force_fb=0, diag=-1, dmul=4, prio=2, look=16, settle=7, pace=4, polldelay=0,
           bq=1, resid=0, pace1=1, n1=6, noW=0, nopre=0, noh=0, maxn=1, ackgap=60, mp=5, noepi=0, noside=0, drole=0)
for a in sys.argv[2:]:
    k, v = a.split("=")
    assert k in OPT, k
    OPT[k] = int(v)
PROF = OPT["prof"]

EPOCH, FLG, FLB, CAND, ARR, ESTAT, PART = 0, 0x1000, 0x5000, 0x9000, 0x10000, 0x18000, 0x20000
KVT, YT2, PROFB = 0x100000, 0x400000, 0x800000
WS_BYTES = 0x1000000
TBYTES = 2621440
WBYTES = 2211840
NMOE, NP1 = 54, 24
OOB = 0x7ffffff0
LA, A_C, A_CP = 0, 16640, 4160
LU, U_C, U_P = 66560, 9120, 4576
LY = 103040
LS, S_T = 103040, 15552
LF = 139776
LDS_BYTES = 140032
LWG, LWU, LWD, WD_P, LRED, LK, LX, X_P = 0, 40976, 81984, 1312, 123968, 125504, 125568, 1344
POLL_LIMIT = 1 << 16

sX, sJ, sW, sTAG, sXCC = "s3", "s4", "s5", "s6", "s7"
pQ, pK, pV, pSH, pH, pD, pWR, pWG, pWU, pWD, pOUT, pWS = 8, 10, 12, 14, 16, 18, 22, 24, 26, 28, 30, 34
WS = "s[36:39]"
sHI = "s52"
ALL = (1 << 64) - 1
A = Asm()


def sp(p):
    return f"s[{p}:{p+1}]"


def srd(reg, ptr, nbytes):
    A(f"s_mov_b32 s{reg}, s{ptr}")
    A(f"s_mov_b32 s{reg+1}, s{ptr+1}")
    A(f"s_mov_b32 s{reg+2}, {nbytes:#x}")
    A(f"s_mov_b32 s{reg+3}, 0x20000")


def stamp(k, wait=False):
    if PROF:
        A(f"s_memrealtime s[{64+2*k}:{65+2*k}]")
        if wait:
            A("s_waitcnt lgkmcnt(0)")


def vr(b, n):
    return f"v[{b}:{b+n-1}]"


def setexec(m):
    lo, hi = m & 0xffffffff, m >> 32
    if m == ALL:
        A("s_mov_b64 exec, -1")
    elif hi == 0 and lo < 0x80000000:
        A(f"s_mov_b64 exec, {lo:#x}")
    else:
        A(f"s_mov_b32 exec_lo, {lo:#x}")
        A(f"s_mov_b32 exec_hi, {hi:#x}")


def after_kernarg():
    A("s_waitcnt lgkmcnt(0)")
    A(f"s_load_dword {sTAG}, {sp(pWS)}, {EPOCH}")
    srd(36, pWS, WS_BYTES)


def make_tag():
    A("s_waitcnt lgkmcnt(0)")
    A(f"s_mul_i32 {sTAG}, {sTAG}, 0x9E3779B1")
    A(f"s_add_u32 {sTAG}, {sTAG}, 0x7F4A7C15")


def or_tree(regs):
    regs = list(regs)
    while len(regs) > 1:
        nxt = []
        i = 0
        while i < len(regs):
            if i + 2 < len(regs):
                A(f"v_or3_b32 v{regs[i]}, v{regs[i]}, v{regs[i+1]}, v{regs[i+2]}")
                nxt.append(regs[i]); i += 3
            elif i + 1 < len(regs):
                A(f"v_or_b32 v{regs[i]}, v{regs[i]}, v{regs[i+1]}")
                nxt.append(regs[i]); i += 2
            else:
                nxt.append(regs[i]); i += 1
        regs = nxt
    return regs[0]


def tag_check(lbl, tagregs, reissue, restore=None):
    A("s_mov_b32 s59, 0")
    A(f"{lbl}:")
    for r in tagregs:
        A(f"v_xor_b32 v{r}, {sTAG}, v{r}")
    r = or_tree(tagregs)
    A(f"v_cmp_ne_u32 vcc, 0, v{r}")
    A(f"s_cbranch_vccz {lbl}_ok")
    if restore:
        restore()
    reissue()
    A("s_add_u32 s59, s59, 1")
    A(f"s_cmp_lt_u32 s59, {POLL_LIMIT}")
    A("s_waitcnt vmcnt(0)")
    A(f"s_cbranch_scc1 {lbl}")
    A(f"{lbl}_ok:")


def merge_dpp(a, rs):
    for r in rs:
        d = f"row_ror:{r} row_mask:0xf bank_mask:0xf"
        A(f"v_min_u32_dpp v{a+1}, v{a}, v{a} {d}")
        A(f"v_max_u32_dpp v{a+3}, v{a+2}, v{a+2} {d}")
        A(f"v_max_u32_dpp v{a}, v{a}, v{a} {d}")
        A(f"v_max_u32 v{a+2}, v{a+1}, v{a+3}")


def cand_loads(t0, va, so, fl):
    for i in range(4):
        A(f"buffer_load_dwordx4 {vr(t0+4*i,4)}, v{va}, {WS}, {so} offen offset:{1024*i}{fl}")


def top2_merge(t0):
    def merge(a, b, tmp):
        A(f"v_min_u32 v{tmp}, v{a}, v{b}")
        A(f"v_max_u32 v{a}, v{a}, v{b}")
        A(f"v_max3_u32 v{a+2}, v{a+2}, v{b+2}, v{tmp}")
    merge(t0, t0+4, t0+1)
    merge(t0+8, t0+12, t0+3)
    merge(t0, t0+8, t0+1)
    merge_dpp(t0, (1, 2, 4, 8))
    A(f"v_readlane_b32 s54, v{t0}, 0")
    A(f"v_readlane_b32 s55, v{t0+2}, 0")
    for row in (16, 32, 48):
        A(f"v_readlane_b32 s56, v{t0}, {row}")
        A(f"v_readlane_b32 s59, v{t0+2}, {row}")
        A("s_max_u32 s55, s55, s59")
        A("s_min_u32 s59, s54, s56")
        A("s_max_u32 s54, s54, s56")
        A("s_max_u32 s55, s55, s59")


A(f"{NAME}_kernel:")
A("s_cmp_ge_u32 s2, 256")
A("s_cbranch_scc1 L_end")
A("s_load_dwordx16 s[8:23], s[0:1], 0")
A("s_load_dwordx8 s[24:31], s[0:1], 64")
A("s_load_dwordx4 s[32:35], s[0:1], 96")
A("v_lshrrev_b32 v1, 6, v0")
A("v_mov_b32 v9, v0")
A("v_and_b32 v0, 63, v0")
A(f"s_and_b32 {sX}, s2, 7")
A(f"s_lshr_b32 {sJ}, s2, 3")
A(f"v_readfirstlane_b32 {sW}, v1")
A(f"s_getreg_b32 {sXCC}, hwreg(HW_REG_XCC_ID)")
if OPT["force_fb"]:
    A(f"s_add_u32 {sXCC}, {sXCC}, {sJ}")
A(f"s_mov_b32 {sHI}, 0xffff0000")
if PROF:
    for k in range(64, 96):
        A(f"s_mov_b32 s{k}, 0")
stamp(0)
A(f"s_mul_i32 s53, {sX}, 20")
A(f"s_add_u32 s53, s53, {sJ}")
A(f"s_sub_u32 s63, {sJ}, 20")
A(f"s_sub_u32 s58, {sJ}, 8")
A(f"s_cmp_lt_u32 {sJ}, 20")
A(f"s_cselect_b32 s58, {sJ}, s58")
A(f"s_cmp_lg_u32 {sW}, 0")
A("s_cbranch_scc1 L_not7")

A("v_and_b32 v1, 7, v0")
A("v_bfe_u32 v2, v0, 3, 1")
A("v_lshrrev_b32 v3, 4, v0")
A("v_mul_u32_u24 v4, 1280, v1")
A("v_mul_u32_u24 v5, 640, v2")
A("v_add_u32 v4, v4, v5")
A("v_lshl_add_u32 v4, v3, 4, v4")
A("s_mul_i32 s55, s2, 10240")
A("v_add_u32 v4, s55, v4")
A("v_and_b32 v5, 15, v0")
A("v_cmp_lt_u32 vcc, 1, v5")
A("v_mov_b32 v6, 640")
A("v_cndmask_b32 v6, 0, v6, vcc")
A("v_lshl_add_u32 v6, v3, 4, v6")
A("s_mov_b32 s55, 0x3f803f80")
for i in range(44):
    A(f"v_mov_b32 v{56+i}, s55")
A("s_waitcnt lgkmcnt(0)")
for s in range(10):
    A(f"global_load_dwordx4 {vr(16+4*s,4)}, v4, {sp(pQ)} offset:{64*s}")
setexec(0x0006000600060006)
for s in range(10):
    A(f"global_load_dwordx4 {vr(56+4*s,4)}, v6, {sp(pWR)} offset:{64*s}")
setexec(ALL)
if OPT["bq"]:
    A("s_barrier")
after_kernarg()
stamp(1)
A("v_lshrrev_b32 v7, 2, v5")
A("v_lshl_add_u32 v7, v7, 4, v5")
A("v_lshlrev_b32 v7, 2, v7")
A("s_lshl_b32 s55, s2, 6")
A(f"s_add_u32 s55, s55, {ESTAT}")
A("v_lshl_add_u32 v122, v1, 3, s55")
A("s_lshl_b32 s56, s2, 3")
A("s_sub_u32 s56, 2047, s56")
A("v_sub_u32 v9, s56, v1")
for r, m in ((40, 0x22222222), (42, 0x44444444), (44, 0x88888888), (46, 0xff00ff00)):
    A(f"s_mov_b32 s{r}, {m:#x}")
    A(f"s_mov_b32 s{r+1}, {m:#x}")
A("s_lshl_b32 s55, s2, 4")
A(f"s_add_u32 s55, s55, {CAND}")
A("v_mov_b32 v8, s55")
for s in range(10):
    A(f"s_waitcnt vmcnt({19-s})")
    c = "0" if s == 0 else "v[100:103]"
    A(f"v_mfma_f32_16x16x32_bf16 v[100:103], {vr(16+4*s,4)}, {vr(16+4*s,4)}, {c}")
stamp(2)
for s in range(10):
    A(f"s_waitcnt vmcnt({9-s})")
    c = "0" if s == 0 else "v[104:107]"
    A(f"v_mfma_f32_16x16x32_bf16 v[104:107], {vr(56+4*s,4)}, {vr(16+4*s,4)}, {c}")
    c = "0" if s == 0 else "v[108:111]"
    A(f"v_mfma_f32_16x16x32_bf16 v[108:111], {vr(56+4*s,4)}, v[96:99], {c}")
    if s == 3:
        A("v_cndmask_b32 v100, v100, v101, s[40:41]")
        A("v_cndmask_b32 v100, v100, v102, s[42:43]")
        A("v_cndmask_b32 v100, v100, v103, s[44:45]")
        A("ds_bpermute_b32 v100, v7, v100")
stamp(9)
make_tag()
ROR8 = "row_ror:8 row_mask:0xf bank_mask:0xf"
A(f"v_add_f32_dpp v100, v100, v100 {ROR8}")
A("v_mul_f32 v100, 0x3acccccd, v100")
A(f"v_mov_b32 v121, {sTAG}")
A("v_mov_b32 v14, 0")
A(f"v_add_f32_dpp v104, v104, v104 {ROR8}")
A("v_cndmask_b32 v105, v105, v106, s[46:47]")
A("v_mul_f32 v104, 0x3acccccd, v104")
A("v_add_f32 v109, v109, v110")
A("v_fma_f32 v100, -v104, v104, v100")
A(f"v_add_f32_dpp v105, v105, v105 {ROR8}")
A("v_max_f32 v100, 0, v100")
A("v_cvt_pk_bf16_f32 v104, v104, v100")
A(f"v_and_b32 v100, {sHI}, v104")
A("v_add_f32 v100, 0x3727c5ac, v100")
A("v_cvt_pk_bf16_f32 v100, v100, v100")
A(f"v_and_b32 v100, {sHI}, v100")
A("v_sqrt_f32 v100, v100")
A("v_lshlrev_b32 v106, 16, v104")
A("v_cvt_pk_bf16_f32 v120, v106, v100")
A(f"v_and_b32 v100, {sHI}, v120")
A("v_rcp_f32 v100, v100")
A("v_fma_f32 v105, -v106, v109, v105")
A("v_mul_f32 v105, v105, v100")
A("v_cvt_pk_bf16_f32 v105, v105, v105")
A("v_ashrrev_i32 v106, 31, v105")
A("v_or_b32 v106, 0x80000000, v106")
A("v_xor_b32 v105, v105, v106")
A(f"v_and_or_b32 v12, v105, {sHI}, v9")
merge_dpp(12, (1, 2, 4))
A(f"v_mov_b32 v13, {sTAG}")
A(f"v_mov_b32 v15, {sTAG}")
setexec(1)
A(f"buffer_store_dwordx4 v[12:15], v8, {WS}, 0 offen sc1")
setexec(0xff)
A(f"buffer_store_dwordx2 v[120:121], v122, {WS}, 0 offen sc1")
setexec(ALL)
stamp(8)
A(f"s_cmp_ge_u32 {sJ}, 20")
A("s_cbranch_scc1 L_b1")
A("s_lshl_b32 s54, s53, 14")
A(f"s_add_u32 s55, s54, {KVT}")
A("v_lshl_add_u32 v2, v0, 7, s55")
A(f"s_lshl_b32 s55, {sX}, 11")
A(f"s_add_u32 s55, s55, {FLG}")
A("v_and_b32 v3, 15, v0")
A("v_lshl_add_u32 v3, v3, 7, s55")
A("s_movk_i32 s55, 8192")
if not OPT["nopre"]:
    A(f"buffer_load_dword v127, v2, {WS}, 0 offen sc1")
    A(f"buffer_load_dword v127, v2, {WS}, s55 offen sc1")
A(f"buffer_load_dword v127, v3, {WS}, 0 offen sc1")
srd(48, pH, TBYTES)
A("v_lshlrev_b32 v2, 4, v0")
for c in range(0 if OPT["noh"] else 4):
    A(f"s_mov_b32 m0, {LA + c*A_C + 3*A_CP + 48}")
    for i in range(4):
        A(f"buffer_load_dwordx4 v2, s[48:51], s54 offen offset:{1024*i} lds")
    A("s_add_u32 s54, s54, 4096")
stamp(11)
A("L_b1:")
A("s_lshl_b32 s59, s2, 7")
A(f"s_add_u32 s59, s59, {ARR}")
A(f"v_mov_b32 v10, {sTAG}")
A(f"v_mov_b32 v11, {sXCC}")
A("v_mov_b32 v12, s59")
A("s_barrier")
setexec(1)
A(f"buffer_store_dwordx2 v[10:11], v12, {WS}, 0 offen sc1")
setexec(ALL)
A("s_cmp_ge_u32 s63, 8")
A("s_cbranch_scc1 L_kvdone")
A("s_branch L_moe")

A("L_not7:")
A("s_cmp_lt_u32 s63, 8")
A("s_cbranch_scc1 L_nonp1")
A("v_subrev_u32 v9, 64, v9")
A("s_mul_i32 s60, s58, 11")
A("s_min_u32 s60, s60, 245")
A(f"s_mul_i32 s55, s60, {8*1280}")
A(f"s_mul_i32 s54, {sX}, 160")
A("s_add_u32 s55, s55, s54")
A(f"s_sub_u32 s55, s55, {8*1280}")
A(f"v_mov_b32 v7, {OOB:#x}")
for i in range(3):
    d = 1 + i
    A(f"v_add_u32 v4, {12+448*i}, v9")
    A("v_mul_u32_u24 v5, 1619, v4")
    A("v_lshrrev_b32 v5, 17, v5")
    A("v_mul_u32_u24 v6, 81, v5")
    if i == 0:
        A("v_cmp_gt_u32 vcc, 50, v4")
    A("v_sub_u32 v4, v4, v6")
    A("v_mul_u32_u24 v6, 205, v4")
    A("v_lshrrev_b32 v6, 11, v6")
    A("v_lshl_add_u32 v5, v5, 3, v6")
    A("v_mul_u32_u24 v6, 10, v6")
    A("v_sub_u32 v4, v4, v6")
    A("v_mul_u32_u24 v5, 1280, v5")
    A("v_lshl_add_u32 v5, v4, 4, v5")
    A(f"v_add_u32 v{d}, s55, v5")
    if i == 0:
        A("v_cndmask_b32 v1, v1, v7, vcc")
A("v_min_u32 v9, 439, v9")
A("v_mul_u32_u24 v7, 2979, v9")
A("v_lshrrev_b32 v7, 15, v7")
A("v_mul_u32_u24 v8, 11, v7")
A("v_sub_u32 v8, v9, v8")
A(f"s_mul_i32 s54, {sX}, 640")
A("v_lshl_add_u32 v9, v7, 4, s54")
A(f"s_lshl_b32 s56, {sW}, 10")
A(f"s_add_u32 s56, s56, {LS + 12*16 - 1024}")
after_kernarg()
srd(40, pK, TBYTES)
srd(44, pV, TBYTES)
if OPT["bq"]:
    A("s_barrier")
for i in range(3):
    if i == 2:
        A(f"s_cmp_lg_u32 {sW}, 1")
        A("s_cbranch_scc1 L_no3")
    for t, r in enumerate((40, 44)):
        A(f"s_add_u32 m0, s56, {t*S_T + 7168*i}")
        A(f"buffer_load_dwordx4 v{1+i}, s[{r}:{r+3}], 0 offen lds")
A("L_no3:")
A(f"global_load_dwordx4 v[20:23], v9, {sp(pSH)}")
A("s_lshl_b32 s62, s53, 2")
A(f"s_and_b32 s54, {sW}, 3")
A("s_add_u32 s62, s62, s54")
A("s_min_u32 s62, s62, 639")
A("s_lshl_b32 s54, s62, 1")
A("s_and_b32 s54, s54, -4")
A(f"s_load_dword s63, {sp(pD)}, s54")
stamp(1)
A("v_mul_u32_u24 v1, 1296, v8")
A("v_lshl_add_u32 v1, v7, 2, v1")
A(f"v_add_u32 v1, {LS}, v1")
A(f"s_mul_i32 s55, {sX}, {80*4096}")
A("s_lshl_b32 s57, s60, 4")
A("s_add_u32 s55, s55, s57")
A(f"s_add_u32 s55, s55, {KVT}")
A("v_lshlrev_b32 v5, 13, v7")
A("v_lshl_add_u32 v5, v8, 4, v5")
A("v_add_u32 v5, s55, v5")
A(f"s_cmp_lg_u32 {sW}, 3")
A("s_cbranch_scc1 L_nz")
for i in range(4):
    A(f"v_mov_b32 v{16+i}, 0")
A("v_lshrrev_b32 v2, 5, v0")
A(f"v_mul_u32_u24 v2, {U_P}, v2")
A("v_and_b32 v3, 31, v0")
A("v_min_u32 v3, 27, v3")
A("v_lshl_add_u32 v2, v3, 4, v2")
A(f"v_add_u32 v2, {LU}, v2")
for c in range(4):
    A(f"ds_write_b128 v2, v[16:19] offset:{c*U_C}")
A("v_lshrrev_b32 v2, 2, v0")
A(f"v_mul_u32_u24 v2, {A_CP}, v2")
A("v_and_b32 v3, 3, v0")
A("v_min_u32 v3, 2, v3")
A("v_lshl_add_u32 v2, v3, 4, v2")
A("ds_write_b128 v2, v[16:19]")
A("L_nz:")
make_tag()
A("s_waitcnt vmcnt(0)")
A("v_lshlrev_b32 v10, 16, v20")
A("v_lshlrev_b32 v11, 16, v22")
A(f"v_and_b32 v12, {sHI}, v20")
A(f"v_and_b32 v13, {sHI}, v22")
A("v_lshlrev_b32 v14, 16, v21")
A("v_lshlrev_b32 v15, 16, v23")
A(f"v_and_b32 v16, {sHI}, v21")
A(f"v_and_b32 v17, {sHI}, v23")
A("s_barrier")
stamp(2, True)


def koff(t):
    return (1296 + 160*t) if t >= 0 else 160*(8 + t)


def Kp(t):
    return vr(40 + 2*(t + 3), 2)


for i, t in enumerate(range(-3, 8)):
    A(f"ds_read_b32 v{20+i}, v1 offset:{koff(t)}")
for t in range(4):
    A(f"ds_read_b32 v{32+t}, v1 offset:{S_T + koff(t)}")
for i in range(11):
    if i in (0, 4, 8):
        A(f"s_waitcnt lgkmcnt({(11, 7, 8)[i//4]})")
    A(f"v_lshlrev_b32 v{40+2*i}, 16, v{20+i}")
    A(f"v_and_b32 v{41+2*i}, {sHI}, v{20+i}")
    if i == 7:
        for t in range(4, 8):
            A(f"ds_read_b32 v{32+t}, v1 offset:{S_T + koff(t)}")
for t in range(8):
    A(f"v_pk_mul_f32 {vr(96+2*t,2)}, v[16:17], {Kp(t-3)}")
for t in range(8):
    A(f"v_pk_fma_f32 {vr(96+2*t,2)}, v[14:15], {Kp(t-2)}, {vr(96+2*t,2)}")
for t in range(8):
    A(f"v_pk_fma_f32 {vr(96+2*t,2)}, v[12:13], {Kp(t-1)}, {vr(96+2*t,2)}")
for t in range(8):
    A(f"v_pk_fma_f32 {vr(96+2*t,2)}, v[10:11], {Kp(t)}, {vr(96+2*t,2)}")
A("s_waitcnt lgkmcnt(0)")
for t in range(8):
    A(f"v_lshlrev_b32 v{62+2*t}, 16, v{32+t}")
    A(f"v_and_b32 v{63+2*t}, {sHI}, v{32+t}")
for t in range(8):
    A(f"v_pk_mul_f32 {vr(96+2*t,2)}, {vr(96+2*t,2)}, {vr(62+2*t,2)}")
A("s_mov_b32 s55, 4096")
for c in range(2):
    for i in range(4):
        A(f"v_cvt_pk_bf16_f32 v{80+4*c+i}, v{96+2*(7-2*i)+c}, v{96+2*(6-2*i)+c}")
    A(f"buffer_store_dwordx4 {vr(80+4*c,4)}, v5, {WS}, {'s55' if c else '0'} offen")
stamp(3)
A("L_kvdone:")
A(f"s_lshl_b32 s55, {sX}, 11")
A("s_lshl_b32 s57, s58, 3")
A("s_add_u32 s57, s57, s55")
A(f"v_mov_b32 v10, {sTAG}")
A(f"v_mov_b32 v11, {sXCC}")
A("v_mov_b32 v12, s57")
A(f"v_min_u32 v1, {NP1-1}, v0")
A("v_lshl_add_u32 v1, v1, 3, s55")
A("s_lshl_b32 s54, s53, 2")
A(f"s_add_u32 s54, s54, {sW}")
A("s_lshl_b32 s54, s54, 12")
A(f"s_add_u32 s54, s54, {KVT}")
A("v_lshl_add_u32 v13, v0, 4, s54")
A("v_subrev_u32 v14, 16, v13")
A("v_cmp_eq_u32 vcc, 0, v0")
A(f"v_mov_b32 v3, {OOB:#x}")
A("v_cndmask_b32 v14, v14, v3, vcc")
A(f"s_mov_b32 s55, {FLG}")
A("s_mov_b32 s59, 0")
A(f"s_mov_b32 s60, {KVT}")
A(f"s_mov_b32 s61, {FLG}")
A("s_waitcnt vmcnt(0)")
A("s_barrier")
stamp(4, True)
A(f"s_cmp_ge_u32 {sW}, 4")
A("s_cbranch_scc1 L_hi4")
A(f"s_cmp_lg_u32 {sW}, 0")
A("s_cbranch_scc1 L_poll")
setexec(1)
A(f"buffer_store_dwordx2 v[10:11], v12, {WS}, s55 offen")
setexec(ALL)
A("L_poll:")
A(f"buffer_load_dwordx2 v[2:3], v1, {WS}, s55 offen sc1")
A("s_add_u32 s59, s59, 1")
A("s_waitcnt vmcnt(0)")
A("v_cmp_eq_u64 vcc, s[6:7], v[2:3]")
A("s_cmp_eq_u64 vcc, -1")
A("s_cbranch_scc1 L_synced")
A("s_and_b32 s57, s59, 15")
A("s_cmp_lg_u32 s57, 0")
A("s_cbranch_scc1 L_poll")
A("s_branch L_slowsync")
A("L_synced:")
stamp(5)
A(f"s_cmp_ge_u32 {sJ}, 20")
A("s_cbranch_scc1 L_final")

for i in range(4):
    A(f"buffer_load_dwordx4 {vr(16+4*i,4)}, v13, {WS}, 0 offen offset:{1024*i} sc1")
    if i == 0:
        A(f"buffer_load_dword v32, v14, {WS}, 0 offen sc1")
    else:
        A(f"buffer_load_dword v{32+i}, v13, {WS}, 0 offen offset:{1024*i-16} sc1")
A(f"s_mul_i32 s55, {sW}, {U_C}")
A(f"s_add_u32 s55, s55, {LU + 28*16}")
A("v_lshl_add_u32 v7, v0, 4, s55")
A(f"v_mov_b32 v2, {LF}")
A("v_mov_b32 v3, s61")
A("ds_write_b32 v2, v3")
for i in range(4):
    A(f"s_waitcnt vmcnt({2*(3-i)})")
    b = 16 + 4*i
    A(f"ds_write_b128 v7, {vr(b,4)} offset:{U_P + 1024*i}")
    A(f"v_alignbyte_b32 v{40+4*i}, v{b+1}, v{b}, 2")
    A(f"v_alignbyte_b32 v{41+4*i}, v{b+2}, v{b+1}, 2")
    A(f"v_alignbyte_b32 v{42+4*i}, v{b+3}, v{b+2}, 2")
    A(f"v_alignbyte_b32 v{43+4*i}, v{32+i}, v{b+3}, 2")
    A(f"ds_write_b128 v7, {vr(40+4*i,4)} offset:{1024*i}")
stamp(6)
A("s_waitcnt lgkmcnt(0)")
A("s_barrier")

A("L_final:")
if OPT["noepi"]:
    A("s_cmp_lt_u32 s58, 22")
    A("s_cbranch_scc1 L_fin")
A("s_cmp_ge_u32 s58, 22")
A("s_cbranch_scc1 L_special")
XR, SR = (48, 56), (16, 32)
XN, CC = (64, 96), (80, 112)
OCT, CPO, QOF = (1, 2), (3, 3), (5, 6)
A(f"s_mul_i32 s54, {sX}, 160")
A(f"s_lshl_b32 s55, {sW}, 6")
A("s_mul_i32 s56, s58, 6")
A("s_min_u32 s56, s56, 122")
A("v_add_u32 v8, s55, v0")
A("v_min_u32 v8, 239, v8")
A("v_mul_u32_u24 v9, 1639, v8")
A("v_lshrrev_b32 v9, 16, v9")
A("v_mul_u32_u24 v10, 40, v9")
A("v_sub_u32 v8, v8, v10")
A("v_add_u32 v1, s56, v9")
A("v_add_u32 v2, 128, v1")
A("v_lshlrev_b32 v3, 3, v8")
A("v_mul_u32_u24 v9, 10240, v1")
A("v_lshl_add_u32 v9, v8, 2, v9")
A("v_add_u32 v5, s54, v9")
A(f"v_add_u32 v6, {1024*1280}, v5")
srd(40, pQ, TBYTES)
A("s_movk_i32 s49, 5120")
A(f"s_mov_b32 s57, {ESTAT}")
A(f"s_mov_b32 s58, {CAND}")
A("v_lshlrev_b32 v7, 4, v0")
A(f"v_lshlrev_b32 v8, 6, v{OCT[0]}")
A(f"v_lshlrev_b32 v9, 6, v{OCT[1]}")


def stat_loads(fl):
    for task in range(2):
        for i in range(4):
            A(f"buffer_load_dwordx4 {vr(SR[task]+4*i,4)}, v{8+task}, {WS}, s57 offen offset:{16*i}{fl}")


def rows(op, reg, task):
    for t in range(8):
        A(f"buffer_{op}_dword v{reg+t}, v{QOF[task]}, s[40:43], {'s49' if t >= 4 else '0'} offen offset:{1280*(t&3)}")


stat_loads("")
cand_loads(96, 7, "s58", "")
rows("load", XR[0], 0)
rows("load", XR[1], 1)
A(f"s_mov_b32 s40, s{pOUT}")
A(f"s_mov_b32 s41, s{pOUT+1}")
A("s_waitcnt vmcnt(20)")
tag_check("L_st", [17 + 2*i for i in range(16)], lambda: stat_loads(" sc1"))
for t in range(16):
    st = 16 + 2*t
    A(f"v_and_b32 v{st+1}, {sHI}, v{st}")
    A(f"v_rcp_f32 v{st+1}, v{st+1}")
    A(f"v_lshlrev_b32 v{st}, 16, v{st}")
for t in range(16):
    st = 16 + 2*t
    A(f"v_mul_f32 v{st}, v{st}, v{st+1}")
A("s_waitcnt vmcnt(16)")
tag_check("L_cc", [97 + 2*i for i in range(8)], lambda: cand_loads(96, 7, "s58", " sc1"))
top2_merge(96)
A("s_andn2_b32 s62, 0x7ff, s54")
A("s_andn2_b32 s63, 0x7ff, s55")
stamp(12)
for task in range(2):
    A(f"s_waitcnt vmcnt({8 - 8*task})")
    for t in range(8):
        st, xn, cc = SR[task] + 2*t, XN[task] + 2*t, CC[task] + 2*t
        A(f"v_lshlrev_b32 v{cc}, 16, v{XR[task]+t}")
        A(f"v_and_b32 v{cc+1}, {sHI}, v{XR[task]+t}")
        A(f"v_fma_f32 v{xn}, v{cc}, v{st+1}, -v{st}")
        A(f"v_fma_f32 v{xn+1}, v{cc+1}, v{st+1}, -v{st}")
        A(f"v_add_f32 v{cc}, v{cc}, v{xn}")
        A(f"v_add_f32 v{cc+1}, v{cc+1}, v{xn+1}")
stamp(7)
A(f"s_mul_i32 s54, {sX}, {80*4096}")
A("s_add_u32 s60, s60, s54")
A("s_add_u32 s48, s60, 4096")
A(f"s_lshl_b32 s54, {sX}, 11")
A("s_add_u32 s61, s61, s54")
A("s_add_u32 s61, s61, 512")


def yflag_poll(lbl, va, so):
    A("s_mov_b32 s59, 0")
    A(f"{lbl}:")
    A(f"buffer_load_dwordx2 v[10:11], v{va}, {WS}, {so} offen sc1")
    A("s_add_u32 s59, s59, 1")
    A("s_waitcnt vmcnt(0)")
    A(f"v_cmp_ne_u32 vcc, {sTAG}, v10")
    A(f"v_cmp_ne_u32 s[54:55], {sTAG}, v11")
    A("s_or_b64 vcc, vcc, s[54:55]")
    A(f"s_cbranch_scc0 {lbl}_ok")
    A(f"s_cmp_lt_u32 s59, {POLL_LIMIT}")
    A(f"s_cbranch_scc1 {lbl}")
    A(f"{lbl}_ok:")


for task in range(2):
    if task == 1:
        A("s_add_u32 s61, s61, 512")
    A(f"v_lshlrev_b32 v8, 10, v{CPO[task]}")
    A(f"v_lshl_add_u32 v8, v{OCT[task]}, 4, v8")
    A("s_lshr_b32 s56, s62, 3")
    A("s_lshr_b32 s57, s63, 3")
    A(f"v_cmp_eq_u32 s[44:45], s56, v{OCT[task]}")
    A(f"v_cmp_eq_u32 s[46:47], s57, v{OCT[task]}")
    yflag_poll(f"L_yf{task}", CPO[task], "s61")
    A(f"buffer_load_dwordx4 v[16:19], v8, {WS}, s60 offen sc1")
    A(f"buffer_load_dwordx4 v[20:23], v8, {WS}, s48 offen sc1")
    stamp(8 + 2*task)
    for c in range(2):
        A(f"s_waitcnt vmcnt({1-c})")
        for i in range(4):
            A(f"v_lshlrev_b32 v{24+2*i}, 16, v{16+4*c+i}")
            A(f"v_and_b32 v{25+2*i}, {sHI}, v{16+4*c+i}")
        for pos in range(8):
            t = 2*(pos & 3) + (pos >> 2)
            A(f"v_fmac_f32 v{CC[task]+2*t+c}, v{XN[task]+2*t+c}, v{24+pos}")
    for t in range(8):
        A(f"v_cvt_pk_bf16_f32 v{32+8*task+t}, v{CC[task]+2*t}, v{CC[task]+2*t+1}")
    A("s_or_b64 s[54:55], s[44:45], s[46:47]")
    A(f"s_cbranch_scc1 L_msk{task}")
    rows("store", 32 + 8*task, task)
    A(f"L_mskd{task}:")
    stamp(9 + 2*task)
A("s_branch L_fin")
for task in range(2):
    A(f"L_msk{task}:")
    A("s_and_b32 s56, s62, 7")
    A("s_and_b32 s57, s63, 7")
    for t in range(8):
        A(f"s_cmp_eq_u32 s56, {t}")
        A("s_cselect_b64 s[54:55], s[44:45], 0")
        A(f"s_cmp_eq_u32 s57, {t}")
        A("s_cselect_b64 vcc, s[46:47], 0")
        A("s_nor_b64 exec, s[54:55], vcc")
        A(f"s_cbranch_execz L_ms{task}_{t}")
        A(f"buffer_store_dword v{32+8*task+t}, v{QOF[task]}, s[40:43], {'s49' if t >= 4 else '0'} offen offset:{1280*(t&3)}")
        A(f"L_ms{task}_{t}:")
    setexec(ALL)
    A(f"s_branch L_mskd{task}")

A("L_special:")
A("v_min_u32 v1, 39, v0")
A(f"s_cmp_lg_u32 {sW}, 0")
A("s_cbranch_scc1 L_sp1")
A("v_lshlrev_b32 v7, 4, v0")
A(f"s_mov_b32 s58, {CAND}")
cand_loads(16, 7, "s58", " sc1")
A("s_waitcnt vmcnt(0)")
tag_check("L_sc", [17 + 2*i for i in range(8)], lambda: cand_loads(16, 7, "s58", " sc1"))
top2_merge(16)
A(f"s_cmp_eq_u32 {sJ}, 30")
A("s_cselect_b32 s62, s54, s55")
A("s_andn2_b32 s62, 0x7ff, s62")
srd(40, pQ, TBYTES)
A("s_mul_i32 s54, s62, 1280")
A(f"s_mul_i32 s55, {sX}, 160")
A("s_add_u32 s54, s54, s55")
A("v_lshl_add_u32 v2, v1, 2, s54")
A("buffer_load_dword v4, v2, s[40:43], 0 offen")
A("s_lshl_b32 s54, s62, 3")
A(f"s_add_u32 s54, s54, {ESTAT}")
A("v_mov_b32 v3, s54")


def sstat():
    A(f"buffer_load_dwordx2 v[8:9], v3, {WS}, 0 offen sc1")


sstat()
A("s_waitcnt vmcnt(0)")
tag_check("L_ss", [9], sstat)
A(f"v_and_b32 v9, {sHI}, v8")
A("v_rcp_f32 v9, v9")
A("v_lshlrev_b32 v8, 16, v8")
A("v_lshlrev_b32 v50, 16, v4")
A(f"v_and_b32 v51, {sHI}, v4")
A("v_sub_f32 v48, v50, v8")
A("v_sub_f32 v49, v51, v8")
A("v_mul_f32 v48, v48, v9")
A("v_mul_f32 v49, v49, v9")
A("v_add_f32 v50, v50, v48")
A("v_add_f32 v51, v51, v49")
A(f"s_lshl_b32 s55, {sX}, 11")
A("s_add_u32 s61, s61, s55")
A("s_add_u32 s58, s61, 512")
A("v_lshlrev_b32 v3, 3, v1")
yflag_poll("L_s0", 3, "s58")
A("L_sp1:")
A(f"s_sub_u32 s54, {sJ}, 30")
A("s_mul_i32 s54, s54, 640")
A(f"s_mul_i32 s55, {sX}, 1280")
A("s_add_u32 s54, s54, s55")
A(f"s_mul_i32 s55, {sW}, 10240")
A("s_add_u32 s54, s54, s55")
A(f"s_add_u32 s54, s54, {PART}")
A("v_lshl_add_u32 v5, v1, 4, s54")
A(f"s_cmp_lt_u32 {sW}, 6")
A("s_cselect_b32 s57, 6, 5")
A("s_cselect_b32 s58, 1.0, 0")
A("s_mul_i32 s57, s57, 81920")


def part_loads():
    A("s_mov_b32 s56, 0")
    for i in range(7):
        A(f"buffer_load_dwordx4 {vr(16+4*i,4)}, v5, {WS}, {'s57' if i == 6 else 's56'} offen sc1")
        if i < 5:
            A("s_add_u32 s56, s56, 81920")


A("s_barrier")
part_loads()
A("s_waitcnt vmcnt(0)")
tag_check("L_pp", [17 + 2*i for i in range(14)], part_loads)
stamp(8)
for c in range(2):
    A(f"v_mul_f32 v{40+2*c}, s58, v{40+2*c}")
for i in (4, 2, 0):
    for c in range(2):
        A(f"v_add_f32 v{16+4*i+2*c}, v{16+4*i+2*c}, v{20+4*i+2*c}")
    for c in range(2):
        A(f"v_add_f32 v{40+2*c}, v{40+2*c}, v{16+4*i+2*c}")
A("v_mov_b32 v41, v42")
A(f"s_lshl_b32 s54, {sW}, 9")
A("v_lshl_add_u32 v6, v0, 3, s54")
A("ds_write_b64 v6, v[40:41]")
A("s_waitcnt lgkmcnt(0)")
A("s_barrier")
A(f"s_cmp_lg_u32 {sW}, 0")
A("s_cbranch_scc1 L_fin")
A("v_lshrrev_b32 v6, 3, v1")
A("v_bfe_u32 v7, v1, 1, 2")
A("v_mad_u32_u24 v6, v7, 5, v6")
A("v_and_b32 v7, 1, v1")
A("v_mad_u32_u24 v6, v7, 20, v6")
A("v_lshlrev_b32 v6, 3, v6")
for i in range(8):
    A(f"ds_read_b64 {vr(16+2*i,2)}, v6 offset:{512*i}")
A("s_lshr_b32 s54, s62, 10")
A("s_add_u32 s54, s54, 1")
A("s_lshl_b32 s54, s54, 9")
A("s_add_u32 s61, s61, s54")
A(f"s_mul_i32 s54, {sX}, {80*4096}")
A("s_add_u32 s60, s60, s54")
A("s_lshr_b32 s54, s62, 3")
A("s_lshl_b32 s54, s54, 4")
A("s_add_u32 s60, s60, s54")
A("s_and_b32 s54, s62, 1")
A("s_lshl_b32 s54, s54, 3")
A("s_add_u32 s60, s60, s54")
A("s_and_b32 s54, s62, 6")
A("s_add_u32 s60, s60, s54")
A("s_add_u32 s48, s60, 4096")
A("v_lshlrev_b32 v7, 13, v1")
A("s_waitcnt lgkmcnt(0)")
for i in range(1, 8):
    A(f"v_add_f32 v16, v16, v{16+2*i}")
    A(f"v_add_f32 v17, v17, v{17+2*i}")
A("v_add_f32 v50, v50, v16")
A("v_add_f32 v51, v51, v17")
yflag_poll("L_sy", 3, "s61")
A(f"buffer_load_ushort v16, v7, {WS}, s60 offen sc1")
A(f"buffer_load_ushort v17, v7, {WS}, s48 offen sc1")
A("s_waitcnt vmcnt(0)")
A("v_lshlrev_b32 v16, 16, v16")
A("v_lshlrev_b32 v17, 16, v17")
A("v_fmac_f32 v50, v48, v16")
A("v_fmac_f32 v51, v49, v17")
A("v_cvt_pk_bf16_f32 v50, v50, v51")
srd(40, pOUT, TBYTES)
A("buffer_store_dword v50, v2, s[40:43], 0 offen")
stamp(9)
A("s_branch L_fin")

A("L_slowsync:")
A(f"v_min_u32 v4, {NP1-1}, v0")
A("v_add_u32 v5, 8, v4")
A("v_cmp_gt_u32 vcc, 20, v4")
A("v_cndmask_b32 v4, v5, v4, vcc")
A("v_lshlrev_b32 v4, 10, v4")
A(f"s_lshl_b32 s57, {sX}, 7")
A(f"s_add_u32 s57, s57, {ARR}")
A(f"buffer_load_dwordx2 v[2:3], v4, {WS}, s57 offen sc1")
A("s_waitcnt vmcnt(0)")
A(f"v_cmp_eq_u32 vcc, {sTAG}, v2")
A(f"v_cmp_ne_u32 s[56:57], {sXCC}, v3")
A("s_and_b64 vcc, vcc, s[56:57]")
A("s_cbranch_scc1 L_fb")
A(f"s_cmp_lt_u32 s59, {POLL_LIMIT}")
A("s_cbranch_scc1 L_poll")
A("s_branch L_synced")
A("L_fb:")
A(f"s_mov_b32 s57, {FLB}")
A(f"s_mov_b32 s60, {YT2}")
A(f"s_mov_b32 s61, {FLB}")
A(f"s_cmp_lg_u32 {sW}, 0")
A("s_cbranch_scc1 L_nowb")
A("buffer_wbl2 sc1")
A("s_waitcnt vmcnt(0)")
setexec(1)
A(f"buffer_store_dwordx2 v[10:11], v12, {WS}, s57 offen sc1")
setexec(ALL)
A("L_nowb:")
A(f"s_cmp_ge_u32 {sJ}, 20")
A("s_cbranch_scc1 L_synced")
A("s_mov_b32 s59, 0")
A("L_pollb:")
A(f"buffer_load_dwordx2 v[2:3], v1, {WS}, s57 offen sc1")
A("s_add_u32 s59, s59, 1")
A("s_waitcnt vmcnt(0)")
A(f"v_cmp_eq_u32 vcc, {sTAG}, v2")
A("s_cmp_eq_u64 vcc, -1")
A("s_cbranch_scc1 L_bok")
A("s_sleep 2")
A(f"s_cmp_lt_u32 s59, {POLL_LIMIT}")
A("s_cbranch_scc1 L_pollb")
A("L_bok:")
A("buffer_inv sc1")
A("s_waitcnt vmcnt(0)")
A("s_branch L_synced")

A("L_hi4:")
A(f"s_cmp_lt_u32 {sJ}, 20")
A("s_cbranch_scc1 L_mfma")
A(f"s_cmp_ge_u32 {sJ}, 30")
A("s_cbranch_scc1 L_special")
A(f"s_cmp_lg_u32 s2, {28*8}")
A("s_cbranch_scc1 L_fin")
A(f"s_cmp_lg_u32 {sW}, 7")
A("s_cbranch_scc1 L_fin")
A("v_lshlrev_b32 v1, 7, v0")
for i in range(4):
    A(f"s_mov_b32 s{54+i}, {ARR + 8192*i}")


def arr_loads():
    A("s_sleep 8")
    for i in range(4):
        A(f"buffer_load_dword v{6+i}, v1, {WS}, s{54+i} offen sc1")


arr_loads()
A("s_waitcnt vmcnt(0)")
tag_check("L_ep", [6, 7, 8, 9], arr_loads)
A(f"v_mov_b32 v10, {sTAG}")
A(f"v_mov_b32 v11, {EPOCH}")
setexec(1)
A(f"buffer_store_dword v10, v11, {WS}, 0 offen sc1")
setexec(ALL)
A("s_branch L_fin")

A("L_mfma:")
A(f"s_sub_u32 s53, {sW}, 4")
A(f"s_mul_i32 s54, s53, {A_C}")
A("v_lshl_add_u32 v8, v0, 4, s54")
for i in range(4):
    A(f"ds_read_b128 {vr(16+16*i,4)}, v8 offset:{3*A_CP + 32 + 1024*i}")
    A(f"ds_read_b128 {vr(20+16*i,4)}, v8 offset:{3*A_CP + 48 + 1024*i}")
for i in range(4):
    b = 16 + 16*i
    A(f"s_waitcnt lgkmcnt({6 + i})")
    A(f"ds_write_b128 v8, {vr(b+2,4)} offset:{A_CP + 48 + 1024*i}")
    for q in range(6):
        A(f"v_mov_b32 v{b+8+q}, v{b+1+q}")
    A(f"ds_write_b128 v8, {vr(b+8,4)} offset:{48 + 1024*i}")
    A(f"ds_write_b128 v8, {vr(b+10,4)} offset:{2*A_CP + 48 + 1024*i}")
A("v_and_b32 v6, 3, v0")
A(f"v_mul_u32_u24 v1, {A_CP}, v6")
A("v_bfe_u32 v6, v0, 2, 2")
A("v_lshrrev_b32 v7, 4, v0")
A("v_add_u32 v6, v6, v7")
A("v_lshl_add_u32 v1, v6, 4, v1")
A("v_add_u32 v1, s54, v1")
A("v_and_b32 v6, 1, v0")
A(f"v_mul_u32_u24 v2, {U_P}, v6")
A("v_bfe_u32 v6, v0, 1, 3")
A("v_lshlrev_b32 v6, 2, v6")
A("v_sub_u32 v6, v6, v7")
A("v_lshl_add_u32 v2, v6, 4, v2")
A(f"s_mul_i32 s54, s53, {U_C}")
A(f"s_add_u32 s54, s54, {LU + 48}")
A("v_add_u32 v2, s54, v2")
A("v_bfe_u32 v6, v0, 1, 3")
A("v_lshl_add_u32 v6, v6, 2, v7")
A("v_and_b32 v5, 1, v0")
A("v_lshlrev_b32 v4, 4, v6")
A("v_lshl_add_u32 v4, v5, 3, v4")
A("s_lshl_b32 s54, s62, 12")
A("v_add_u32 v4, s54, v4")
A(f"s_mul_i32 s54, {sX}, {2048 - 320}")
A("s_lshl_b32 s55, s62, 2")
A("s_add_u32 s54, s54, s55")
A("v_mov_b32 v5, s54")
A(f"v_mov_b32 v6, {sTAG}")
A(f"v_mov_b32 v7, {LF}")
A("s_bitcmp1_b32 s62, 0")
A("s_cselect_b32 s54, 16, 0")
A("s_lshr_b32 s63, s63, s54")
A("s_and_b32 s63, s63, 0xffff")
A("v_lshrrev_b32 v12, 4, v0")
A("v_and_b32 v13, 15, v0")
A("v_lshl_add_u32 v12, v12, 2, v13")
A("v_mov_b32 v13, s63")
for i in range(4):
    A(f"v_cmp_eq_u32 vcc, {15-i}, v12")
    A(f"v_cndmask_b32 v{8+i}, 0, v13, vcc")
A(f"s_mov_b32 s60, {KVT}")
A(f"s_mov_b32 s61, {FLG}")
A(f"s_mov_b32 s56, {YT2}")
A(f"s_mov_b32 s57, {FLB}")
A("s_waitcnt lgkmcnt(0)")
n = 0
for rho in range(OPT["resid"]):
    for a in range(4):
        A(f"ds_read_b128 a[{(rho*4+a)*4}:{(rho*4+a)*4+3}], v1 offset:{64*rho + 512*a}")
        n += 1
        if n % 8 == 0:
            A("s_waitcnt lgkmcnt(7)")
stamp(5)
if OPT["prio"]:
    A(f"s_setprio {OPT['prio']}")
A("s_waitcnt lgkmcnt(0)")
A("s_barrier")
if PROF:
    A("s_memtime s[90:91]")
stamp(6, True)


slow_sites = []


def ystore(txt_fast, txt_slow):
    k = len(slow_sites)
    slow_sites.append(txt_slow)
    return f"s_cbranch_scc1 L_ys{k}\n{txt_fast}\nL_yr{k}:"


def mfma_schedule():
    passes = [(0, 1, 2, 3), (4, 5, 6, 7)]
    seq = []
    for pi, tiles in enumerate(passes):
        for rho in range(8):
            for b in range(max(tiles) + 1):
                for n in tiles:
                    if n >= b:
                        a = n - b
                        ak = ("A", a, rho) if a <= 3 else ("A", a, rho, pi)
                        seq.append((pi, n, ak, ("B", b, rho, pi)))
                        if a == 0 and rho == 0:
                            seq.append((pi, n, ("D",), ("B", b, rho, pi)))
    N = len(seq)
    end = [max(i for i, e in enumerate(seq) if e[0] == pi) for pi in range(2)]
    reg, pos = {}, {}
    side = {}

    def put(i, key, fn):
        while len(side.get(i, [])) >= 1 and i < N - 1:
            i += 1
        side.setdefault(i, []).append((key, fn))
        return i

    def acc(n, t):
        return 96 + 4*n + t

    def pack_store(n, i):
        i = put(i, None, lambda n=n: f"v_cvt_pk_bf16_f32 v{acc(n,0)}, v{acc(n,0)}, v{acc(n,1)}")
        i = put(i, None, lambda n=n: f"v_cvt_pk_bf16_f32 v{acc(n,1)}, v{acc(n,2)}, v{acc(n,3)}")
        return put(i, None, lambda n=n: ystore(
            f"buffer_store_dwordx2 {vr(acc(n,0),2)}, v4, {WS}, s60 offen offset:{512*n}",
            f"buffer_store_dwordx2 {vr(acc(n,0),2)}, v4, {WS}, s56 offen offset:{512*n} sc1"))

    def flag(pi, i):
        return put(i, None, lambda pi=pi: "s_waitcnt vmcnt(0)\ns_mov_b64 exec, 1\n" + ystore(
            f"buffer_store_dword v6, v5, {WS}, s61 offen offset:{512*(pi+1)}",
            f"buffer_store_dword v6, v5, {WS}, s57 offen offset:{512*(pi+1)} sc1") + "\ns_mov_b64 exec, -1")

    put(24, ("M",), lambda: f"v_readfirstlane_b32 s54, v15\ns_cmp_lg_u32 s54, {FLG}")
    i = end[0] + 5
    for n in passes[0]:
        i = pack_store(n, i)
    flag(0, i + OPT["ackgap"])

    first, last = {}, {}
    for i, (_, _, ak, bk) in enumerate(seq):
        ks = [k for k in (bk, ak) if len(k) == 4 or (len(k) == 3 and k[2] >= OPT["resid"])]
        ks += [k for k, _ in side.get(i, []) if k and k[0] == "K"]
        for k in ks:
            first.setdefault(k, i)
            last[k] = i
    loads = sorted(first, key=lambda k: (first[k], k[0] != "B"))
    free = [16 + 4*s for s in range(20)]
    issued = []
    st = dict(done=0, li=0)
    LOOK, SETTLE = OPT["look"], OPT["settle"]
    started = set()

    def rname(k):
        if len(k) == 1:
            return "v[8:11]"
        if len(k) == 3:
            return f"a[{(k[2]*4 + k[1])*4}:{(k[2]*4 + k[1])*4 + 3}]"
        return vr(reg[k], 4)

    def issue_loads(i, maxn):
        cnt = 0
        while st["li"] < len(loads) and cnt < maxn:
            k = loads[st["li"]]
            if first[k] > i + LOOK or len(issued) - st["done"] >= 14 or not free:
                break
            if len(k) == 4:
                reg[k] = free.pop(0)
            if k[0] == "A":
                A(f"ds_read_b128 {rname(k)}, v1 offset:{64*k[2] + 512*k[1]}")
            elif k[0] == "B":
                A(f"ds_read_b128 {rname(k)}, v2 offset:{512*k[1] + 64*(7-k[2])}")
            else:
                A(f"ds_read_b128 {rname(k)}, v3 offset:{512*k[1]}")
            pos[k] = len(issued)
            issued.append((k, i))
            st["li"] += 1
            cnt += 1

    def wait_for(keys, i):
        needp = max([pos[k] for k in keys if k in pos] + [-1]) + 1
        for k in keys:
            assert k in pos or k not in first, (k, i)
        if needp > st["done"]:
            tgt = needp
            while tgt < len(issued) and issued[tgt][1] <= i - SETTLE:
                tgt += 1
            A(f"s_waitcnt lgkmcnt({len(issued) - tgt})")
            st["done"] = tgt

    issue_loads(-1, 10)
    A("ds_read_b32 v15, v7")
    pos[("M",)] = len(issued)
    issued.append((None, -1))
    for i, (pi, n, ak, bk) in enumerate(seq):
        wait_for([ak, bk] + [k for k, _ in side.get(i, []) if k], i)
        a_ = vr(96 + 4*n, 4)
        c = a_ if n in started else "0"
        started.add(n)
        A(f"v_mfma_f32_16x16x32_bf16 {a_}, {rname(ak)}, {rname(bk)}, {c}")
        for k, fn in side.get(i, []):
            t_ = fn()
            if not (OPT["noside"] and t_.startswith("v_") and "readfirst" not in t_):
                A(t_)
        for k in list(reg):
            if last[k] == i:
                free.append(reg[k])
        behind = st["li"] < len(loads) and first[loads[st["li"]]] <= i + 8
        issue_loads(i, OPT["maxn"] + (1 if behind else 0))
    side.clear()
    i = N - 1
    for n in passes[1]:
        pack_store(n, i)
    flag(1, i)
    if PROF:
        A("s_memtime s[92:93]")
    stamp(8)
    for k, fn in side[N-1]:
        A(fn())


mfma_schedule()
stamp(7)
A("s_branch L_fin")
for k, t in enumerate(slow_sites):
    A(f"L_ys{k}:")
    A(t)
    A(f"s_branch L_yr{k}")

A("L_nonp1:")
A("v_lshrrev_b32 v1, 2, v0")
A("v_mul_u32_u24 v1, 3456, v1")
A("v_lshrrev_b32 v2, 4, v0")
A("v_and_b32 v2, 2, v2")
A("v_and_b32 v3, 3, v0")
A("v_xor_b32 v2, v2, v3")
A("v_lshl_add_u32 v100, v2, 4, v1")
A("v_subrev_u32 v9, 64, v9")
for k in range(11):
    A(f"v_add_u32 v1, {256*k}, v9")
    A("v_mul_u32_u24 v2, 1599, v1")
    A("v_lshrrev_b32 v2, 17, v2")
    A("v_mul_u32_u24 v3, 82, v2")
    A("v_sub_u32 v1, v1, v3")
    A("v_min_u32 v1, 79, v1")
    A("v_mul_u32_u24 v2, 1280, v2")
    A(f"v_lshl_add_u32 v{101+k}, v1, 4, v2")
after_kernarg()
if OPT["bq"]:
    A("s_barrier")
if OPT["codewarm"]:
    A("s_getpc_b64 s[54:55]")
    A("L_pc:")
    A(f"s_sub_u32 s54, s54, L_pc-{NAME}_kernel")
    A("s_subb_u32 s55, s55, 0")
    A("v_lshlrev_b32 v1, 7, v9")
    A(f"v_cmp_gt_u32 vcc, L_codeend-{NAME}_kernel, v1")
    A("s_and_saveexec_b64 s[56:57], vcc")
    A("s_cbranch_execz L_nocw")
    A("global_load_dword v127, v1, s[54:55]")
    A("L_nocw:")
    setexec(ALL)
make_tag()
A("s_barrier")

A("L_moe:")
A(f"s_cmp_lt_u32 {sX}, 3")
A("s_cselect_b32 s54, 8, 6")
A("s_cselect_b32 s55, 0, 6")
A("s_cmp_ge_u32 s63, s54")
A("s_cbranch_scc1 L_fin")
A(f"s_mul_i32 s56, {sX}, s54")
A("s_add_u32 s56, s56, s55")
A("s_add_u32 s53, s63, s56")
A("s_mov_b32 s57, 0x3f803f80")
for i in range(4):
    A(f"v_mov_b32 v{16+i}, s57")
A(f"s_mov_b32 s57, {LX + 2*X_P}")
A("v_lshl_add_u32 v2, v0, 4, s57")
A("ds_write_b128 v2, v[16:19]")
A("ds_write_b128 v2, v[16:19] offset:256")
A("v_bfe_u32 v1, v0, 3, 1")
A("v_lshrrev_b32 v2, 4, v0")
A("v_bfe_u32 v10, v0, 2, 2")
A("v_and_b32 v11, 3, v0")
A("v_lshl_add_u32 v14, v2, 3, v10")
A(f"v_mul_u32_u24 v12, {WD_P}, v14")
A(f"s_mul_i32 s57, {sW}, 160")
A(f"s_add_u32 s57, s57, {LWD}")
A("v_lshl_add_u32 v13, v11, 3, s57")
A("v_add_u32 v12, v12, v13")
A(f"s_and_b32 s60, {sW}, 1")
A(f"s_lshr_b32 s61, {sW}, 1")
A("v_lshlrev_b32 v14, 6, v14")
A("v_lshrrev_b32 v15, 1, v11")
A(f"v_mul_u32_u24 v15, {LWU}, v15")
A("v_add_u32 v14, v14, v15")
A("v_and_b32 v15, 1, v11")
A("v_lshl_add_u32 v14, v15, 3, v14")
A("v_and_b32 v15, 1, v2")
A("v_lshlrev_b32 v15, 1, v15")
A("v_xor_b32 v15, s61, v15")
A("v_lshl_add_u32 v14, v15, 4, v14")
A(f"s_mul_i32 s57, s60, {320*64}")
A("v_add_u32 v14, s57, v14")
A("v_and_b32 v10, 7, v0")
A("v_lshl_add_u32 v11, v2, 3, v10")
A("v_lshlrev_b32 v11, 2, v11")
A(f"v_add_u32 v37, {LRED + 512}, v11")
A("v_lshl_add_u32 v36, v1, 8, v11")
A(f"v_add_u32 v36, {LRED}, v36")
A("v_and_b32 v18, 1, v10")
A("v_mov_b32 v19, 0xffff")
A(f"v_mov_b32 v20, {sHI}")
A("v_cmp_eq_u32 vcc, 1, v18")
A("v_cndmask_b32 v18, v19, v20, vcc")
A("v_lshrrev_b32 v13, 1, v10")
for i in range(4):
    A(f"v_cmp_eq_u32 vcc, {i}, v13")
    A(f"v_cndmask_b32 v{80+i}, 0, v18, vcc")
A("v_and_b32 v38, 15, v0")
A("v_lshlrev_b32 v38, 8, v38")
A("v_lshrrev_b32 v39, 1, v2")
A("v_lshl_add_u32 v38, v39, 7, v38")
A("v_and_b32 v39, 1, v2")
A("v_lshl_add_u32 v38, v39, 4, v38")
A("s_mul_i32 s57, s60, 768")
A("s_lshl_b32 s59, s61, 5")
A("s_add_u32 s57, s57, s59")
A(f"s_add_u32 s57, s57, {LRED}")
A("v_add_u32 v38, s57, v38")
A("v_mul_u32_u24 v39, 640, v1")
A("v_lshl_add_u32 v39, v10, 4, v39")
A("v_mul_u32_u24 v15, 80, v2")
A("v_add_u32 v39, v39, v15")
A("s_mul_i32 s57, s53, 10240")
A(f"s_mul_i32 s59, {sW}, 1280")
A("s_add_u32 s57, s57, s59")
A(f"s_add_u32 s57, s57, {PART}")
A("v_add_u32 v39, s57, v39")
A(f"s_mov_b32 s57, {LK}")
A("v_lshl_add_u32 v13, v1, 2, s57")
A("v_and_b32 v6, 15, v0")
A("v_min_u32 v6, 2, v6")
A(f"v_mul_u32_u24 v6, {X_P}, v6")
A("s_mul_i32 s57, s60, 640")
A(f"s_add_u32 s57, s57, {LX}")
A("v_lshl_add_u32 v7, v2, 4, s57")
A("v_add_u32 v6, v6, v7")
for i in range(4):
    A(f"v_mov_b32 v{85+2*i}, {sTAG}")
A(f"s_sub_u32 s58, {sW}, 1")
A(f"s_cmp_ge_u32 s58, {0 if OPT['noW'] else 4}")
A("s_cbranch_scc1 L_noload")
srd(40, pWG, WBYTES)
srd(44, pWU, WBYTES)
srd(48, pWD, WBYTES)
A(f"s_mul_i32 s55, s58, {160*3456}")
A("s_lshl_b32 s56, s53, 6")
A("s_add_u32 s55, s55, s56")
A("s_mul_i32 s54, s58, 10240")
for i in range(10):
    A(f"s_add_u32 m0, s54, {LWG + 1024*i}")
    A("buffer_load_dwordx4 v100, s[40:43], s55 offen lds")
    pc = OPT["pace1"] if 2*i + 1 <= OPT["n1"] else OPT["pace"]
    A(f"s_waitcnt vmcnt({pc})")
    A(f"s_add_u32 m0, s54, {LWU + 1024*i}")
    A("buffer_load_dwordx4 v100, s[44:47], s55 offen lds")
    pc = OPT["pace1"] if 2*i + 2 <= OPT["n1"] else OPT["pace"]
    A(f"s_waitcnt vmcnt({pc})")
    A(f"s_add_u32 s55, s55, {16*3456}")
    if i == OPT["mp"] - 1:
        A("s_barrier")
A("s_mul_i32 s55, s53, 40960")
A("s_lshl_b32 s54, s58, 10")
A("s_cmp_lg_u32 s58, 0")
A("s_cbranch_scc1 L_nod11")
A(f"s_mov_b32 m0, {LWD + 40960}")
A("buffer_load_dwordx4 v111, s[48:51], s55 offen lds")
A("L_nod11:")
for k in range(10):
    A(f"s_add_u32 m0, s54, {LWD + 4096*k}")
    A(f"buffer_load_dwordx4 v{101+k}, s[48:51], s55 offen lds")
stamp(4)
A("s_branch L_nopoll")
A("L_noload:")
A("s_barrier")
A(f"s_cmp_lg_u32 {sW}, 0")
A("s_cbranch_scc1 L_nopoll")
A("v_lshlrev_b32 v32, 4, v0")
A(f"s_mov_b32 s58, {CAND}")
if OPT["polldelay"]:
    A(f"s_sleep {OPT['polldelay']}")
cand_loads(16, 32, "s58", " sc1")
srd(40, pQ, TBYTES)
A("s_waitcnt vmcnt(0)")
tag_check("L_cm", [17 + 2*i for i in range(8)], lambda: cand_loads(16, 32, "s58", " sc1"))
top2_merge(16)
stamp(7)
A("s_andn2_b32 s56, 0x7ff, s54")
A("s_andn2_b32 s57, 0x7ff, s55")
A("s_mul_i32 s56, s56, 1280")
A("s_mul_i32 s57, s57, 1280")
A(f"s_mov_b32 m0, {LX}")
A("buffer_load_dwordx4 v32, s[40:43], s56 offen lds")
setexec(0xffff)
A("buffer_load_dwordx4 v32, s[40:43], s56 offen offset:1024 lds")
setexec(ALL)
A(f"s_mov_b32 m0, {LX + X_P}")
A("buffer_load_dwordx4 v32, s[40:43], s57 offen lds")
setexec(0xffff)
A("buffer_load_dwordx4 v32, s[40:43], s57 offen offset:1024 lds")
setexec(ALL)
A("v_mov_b32 v16, s54")
A("v_mov_b32 v17, s55")
A("v_cmp_eq_u32 vcc, 1, v1")
A("v_cndmask_b32 v5, v16, v17, vcc")
A("v_not_b32 v3, v5")
A("v_and_b32 v7, 0x7ff, v3")
A("v_lshlrev_b32 v7, 3, v7")
A(f"s_mov_b32 s57, {ESTAT}")


def mstat():
    A(f"buffer_load_dwordx2 v[8:9], v7, {WS}, s57 offen sc1")


mstat()
A(f"v_and_b32 v5, {sHI}, v5")
A("v_ashrrev_i32 v10, 31, v5")
A("v_not_b32 v10, v10")
A("v_or_b32 v10, 0x80000000, v10")
A("v_xor_b32 v5, v5, v10")
A(f"v_and_b32 v5, {sHI}, v5")
A("v_mul_f32 v5, 0xbfb8aa3b, v5")
A("v_exp_f32 v5, v5")
A("v_add_f32 v5, 1.0, v5")
A("v_rcp_f32 v5, v5")
A("s_waitcnt vmcnt(0)")
tag_check("L_ms", [9], mstat)
A("ds_write2_b32 v13, v5, v8 offset0:0 offset1:2")
stamp(11)
A("L_nopoll:")
for t in range(1, 5):
    m = (1 << t) * 0x01010101
    A(f"s_mov_b32 s{40+2*t}, {m:#x}")
    A(f"s_mov_b32 s{41+2*t}, {m:#x}")
A("s_waitcnt vmcnt(10) lgkmcnt(0)")
stamp(5)
A("s_barrier")
stamp(6, True)
for s in range(10):
    A(f"ds_read_b64_tr_b16 a[{4*s}:{4*s+1}], v14 offset:{2048*s}")
    A(f"ds_read_b64_tr_b16 a[{4*s+2}:{4*s+3}], v14 offset:{2048*s + 256}")
    A(f"ds_read_b128 {vr(40+4*s,4)}, v6 offset:{64*s}")
    if s >= 4:
        q = s - 4
        A("s_waitcnt lgkmcnt(12)")
        c = "0" if q == 0 else "v[28:31]"
        A(f"v_mfma_f32_16x16x32_bf16 v[28:31], a[{4*q}:{4*q+3}], {vr(40+4*q,4)}, {c}")
A("ds_read2_b32 v[4:5], v13 offset0:2 offset1:0")
for q in range(6, 10):
    A(f"s_waitcnt lgkmcnt({3*(9-q) + 1})")
    A(f"v_mfma_f32_16x16x32_bf16 v[28:31], a[{4*q}:{4*q+3}], {vr(40+4*q,4)}, v[28:31]")
A("s_waitcnt lgkmcnt(0)")
A(f"v_and_b32 v9, {sHI}, v4")
A("v_lshlrev_b32 v8, 16, v4")
A("v_rcp_f32 v9, v9")
setexec(0x0007000700070007)
A("ds_write_b128 v38, v[28:31]")
setexec(ALL)
A("s_waitcnt vmcnt(0) lgkmcnt(0)")
A("s_barrier")
stamp(3, True)
A("ds_read2_b32 v[28:29], v36 offset0:0 offset1:32")
A("ds_read2_b32 v[30:31], v36 offset0:192 offset1:224")
A("ds_read2_b32 v[32:33], v37 offset0:0 offset1:32")
A("ds_read2_b32 v[34:35], v37 offset0:192 offset1:224")
for t in range(5):
    A(f"ds_read_b64_tr_b16 a[{40+4*t}:{41+4*t}], v12 offset:{32*t}")
    A(f"ds_read_b64_tr_b16 a[{42+4*t}:{43+4*t}], v12 offset:{32*t + 4*WD_P}")
A("s_waitcnt lgkmcnt(12)")
A("v_add_f32 v28, v28, v30")
A("v_add_f32 v29, v29, v31")
A("s_waitcnt lgkmcnt(10)")
A("v_add_f32 v32, v32, v34")
A("v_add_f32 v33, v33, v35")
A("v_fma_f32 v28, -v8, v32, v28")
A("v_fma_f32 v29, -v8, v33, v29")
A("v_mul_f32 v28, v28, v9")
A("v_mul_f32 v29, v29, v9")
A("v_mul_f32 v30, 0xbfb8aa3b, v28")
A("v_exp_f32 v30, v30")
A("v_mul_f32 v29, v29, v28")
A("v_add_f32 v30, 1.0, v30")
A("v_rcp_f32 v30, v30")
A("v_mul_f32 v29, v29, v30")
A("v_cvt_pk_bf16_f32 v29, v29, v29")
for i in range(4):
    A(f"v_and_b32 v{32+i}, v29, v{80+i}")
for r in ("quad_perm:[1,0,3,2]", "quad_perm:[2,3,0,1]", "row_half_mirror"):
    for i in range(4):
        A(f"v_or_b32_dpp v{32+i}, v{32+i}, v{32+i} {r} row_mask:0xf bank_mask:0xf")
A("s_waitcnt lgkmcnt(0)")
for t in range(5):
    A(f"v_mfma_f32_16x16x32_bf16 {vr(40+4*t,4)}, a[{40+4*t}:{43+4*t}], v[32:35], 0")
for t in range(1, 5):
    for i in range(4):
        A(f"v_cndmask_b32 v{40+i}, v{40+i}, v{40+4*t+i}, s[{40+2*t}:{41+2*t}]")
for i in range(4):
    A(f"v_mul_f32 v{84+2*i}, v{40+i}, v5")
setexec(0x1f1f1f1f1f1f1f1f)
A(f"buffer_store_dwordx4 v[84:87], v39, {WS}, 0 offen sc1")
A(f"buffer_store_dwordx4 v[88:91], v39, {WS}, 0 offen offset:320 sc1")
setexec(ALL)
stamp(12)

A("L_fin:")
if PROF:
    A("s_waitcnt vmcnt(0)")
    stamp(15)
    A("s_waitcnt lgkmcnt(0)")
    if OPT["diag"] >= 0:
        k = OPT["diag"]
        A(f"s_sub_u32 s53, s{64+2*k}, s64")
        A(f"s_cmp_eq_u32 s{64+2*k}, 0")
        A("s_cselect_b32 s53, 0, s53")
        if OPT["drole"] == 1:
            A(f"s_cmp_ge_u32 {sJ}, 20")
            A("s_cselect_b32 s53, 0, s53")
        if OPT["drole"] == 2:
            A(f"s_sub_u32 s54, {sJ}, 20")
            A("s_cmp_ge_u32 s54, 8")
            A("s_cselect_b32 s53, 0, s53")
        A(f"s_mul_i32 s53, s53, {OPT['dmul']}")
        A("s_add_u32 s53, s53, 4000")
        A("L_diag:")
        A("s_sleep 4")
        A("s_memrealtime s[54:55]")
        A("s_waitcnt lgkmcnt(0)")
        A("s_sub_u32 s54, s54, s64")
        A("s_cmp_lt_u32 s54, s53")
        A("s_cbranch_scc1 L_diag")
    A("s_lshl_b32 s53, s2, 3")
    A(f"s_add_u32 s53, s53, {sW}")
    A("s_lshl_b32 s53, s53, 6")
    A(f"s_add_u32 s53, s53, {PROFB}")
    A("v_mov_b32 v1, s53")
    setexec(1)
    for k in range(16):
        A(f"v_mov_b32 v2, s{64+2*k}")
        A(f"buffer_store_dword v2, v1, {WS}, 0 offen offset:{4*k}")
A("L_end:")
A("s_endpgm")
A("L_codeend:")

hdr = open(os.path.join(os.path.dirname(os.path.abspath(__file__)), "..", "cdna_kernels", NAME + ".s.ref")).read().split("\n")
hdr = [l for l in hdr if l.startswith(";") and "@launch" not in l]
out = hdr + [f"; @launch grid=(256,1,1) block=(512,1,1) lds={LDS_BYTES}",
             '.amdgcn_target "amdgcn-amd-amdhsa--gfx950"', ".text", f".globl {NAME}_kernel", ".p2align 8",
             f".type {NAME}_kernel,@function"]
out += A.padded()
out += ['.section .rodata,"a"', ".p2align 6", f".amdhsa_kernel {NAME}_kernel",
        "  .amdhsa_next_free_vgpr 256", "  .amdhsa_next_free_sgpr 102", "  .amdhsa_accum_offset 128",
        "  .amdhsa_group_segment_fixed_size 0", "  .amdhsa_kernarg_size 112", "  .amdhsa_user_sgpr_count 2",
        "  .amdhsa_user_sgpr_kernarg_segment_ptr 1", "  .amdhsa_system_sgpr_workgroup_id_x 1",
        "  .amdhsa_float_denorm_mode_32 3", ".end_amdhsa_kernel", ""]
open(sys.argv[1], "w").write("\n".join(out))
```

```python
import sys, os
sys.path.insert(0, os.path.dirname(os.path.abspath(__file__)))
from asmlib import Asm

NAME = "parallel_sum__ssm_conv_h3__moe_arch_mod__prompt"
OPT = dict(prof=0, codewarm=1, force_fb=0, diag=-1, dmul=4, prio=2, look=16, settle=7, pace=4, polldelay=0,
           bq=1, resid=0, pace1=1, n1=6, noW=0, nopre=0, noh=0, maxn=1, ackgap=20, mp=5, noepi=0, noside=0, drole=0, outA=0, outB=0, wb=0, sent=70, rot=0, probe=0)
for a in sys.argv[2:]:
    k, v = a.split("=")
    assert k in OPT, k
    OPT[k] = int(v)
PROF = OPT["prof"]

EPOCH, FLG, FLB, CAND, ARR, ESTAT, PART = 0, 0x1000, 0x5000, 0x9000, 0x10000, 0x18000, 0x20000
TOP = 0xA000
KVT, YT2, PROFB = 0x100000, 0x400000, 0x800000
WS_BYTES = 0x1000000
TBYTES = 2621440
WBYTES = 2211840
NMOE, NP1 = 54, 24
OOB = 0x7ffffff0
LA, A_C, A_CP = 0, 16640, 4160
LU, U_C, U_P = 66560, 9120, 4576
LY = 103040
LS, S_T = 103040, 15552
LF = 139776
LDS_BYTES = 140032
LWG, LWU, LWD, WD_P, LRED, LK, LX, X_P = 0, 40976, 81984, 1312, 123968, 125504, 125568, 1344
POLL_LIMIT = 1 << 16

sX, sJ, sW, sTAG, sXCC = "s3", "s4", "s5", "s6", "s7"
pQ, pK, pV, pSH, pH, pD, pWR, pWG, pWU, pWD, pOUT, pWS = 8, 10, 12, 14, 16, 18, 22, 24, 26, 28, 30, 34
WS = "s[36:39]"
sHI = "s52"
ALL = (1 << 64) - 1
A = Asm()


def sp(p):
    return f"s[{p}:{p+1}]"


def srd(reg, ptr, nbytes):
    A(f"s_mov_b32 s{reg}, s{ptr}")
    A(f"s_mov_b32 s{reg+1}, s{ptr+1}")
    A(f"s_mov_b32 s{reg+2}, {nbytes:#x}")
    A(f"s_mov_b32 s{reg+3}, 0x20000")


def stamp(k, wait=False):
    if PROF:
        A(f"s_memrealtime s[{64+2*k}:{65+2*k}]")
        if wait:
            A("s_waitcnt lgkmcnt(0)")


def vr(b, n):
    return f"v[{b}:{b+n-1}]"


def setexec(m):
    lo, hi = m & 0xffffffff, m >> 32
    if m == ALL:
        A("s_mov_b64 exec, -1")
    elif hi == 0 and lo < 0x80000000:
        A(f"s_mov_b64 exec, {lo:#x}")
    else:
        A(f"s_mov_b32 exec_lo, {lo:#x}")
        A(f"s_mov_b32 exec_hi, {hi:#x}")


def after_kernarg():
    A("s_waitcnt lgkmcnt(0)")
    A(f"s_load_dword {sTAG}, {sp(pWS)}, {EPOCH}")
    srd(36, pWS, WS_BYTES)


def make_tag():
    A("s_waitcnt lgkmcnt(0)")
    A(f"s_mul_i32 {sTAG}, {sTAG}, 0x9E3779B1")
    A(f"s_add_u32 {sTAG}, {sTAG}, 0x7F4A7C15")


def or_tree(regs):
    regs = list(regs)
    while len(regs) > 1:
        nxt = []
        i = 0
        while i < len(regs):
            if i + 2 < len(regs):
                A(f"v_or3_b32 v{regs[i]}, v{regs[i]}, v{regs[i+1]}, v{regs[i+2]}")
                nxt.append(regs[i]); i += 3
            elif i + 1 < len(regs):
                A(f"v_or_b32 v{regs[i]}, v{regs[i]}, v{regs[i+1]}")
                nxt.append(regs[i]); i += 2
            else:
                nxt.append(regs[i]); i += 1
        regs = nxt
    return regs[0]


def tag_check(lbl, tagregs, reissue, restore=None):
    A("s_mov_b32 s59, 0")
    A(f"{lbl}:")
    for r in tagregs:
        A(f"v_xor_b32 v{r}, {sTAG}, v{r}")
    r = or_tree(tagregs)
    A(f"v_cmp_ne_u32 vcc, 0, v{r}")
    A(f"s_cbranch_vccz {lbl}_ok")
    if restore:
        restore()
    reissue()
    A("s_add_u32 s59, s59, 1")
    A(f"s_cmp_lt_u32 s59, {POLL_LIMIT}")
    A("s_waitcnt vmcnt(0)")
    A(f"s_cbranch_scc1 {lbl}")
    A(f"{lbl}_ok:")


def merge_dpp(a, rs):
    for r in rs:
        d = f"row_ror:{r} row_mask:0xf bank_mask:0xf"
        A(f"v_min_u32_dpp v{a+1}, v{a}, v{a} {d}")
        A(f"v_max_u32_dpp v{a+3}, v{a+2}, v{a+2} {d}")
        A(f"v_max_u32_dpp v{a}, v{a}, v{a} {d}")
        A(f"v_max_u32 v{a+2}, v{a+1}, v{a+3}")


def cand_loads(t0, va, so, fl):
    for i in range(4):
        A(f"buffer_load_dwordx4 {vr(t0+4*i,4)}, v{va}, {WS}, {so} offen offset:{1024*i}{fl}")


def top2_merge(t0):
    def merge(a, b, tmp):
        A(f"v_min_u32 v{tmp}, v{a}, v{b}")
        A(f"v_max_u32 v{a}, v{a}, v{b}")
        A(f"v_max3_u32 v{a+2}, v{a+2}, v{b+2}, v{tmp}")
    merge(t0, t0+4, t0+1)
    merge(t0+8, t0+12, t0+3)
    merge(t0, t0+8, t0+1)
    merge_dpp(t0, (1, 2, 4, 8))
    A(f"v_readlane_b32 s54, v{t0}, 0")
    A(f"v_readlane_b32 s55, v{t0+2}, 0")
    for row in (16, 32, 48):
        A(f"v_readlane_b32 s56, v{t0}, {row}")
        A(f"v_readlane_b32 s59, v{t0+2}, {row}")
        A("s_max_u32 s55, s55, s59")
        A("s_min_u32 s59, s54, s56")
        A("s_max_u32 s54, s54, s56")
        A("s_max_u32 s55, s55, s59")


A(f"{NAME}_kernel:")
A("s_cmp_ge_u32 s2, 256")
A("s_cbranch_scc1 L_end")
A("s_load_dwordx16 s[8:23], s[0:1], 0")
A("s_load_dwordx8 s[24:31], s[0:1], 64")
A("s_load_dwordx4 s[32:35], s[0:1], 96")
A("v_lshrrev_b32 v1, 6, v0")
A("v_mov_b32 v9, v0")
A("v_and_b32 v0, 63, v0")
A(f"s_and_b32 {sX}, s2, 7")
A(f"s_lshr_b32 {sJ}, s2, 3")
A(f"v_readfirstlane_b32 {sW}, v1")
A(f"s_getreg_b32 {sXCC}, hwreg(HW_REG_XCC_ID)")
if OPT["force_fb"]:
    A(f"s_add_u32 {sXCC}, {sXCC}, {sJ}")
A(f"s_mov_b32 {sHI}, 0xffff0000")
if PROF:
    for k in range(64, 96):
        A(f"s_mov_b32 s{k}, 0")
stamp(0)
A(f"s_mul_i32 s53, {sX}, 20")
A(f"s_add_u32 s53, s53, {sJ}")
A(f"s_sub_u32 s63, {sJ}, 20")
A(f"s_sub_u32 s58, {sJ}, 8")
A(f"s_cmp_lt_u32 {sJ}, 20")
A(f"s_cselect_b32 s58, {sJ}, s58")
A(f"s_cmp_lg_u32 {sW}, 0")
A("s_cbranch_scc1 L_not7")

A("v_and_b32 v1, 7, v0")
A("v_bfe_u32 v2, v0, 3, 1")
A("v_lshrrev_b32 v3, 4, v0")
A("v_mul_u32_u24 v4, 1280, v1")
A("v_mul_u32_u24 v5, 640, v2")
A("v_add_u32 v4, v4, v5")
A("v_lshl_add_u32 v4, v3, 4, v4")
A("s_mul_i32 s55, s2, 10240")
A("v_add_u32 v4, s55, v4")
A("v_and_b32 v5, 15, v0")
A("v_cmp_lt_u32 vcc, 1, v5")
A("v_mov_b32 v6, 640")
A("v_cndmask_b32 v6, 0, v6, vcc")
A("v_lshl_add_u32 v6, v3, 4, v6")
A("s_mov_b32 s55, 0x3f803f80")
for i in range(44):
    A(f"v_mov_b32 v{56+i}, s55")
A("s_waitcnt lgkmcnt(0)")
for s in range(10):
    A(f"global_load_dwordx4 {vr(16+4*s,4)}, v4, {sp(pQ)} offset:{64*s}")
setexec(0x0006000600060006)
for s in range(10):
    A(f"global_load_dwordx4 {vr(56+4*s,4)}, v6, {sp(pWR)} offset:{64*s}")
setexec(ALL)
if OPT["bq"]:
    A("s_barrier")
after_kernarg()
stamp(1)
A("v_lshrrev_b32 v7, 2, v5")
A("v_lshl_add_u32 v7, v7, 4, v5")
A("v_lshlrev_b32 v7, 2, v7")
A("s_lshl_b32 s55, s2, 6")
A(f"s_add_u32 s55, s55, {ESTAT}")
A("v_lshl_add_u32 v122, v1, 3, s55")
A("s_lshl_b32 s56, s2, 3")
A("s_sub_u32 s56, 2047, s56")
A("v_sub_u32 v9, s56, v1")
for r, m in ((40, 0x22222222), (42, 0x44444444), (44, 0x88888888), (46, 0xff00ff00)):
    A(f"s_mov_b32 s{r}, {m:#x}")
    A(f"s_mov_b32 s{r+1}, {m:#x}")
A("s_lshl_b32 s55, s2, 4")
A(f"s_add_u32 s55, s55, {CAND}")
A("v_mov_b32 v8, s55")
for s in range(10):
    A(f"s_waitcnt vmcnt({19-s})")
    c = "0" if s == 0 else "v[100:103]"
    A(f"v_mfma_f32_16x16x32_bf16 v[100:103], {vr(16+4*s,4)}, {vr(16+4*s,4)}, {c}")
stamp(2)
for s in range(10):
    A(f"s_waitcnt vmcnt({9-s})")
    c = "0" if s == 0 else "v[104:107]"
    A(f"v_mfma_f32_16x16x32_bf16 v[104:107], {vr(56+4*s,4)}, {vr(16+4*s,4)}, {c}")
    c = "0" if s == 0 else "v[108:111]"
    A(f"v_mfma_f32_16x16x32_bf16 v[108:111], {vr(56+4*s,4)}, v[96:99], {c}")
    if s == 3:
        A("v_cndmask_b32 v100, v100, v101, s[40:41]")
        A("v_cndmask_b32 v100, v100, v102, s[42:43]")
        A("v_cndmask_b32 v100, v100, v103, s[44:45]")
        A("ds_bpermute_b32 v100, v7, v100")
stamp(9)
make_tag()
ROR8 = "row_ror:8 row_mask:0xf bank_mask:0xf"
A(f"v_add_f32_dpp v100, v100, v100 {ROR8}")
A("v_mul_f32 v100, 0x3acccccd, v100")
A(f"v_mov_b32 v121, {sTAG}")
A("v_mov_b32 v14, 0")
A(f"v_add_f32_dpp v104, v104, v104 {ROR8}")
A("v_cndmask_b32 v105, v105, v106, s[46:47]")
A("v_mul_f32 v104, 0x3acccccd, v104")
A("v_add_f32 v109, v109, v110")
A("v_fma_f32 v100, -v104, v104, v100")
A(f"v_add_f32_dpp v105, v105, v105 {ROR8}")
A("v_max_f32 v100, 0, v100")
A("v_cvt_pk_bf16_f32 v104, v104, v100")
A(f"v_and_b32 v100, {sHI}, v104")
A("v_add_f32 v100, 0x3727c5ac, v100")
A("v_cvt_pk_bf16_f32 v100, v100, v100")
A(f"v_and_b32 v100, {sHI}, v100")
A("v_sqrt_f32 v100, v100")
A("v_lshlrev_b32 v106, 16, v104")
A("v_cvt_pk_bf16_f32 v120, v106, v100")
A(f"v_and_b32 v100, {sHI}, v120")
A("v_rcp_f32 v100, v100")
A("v_fma_f32 v105, -v106, v109, v105")
A("v_mul_f32 v105, v105, v100")
A("v_cvt_pk_bf16_f32 v105, v105, v105")
A("v_ashrrev_i32 v106, 31, v105")
A("v_or_b32 v106, 0x80000000, v106")
A("v_xor_b32 v105, v105, v106")
A(f"v_and_or_b32 v12, v105, {sHI}, v9")
merge_dpp(12, (1, 2, 4))
A(f"v_mov_b32 v13, {sTAG}")
A(f"v_mov_b32 v15, {sTAG}")
setexec(1)
A(f"buffer_store_dwordx4 v[12:15], v8, {WS}, 0 offen sc1")
setexec(0xff)
A(f"buffer_store_dwordx2 v[120:121], v122, {WS}, 0 offen sc1")
setexec(ALL)
stamp(8)
A(f"s_cmp_ge_u32 {sJ}, 20")
A("s_cbranch_scc1 L_b1")
A("s_lshl_b32 s54, s53, 14")
A(f"s_add_u32 s55, s54, {KVT}")
A("v_lshl_add_u32 v2, v0, 7, s55")
A(f"s_lshl_b32 s55, {sX}, 11")
A(f"s_add_u32 s55, s55, {FLG}")
A("v_and_b32 v3, 15, v0")
A("v_lshl_add_u32 v3, v3, 7, s55")
A("s_movk_i32 s55, 8192")
if not OPT["nopre"]:
    A(f"buffer_load_dword v127, v2, {WS}, 0 offen sc1")
    A(f"buffer_load_dword v127, v2, {WS}, s55 offen sc1")
A(f"buffer_load_dword v127, v3, {WS}, 0 offen sc1")
srd(48, pH, TBYTES)
A("v_lshlrev_b32 v2, 4, v0")
for c in range(0 if OPT["noh"] else 4):
    A(f"s_mov_b32 m0, {LA + c*A_C + 3*A_CP + 48}")
    for i in range(4):
        A(f"buffer_load_dwordx4 v2, s[48:51], s54 offen offset:{1024*i} lds")
    A("s_add_u32 s54, s54, 4096")
stamp(11)
A("L_b1:")
A("s_lshl_b32 s59, s2, 7")
A(f"s_add_u32 s59, s59, {ARR}")
A(f"v_mov_b32 v10, {sTAG}")
A(f"v_mov_b32 v11, {sXCC}")
A("v_mov_b32 v12, s59")
A("s_barrier")
setexec(1)
A(f"buffer_store_dwordx2 v[10:11], v12, {WS}, 0 offen sc1")
setexec(ALL)
A("s_cmp_ge_u32 s63, 8")
A("s_cbranch_scc1 L_kvdone")
A("s_branch L_moe")

A("L_not7:")
A("s_cmp_lt_u32 s63, 8")
A("s_cbranch_scc1 L_nonp1")
A("v_subrev_u32 v9, 64, v9")
A("s_mul_i32 s60, s58, 11")
A("s_min_u32 s60, s60, 245")
A(f"s_mul_i32 s55, s60, {8*1280}")
A(f"s_mul_i32 s54, {sX}, 160")
A("s_add_u32 s55, s55, s54")
A(f"s_sub_u32 s55, s55, {8*1280}")
A(f"v_mov_b32 v7, {OOB:#x}")
for i in range(3):
    d = 1 + i
    A(f"v_add_u32 v4, {12+448*i}, v9")
    A("v_mul_u32_u24 v5, 1619, v4")
    A("v_lshrrev_b32 v5, 17, v5")
    A("v_mul_u32_u24 v6, 81, v5")
    if i == 0:
        A("v_cmp_gt_u32 vcc, 50, v4")
    A("v_sub_u32 v4, v4, v6")
    A("v_mul_u32_u24 v6, 205, v4")
    A("v_lshrrev_b32 v6, 11, v6")
    A("v_lshl_add_u32 v5, v5, 3, v6")
    A("v_mul_u32_u24 v6, 10, v6")
    A("v_sub_u32 v4, v4, v6")
    A("v_mul_u32_u24 v5, 1280, v5")
    A("v_lshl_add_u32 v5, v4, 4, v5")
    A(f"v_add_u32 v{d}, s55, v5")
    if i == 0:
        A("v_cndmask_b32 v1, v1, v7, vcc")
A("v_min_u32 v9, 439, v9")
A("v_mul_u32_u24 v7, 2979, v9")
A("v_lshrrev_b32 v7, 15, v7")
A("v_mul_u32_u24 v8, 11, v7")
A("v_sub_u32 v8, v9, v8")
A(f"s_mul_i32 s54, {sX}, 640")
A("v_lshl_add_u32 v9, v7, 4, s54")
A(f"s_lshl_b32 s56, {sW}, 10")
A(f"s_add_u32 s56, s56, {LS + 12*16 - 1024}")
after_kernarg()
srd(40, pK, TBYTES)
srd(44, pV, TBYTES)
if OPT["bq"]:
    A("s_barrier")
for i in range(3):
    if i == 2:
        A(f"s_cmp_lg_u32 {sW}, 1")
        A("s_cbranch_scc1 L_no3")
    for t, r in enumerate((40, 44)):
        A(f"s_add_u32 m0, s56, {t*S_T + 7168*i}")
        A(f"buffer_load_dwordx4 v{1+i}, s[{r}:{r+3}], 0 offen lds")
A("L_no3:")
A(f"global_load_dwordx4 v[20:23], v9, {sp(pSH)}")
A("s_lshl_b32 s62, s53, 2")
A(f"s_and_b32 s54, {sW}, 3")
A("s_add_u32 s62, s62, s54")
A("s_min_u32 s62, s62, 639")
A("s_lshl_b32 s54, s62, 1")
A("s_and_b32 s54, s54, -4")
A(f"s_load_dword s63, {sp(pD)}, s54")
stamp(1)
A("v_mul_u32_u24 v1, 1296, v8")
A("v_lshl_add_u32 v1, v7, 2, v1")
A(f"v_add_u32 v1, {LS}, v1")
A(f"s_mul_i32 s55, {sX}, {80*4096}")
A("s_lshl_b32 s57, s60, 4")
A("s_add_u32 s55, s55, s57")
A(f"s_add_u32 s55, s55, {KVT}")
A("v_lshlrev_b32 v5, 13, v7")
A("v_lshl_add_u32 v5, v8, 4, v5")
A("v_add_u32 v5, s55, v5")
A(f"s_cmp_lg_u32 {sW}, 3")
A("s_cbranch_scc1 L_nz")
for i in range(4):
    A(f"v_mov_b32 v{16+i}, 0")
A("v_lshrrev_b32 v2, 5, v0")
A(f"v_mul_u32_u24 v2, {U_P}, v2")
A("v_and_b32 v3, 31, v0")
A("v_min_u32 v3, 27, v3")
A("v_lshl_add_u32 v2, v3, 4, v2")
A(f"v_add_u32 v2, {LU}, v2")
for c in range(4):
    A(f"ds_write_b128 v2, v[16:19] offset:{c*U_C}")
A("v_lshrrev_b32 v2, 2, v0")
A(f"v_mul_u32_u24 v2, {A_CP}, v2")
A("v_and_b32 v3, 3, v0")
A("v_min_u32 v3, 2, v3")
A("v_lshl_add_u32 v2, v3, 4, v2")
A("ds_write_b128 v2, v[16:19]")
A("L_nz:")
make_tag()
A("s_waitcnt vmcnt(0)")
A("v_lshlrev_b32 v10, 16, v20")
A("v_lshlrev_b32 v11, 16, v22")
A(f"v_and_b32 v12, {sHI}, v20")
A(f"v_and_b32 v13, {sHI}, v22")
A("v_lshlrev_b32 v14, 16, v21")
A("v_lshlrev_b32 v15, 16, v23")
A(f"v_and_b32 v16, {sHI}, v21")
A(f"v_and_b32 v17, {sHI}, v23")
A("s_barrier")
stamp(2, True)


def koff(t):
    return (1296 + 160*t) if t >= 0 else 160*(8 + t)


def Kp(t):
    return vr(40 + 2*(t + 3), 2)


for i, t in enumerate(range(-3, 8)):
    A(f"ds_read_b32 v{20+i}, v1 offset:{koff(t)}")
for t in range(4):
    A(f"ds_read_b32 v{32+t}, v1 offset:{S_T + koff(t)}")
for i in range(11):
    if i in (0, 4, 8):
        A(f"s_waitcnt lgkmcnt({(11, 7, 8)[i//4]})")
    A(f"v_lshlrev_b32 v{40+2*i}, 16, v{20+i}")
    A(f"v_and_b32 v{41+2*i}, {sHI}, v{20+i}")
    if i == 7:
        for t in range(4, 8):
            A(f"ds_read_b32 v{32+t}, v1 offset:{S_T + koff(t)}")
for t in range(8):
    A(f"v_pk_mul_f32 {vr(96+2*t,2)}, v[16:17], {Kp(t-3)}")
for t in range(8):
    A(f"v_pk_fma_f32 {vr(96+2*t,2)}, v[14:15], {Kp(t-2)}, {vr(96+2*t,2)}")
for t in range(8):
    A(f"v_pk_fma_f32 {vr(96+2*t,2)}, v[12:13], {Kp(t-1)}, {vr(96+2*t,2)}")
for t in range(8):
    A(f"v_pk_fma_f32 {vr(96+2*t,2)}, v[10:11], {Kp(t)}, {vr(96+2*t,2)}")
A("s_waitcnt lgkmcnt(0)")
for t in range(8):
    A(f"v_lshlrev_b32 v{62+2*t}, 16, v{32+t}")
    A(f"v_and_b32 v{63+2*t}, {sHI}, v{32+t}")
for t in range(8):
    A(f"v_pk_mul_f32 {vr(96+2*t,2)}, {vr(96+2*t,2)}, {vr(62+2*t,2)}")
A("s_mov_b32 s55, 4096")
for c in range(2):
    for i in range(4):
        A(f"v_cvt_pk_bf16_f32 v{80+4*c+i}, v{96+2*(7-2*i)+c}, v{96+2*(6-2*i)+c}")
    A(f"buffer_store_dwordx4 {vr(80+4*c,4)}, v5, {WS}, {'s55' if c else '0'} offen")
stamp(3)
A("L_kvdone:")
A(f"s_lshl_b32 s55, {sX}, 11")
A("s_lshl_b32 s57, s58, 3")
A("s_add_u32 s57, s57, s55")
A(f"v_mov_b32 v10, {sTAG}")
A(f"v_mov_b32 v11, {sXCC}")
A("v_mov_b32 v12, s57")
A(f"v_min_u32 v1, {NP1-1}, v0")
A("v_lshl_add_u32 v1, v1, 3, s55")
A("s_lshl_b32 s54, s53, 2")
A(f"s_add_u32 s54, s54, {sW}")
A("s_lshl_b32 s54, s54, 12")
A(f"s_add_u32 s54, s54, {KVT}")
A("v_lshl_add_u32 v13, v0, 4, s54")
A("v_subrev_u32 v14, 16, v13")
A("v_cmp_eq_u32 vcc, 0, v0")
A(f"v_mov_b32 v3, {OOB:#x}")
A("v_cndmask_b32 v14, v14, v3, vcc")
A(f"s_mov_b32 s55, {FLG}")
A("s_mov_b32 s59, 0")
A(f"s_mov_b32 s60, {KVT}")
A(f"s_mov_b32 s61, {FLG}")
A("s_waitcnt vmcnt(0)")
A("s_barrier")
stamp(4, True)
A(f"s_cmp_ge_u32 {sW}, 4")
A("s_cbranch_scc1 L_hi4")
A(f"s_cmp_lg_u32 {sW}, 0")
A("s_cbranch_scc1 L_poll")
setexec(1)
A(f"buffer_store_dwordx2 v[10:11], v12, {WS}, s55 offen")
setexec(ALL)
A("L_poll:")
A(f"buffer_load_dwordx2 v[2:3], v1, {WS}, s55 offen sc1")
A("s_add_u32 s59, s59, 1")
A("s_waitcnt vmcnt(0)")
A("v_cmp_eq_u64 vcc, s[6:7], v[2:3]")
A("s_cmp_eq_u64 vcc, -1")
A("s_cbranch_scc1 L_synced")
A("s_and_b32 s57, s59, 15")
A("s_cmp_lg_u32 s57, 0")
A("s_cbranch_scc1 L_poll")
A("s_branch L_slowsync")
A("L_synced:")
stamp(5)
A(f"s_cmp_ge_u32 {sJ}, 20")
A("s_cbranch_scc1 L_final")

for i in range(4):
    A(f"buffer_load_dwordx4 {vr(16+4*i,4)}, v13, {WS}, 0 offen offset:{1024*i} sc1")
    if i == 0:
        A(f"buffer_load_dword v32, v14, {WS}, 0 offen sc1")
    else:
        A(f"buffer_load_dword v{32+i}, v13, {WS}, 0 offen offset:{1024*i-16} sc1")
A(f"s_mul_i32 s55, {sW}, {U_C}")
A(f"s_add_u32 s55, s55, {LU + 28*16}")
A("v_lshl_add_u32 v7, v0, 4, s55")
A(f"v_mov_b32 v2, {LF}")
A("v_mov_b32 v3, s61")
A("ds_write_b32 v2, v3")
for i in range(4):
    A(f"s_waitcnt vmcnt({2*(3-i)})")
    b = 16 + 4*i
    A(f"ds_write_b128 v7, {vr(b,4)} offset:{U_P + 1024*i}")
    A(f"v_alignbyte_b32 v{40+4*i}, v{b+1}, v{b}, 2")
    A(f"v_alignbyte_b32 v{41+4*i}, v{b+2}, v{b+1}, 2")
    A(f"v_alignbyte_b32 v{42+4*i}, v{b+3}, v{b+2}, 2")
    A(f"v_alignbyte_b32 v{43+4*i}, v{32+i}, v{b+3}, 2")
    A(f"ds_write_b128 v7, {vr(40+4*i,4)} offset:{1024*i}")
stamp(6)
A("s_waitcnt lgkmcnt(0)")
A("s_barrier")

A("L_final:")
if OPT["noepi"]:
    A("s_cmp_lt_u32 s58, 22")
    A("s_cbranch_scc1 L_fin")
A("s_cmp_ge_u32 s58, 22")
A("s_cbranch_scc1 L_special")
XR, SR = (48, 56), (16, 32)
XN, CC = (64, 96), (80, 112)
OCT, CPO, QOF = (1, 2), (3, 3), (5, 6)
A(f"s_mul_i32 s54, {sX}, 160")
A(f"s_lshl_b32 s55, {sW}, 6")
A("s_mul_i32 s56, s58, 6")
A("s_min_u32 s56, s56, 122")
A("v_add_u32 v8, s55, v0")
A("v_min_u32 v8, 239, v8")
A("v_mul_u32_u24 v9, 1639, v8")
A("v_lshrrev_b32 v9, 16, v9")
A("v_mul_u32_u24 v10, 40, v9")
A("v_sub_u32 v8, v8, v10")
A("v_add_u32 v1, s56, v9")
A("v_add_u32 v2, 128, v1")
A("v_lshlrev_b32 v3, 3, v8")
A("v_mul_u32_u24 v9, 10240, v1")
A("v_lshl_add_u32 v9, v8, 2, v9")
A("v_add_u32 v5, s54, v9")
A(f"v_add_u32 v6, {1024*1280}, v5")
srd(40, pQ, TBYTES)
A("s_movk_i32 s49, 5120")
A(f"s_mov_b32 s57, {ESTAT}")
A(f"s_mov_b32 s58, {ESTAT + 8192}")
A("v_and_b32 v7, 7, v0")
A("v_lshl_add_u32 v7, v1, 3, v7")
A("v_lshlrev_b32 v7, 3, v7")


def stat_loads(fl):
    A(f"buffer_load_dwordx2 v[12:13], v7, {WS}, s57 offen{fl}")
    A(f"buffer_load_dwordx2 v[14:15], v7, {WS}, s58 offen{fl}")


def ofl(task):
    return ("", " sc1", " nt", " sc0 sc1")[OPT["outB" if task else "outA"]]


def rows(op, reg, task):
    for t in range(8):
        fl = ofl(task) if op == "store" else ""
        A(f"buffer_{op}_dword v{reg+t}, v{QOF[task]}, s[40:43], {'s49' if t >= 4 else '0'} offen offset:{1280*(t&3)}{fl}")


stat_loads("")
rows("load", XR[0], 0)
rows("load", XR[1], 1)
A(f"s_mov_b32 s40, s{pOUT}")
A(f"s_mov_b32 s41, s{pOUT+1}")
A(f"s_mul_i32 s54, {sX}, {80*4096}")
A("s_add_u32 s60, s60, s54")
A("s_add_u32 s48, s60, 4096")
A(f"s_lshl_b32 s54, {sX}, 11")
A("s_add_u32 s61, s61, s54")
A("s_add_u32 s61, s61, 512")
A("v_lshlrev_b32 v8, 10, v3")
A("v_lshl_add_u32 v8, v1, 4, v8")
A(f"s_lshl_b32 s54, {sX}, 7")
A(f"s_add_u32 s54, s54, {TOP}")
A("v_mov_b32 v9, s54")
A("s_waitcnt vmcnt(16)")
tag_check("L_st", [13, 15], lambda: stat_loads(" sc1"))
for st in (12, 14):
    A(f"v_and_b32 v{st+1}, {sHI}, v{st}")
    A(f"v_rcp_f32 v{st+1}, v{st+1}")
    A(f"v_lshlrev_b32 v{st}, 16, v{st}")
for st in (12, 14):
    A(f"v_mul_f32 v{st}, v{st}, v{st+1}")


def precompute(task):
    for t in range(8):
        if t == 7:
            A("s_waitcnt lgkmcnt(6)")
        A(f"ds_swizzle_b32 v{16+2*t}, v{12+2*task} offset:{(t << 5) | 0x18}")
        A(f"ds_swizzle_b32 v{17+2*t}, v{13+2*task} offset:{(t << 5) | 0x18}")
    A(f"s_waitcnt vmcnt(8)")
    for t in range(8):
        cc = CC[task] + 2*t
        A(f"v_lshlrev_b32 v{cc}, 16, v{XR[task]+t}")
        A(f"v_and_b32 v{cc+1}, {sHI}, v{XR[task]+t}")
    A("s_waitcnt lgkmcnt(0)")
    for t in range(8):
        st, xn, cc = 16 + 2*t, XN[task] + 2*t, CC[task] + 2*t
        A(f"v_fma_f32 v{xn}, v{cc}, v{st+1}, -v{st}")
        A(f"v_fma_f32 v{xn+1}, v{cc+1}, v{st+1}, -v{st}")
        A(f"v_add_f32 v{cc}, v{cc}, v{xn}")
        A(f"v_add_f32 v{cc+1}, v{cc+1}, v{xn+1}")


def yflag_poll(lbl, va, so):
    A("s_mov_b32 s59, 0")
    A(f"{lbl}:")
    A(f"buffer_load_dwordx2 v[10:11], v{va}, {WS}, {so} offen sc1")
    A("s_add_u32 s59, s59, 1")
    A("s_waitcnt vmcnt(0)")
    A(f"v_cmp_ne_u32 vcc, {sTAG}, v10")
    A(f"v_cmp_ne_u32 s[54:55], {sTAG}, v11")
    A("s_or_b64 vcc, vcc, s[54:55]")
    A(f"s_cbranch_scc0 {lbl}_ok")
    A(f"s_cmp_lt_u32 s59, {POLL_LIMIT}")
    A(f"s_cbranch_scc1 {lbl}")
    A(f"{lbl}_ok:")


def top_load():
    A(f"buffer_load_dwordx2 v[10:11], v9, {WS}, 0 offen sc1")


def y_loads(task):
    A(f"buffer_load_dwordx4 v[16:19], v8, {WS}, s60 offen offset:{2048*task} sc1")
    A(f"buffer_load_dwordx4 v[20:23], v8, {WS}, s48 offen offset:{2048*task} sc1")


for task in range(2):
    precompute(task)
    if task == 0:
        stamp(7)
        top_load()
        A("s_waitcnt vmcnt(0)")
        tag_check("L_tp", [11], top_load)
        A("v_readfirstlane_b32 s62, v10")
        A("s_lshr_b32 s63, s62, 16")
        A("s_and_b32 s62, s62, 0xffff")
        stamp(12)
    A("s_lshr_b32 s56, s62, 3")
    A("s_lshr_b32 s57, s63, 3")
    A(f"v_cmp_eq_u32 s[44:45], s56, v{OCT[task]}")
    A(f"v_cmp_eq_u32 s[46:47], s57, v{OCT[task]}")
    if task == 0:
        yflag_poll("L_yf0", 3, "s61")
        y_loads(0)
        A("s_waitcnt vmcnt(0)")
    else:
        A(f"s_cmp_ge_u32 {sJ}, 20")
        A("s_cbranch_scc1 L_nb5")
        A("s_barrier")
        A("L_nb5:")
        A("s_mov_b32 s59, 0")
        A("L_ys:")
        y_loads(1)
        A("s_add_u32 s59, s59, 1")
        A("s_waitcnt vmcnt(0)")
        A("v_max3_u32 v24, v16, v17, v18")
        A("v_max3_u32 v25, v19, v20, v21")
        A("v_max3_u32 v24, v24, v22, v23")
        A("v_max_u32 v24, v24, v25")
        A("v_cmp_eq_u32 vcc, -1, v24")
        A("s_and_b64 exec, exec, vcc")
        A("s_cbranch_execz L_ysok")
        A("s_cmp_lt_u32 s59, 4096")
        A("s_cbranch_scc1 L_ys")
        setexec(ALL)
        A("s_add_u32 s61, s61, 512")
        yflag_poll("L_yf1", 3, "s61")
        y_loads(1)
        A("s_waitcnt vmcnt(0)")
        A("L_ysok:")
        setexec(ALL)
    stamp(8 + 2*task)
    for c in range(2):
        for i in range(4):
            A(f"v_lshlrev_b32 v{24+2*i}, 16, v{16+4*c+i}")
            A(f"v_and_b32 v{25+2*i}, {sHI}, v{16+4*c+i}")
        for pos in range(8):
            t = 2*(pos & 3) + (pos >> 2)
            A(f"v_fmac_f32 v{CC[task]+2*t+c}, v{XN[task]+2*t+c}, v{24+pos}")
    for t in range(8):
        A(f"v_cvt_pk_bf16_f32 v{32+8*task+t}, v{CC[task]+2*t}, v{CC[task]+2*t+1}")
    A("s_or_b64 s[54:55], s[44:45], s[46:47]")
    A(f"s_cbranch_scc1 L_msk{task}")
    rows("store", 32 + 8*task, task)
    A(f"L_mskd{task}:")
    stamp(9 + 2*task)
A("s_branch L_fin")
for task in range(2):
    A(f"L_msk{task}:")
    A("s_and_b32 s56, s62, 7")
    A("s_and_b32 s57, s63, 7")
    for t in range(8):
        A(f"s_cmp_eq_u32 s56, {t}")
        A("s_cselect_b64 s[54:55], s[44:45], 0")
        A(f"s_cmp_eq_u32 s57, {t}")
        A("s_cselect_b64 vcc, s[46:47], 0")
        A("s_nor_b64 exec, s[54:55], vcc")
        A(f"s_cbranch_execz L_ms{task}_{t}")
        A(f"buffer_store_dword v{32+8*task+t}, v{QOF[task]}, s[40:43], {'s49' if t >= 4 else '0'} offen offset:{1280*(t&3)}{ofl(task)}")
        A(f"L_ms{task}_{t}:")
    setexec(ALL)
    A(f"s_branch L_mskd{task}")

A("L_special:")
A("v_min_u32 v1, 39, v0")
A(f"s_cmp_lg_u32 {sW}, 0")
A("s_cbranch_scc1 L_sp1")
A("v_lshlrev_b32 v7, 4, v0")
A(f"s_mov_b32 s58, {CAND}")
cand_loads(16, 7, "s58", " sc1")
A("s_waitcnt vmcnt(0)")
tag_check("L_sc", [17 + 2*i for i in range(8)], lambda: cand_loads(16, 7, "s58", " sc1"))
top2_merge(16)
A("s_andn2_b32 s54, 0x7ff, s54")
A("s_andn2_b32 s62, 0x7ff, s55")
A(f"s_cmp_lg_u32 {sJ}, 30")
A("s_cbranch_scc1 L_ntp")
A("s_lshl_b32 s55, s62, 16")
A("s_or_b32 s55, s55, s54")
A("s_mov_b32 s62, s54")
A(f"s_lshl_b32 s54, {sX}, 7")
A(f"s_add_u32 s54, s54, {TOP}")
A("v_mov_b32 v8, s55")
A(f"v_mov_b32 v9, {sTAG}")
A("v_mov_b32 v3, s54")
setexec(1)
A(f"buffer_store_dwordx2 v[8:9], v3, {WS}, 0 offen sc1")
setexec(ALL)
A("L_ntp:")
srd(40, pQ, TBYTES)
A("s_mul_i32 s54, s62, 1280")
A(f"s_mul_i32 s55, {sX}, 160")
A("s_add_u32 s54, s54, s55")
A("v_lshl_add_u32 v2, v1, 2, s54")
A("buffer_load_dword v4, v2, s[40:43], 0 offen")
A("s_lshl_b32 s54, s62, 3")
A(f"s_add_u32 s54, s54, {ESTAT}")
A("v_mov_b32 v3, s54")


def sstat():
    A(f"buffer_load_dwordx2 v[8:9], v3, {WS}, 0 offen sc1")


sstat()
A("s_waitcnt vmcnt(0)")
tag_check("L_ss", [9], sstat)
A(f"v_and_b32 v9, {sHI}, v8")
A("v_rcp_f32 v9, v9")
A("v_lshlrev_b32 v8, 16, v8")
A("v_lshlrev_b32 v50, 16, v4")
A(f"v_and_b32 v51, {sHI}, v4")
A("v_sub_f32 v48, v50, v8")
A("v_sub_f32 v49, v51, v8")
A("v_mul_f32 v48, v48, v9")
A("v_mul_f32 v49, v49, v9")
A("v_add_f32 v50, v50, v48")
A("v_add_f32 v51, v51, v49")
A(f"s_lshl_b32 s55, {sX}, 11")
A("s_add_u32 s61, s61, s55")
A("s_add_u32 s61, s61, 512")
A(f"s_mul_i32 s54, {sX}, {80*4096}")
A("s_add_u32 s60, s60, s54")
A("s_lshr_b32 s54, s62, 3")
A("s_lshl_b32 s54, s54, 4")
A("s_add_u32 s60, s60, s54")
A("s_and_b32 s54, s62, 1")
A("s_lshl_b32 s54, s54, 3")
A("s_add_u32 s60, s60, s54")
A("s_and_b32 s54, s62, 4")
A("s_add_u32 s60, s60, s54")
A("s_add_u32 s48, s60, 4096")
A("s_bitcmp1_b32 s62, 1")
A("s_cselect_b32 s63, 0, 16")
A("v_lshlrev_b32 v3, 3, v1")
A("v_lshlrev_b32 v7, 13, v1")
A("v_lshrrev_b32 v6, 3, v1")
A("v_bfe_u32 v5, v1, 1, 2")
A("v_mad_u32_u24 v6, v5, 5, v6")
A("v_and_b32 v5, 1, v1")
A("v_mad_u32_u24 v6, v5, 20, v6")
A("v_lshlrev_b32 v6, 3, v6")
srd(40, pOUT, TBYTES)
yflag_poll("L_s0", 3, "s61")


def sy_loads():
    A(f"buffer_load_dword v32, v7, {WS}, s60 offen sc1")
    A(f"buffer_load_dword v33, v7, {WS}, s48 offen sc1")


sy_loads()
A("s_barrier")
A("s_barrier")
stamp(8)
for i in range(7):
    A(f"ds_read_b64 {vr(16+2*i,2)}, v6 offset:{512*i}")
A("s_waitcnt lgkmcnt(0)")
for i in range(1, 7):
    A(f"v_add_f32 v16, v16, v{16+2*i}")
    A(f"v_add_f32 v17, v17, v{17+2*i}")
A("v_add_f32 v50, v50, v16")
A("v_add_f32 v51, v51, v17")
A("s_mov_b32 s59, 0")
A("L_sy:")
A("s_waitcnt vmcnt(0)")
A("v_max_u32 v34, v32, v33")
A("v_cmp_eq_u32 vcc, -1, v34")
A("s_cbranch_vccz L_syok")
sy_loads()
A("s_add_u32 s59, s59, 1")
A("s_cmp_lt_u32 s59, 4096")
A("s_cbranch_scc1 L_sy")
A("s_add_u32 s61, s61, 512")
yflag_poll("L_s1", 3, "s61")
sy_loads()
A("s_waitcnt vmcnt(0)")
A("L_syok:")
A("v_lshlrev_b32 v32, s63, v32")
A("v_lshlrev_b32 v33, s63, v33")
A(f"v_and_b32 v32, {sHI}, v32")
A(f"v_and_b32 v33, {sHI}, v33")
A("v_fmac_f32 v50, v48, v32")
A("v_fmac_f32 v51, v49, v33")
A("v_cvt_pk_bf16_f32 v50, v50, v51")
A("buffer_store_dword v50, v2, s[40:43], 0 offen")
stamp(9)
A("s_branch L_fin")
A("L_sp1:")
A(f"s_sub_u32 s54, {sJ}, 30")
A("s_mul_i32 s54, s54, 640")
A(f"s_mul_i32 s55, {sX}, 1280")
A("s_add_u32 s54, s54, s55")
A(f"s_mul_i32 s55, {sW}, 10240")
A("s_add_u32 s54, s54, s55")
A(f"s_add_u32 s54, s54, {PART - 10240}")
A("v_lshl_add_u32 v5, v1, 4, s54")
A(f"s_cmp_lt_u32 {sW}, 6")
A("s_cselect_b32 s57, 7, 6")
A("s_cselect_b32 s58, 1.0, 0")
A("v_min_u32 v4, s57, v0")
A("v_mul_u32_u24 v4, 71680, v4")
A("v_add_u32 v4, s54, v4")
A("s_mul_i32 s57, s57, 71680")


def part_probe():
    A("s_sleep 2")
    A(f"buffer_load_dwordx2 v[16:17], v4, {WS}, 0 offen sc1")


def part_loads():
    A("s_mov_b32 s56, 0")
    for i in range(8):
        A(f"buffer_load_dwordx4 {vr(16+4*i,4)}, v5, {WS}, {'s57' if i == 7 else 's56'} offen sc1")
        if i < 6:
            A("s_add_u32 s56, s56, 71680")


A("s_barrier")
if OPT["probe"]:
    part_probe()
    A("s_waitcnt vmcnt(0)")
    tag_check("L_pq", [17], part_probe)
stamp(7)
part_loads()
A("s_waitcnt vmcnt(0)")
tag_check("L_pp", [17 + 2*i for i in range(16)], part_loads)
stamp(8)
for c in range(2):
    A(f"v_mul_f32 v{44+2*c}, s58, v{44+2*c}")
for i in (0, 2, 4, 6):
    for c in range(2):
        A(f"v_add_f32 v{16+4*i+2*c}, v{16+4*i+2*c}, v{20+4*i+2*c}")
for c in range(2):
    A(f"v_add_f32 v{16+2*c}, v{16+2*c}, v{24+2*c}")
    A(f"v_add_f32 v{32+2*c}, v{32+2*c}, v{40+2*c}")
A("v_add_f32 v16, v16, v32")
A("v_add_f32 v17, v18, v34")
A(f"s_lshl_b32 s54, {sW}, 9")
A("s_sub_u32 s54, s54, 512")
A("v_lshl_add_u32 v6, v0, 3, s54")
A("ds_write_b64 v6, v[16:17]")
A("s_waitcnt lgkmcnt(0)")
A("s_barrier")
A("s_branch L_fin")

A("L_slowsync:")
A(f"v_min_u32 v4, {NP1-1}, v0")
A("v_add_u32 v5, 8, v4")
A("v_cmp_gt_u32 vcc, 20, v4")
A("v_cndmask_b32 v4, v5, v4, vcc")
A("v_lshlrev_b32 v4, 10, v4")
A(f"s_lshl_b32 s57, {sX}, 7")
A(f"s_add_u32 s57, s57, {ARR}")
A(f"buffer_load_dwordx2 v[2:3], v4, {WS}, s57 offen sc1")
A("s_waitcnt vmcnt(0)")
A(f"v_cmp_eq_u32 vcc, {sTAG}, v2")
A(f"v_cmp_ne_u32 s[56:57], {sXCC}, v3")
A("s_and_b64 vcc, vcc, s[56:57]")
A("s_cbranch_scc1 L_fb")
A(f"s_cmp_lt_u32 s59, {POLL_LIMIT}")
A("s_cbranch_scc1 L_poll")
A("s_branch L_synced")
A("L_fb:")
A(f"s_mov_b32 s57, {FLB}")
A(f"s_mov_b32 s60, {YT2}")
A(f"s_mov_b32 s61, {FLB}")
A(f"s_cmp_lg_u32 {sW}, 0")
A("s_cbranch_scc1 L_nowb")
A("buffer_wbl2 sc1")
A("s_waitcnt vmcnt(0)")
setexec(1)
A(f"buffer_store_dwordx2 v[10:11], v12, {WS}, s57 offen sc1")
setexec(ALL)
A("L_nowb:")
A(f"s_cmp_ge_u32 {sJ}, 20")
A("s_cbranch_scc1 L_synced")
A("s_mov_b32 s59, 0")
A("L_pollb:")
A(f"buffer_load_dwordx2 v[2:3], v1, {WS}, s57 offen sc1")
A("s_add_u32 s59, s59, 1")
A("s_waitcnt vmcnt(0)")
A(f"v_cmp_eq_u32 vcc, {sTAG}, v2")
A("s_cmp_eq_u64 vcc, -1")
A("s_cbranch_scc1 L_bok")
A("s_sleep 2")
A(f"s_cmp_lt_u32 s59, {POLL_LIMIT}")
A("s_cbranch_scc1 L_pollb")
A("L_bok:")
A("buffer_inv sc1")
A("s_waitcnt vmcnt(0)")
A("s_branch L_synced")

A("L_hi4:")
A(f"s_cmp_lt_u32 {sJ}, 20")
A("s_cbranch_scc1 L_mfma")
A(f"s_cmp_ge_u32 {sJ}, 30")
A("s_cbranch_scc1 L_special")
A(f"s_cmp_lg_u32 s2, {28*8}")
A("s_cbranch_scc1 L_fin")
A(f"s_cmp_lg_u32 {sW}, 7")
A("s_cbranch_scc1 L_fin")
A("v_lshlrev_b32 v1, 7, v0")
for i in range(4):
    A(f"s_mov_b32 s{54+i}, {ARR + 8192*i}")


def arr_loads():
    A("s_sleep 8")
    for i in range(4):
        A(f"buffer_load_dword v{6+i}, v1, {WS}, s{54+i} offen sc1")


arr_loads()
A("s_waitcnt vmcnt(0)")
tag_check("L_ep", [6, 7, 8, 9], arr_loads)
A(f"v_mov_b32 v10, {sTAG}")
A(f"v_mov_b32 v11, {EPOCH}")
setexec(1)
A(f"buffer_store_dword v10, v11, {WS}, 0 offen sc1")
setexec(ALL)
A("s_branch L_fin")

A("L_mfma:")
A(f"s_sub_u32 s53, {sW}, 4")
A(f"s_mul_i32 s54, s53, {A_C}")
A("v_lshl_add_u32 v8, v0, 4, s54")
for i in range(4):
    A(f"ds_read_b128 {vr(16+16*i,4)}, v8 offset:{3*A_CP + 32 + 1024*i}")
    A(f"ds_read_b128 {vr(20+16*i,4)}, v8 offset:{3*A_CP + 48 + 1024*i}")
for i in range(4):
    b = 16 + 16*i
    A(f"s_waitcnt lgkmcnt({6 + i})")
    A(f"ds_write_b128 v8, {vr(b+2,4)} offset:{A_CP + 48 + 1024*i}")
    for q in range(6):
        A(f"v_mov_b32 v{b+8+q}, v{b+1+q}")
    A(f"ds_write_b128 v8, {vr(b+8,4)} offset:{48 + 1024*i}")
    A(f"ds_write_b128 v8, {vr(b+10,4)} offset:{2*A_CP + 48 + 1024*i}")
A("v_and_b32 v6, 3, v0")
A(f"v_mul_u32_u24 v1, {A_CP}, v6")
A("v_bfe_u32 v6, v0, 2, 2")
A("v_lshrrev_b32 v7, 4, v0")
A("v_add_u32 v6, v6, v7")
A("v_lshl_add_u32 v1, v6, 4, v1")
A("v_add_u32 v1, s54, v1")
A("v_and_b32 v6, 1, v0")
A(f"v_mul_u32_u24 v2, {U_P}, v6")
A("v_bfe_u32 v6, v0, 1, 3")
A("v_lshlrev_b32 v6, 2, v6")
A("v_sub_u32 v6, v6, v7")
A("v_lshl_add_u32 v2, v6, 4, v2")
A(f"s_mul_i32 s54, s53, {U_C}")
A(f"s_add_u32 s54, s54, {LU + 48}")
A("v_add_u32 v2, s54, v2")
A("v_bfe_u32 v6, v0, 1, 3")
A("v_lshl_add_u32 v6, v6, 2, v7")
A("v_and_b32 v5, 1, v0")
A("v_lshlrev_b32 v4, 4, v6")
A("v_lshl_add_u32 v4, v5, 3, v4")
A("s_lshl_b32 s54, s62, 12")
A("v_add_u32 v4, s54, v4")
A(f"s_mul_i32 s54, {sX}, {2048 - 320}")
A("s_lshl_b32 s55, s62, 2")
A("s_add_u32 s54, s54, s55")
A("v_mov_b32 v5, s54")
A(f"v_mov_b32 v6, {sTAG}")
A(f"v_mov_b32 v7, {LF}")
A("s_bitcmp1_b32 s62, 0")
A("s_cselect_b32 s54, 16, 0")
A("s_lshr_b32 s63, s63, s54")
A("s_and_b32 s63, s63, 0xffff")
A("v_lshrrev_b32 v12, 4, v0")
A("v_and_b32 v13, 15, v0")
A("v_lshl_add_u32 v12, v12, 2, v13")
A("v_mov_b32 v13, s63")
for i in range(4):
    A(f"v_cmp_eq_u32 vcc, {15-i}, v12")
    A(f"v_cndmask_b32 v{8+i}, 0, v13, vcc")
A("v_mov_b32 v12, -1")
A("v_mov_b32 v13, -1")
A(f"s_mov_b32 s60, {KVT}")
A(f"s_mov_b32 s61, {FLG}")
A(f"s_mov_b32 s56, {YT2}")
A(f"s_mov_b32 s57, {FLB}")
A("s_waitcnt lgkmcnt(0)")
n = 0
for rho in range(OPT["resid"]):
    for a in range(4):
        A(f"ds_read_b128 a[{(rho*4+a)*4}:{(rho*4+a)*4+3}], v1 offset:{64*rho + 512*a}")
        n += 1
        if n % 8 == 0:
            A("s_waitcnt lgkmcnt(7)")
stamp(5)
if OPT["prio"]:
    A(f"s_setprio {OPT['prio']}")
A("s_waitcnt lgkmcnt(0)")
A("s_barrier")
if PROF:
    A("s_memtime s[90:91]")
stamp(6, True)


slow_sites = []


def ystore(txt_fast, txt_slow):
    k = len(slow_sites)
    slow_sites.append(txt_slow)
    return f"s_cbranch_scc1 L_ys{k}\n{txt_fast}\nL_yr{k}:"


def mfma_schedule():
    passes = [(0, 1, 2, 3), (4, 5, 6, 7)]
    seq = []
    for pi, tiles in enumerate(passes):
        for rho in range(8):
            for b in range(max(tiles) + 1):
                for n in tiles:
                    if n >= b:
                        a = n - b
                        ak = ("A", a, rho) if a <= 3 else ("A", a, rho, pi)
                        seq.append((pi, n, ak, ("B", b, rho, pi)))
                        if a == 0 and rho == 0:
                            seq.append((pi, n, ("D",), ("B", b, rho, pi)))
    N = len(seq)
    end = [max(i for i, e in enumerate(seq) if e[0] == pi) for pi in range(2)]
    reg, pos = {}, {}
    side = {}

    def put(i, key, fn):
        while len(side.get(i, [])) >= 1 and i < N - 1:
            i += 1
        side.setdefault(i, []).append((key, fn))
        return i

    def acc(n, t):
        return 96 + 4*n + t

    def pack_store(n, i):
        i = put(i, None, lambda n=n: f"v_cvt_pk_bf16_f32 v{acc(n,0)}, v{acc(n,0)}, v{acc(n,1)}")
        i = put(i, None, lambda n=n: f"v_cvt_pk_bf16_f32 v{acc(n,1)}, v{acc(n,2)}, v{acc(n,3)}")
        return put(i, None, lambda n=n: ystore(
            f"buffer_store_dwordx2 {vr(acc(n,0),2)}, v4, {WS}, s60 offen offset:{512*n}",
            f"buffer_store_dwordx2 {vr(acc(n,0),2)}, v4, {WS}, s56 offen offset:{512*n} sc1"))

    def flag(pi, i):
        return put(i, None, lambda pi=pi: "s_waitcnt vmcnt(0)\ns_mov_b64 exec, 1\n" + ystore(
            f"buffer_store_dword v6, v5, {WS}, s61 offen offset:{512*(pi+1)}",
            f"buffer_store_dword v6, v5, {WS}, s57 offen offset:{512*(pi+1)} sc1") + "\ns_mov_b64 exec, -1" + ("\ns_memrealtime s[82:83]" if PROF and pi == 0 else ""))

    put(24, ("M",), lambda: f"v_readfirstlane_b32 s54, v15\ns_cmp_lg_u32 s54, {FLG}")
    i = OPT['sent']
    for n in passes[1]:
        i = put(i + 3, None, lambda n=n: ystore(
            f"buffer_store_dwordx2 v[12:13], v4, {WS}, s60 offen offset:{512*n}",
            f"buffer_store_dwordx2 v[12:13], v4, {WS}, s56 offen offset:{512*n} sc1"))
    i = end[0] + 5
    for n in passes[0]:
        i = pack_store(n, i)
    flag(0, i + OPT["ackgap"])

    first, last = {}, {}
    for i, (_, _, ak, bk) in enumerate(seq):
        ks = [k for k in (bk, ak) if len(k) == 4 or (len(k) == 3 and k[2] >= OPT["resid"])]
        ks += [k for k, _ in side.get(i, []) if k and k[0] == "K"]
        for k in ks:
            first.setdefault(k, i)
            last[k] = i
    loads = sorted(first, key=lambda k: (first[k], k[0] != "B"))
    free = [16 + 4*s for s in range(20)]
    issued = []
    st = dict(done=0, li=0)
    LOOK, SETTLE = OPT["look"], OPT["settle"]
    started = set()

    def rname(k):
        if len(k) == 1:
            return "v[8:11]"
        if len(k) == 3:
            return f"a[{(k[2]*4 + k[1])*4}:{(k[2]*4 + k[1])*4 + 3}]"
        return vr(reg[k], 4)

    def issue_loads(i, maxn):
        cnt = 0
        while st["li"] < len(loads) and cnt < maxn:
            k = loads[st["li"]]
            if first[k] > i + LOOK or len(issued) - st["done"] >= 14 or not free:
                break
            if len(k) == 4:
                reg[k] = free.pop(0)
            if k[0] == "A":
                A(f"ds_read_b128 {rname(k)}, v1 offset:{64*k[2] + 512*k[1]}")
            elif k[0] == "B":
                A(f"ds_read_b128 {rname(k)}, v2 offset:{512*k[1] + 64*(7-k[2])}")
            else:
                A(f"ds_read_b128 {rname(k)}, v3 offset:{512*k[1]}")
            pos[k] = len(issued)
            issued.append((k, i))
            st["li"] += 1
            cnt += 1

    def wait_for(keys, i):
        needp = max([pos[k] for k in keys if k in pos] + [-1]) + 1
        for k in keys:
            assert k in pos or k not in first, (k, i)
        if needp > st["done"]:
            tgt = needp
            while tgt < len(issued) and issued[tgt][1] <= i - SETTLE:
                tgt += 1
            A(f"s_waitcnt lgkmcnt({len(issued) - tgt})")
            st["done"] = tgt

    issue_loads(-1, 10)
    A("ds_read_b32 v15, v7")
    pos[("M",)] = len(issued)
    issued.append((None, -1))
    for i, (pi, n, ak, bk) in enumerate(seq):
        wait_for([ak, bk] + [k for k, _ in side.get(i, []) if k], i)
        a_ = vr(96 + 4*n, 4)
        c = a_ if n in started else "0"
        started.add(n)
        A(f"v_mfma_f32_16x16x32_bf16 {a_}, {rname(ak)}, {rname(bk)}, {c}")
        for k, fn in side.get(i, []):
            t_ = fn()
            if not (OPT["noside"] and t_.startswith("v_") and "readfirst" not in t_):
                A(t_)
        for k in list(reg):
            if last[k] == i:
                free.append(reg[k])
        behind = st["li"] < len(loads) and first[loads[st["li"]]] <= i + 8
        issue_loads(i, OPT["maxn"] + (1 if behind else 0))
    side.clear()
    i = N - 1
    for n in passes[1]:
        pack_store(n, i)
    put(i, None, lambda: "s_barrier")
    flag(1, i)
    if PROF:
        A("s_memtime s[92:93]")
    stamp(8)
    for k, fn in side[N-1]:
        A(fn())


mfma_schedule()
stamp(7)
A("s_branch L_fin")
for k, t in enumerate(slow_sites):
    A(f"L_ys{k}:")
    A(t)
    A(f"s_branch L_yr{k}")

A("L_nonp1:")
A("v_lshrrev_b32 v1, 2, v0")
A("v_mul_u32_u24 v1, 3456, v1")
A("v_lshrrev_b32 v2, 4, v0")
A("v_and_b32 v2, 2, v2")
A("v_and_b32 v3, 3, v0")
A("v_xor_b32 v2, v2, v3")
A("v_lshl_add_u32 v100, v2, 4, v1")
A("v_subrev_u32 v9, 64, v9")
for k in range(11):
    A(f"v_add_u32 v1, {256*k}, v9")
    A("v_mul_u32_u24 v2, 1599, v1")
    A("v_lshrrev_b32 v2, 17, v2")
    A("v_mul_u32_u24 v3, 82, v2")
    A("v_sub_u32 v1, v1, v3")
    A("v_min_u32 v1, 79, v1")
    A("v_mul_u32_u24 v2, 1280, v2")
    A(f"v_lshl_add_u32 v{101+k}, v1, 4, v2")
after_kernarg()
if OPT["bq"]:
    A("s_barrier")
if OPT["codewarm"]:
    A("s_getpc_b64 s[54:55]")
    A("L_pc:")
    A(f"s_sub_u32 s54, s54, L_pc-{NAME}_kernel")
    A("s_subb_u32 s55, s55, 0")
    A("v_lshlrev_b32 v1, 7, v9")
    A(f"v_cmp_gt_u32 vcc, L_codeend-{NAME}_kernel, v1")
    A("s_and_saveexec_b64 s[56:57], vcc")
    A("s_cbranch_execz L_nocw")
    A("global_load_dword v127, v1, s[54:55]")
    A("L_nocw:")
    setexec(ALL)
make_tag()
A("s_barrier")

A("L_moe:")
A(f"s_cmp_lt_u32 {sX}, 3")
A("s_cselect_b32 s54, 8, 6")
A("s_cselect_b32 s55, 0, 6")
A("s_cmp_ge_u32 s63, s54")
A("s_cbranch_scc1 L_fin")
A(f"s_mul_i32 s56, {sX}, s54")
A("s_add_u32 s56, s56, s55")
A("s_add_u32 s53, s63, s56")
A("s_mov_b32 s57, 0x3f803f80")
for i in range(4):
    A(f"v_mov_b32 v{16+i}, s57")
A(f"s_mov_b32 s57, {LX + 2*X_P}")
A("v_lshl_add_u32 v2, v0, 4, s57")
A("ds_write_b128 v2, v[16:19]")
A("ds_write_b128 v2, v[16:19] offset:256")
A("v_bfe_u32 v1, v0, 3, 1")
A("v_lshrrev_b32 v2, 4, v0")
A("v_bfe_u32 v10, v0, 2, 2")
A("v_and_b32 v11, 3, v0")
A("v_lshl_add_u32 v14, v2, 3, v10")
A(f"v_mul_u32_u24 v12, {WD_P}, v14")
A(f"s_mul_i32 s57, {sW}, 160")
A(f"s_add_u32 s57, s57, {LWD}")
A("v_lshl_add_u32 v13, v11, 3, s57")
A("v_add_u32 v12, v12, v13")
A(f"s_and_b32 s60, {sW}, 1")
A(f"s_lshr_b32 s61, {sW}, 1")
A("v_lshlrev_b32 v14, 6, v14")
A("v_lshrrev_b32 v15, 1, v11")
A(f"v_mul_u32_u24 v15, {LWU}, v15")
A("v_add_u32 v14, v14, v15")
A("v_and_b32 v15, 1, v11")
A("v_lshl_add_u32 v14, v15, 3, v14")
A("v_and_b32 v15, 1, v2")
A("v_lshlrev_b32 v15, 1, v15")
A("v_xor_b32 v15, s61, v15")
A("v_lshl_add_u32 v14, v15, 4, v14")
A(f"s_mul_i32 s57, s60, {320*64}")
A("v_add_u32 v14, s57, v14")
A("v_and_b32 v10, 7, v0")
A("v_lshl_add_u32 v11, v2, 3, v10")
A("v_lshlrev_b32 v11, 2, v11")
A(f"v_add_u32 v37, {LRED + 512}, v11")
A("v_lshl_add_u32 v36, v1, 8, v11")
A(f"v_add_u32 v36, {LRED}, v36")
A("v_and_b32 v18, 1, v10")
A("v_mov_b32 v19, 0xffff")
A(f"v_mov_b32 v20, {sHI}")
A("v_cmp_eq_u32 vcc, 1, v18")
A("v_cndmask_b32 v18, v19, v20, vcc")
A("v_lshrrev_b32 v13, 1, v10")
for i in range(4):
    A(f"v_cmp_eq_u32 vcc, {i}, v13")
    A(f"v_cndmask_b32 v{80+i}, 0, v18, vcc")
A("v_and_b32 v38, 15, v0")
A("v_lshlrev_b32 v38, 8, v38")
A("v_lshrrev_b32 v39, 1, v2")
A("v_lshl_add_u32 v38, v39, 7, v38")
A("v_and_b32 v39, 1, v2")
A("v_lshl_add_u32 v38, v39, 4, v38")
A("s_mul_i32 s57, s60, 768")
A("s_lshl_b32 s59, s61, 5")
A("s_add_u32 s57, s57, s59")
A(f"s_add_u32 s57, s57, {LRED}")
A("v_add_u32 v38, s57, v38")
A("v_mul_u32_u24 v39, 640, v1")
A("v_lshl_add_u32 v39, v10, 4, v39")
A("v_mul_u32_u24 v15, 80, v2")
A("v_add_u32 v39, v39, v15")
A("s_mul_i32 s57, s53, 10240")
A(f"s_mul_i32 s59, {sW}, 1280")
A("s_add_u32 s57, s57, s59")
A(f"s_add_u32 s57, s57, {PART}")
A("v_add_u32 v39, s57, v39")
A(f"s_mov_b32 s57, {LK}")
A("v_lshl_add_u32 v13, v1, 2, s57")
A("v_and_b32 v6, 15, v0")
A("v_min_u32 v6, 2, v6")
A(f"v_mul_u32_u24 v6, {X_P}, v6")
A("s_mul_i32 s57, s60, 640")
A(f"s_add_u32 s57, s57, {LX}")
A("v_lshl_add_u32 v7, v2, 4, s57")
A("v_add_u32 v6, v6, v7")
for i in range(4):
    A(f"v_mov_b32 v{85+2*i}, {sTAG}")
A(f"s_sub_u32 s58, {sW}, 1")
A(f"s_cmp_ge_u32 s58, {0 if OPT['noW'] else 4}")
A("s_cbranch_scc1 L_noload")
srd(40, pWG, WBYTES)
srd(44, pWU, WBYTES)
srd(48, pWD, WBYTES)
A(f"s_mul_i32 s55, s58, {160*3456}")
A("s_lshl_b32 s56, s53, 6")
A("s_add_u32 s55, s55, s56")
A("s_mul_i32 s54, s58, 10240")
if OPT["rot"]:
    A("s_bitcmp1_b32 s53, 0")
    A("s_cselect_b32 s59, 5, 0")
    A(f"s_mul_i32 s56, s59, {16*3456}")
    A("s_add_u32 s55, s55, s56")
    A("s_lshl_b32 s59, s59, 10")
    A("s_add_u32 s54, s54, s59")
    A("s_lshl_b32 s56, s56, 1")
    A("s_lshl_b32 s59, s59, 1")
for i in range(10):
    if OPT["rot"] and i == 5:
        A("s_sub_u32 s55, s55, s56")
        A("s_sub_u32 s54, s54, s59")
    A(f"s_add_u32 m0, s54, {LWG + 1024*i}")
    A("buffer_load_dwordx4 v100, s[40:43], s55 offen lds")
    pc = OPT["pace1"] if 2*i + 1 <= OPT["n1"] else OPT["pace"]
    A(f"s_waitcnt vmcnt({pc})")
    A(f"s_add_u32 m0, s54, {LWU + 1024*i}")
    A("buffer_load_dwordx4 v100, s[44:47], s55 offen lds")
    pc = OPT["pace1"] if 2*i + 2 <= OPT["n1"] else OPT["pace"]
    A(f"s_waitcnt vmcnt({pc})")
    A(f"s_add_u32 s55, s55, {16*3456}")
    if i == OPT["mp"] - 1:
        A("s_barrier")
A("s_mul_i32 s55, s53, 40960")
A("s_lshl_b32 s54, s58, 10")
A("s_cmp_lg_u32 s58, 0")
A("s_cbranch_scc1 L_nod11")
A(f"s_mov_b32 m0, {LWD + 40960}")
A("buffer_load_dwordx4 v111, s[48:51], s55 offen lds")
A("L_nod11:")
for k in range(10):
    A(f"s_add_u32 m0, s54, {LWD + 4096*k}")
    A(f"buffer_load_dwordx4 v{101+k}, s[48:51], s55 offen lds")
stamp(4)
A("s_branch L_nopoll")
A("L_noload:")
A("s_barrier")
A(f"s_cmp_lg_u32 {sW}, 0")
A("s_cbranch_scc1 L_nopoll")
A("v_lshlrev_b32 v32, 4, v0")
A(f"s_mov_b32 s58, {CAND}")
if OPT["polldelay"]:
    A(f"s_sleep {OPT['polldelay']}")
cand_loads(16, 32, "s58", " sc1")
srd(40, pQ, TBYTES)
A("s_waitcnt vmcnt(0)")
tag_check("L_cm", [17 + 2*i for i in range(8)], lambda: cand_loads(16, 32, "s58", " sc1"))
top2_merge(16)
stamp(7)
A("s_andn2_b32 s56, 0x7ff, s54")
A("s_andn2_b32 s57, 0x7ff, s55")
A("s_mul_i32 s56, s56, 1280")
A("s_mul_i32 s57, s57, 1280")
A(f"s_mov_b32 m0, {LX}")
A("buffer_load_dwordx4 v32, s[40:43], s56 offen lds")
setexec(0xffff)
A("buffer_load_dwordx4 v32, s[40:43], s56 offen offset:1024 lds")
setexec(ALL)
A(f"s_mov_b32 m0, {LX + X_P}")
A("buffer_load_dwordx4 v32, s[40:43], s57 offen lds")
setexec(0xffff)
A("buffer_load_dwordx4 v32, s[40:43], s57 offen offset:1024 lds")
setexec(ALL)
A("v_mov_b32 v16, s54")
A("v_mov_b32 v17, s55")
A("v_cmp_eq_u32 vcc, 1, v1")
A("v_cndmask_b32 v5, v16, v17, vcc")
A("v_not_b32 v3, v5")
A("v_and_b32 v7, 0x7ff, v3")
A("v_lshlrev_b32 v7, 3, v7")
A(f"s_mov_b32 s57, {ESTAT}")


def mstat():
    A(f"buffer_load_dwordx2 v[8:9], v7, {WS}, s57 offen sc1")


mstat()
A(f"v_and_b32 v5, {sHI}, v5")
A("v_ashrrev_i32 v10, 31, v5")
A("v_not_b32 v10, v10")
A("v_or_b32 v10, 0x80000000, v10")
A("v_xor_b32 v5, v5, v10")
A(f"v_and_b32 v5, {sHI}, v5")
A("v_mul_f32 v5, 0xbfb8aa3b, v5")
A("v_exp_f32 v5, v5")
A("v_add_f32 v5, 1.0, v5")
A("v_rcp_f32 v5, v5")
A("s_waitcnt vmcnt(0)")
tag_check("L_ms", [9], mstat)
A("ds_write2_b32 v13, v5, v8 offset0:0 offset1:2")
stamp(11)
A("L_nopoll:")
for t in range(1, 5):
    m = (1 << t) * 0x01010101
    A(f"s_mov_b32 s{40+2*t}, {m:#x}")
    A(f"s_mov_b32 s{41+2*t}, {m:#x}")
A("s_waitcnt vmcnt(10) lgkmcnt(0)")
stamp(5)
A("s_barrier")
stamp(6, True)
for s in range(10):
    A(f"ds_read_b64_tr_b16 a[{4*s}:{4*s+1}], v14 offset:{2048*s}")
    A(f"ds_read_b64_tr_b16 a[{4*s+2}:{4*s+3}], v14 offset:{2048*s + 256}")
    A(f"ds_read_b128 {vr(40+4*s,4)}, v6 offset:{64*s}")
    if s >= 4:
        q = s - 4
        A("s_waitcnt lgkmcnt(12)")
        c = "0" if q == 0 else "v[28:31]"
        A(f"v_mfma_f32_16x16x32_bf16 v[28:31], a[{4*q}:{4*q+3}], {vr(40+4*q,4)}, {c}")
A("ds_read2_b32 v[4:5], v13 offset0:2 offset1:0")
for q in range(6, 10):
    A(f"s_waitcnt lgkmcnt({3*(9-q) + 1})")
    A(f"v_mfma_f32_16x16x32_bf16 v[28:31], a[{4*q}:{4*q+3}], {vr(40+4*q,4)}, v[28:31]")
A("s_waitcnt lgkmcnt(0)")
A(f"v_and_b32 v9, {sHI}, v4")
A("v_lshlrev_b32 v8, 16, v4")
A("v_rcp_f32 v9, v9")
setexec(0x0007000700070007)
A("ds_write_b128 v38, v[28:31]")
setexec(ALL)
A("s_waitcnt vmcnt(0) lgkmcnt(0)")
A("s_barrier")
stamp(3, True)
A("ds_read2_b32 v[28:29], v36 offset0:0 offset1:32")
A("ds_read2_b32 v[30:31], v36 offset0:192 offset1:224")
A("ds_read2_b32 v[32:33], v37 offset0:0 offset1:32")
A("ds_read2_b32 v[34:35], v37 offset0:192 offset1:224")
for t in range(5):
    A(f"ds_read_b64_tr_b16 a[{40+4*t}:{41+4*t}], v12 offset:{32*t}")
    A(f"ds_read_b64_tr_b16 a[{42+4*t}:{43+4*t}], v12 offset:{32*t + 4*WD_P}")
A("s_waitcnt lgkmcnt(12)")
A("v_add_f32 v28, v28, v30")
A("v_add_f32 v29, v29, v31")
A("s_waitcnt lgkmcnt(10)")
A("v_add_f32 v32, v32, v34")
A("v_add_f32 v33, v33, v35")
A("v_fma_f32 v28, -v8, v32, v28")
A("v_fma_f32 v29, -v8, v33, v29")
A("v_mul_f32 v28, v28, v9")
A("v_mul_f32 v29, v29, v9")
A("v_mul_f32 v30, 0xbfb8aa3b, v28")
A("v_exp_f32 v30, v30")
A("v_mul_f32 v29, v29, v28")
A("v_add_f32 v30, 1.0, v30")
A("v_rcp_f32 v30, v30")
A("v_mul_f32 v29, v29, v30")
A("v_cvt_pk_bf16_f32 v29, v29, v29")
for i in range(4):
    A(f"v_and_b32 v{32+i}, v29, v{80+i}")
for r in ("quad_perm:[1,0,3,2]", "quad_perm:[2,3,0,1]", "row_half_mirror"):
    for i in range(4):
        A(f"v_or_b32_dpp v{32+i}, v{32+i}, v{32+i} {r} row_mask:0xf bank_mask:0xf")
A("s_waitcnt lgkmcnt(0)")
for t in range(5):
    A(f"v_mfma_f32_16x16x32_bf16 {vr(40+4*t,4)}, a[{40+4*t}:{43+4*t}], v[32:35], 0")
for t in range(1, 5):
    for i in range(4):
        A(f"v_cndmask_b32 v{40+i}, v{40+i}, v{40+4*t+i}, s[{40+2*t}:{41+2*t}]")
for i in range(4):
    A(f"v_mul_f32 v{84+2*i}, v{40+i}, v5")
setexec(0x1f1f1f1f1f1f1f1f)
A(f"buffer_store_dwordx4 v[84:87], v39, {WS}, 0 offen sc1")
A(f"buffer_store_dwordx4 v[88:91], v39, {WS}, 0 offen offset:320 sc1")
setexec(ALL)
stamp(12)
if OPT["wb"]:
    A(f"s_lshl_b32 s54, {sW}, 5")
    A(f"s_add_u32 s54, s54, {sJ}")
    A("s_cmp_lg_u32 s54, 20")
    A("s_cbranch_scc1 L_fin")
    if OPT["wb"] & 1:
        A("buffer_wbl2 sc1")
        A("s_waitcnt vmcnt(0)")
        stamp(10)
    if OPT["wb"] & 2:
        A("v_min_u32 v1, 39, v0")
        A(f"s_lshl_b32 s54, {sX}, 11")
        A("v_lshl_add_u32 v1, v1, 3, s54")
        A(f"s_mov_b32 s56, {FLG + 1024}")
        A(f"s_mov_b32 s57, {FLB + 1024}")
        A("s_mov_b32 s59, 0")
        A("L_wbp:")
        A("s_add_u32 s59, s59, 1")
        A("s_and_b32 s58, s59, 15")
        A("s_cselect_b32 s58, s56, s57")
        A(f"buffer_load_dwordx2 v[10:11], v1, {WS}, s58 offen sc1")
        A("s_waitcnt vmcnt(0)")
        A(f"v_cmp_ne_u32 vcc, {sTAG}, v10")
        A(f"v_cmp_ne_u32 s[54:55], {sTAG}, v11")
        A("s_or_b64 vcc, vcc, s[54:55]")
        A("s_cbranch_scc0 L_wbok")
        A(f"s_cmp_lt_u32 s59, {POLL_LIMIT}")
        A("s_cbranch_scc1 L_wbp")
        A("L_wbok:")
        A("buffer_wbl2 sc1")

A("L_fin:")
if PROF:
    A("s_waitcnt vmcnt(0)")
    stamp(15)
    A("s_waitcnt lgkmcnt(0)")
    if OPT["diag"] >= 0:
        k = OPT["diag"]
        A(f"s_sub_u32 s53, s{64+2*k}, s64")
        A(f"s_cmp_eq_u32 s{64+2*k}, 0")
        A("s_cselect_b32 s53, 0, s53")
        if OPT["drole"] == 1:
            A(f"s_cmp_ge_u32 {sJ}, 20")
            A("s_cselect_b32 s53, 0, s53")
        if OPT["drole"] == 2:
            A(f"s_sub_u32 s54, {sJ}, 20")
            A("s_cmp_ge_u32 s54, 8")
            A("s_cselect_b32 s53, 0, s53")
        A(f"s_mul_i32 s53, s53, {OPT['dmul']}")
        A("s_add_u32 s53, s53, 4000")
        A("L_diag:")
        A("s_sleep 4")
        A("s_memrealtime s[54:55]")
        A("s_waitcnt lgkmcnt(0)")
        A("s_sub_u32 s54, s54, s64")
        A("s_cmp_lt_u32 s54, s53")
        A("s_cbranch_scc1 L_diag")
    A("s_lshl_b32 s53, s2, 3")
    A(f"s_add_u32 s53, s53, {sW}")
    A("s_lshl_b32 s53, s53, 6")
    A(f"s_add_u32 s53, s53, {PROFB}")
    A("v_mov_b32 v1, s53")
    setexec(1)
    for k in range(16):
        A(f"v_mov_b32 v2, s{64+2*k}")
        A(f"buffer_store_dword v2, v1, {WS}, 0 offen offset:{4*k}")
A("L_end:")
A("s_endpgm")
A("L_codeend:")

hdr = open(os.path.join(os.path.dirname(os.path.abspath(__file__)), "..", "cdna_kernels", NAME + ".s.ref")).read().split("\n")
hdr = [l for l in hdr if l.startswith(";") and "@launch" not in l]
out = hdr + [f"; @launch grid=(256,1,1) block=(512,1,1) lds={LDS_BYTES}",
             '.amdgcn_target "amdgcn-amd-amdhsa--gfx950"', ".text", f".globl {NAME}_kernel", ".p2align 8",
             f".type {NAME}_kernel,@function"]
out += A.padded()
out += ['.section .rodata,"a"', ".p2align 6", f".amdhsa_kernel {NAME}_kernel",
        "  .amdhsa_next_free_vgpr 256", "  .amdhsa_next_free_sgpr 102", "  .amdhsa_accum_offset 128",
        "  .amdhsa_group_segment_fixed_size 0", "  .amdhsa_kernarg_size 112", "  .amdhsa_user_sgpr_count 2",
        "  .amdhsa_user_sgpr_kernarg_segment_ptr 1", "  .amdhsa_system_sgpr_workgroup_id_x 1",
        "  .amdhsa_float_denorm_mode_32 3", ".end_amdhsa_kernel", ""]
open(sys.argv[1], "w").write("\n".join(out))
```

```python
import sys, os
sys.path.insert(0, os.path.dirname(os.path.abspath(__file__)))
from asmlib import Asm

NAME = "parallel_sum__ssm_conv_h3__moe_arch_mod__prompt"
OPT = dict(prof=0, codewarm=2, force_fb=0, diag=-1, dmul=4, prio=2, look=16, settle=7, pace=4, polldelay=0,
           bq=1, resid=4, pace1=1, n1=6, noW=0, nopre=0, noh=0, maxn=1, ackgap=20, mp=5, noepi=0, noside=0, drole=0, outA=0, outB=0, wb=0, sent=70, rot=0, probe=0, malign=1, ya=0)
for a in sys.argv[2:]:
    k, v = a.split("=")
    assert k in OPT, k
    OPT[k] = int(v)
PROF = OPT["prof"]

EPOCH, FLG, FLB, CAND, ARR, ESTAT, PART = 0, 0x1000, 0x5000, 0x9000, 0x10000, 0x18000, 0x20000
TOP = 0xA000
KVT, YT2, PROFB = 0x100000, 0x400000, 0x800000
WS_BYTES = 0x1000000
TBYTES = 2621440
WBYTES = 2211840
NMOE, NP1 = 54, 24
OOB = 0x7ffffff0
LA, A_C, A_CP = 0, 16640, 4160
LU, U_C, U_P = 66560, 9120, 4576
LY = 103040
LS, S_T = 103040, 15552
LF = 139776
LDS_BYTES = 140032
LWG, LWU, LWD, WD_P, LRED, LK, LX, X_P = 0, 40976, 81984, 1312, 123968, 125504, 125568, 1344
POLL_LIMIT = 1 << 16

sX, sJ, sW, sTAG, sXCC = "s3", "s4", "s5", "s6", "s7"
pQ, pK, pV, pSH, pH, pD, pWR, pWG, pWU, pWD, pOUT, pWS = 8, 10, 12, 14, 16, 18, 22, 24, 26, 28, 30, 34
WS = "s[36:39]"
sHI = "s52"
ALL = (1 << 64) - 1
A = Asm()


def sp(p):
    return f"s[{p}:{p+1}]"


def srd(reg, ptr, nbytes):
    A(f"s_mov_b32 s{reg}, s{ptr}")
    A(f"s_mov_b32 s{reg+1}, s{ptr+1}")
    A(f"s_mov_b32 s{reg+2}, {nbytes:#x}")
    A(f"s_mov_b32 s{reg+3}, 0x20000")


def stamp(k, wait=False):
    if PROF:
        A(f"s_memrealtime s[{64+2*k}:{65+2*k}]")
        if wait:
            A("s_waitcnt lgkmcnt(0)")


def vr(b, n):
    return f"v[{b}:{b+n-1}]"


def setexec(m):
    lo, hi = m & 0xffffffff, m >> 32
    if m == ALL:
        A("s_mov_b64 exec, -1")
    elif hi == 0 and lo < 0x80000000:
        A(f"s_mov_b64 exec, {lo:#x}")
    else:
        A(f"s_mov_b32 exec_lo, {lo:#x}")
        A(f"s_mov_b32 exec_hi, {hi:#x}")


def after_kernarg():
    A("s_waitcnt lgkmcnt(0)")
    A(f"s_load_dword {sTAG}, {sp(pWS)}, {EPOCH}")
    srd(36, pWS, WS_BYTES)


def make_tag():
    A("s_waitcnt lgkmcnt(0)")
    A(f"s_mul_i32 {sTAG}, {sTAG}, 0x9E3779B1")
    A(f"s_add_u32 {sTAG}, {sTAG}, 0x7F4A7C15")


def or_tree(regs):
    regs = list(regs)
    while len(regs) > 1:
        nxt = []
        i = 0
        while i < len(regs):
            if i + 2 < len(regs):
                A(f"v_or3_b32 v{regs[i]}, v{regs[i]}, v{regs[i+1]}, v{regs[i+2]}")
                nxt.append(regs[i]); i += 3
            elif i + 1 < len(regs):
                A(f"v_or_b32 v{regs[i]}, v{regs[i]}, v{regs[i+1]}")
                nxt.append(regs[i]); i += 2
            else:
                nxt.append(regs[i]); i += 1
        regs = nxt
    return regs[0]


def tag_check(lbl, tagregs, reissue, restore=None):
    A("s_mov_b32 s59, 0")
    A(f"{lbl}:")
    for r in tagregs:
        A(f"v_xor_b32 v{r}, {sTAG}, v{r}")
    r = or_tree(tagregs)
    A(f"v_cmp_ne_u32 vcc, 0, v{r}")
    A(f"s_cbranch_vccz {lbl}_ok")
    if restore:
        restore()
    reissue()
    A("s_add_u32 s59, s59, 1")
    A(f"s_cmp_lt_u32 s59, {POLL_LIMIT}")
    A("s_waitcnt vmcnt(0)")
    A(f"s_cbranch_scc1 {lbl}")
    A(f"{lbl}_ok:")


def merge_dpp(a, rs):
    for r in rs:
        d = f"row_ror:{r} row_mask:0xf bank_mask:0xf"
        A(f"v_min_u32_dpp v{a+1}, v{a}, v{a} {d}")
        A(f"v_max_u32_dpp v{a+3}, v{a+2}, v{a+2} {d}")
        A(f"v_max_u32_dpp v{a}, v{a}, v{a} {d}")
        A(f"v_max_u32 v{a+2}, v{a+1}, v{a+3}")


def cand_loads(t0, va, so, fl):
    for i in range(4):
        A(f"buffer_load_dwordx4 {vr(t0+4*i,4)}, v{va}, {WS}, {so} offen offset:{1024*i}{fl}")


def top2_merge(t0):
    def merge(a, b, tmp):
        A(f"v_min_u32 v{tmp}, v{a}, v{b}")
        A(f"v_max_u32 v{a}, v{a}, v{b}")
        A(f"v_max3_u32 v{a+2}, v{a+2}, v{b+2}, v{tmp}")
    merge(t0, t0+4, t0+1)
    merge(t0+8, t0+12, t0+3)
    merge(t0, t0+8, t0+1)
    merge_dpp(t0, (1, 2, 4, 8))
    A(f"v_readlane_b32 s54, v{t0}, 0")
    A(f"v_readlane_b32 s55, v{t0+2}, 0")
    for row in (16, 32, 48):
        A(f"v_readlane_b32 s56, v{t0}, {row}")
        A(f"v_readlane_b32 s59, v{t0+2}, {row}")
        A("s_max_u32 s55, s55, s59")
        A("s_min_u32 s59, s54, s56")
        A("s_max_u32 s54, s54, s56")
        A("s_max_u32 s55, s55, s59")


A(f"{NAME}_kernel:")
A("s_cmp_ge_u32 s2, 256")
A("s_cbranch_scc1 L_end")
A("s_load_dwordx16 s[8:23], s[0:1], 0")
A("s_load_dwordx8 s[24:31], s[0:1], 64")
A("s_load_dwordx4 s[32:35], s[0:1], 96")
A("v_lshrrev_b32 v1, 6, v0")
A("v_mov_b32 v9, v0")
A("v_and_b32 v0, 63, v0")
A(f"s_and_b32 {sX}, s2, 7")
A(f"s_lshr_b32 {sJ}, s2, 3")
A(f"v_readfirstlane_b32 {sW}, v1")
A(f"s_getreg_b32 {sXCC}, hwreg(HW_REG_XCC_ID)")
if OPT["force_fb"]:
    A(f"s_add_u32 {sXCC}, {sXCC}, {sJ}")
A(f"s_mov_b32 {sHI}, 0xffff0000")
if PROF:
    for k in range(64, 96):
        A(f"s_mov_b32 s{k}, 0")
stamp(0)
A(f"s_mul_i32 s53, {sX}, 20")
A(f"s_add_u32 s53, s53, {sJ}")
A(f"s_sub_u32 s63, {sJ}, 20")
if OPT["codewarm"] == 2:
    A("s_cmp_ge_u32 s63, 8")
    A("s_cbranch_scc1 L_nocw2")
    A("s_getpc_b64 s[54:55]")
    A("L_pc2:")
    A(f"s_sub_u32 s54, s54, L_pc2-{NAME}_kernel")
    A("s_subb_u32 s55, s55, 0")
    A("v_subrev_u32 v1, 320, v9")
    A("v_lshlrev_b32 v1, 7, v1")
    A(f"v_cmp_gt_u32 vcc, L_codeend-{NAME}_kernel, v1")
    A("s_and_saveexec_b64 s[56:57], vcc")
    A("s_cbranch_execz L_nocw3")
    A("global_load_dword v127, v1, s[54:55]")
    A("L_nocw3:")
    setexec(ALL)
    A("L_nocw2:")
A(f"s_sub_u32 s58, {sJ}, 8")
A(f"s_cmp_lt_u32 {sJ}, 20")
A(f"s_cselect_b32 s58, {sJ}, s58")
A(f"s_cmp_lg_u32 {sW}, 0")
A("s_cbranch_scc1 L_not7")

A("v_and_b32 v1, 7, v0")
A("v_bfe_u32 v2, v0, 3, 1")
A("v_lshrrev_b32 v3, 4, v0")
A("v_mul_u32_u24 v4, 1280, v1")
A("v_mul_u32_u24 v5, 640, v2")
A("v_add_u32 v4, v4, v5")
A("v_lshl_add_u32 v4, v3, 4, v4")
A("s_mul_i32 s55, s2, 10240")
A("v_add_u32 v4, s55, v4")
A("v_and_b32 v5, 15, v0")
A("v_cmp_lt_u32 vcc, 1, v5")
A("v_mov_b32 v6, 640")
A("v_cndmask_b32 v6, 0, v6, vcc")
A("v_lshl_add_u32 v6, v3, 4, v6")
A("s_mov_b32 s55, 0x3f803f80")
for i in range(44):
    A(f"v_mov_b32 v{56+i}, s55")
A("s_waitcnt lgkmcnt(0)")
for s in range(10):
    A(f"global_load_dwordx4 {vr(16+4*s,4)}, v4, {sp(pQ)} offset:{64*s}")
setexec(0x0006000600060006)
for s in range(10):
    A(f"global_load_dwordx4 {vr(56+4*s,4)}, v6, {sp(pWR)} offset:{64*s}")
setexec(ALL)
if OPT["bq"]:
    A("s_barrier")
after_kernarg()
stamp(1)
A("v_lshrrev_b32 v7, 2, v5")
A("v_lshl_add_u32 v7, v7, 4, v5")
A("v_lshlrev_b32 v7, 2, v7")
A("s_lshl_b32 s55, s2, 6")
A(f"s_add_u32 s55, s55, {ESTAT}")
A("v_lshl_add_u32 v122, v1, 3, s55")
A("s_lshl_b32 s56, s2, 3")
A("s_sub_u32 s56, 2047, s56")
A("v_sub_u32 v9, s56, v1")
for r, m in ((40, 0x22222222), (42, 0x44444444), (44, 0x88888888), (46, 0xff00ff00)):
    A(f"s_mov_b32 s{r}, {m:#x}")
    A(f"s_mov_b32 s{r+1}, {m:#x}")
A("s_lshl_b32 s55, s2, 4")
A(f"s_add_u32 s55, s55, {CAND}")
A("v_mov_b32 v8, s55")
for s in range(10):
    A(f"s_waitcnt vmcnt({19-s})")
    c = "0" if s == 0 else "v[100:103]"
    A(f"v_mfma_f32_16x16x32_bf16 v[100:103], {vr(16+4*s,4)}, {vr(16+4*s,4)}, {c}")
stamp(2)
for s in range(10):
    A(f"s_waitcnt vmcnt({9-s})")
    c = "0" if s == 0 else "v[104:107]"
    A(f"v_mfma_f32_16x16x32_bf16 v[104:107], {vr(56+4*s,4)}, {vr(16+4*s,4)}, {c}")
    c = "0" if s == 0 else "v[108:111]"
    A(f"v_mfma_f32_16x16x32_bf16 v[108:111], {vr(56+4*s,4)}, v[96:99], {c}")
    if s == 3:
        A("v_cndmask_b32 v100, v100, v101, s[40:41]")
        A("v_cndmask_b32 v100, v100, v102, s[42:43]")
        A("v_cndmask_b32 v100, v100, v103, s[44:45]")
        A("ds_bpermute_b32 v100, v7, v100")
stamp(9)
make_tag()
ROR8 = "row_ror:8 row_mask:0xf bank_mask:0xf"
A(f"v_add_f32_dpp v100, v100, v100 {ROR8}")
A("v_mul_f32 v100, 0x3acccccd, v100")
A(f"v_mov_b32 v121, {sTAG}")
A("v_mov_b32 v14, 0")
A(f"v_add_f32_dpp v104, v104, v104 {ROR8}")
A("v_cndmask_b32 v105, v105, v106, s[46:47]")
A("v_mul_f32 v104, 0x3acccccd, v104")
A("v_add_f32 v109, v109, v110")
A("v_fma_f32 v100, -v104, v104, v100")
A(f"v_add_f32_dpp v105, v105, v105 {ROR8}")
A("v_max_f32 v100, 0, v100")
A("v_cvt_pk_bf16_f32 v104, v104, v100")
A(f"v_and_b32 v100, {sHI}, v104")
A("v_add_f32 v100, 0x3727c5ac, v100")
A("v_cvt_pk_bf16_f32 v100, v100, v100")
A(f"v_and_b32 v100, {sHI}, v100")
A("v_sqrt_f32 v100, v100")
A("v_lshlrev_b32 v106, 16, v104")
A("v_cvt_pk_bf16_f32 v120, v106, v100")
A(f"v_and_b32 v100, {sHI}, v120")
A("v_rcp_f32 v100, v100")
A("v_fma_f32 v105, -v106, v109, v105")
A("v_mul_f32 v105, v105, v100")
A("v_cvt_pk_bf16_f32 v105, v105, v105")
A("v_ashrrev_i32 v106, 31, v105")
A("v_or_b32 v106, 0x80000000, v106")
A("v_xor_b32 v105, v105, v106")
A(f"v_and_or_b32 v12, v105, {sHI}, v9")
merge_dpp(12, (1, 2, 4))
A(f"v_mov_b32 v13, {sTAG}")
A(f"v_mov_b32 v15, {sTAG}")
setexec(1)
A(f"buffer_store_dwordx4 v[12:15], v8, {WS}, 0 offen sc1")
setexec(0xff)
A(f"buffer_store_dwordx2 v[120:121], v122, {WS}, 0 offen sc1")
setexec(ALL)
stamp(8)
A(f"s_cmp_ge_u32 {sJ}, 20")
A("s_cbranch_scc1 L_b1")
A("s_lshl_b32 s54, s53, 14")
A(f"s_add_u32 s55, s54, {KVT}")
A("v_lshl_add_u32 v2, v0, 7, s55")
A(f"s_lshl_b32 s55, {sX}, 11")
A(f"s_add_u32 s55, s55, {FLG}")
A("v_and_b32 v3, 15, v0")
A("v_lshl_add_u32 v3, v3, 7, s55")
A("s_movk_i32 s55, 8192")
if not OPT["nopre"]:
    A(f"buffer_load_dword v127, v2, {WS}, 0 offen sc1")
    A(f"buffer_load_dword v127, v2, {WS}, s55 offen sc1")
A(f"buffer_load_dword v127, v3, {WS}, 0 offen sc1")
srd(48, pH, TBYTES)
A("v_lshlrev_b32 v2, 4, v0")
for c in range(0 if OPT["noh"] else 4):
    A(f"s_mov_b32 m0, {LA + c*A_C + 3*A_CP + 48}")
    for i in range(4):
        A(f"buffer_load_dwordx4 v2, s[48:51], s54 offen offset:{1024*i} lds")
    A("s_add_u32 s54, s54, 4096")
stamp(11)
A("L_b1:")
A("s_lshl_b32 s59, s2, 7")
A(f"s_add_u32 s59, s59, {ARR}")
A(f"v_mov_b32 v10, {sTAG}")
A(f"v_mov_b32 v11, {sXCC}")
A("v_mov_b32 v12, s59")
A("s_barrier")
setexec(1)
A(f"buffer_store_dwordx2 v[10:11], v12, {WS}, 0 offen sc1")
setexec(ALL)
A("s_cmp_ge_u32 s63, 8")
A("s_cbranch_scc1 L_kvdone")
A("s_branch L_moe")

A("L_not7:")
A("s_cmp_lt_u32 s63, 8")
A("s_cbranch_scc1 L_nonp1")
A("v_subrev_u32 v9, 64, v9")
A("s_mul_i32 s60, s58, 11")
A("s_min_u32 s60, s60, 245")
A(f"s_mul_i32 s55, s60, {8*1280}")
A(f"s_mul_i32 s54, {sX}, 160")
A("s_add_u32 s55, s55, s54")
A(f"s_sub_u32 s55, s55, {8*1280}")
A(f"v_mov_b32 v7, {OOB:#x}")
for i in range(3):
    d = 1 + i
    A(f"v_add_u32 v4, {12+448*i}, v9")
    A("v_mul_u32_u24 v5, 1619, v4")
    A("v_lshrrev_b32 v5, 17, v5")
    A("v_mul_u32_u24 v6, 81, v5")
    if i == 0:
        A("v_cmp_gt_u32 vcc, 50, v4")
    A("v_sub_u32 v4, v4, v6")
    A("v_mul_u32_u24 v6, 205, v4")
    A("v_lshrrev_b32 v6, 11, v6")
    A("v_lshl_add_u32 v5, v5, 3, v6")
    A("v_mul_u32_u24 v6, 10, v6")
    A("v_sub_u32 v4, v4, v6")
    A("v_mul_u32_u24 v5, 1280, v5")
    A("v_lshl_add_u32 v5, v4, 4, v5")
    A(f"v_add_u32 v{d}, s55, v5")
    if i == 0:
        A("v_cndmask_b32 v1, v1, v7, vcc")
A("v_min_u32 v9, 439, v9")
A("v_mul_u32_u24 v7, 2979, v9")
A("v_lshrrev_b32 v7, 15, v7")
A("v_mul_u32_u24 v8, 11, v7")
A("v_sub_u32 v8, v9, v8")
A(f"s_mul_i32 s54, {sX}, 640")
A("v_lshl_add_u32 v9, v7, 4, s54")
A(f"s_lshl_b32 s56, {sW}, 10")
A(f"s_add_u32 s56, s56, {LS + 12*16 - 1024}")
after_kernarg()
srd(40, pK, TBYTES)
srd(44, pV, TBYTES)
if OPT["bq"]:
    A("s_barrier")
for i in range(3):
    if i == 2:
        A(f"s_cmp_lg_u32 {sW}, 1")
        A("s_cbranch_scc1 L_no3")
    for t, r in enumerate((40, 44)):
        A(f"s_add_u32 m0, s56, {t*S_T + 7168*i}")
        A(f"buffer_load_dwordx4 v{1+i}, s[{r}:{r+3}], 0 offen lds")
A("L_no3:")
A(f"global_load_dwordx4 v[20:23], v9, {sp(pSH)}")
A("s_lshl_b32 s62, s53, 2")
A(f"s_and_b32 s54, {sW}, 3")
A("s_add_u32 s62, s62, s54")
A("s_min_u32 s62, s62, 639")
A("s_lshl_b32 s54, s62, 1")
A("s_and_b32 s54, s54, -4")
A(f"s_load_dword s63, {sp(pD)}, s54")
stamp(1)
A("v_mul_u32_u24 v1, 1296, v8")
A("v_lshl_add_u32 v1, v7, 2, v1")
A(f"v_add_u32 v1, {LS}, v1")
A(f"s_mul_i32 s55, {sX}, {80*4096}")
A("s_lshl_b32 s57, s60, 4")
A("s_add_u32 s55, s55, s57")
A(f"s_add_u32 s55, s55, {KVT}")
A("v_lshlrev_b32 v5, 13, v7")
A("v_lshl_add_u32 v5, v8, 4, v5")
A("v_add_u32 v5, s55, v5")
A(f"s_cmp_lg_u32 {sW}, 3")
A("s_cbranch_scc1 L_nz")
for i in range(4):
    A(f"v_mov_b32 v{16+i}, 0")
A("v_lshrrev_b32 v2, 5, v0")
A(f"v_mul_u32_u24 v2, {U_P}, v2")
A("v_and_b32 v3, 31, v0")
A("v_min_u32 v3, 27, v3")
A("v_lshl_add_u32 v2, v3, 4, v2")
A(f"v_add_u32 v2, {LU}, v2")
for c in range(4):
    A(f"ds_write_b128 v2, v[16:19] offset:{c*U_C}")
A("v_lshrrev_b32 v2, 2, v0")
A(f"v_mul_u32_u24 v2, {A_CP}, v2")
A("v_and_b32 v3, 3, v0")
A("v_min_u32 v3, 2, v3")
A("v_lshl_add_u32 v2, v3, 4, v2")
A("ds_write_b128 v2, v[16:19]")
A("L_nz:")
make_tag()
A("s_waitcnt vmcnt(0)")
A("v_lshlrev_b32 v10, 16, v20")
A("v_lshlrev_b32 v11, 16, v22")
A(f"v_and_b32 v12, {sHI}, v20")
A(f"v_and_b32 v13, {sHI}, v22")
A("v_lshlrev_b32 v14, 16, v21")
A("v_lshlrev_b32 v15, 16, v23")
A(f"v_and_b32 v16, {sHI}, v21")
A(f"v_and_b32 v17, {sHI}, v23")
A("s_barrier")
stamp(2, True)


def koff(t):
    return (1296 + 160*t) if t >= 0 else 160*(8 + t)


def Kp(t):
    return vr(40 + 2*(t + 3), 2)


for i, t in enumerate(range(-3, 8)):
    A(f"ds_read_b32 v{20+i}, v1 offset:{koff(t)}")
for t in range(4):
    A(f"ds_read_b32 v{32+t}, v1 offset:{S_T + koff(t)}")
for i in range(11):
    if i in (0, 4, 8):
        A(f"s_waitcnt lgkmcnt({(11, 7, 8)[i//4]})")
    A(f"v_lshlrev_b32 v{40+2*i}, 16, v{20+i}")
    A(f"v_and_b32 v{41+2*i}, {sHI}, v{20+i}")
    if i == 7:
        for t in range(4, 8):
            A(f"ds_read_b32 v{32+t}, v1 offset:{S_T + koff(t)}")
for t in range(8):
    A(f"v_pk_mul_f32 {vr(96+2*t,2)}, v[16:17], {Kp(t-3)}")
for t in range(8):
    A(f"v_pk_fma_f32 {vr(96+2*t,2)}, v[14:15], {Kp(t-2)}, {vr(96+2*t,2)}")
for t in range(8):
    A(f"v_pk_fma_f32 {vr(96+2*t,2)}, v[12:13], {Kp(t-1)}, {vr(96+2*t,2)}")
for t in range(8):
    A(f"v_pk_fma_f32 {vr(96+2*t,2)}, v[10:11], {Kp(t)}, {vr(96+2*t,2)}")
A("s_waitcnt lgkmcnt(0)")
for t in range(8):
    A(f"v_lshlrev_b32 v{62+2*t}, 16, v{32+t}")
    A(f"v_and_b32 v{63+2*t}, {sHI}, v{32+t}")
for t in range(8):
    A(f"v_pk_mul_f32 {vr(96+2*t,2)}, {vr(96+2*t,2)}, {vr(62+2*t,2)}")
A("s_mov_b32 s55, 4096")
for c in range(2):
    for i in range(4):
        A(f"v_cvt_pk_bf16_f32 v{80+4*c+i}, v{96+2*(7-2*i)+c}, v{96+2*(6-2*i)+c}")
    A(f"buffer_store_dwordx4 {vr(80+4*c,4)}, v5, {WS}, {'s55' if c else '0'} offen")
stamp(3)
A("L_kvdone:")
A(f"s_lshl_b32 s55, {sX}, 11")
A("s_lshl_b32 s57, s58, 3")
A("s_add_u32 s57, s57, s55")
A(f"v_mov_b32 v10, {sTAG}")
A(f"v_mov_b32 v11, {sXCC}")
A("v_mov_b32 v12, s57")
A(f"v_min_u32 v1, {NP1-1}, v0")
A("v_lshl_add_u32 v1, v1, 3, s55")
A("s_lshl_b32 s54, s53, 2")
A(f"s_add_u32 s54, s54, {sW}")
A("s_lshl_b32 s54, s54, 12")
A(f"s_add_u32 s54, s54, {KVT}")
A("v_lshl_add_u32 v13, v0, 4, s54")
A("v_subrev_u32 v14, 16, v13")
A("v_cmp_eq_u32 vcc, 0, v0")
A(f"v_mov_b32 v3, {OOB:#x}")
A("v_cndmask_b32 v14, v14, v3, vcc")
A(f"s_mov_b32 s55, {FLG}")
A("s_mov_b32 s59, 0")
A(f"s_mov_b32 s60, {KVT}")
A(f"s_mov_b32 s61, {FLG}")
A("s_waitcnt vmcnt(0)")
A("s_barrier")
stamp(4, True)
A(f"s_cmp_ge_u32 {sW}, 4")
A("s_cbranch_scc1 L_hi4")
A(f"s_cmp_lg_u32 {sW}, 0")
A("s_cbranch_scc1 L_poll")
setexec(1)
A(f"buffer_store_dwordx2 v[10:11], v12, {WS}, s55 offen")
setexec(ALL)
A("L_poll:")
A(f"buffer_load_dwordx2 v[2:3], v1, {WS}, s55 offen sc1")
A("s_add_u32 s59, s59, 1")
A("s_waitcnt vmcnt(0)")
A("v_cmp_eq_u64 vcc, s[6:7], v[2:3]")
A("s_cmp_eq_u64 vcc, -1")
A("s_cbranch_scc1 L_synced")
A("s_and_b32 s57, s59, 15")
A("s_cmp_lg_u32 s57, 0")
A("s_cbranch_scc1 L_poll")
A("s_branch L_slowsync")
A("L_synced:")
stamp(5)
A(f"s_cmp_ge_u32 {sJ}, 20")
A("s_cbranch_scc1 L_final")

for i in range(4):
    A(f"buffer_load_dwordx4 {vr(16+4*i,4)}, v13, {WS}, 0 offen offset:{1024*i} sc1")
    if i == 0:
        A(f"buffer_load_dword v32, v14, {WS}, 0 offen sc1")
    else:
        A(f"buffer_load_dword v{32+i}, v13, {WS}, 0 offen offset:{1024*i-16} sc1")
A(f"s_mul_i32 s55, {sW}, {U_C}")
A(f"s_add_u32 s55, s55, {LU + 28*16}")
A("v_lshl_add_u32 v7, v0, 4, s55")
A(f"v_mov_b32 v2, {LF}")
A("v_mov_b32 v3, s61")
A("ds_write_b32 v2, v3")
for i in range(4):
    A(f"s_waitcnt vmcnt({2*(3-i)})")
    b = 16 + 4*i
    A(f"ds_write_b128 v7, {vr(b,4)} offset:{U_P + 1024*i}")
    A(f"v_alignbyte_b32 v{40+4*i}, v{b+1}, v{b}, 2")
    A(f"v_alignbyte_b32 v{41+4*i}, v{b+2}, v{b+1}, 2")
    A(f"v_alignbyte_b32 v{42+4*i}, v{b+3}, v{b+2}, 2")
    A(f"v_alignbyte_b32 v{43+4*i}, v{32+i}, v{b+3}, 2")
    A(f"ds_write_b128 v7, {vr(40+4*i,4)} offset:{1024*i}")
stamp(6)
A("s_waitcnt lgkmcnt(0)")
A("s_barrier")

A("L_final:")
if OPT["noepi"]:
    A("s_cmp_lt_u32 s58, 22")
    A("s_cbranch_scc1 L_fin")
A("s_cmp_ge_u32 s58, 22")
A("s_cbranch_scc1 L_special")
XR, SR = (48, 56), (16, 32)
XN, CC = (64, 96), (80, 112)
OCT, CPO, QOF = (1, 2), (3, 3), (5, 6)
A(f"s_mul_i32 s54, {sX}, 160")
A(f"s_lshl_b32 s55, {sW}, 6")
A("s_mul_i32 s56, s58, 6")
A("s_min_u32 s56, s56, 122")
A("v_add_u32 v8, s55, v0")
A("v_min_u32 v8, 239, v8")
A("v_mul_u32_u24 v9, 1639, v8")
A("v_lshrrev_b32 v9, 16, v9")
A("v_mul_u32_u24 v10, 40, v9")
A("v_sub_u32 v8, v8, v10")
A("v_add_u32 v1, s56, v9")
A("v_add_u32 v2, 128, v1")
A("v_lshlrev_b32 v3, 3, v8")
A("v_mul_u32_u24 v9, 10240, v1")
A("v_lshl_add_u32 v9, v8, 2, v9")
A("v_add_u32 v5, s54, v9")
A(f"v_add_u32 v6, {1024*1280}, v5")
srd(40, pQ, TBYTES)
A("s_movk_i32 s49, 5120")
A(f"s_mov_b32 s57, {ESTAT}")
A(f"s_mov_b32 s58, {ESTAT + 8192}")
A("v_and_b32 v7, 7, v0")
A("v_lshl_add_u32 v7, v1, 3, v7")
A("v_lshlrev_b32 v7, 3, v7")


def stat_loads(fl):
    A(f"buffer_load_dwordx2 v[12:13], v7, {WS}, s57 offen{fl}")
    A(f"buffer_load_dwordx2 v[14:15], v7, {WS}, s58 offen{fl}")


def ofl(task):
    return ("", " sc1", " nt", " sc0 sc1")[OPT["outB" if task else "outA"]]


def rows(op, reg, task):
    for t in range(8):
        fl = ofl(task) if op == "store" else ""
        A(f"buffer_{op}_dword v{reg+t}, v{QOF[task]}, s[40:43], {'s49' if t >= 4 else '0'} offen offset:{1280*(t&3)}{fl}")


stat_loads("")
rows("load", XR[0], 0)
rows("load", XR[1], 1)
A(f"s_mov_b32 s40, s{pOUT}")
A(f"s_mov_b32 s41, s{pOUT+1}")
A(f"s_mul_i32 s54, {sX}, {80*4096}")
A("s_add_u32 s60, s60, s54")
A("s_add_u32 s48, s60, 4096")
A(f"s_lshl_b32 s54, {sX}, 11")
A("s_add_u32 s61, s61, s54")
A("s_add_u32 s61, s61, 512")
A("v_lshlrev_b32 v8, 10, v3")
A("v_lshl_add_u32 v8, v1, 4, v8")
A(f"s_lshl_b32 s54, {sX}, 7")
A(f"s_add_u32 s54, s54, {TOP}")
A("v_mov_b32 v9, s54")
A("s_waitcnt vmcnt(16)")
tag_check("L_st", [13, 15], lambda: stat_loads(" sc1"))
for st in (12, 14):
    A(f"v_and_b32 v{st+1}, {sHI}, v{st}")
    A(f"v_rcp_f32 v{st+1}, v{st+1}")
    A(f"v_lshlrev_b32 v{st}, 16, v{st}")
for st in (12, 14):
    A(f"v_mul_f32 v{st}, v{st}, v{st+1}")


def precompute(task):
    for t in range(8):
        if t == 7:
            A("s_waitcnt lgkmcnt(6)")
        A(f"ds_swizzle_b32 v{16+2*t}, v{12+2*task} offset:{(t << 5) | 0x18}")
        A(f"ds_swizzle_b32 v{17+2*t}, v{13+2*task} offset:{(t << 5) | 0x18}")
    A(f"s_waitcnt vmcnt(8)")
    for t in range(8):
        cc = CC[task] + 2*t
        A(f"v_lshlrev_b32 v{cc}, 16, v{XR[task]+t}")
        A(f"v_and_b32 v{cc+1}, {sHI}, v{XR[task]+t}")
    A("s_waitcnt lgkmcnt(0)")
    for t in range(8):
        st, xn, cc = 16 + 2*t, XN[task] + 2*t, CC[task] + 2*t
        A(f"v_fma_f32 v{xn}, v{cc}, v{st+1}, -v{st}")
        A(f"v_fma_f32 v{xn+1}, v{cc+1}, v{st+1}, -v{st}")
        A(f"v_add_f32 v{cc}, v{cc}, v{xn}")
        A(f"v_add_f32 v{cc+1}, v{cc+1}, v{xn+1}")


def yflag_poll(lbl, va, so):
    A("s_mov_b32 s59, 0")
    A(f"{lbl}:")
    A(f"buffer_load_dwordx2 v[10:11], v{va}, {WS}, {so} offen sc1")
    A("s_add_u32 s59, s59, 1")
    A("s_waitcnt vmcnt(0)")
    A(f"v_cmp_ne_u32 vcc, {sTAG}, v10")
    A(f"v_cmp_ne_u32 s[54:55], {sTAG}, v11")
    A("s_or_b64 vcc, vcc, s[54:55]")
    A(f"s_cbranch_scc0 {lbl}_ok")
    A(f"s_cmp_lt_u32 s59, {POLL_LIMIT}")
    A(f"s_cbranch_scc1 {lbl}")
    A(f"{lbl}_ok:")


def top_load():
    A(f"buffer_load_dwordx2 v[10:11], v9, {WS}, 0 offen sc1")


def y_loads(task):
    A(f"buffer_load_dwordx4 v[16:19], v8, {WS}, s60 offen offset:{2048*task} sc1")
    A(f"buffer_load_dwordx4 v[20:23], v8, {WS}, s48 offen offset:{2048*task} sc1")


for task in range(2):
    precompute(task)
    if task == 0:
        stamp(7)
        top_load()
        A("s_waitcnt vmcnt(0)")
        tag_check("L_tp", [11], top_load)
        A("v_readfirstlane_b32 s62, v10")
        A("s_lshr_b32 s63, s62, 16")
        A("s_and_b32 s62, s62, 0xffff")
        stamp(12)
    A("s_lshr_b32 s56, s62, 3")
    A("s_lshr_b32 s57, s63, 3")
    A(f"v_cmp_eq_u32 s[44:45], s56, v{OCT[task]}")
    A(f"v_cmp_eq_u32 s[46:47], s57, v{OCT[task]}")
    if task == 0:
        yflag_poll("L_yf0", 3, "s61")
        y_loads(0)
        A("s_waitcnt vmcnt(0)")
    else:
        A(f"s_cmp_ge_u32 {sJ}, 20")
        A("s_cbranch_scc1 L_nb5")
        A("s_barrier")
        A("L_nb5:")
        A("s_mov_b32 s59, 0")
        A("L_ys:")
        y_loads(1)
        A("s_add_u32 s59, s59, 1")
        A("s_waitcnt vmcnt(0)")
        A("v_max3_u32 v24, v16, v17, v18")
        A("v_max3_u32 v25, v19, v20, v21")
        A("v_max3_u32 v24, v24, v22, v23")
        A("v_max_u32 v24, v24, v25")
        A("v_cmp_eq_u32 vcc, -1, v24")
        A("s_and_b64 exec, exec, vcc")
        A("s_cbranch_execz L_ysok")
        A("s_cmp_lt_u32 s59, 4096")
        A("s_cbranch_scc1 L_ys")
        setexec(ALL)
        A("s_add_u32 s61, s61, 512")
        yflag_poll("L_yf1", 3, "s61")
        y_loads(1)
        A("s_waitcnt vmcnt(0)")
        A("L_ysok:")
        setexec(ALL)
    stamp(8 + 2*task)
    for c in range(2):
        for i in range(4):
            A(f"v_lshlrev_b32 v{24+2*i}, 16, v{16+4*c+i}")
            A(f"v_and_b32 v{25+2*i}, {sHI}, v{16+4*c+i}")
        for pos in range(8):
            t = 2*(pos & 3) + (pos >> 2)
            A(f"v_fmac_f32 v{CC[task]+2*t+c}, v{XN[task]+2*t+c}, v{24+pos}")
    for t in range(8):
        A(f"v_cvt_pk_bf16_f32 v{32+8*task+t}, v{CC[task]+2*t}, v{CC[task]+2*t+1}")
    A("s_or_b64 s[54:55], s[44:45], s[46:47]")
    A(f"s_cbranch_scc1 L_msk{task}")
    rows("store", 32 + 8*task, task)
    A(f"L_mskd{task}:")
    stamp(9 + 2*task)
A("s_branch L_fin")
for task in range(2):
    A(f"L_msk{task}:")
    A("s_and_b32 s56, s62, 7")
    A("s_and_b32 s57, s63, 7")
    for t in range(8):
        A(f"s_cmp_eq_u32 s56, {t}")
        A("s_cselect_b64 s[54:55], s[44:45], 0")
        A(f"s_cmp_eq_u32 s57, {t}")
        A("s_cselect_b64 vcc, s[46:47], 0")
        A("s_nor_b64 exec, s[54:55], vcc")
        A(f"s_cbranch_execz L_ms{task}_{t}")
        A(f"buffer_store_dword v{32+8*task+t}, v{QOF[task]}, s[40:43], {'s49' if t >= 4 else '0'} offen offset:{1280*(t&3)}{ofl(task)}")
        A(f"L_ms{task}_{t}:")
    setexec(ALL)
    A(f"s_branch L_mskd{task}")

A("L_special:")
A("v_min_u32 v1, 39, v0")
A(f"s_cmp_lg_u32 {sW}, 0")
A("s_cbranch_scc1 L_sp1")
A("v_lshlrev_b32 v7, 4, v0")
A(f"s_mov_b32 s58, {CAND}")
cand_loads(16, 7, "s58", " sc1")
A("s_waitcnt vmcnt(0)")
tag_check("L_sc", [17 + 2*i for i in range(8)], lambda: cand_loads(16, 7, "s58", " sc1"))
top2_merge(16)
A("s_andn2_b32 s54, 0x7ff, s54")
A("s_andn2_b32 s62, 0x7ff, s55")
A(f"s_cmp_lg_u32 {sJ}, 30")
A("s_cbranch_scc1 L_ntp")
A("s_lshl_b32 s55, s62, 16")
A("s_or_b32 s55, s55, s54")
A("s_mov_b32 s62, s54")
A(f"s_lshl_b32 s54, {sX}, 7")
A(f"s_add_u32 s54, s54, {TOP}")
A("v_mov_b32 v8, s55")
A(f"v_mov_b32 v9, {sTAG}")
A("v_mov_b32 v3, s54")
setexec(1)
A(f"buffer_store_dwordx2 v[8:9], v3, {WS}, 0 offen sc1")
setexec(ALL)
A("L_ntp:")
srd(40, pQ, TBYTES)
A("s_mul_i32 s54, s62, 1280")
A(f"s_mul_i32 s55, {sX}, 160")
A("s_add_u32 s54, s54, s55")
A("v_lshl_add_u32 v2, v1, 2, s54")
A("buffer_load_dword v4, v2, s[40:43], 0 offen")
A("s_lshl_b32 s54, s62, 3")
A(f"s_add_u32 s54, s54, {ESTAT}")
A("v_mov_b32 v3, s54")


def sstat():
    A(f"buffer_load_dwordx2 v[8:9], v3, {WS}, 0 offen sc1")


sstat()
A("s_waitcnt vmcnt(0)")
tag_check("L_ss", [9], sstat)
A(f"v_and_b32 v9, {sHI}, v8")
A("v_rcp_f32 v9, v9")
A("v_lshlrev_b32 v8, 16, v8")
A("v_lshlrev_b32 v50, 16, v4")
A(f"v_and_b32 v51, {sHI}, v4")
A("v_sub_f32 v48, v50, v8")
A("v_sub_f32 v49, v51, v8")
A("v_mul_f32 v48, v48, v9")
A("v_mul_f32 v49, v49, v9")
A("v_add_f32 v50, v50, v48")
A("v_add_f32 v51, v51, v49")
A(f"s_lshl_b32 s55, {sX}, 11")
A("s_add_u32 s61, s61, s55")
A("s_add_u32 s61, s61, 512")
A(f"s_mul_i32 s54, {sX}, {80*4096}")
A("s_add_u32 s60, s60, s54")
A("s_lshr_b32 s54, s62, 3")
A("s_lshl_b32 s54, s54, 4")
A("s_add_u32 s60, s60, s54")
A("s_and_b32 s54, s62, 1")
A("s_lshl_b32 s54, s54, 3")
A("s_add_u32 s60, s60, s54")
A("s_and_b32 s54, s62, 4")
A("s_add_u32 s60, s60, s54")
A("s_add_u32 s48, s60, 4096")
A("s_bitcmp1_b32 s62, 1")
A("s_cselect_b32 s63, 0, 16")
A("v_lshlrev_b32 v3, 3, v1")
A("v_lshlrev_b32 v7, 13, v1")
A("v_lshrrev_b32 v6, 3, v1")
A("v_bfe_u32 v5, v1, 1, 2")
A("v_mad_u32_u24 v6, v5, 5, v6")
A("v_and_b32 v5, 1, v1")
A("v_mad_u32_u24 v6, v5, 20, v6")
A("v_lshlrev_b32 v6, 3, v6")
srd(40, pOUT, TBYTES)
yflag_poll("L_s0", 3, "s61")


def sy_loads():
    A(f"buffer_load_dword v32, v7, {WS}, s60 offen sc1")
    A(f"buffer_load_dword v33, v7, {WS}, s48 offen sc1")


sy_loads()
A("s_barrier")
A("s_barrier")
stamp(8)
for i in range(7):
    A(f"ds_read_b64 {vr(16+2*i,2)}, v6 offset:{512*i}")
A("s_waitcnt lgkmcnt(0)")
for i in range(1, 7):
    A(f"v_add_f32 v16, v16, v{16+2*i}")
    A(f"v_add_f32 v17, v17, v{17+2*i}")
A("v_add_f32 v50, v50, v16")
A("v_add_f32 v51, v51, v17")
A("s_mov_b32 s59, 0")
A("L_sy:")
A("s_waitcnt vmcnt(0)")
A("v_max_u32 v34, v32, v33")
A("v_cmp_eq_u32 vcc, -1, v34")
A("s_cbranch_vccz L_syok")
sy_loads()
A("s_add_u32 s59, s59, 1")
A("s_cmp_lt_u32 s59, 4096")
A("s_cbranch_scc1 L_sy")
A("s_add_u32 s61, s61, 512")
yflag_poll("L_s1", 3, "s61")
sy_loads()
A("s_waitcnt vmcnt(0)")
A("L_syok:")
A("v_lshlrev_b32 v32, s63, v32")
A("v_lshlrev_b32 v33, s63, v33")
A(f"v_and_b32 v32, {sHI}, v32")
A(f"v_and_b32 v33, {sHI}, v33")
A("v_fmac_f32 v50, v48, v32")
A("v_fmac_f32 v51, v49, v33")
A("v_cvt_pk_bf16_f32 v50, v50, v51")
A("buffer_store_dword v50, v2, s[40:43], 0 offen")
stamp(9)
A("s_branch L_fin")
A("L_sp1:")
A(f"s_sub_u32 s54, {sJ}, 30")
A("s_mul_i32 s54, s54, 640")
A(f"s_mul_i32 s55, {sX}, 1280")
A("s_add_u32 s54, s54, s55")
A(f"s_mul_i32 s55, {sW}, 10240")
A("s_add_u32 s54, s54, s55")
A(f"s_add_u32 s54, s54, {PART - 10240}")
A("v_lshl_add_u32 v5, v1, 4, s54")
A(f"s_cmp_lt_u32 {sW}, 6")
A("s_cselect_b32 s57, 7, 6")
A("s_cselect_b32 s58, 1.0, 0")
A("v_min_u32 v4, s57, v0")
A("v_mul_u32_u24 v4, 71680, v4")
A("v_add_u32 v4, s54, v4")
A("s_mul_i32 s57, s57, 71680")


def part_probe():
    A("s_sleep 2")
    A(f"buffer_load_dwordx2 v[16:17], v4, {WS}, 0 offen sc1")


def part_loads():
    A("s_mov_b32 s56, 0")
    for i in range(8):
        A(f"buffer_load_dwordx4 {vr(16+4*i,4)}, v5, {WS}, {'s57' if i == 7 else 's56'} offen sc1")
        if i < 6:
            A("s_add_u32 s56, s56, 71680")


A("s_barrier")
if OPT["probe"]:
    part_probe()
    A("s_waitcnt vmcnt(0)")
    tag_check("L_pq", [17], part_probe)
stamp(7)
part_loads()
A("s_waitcnt vmcnt(0)")
tag_check("L_pp", [17 + 2*i for i in range(16)], part_loads)
stamp(8)
for c in range(2):
    A(f"v_mul_f32 v{44+2*c}, s58, v{44+2*c}")
for i in (0, 2, 4, 6):
    for c in range(2):
        A(f"v_add_f32 v{16+4*i+2*c}, v{16+4*i+2*c}, v{20+4*i+2*c}")
for c in range(2):
    A(f"v_add_f32 v{16+2*c}, v{16+2*c}, v{24+2*c}")
    A(f"v_add_f32 v{32+2*c}, v{32+2*c}, v{40+2*c}")
A("v_add_f32 v16, v16, v32")
A("v_add_f32 v17, v18, v34")
A(f"s_lshl_b32 s54, {sW}, 9")
A("s_sub_u32 s54, s54, 512")
A("v_lshl_add_u32 v6, v0, 3, s54")
A("ds_write_b64 v6, v[16:17]")
A("s_waitcnt lgkmcnt(0)")
A("s_barrier")
A("s_branch L_fin")

A("L_slowsync:")
A(f"v_min_u32 v4, {NP1-1}, v0")
A("v_add_u32 v5, 8, v4")
A("v_cmp_gt_u32 vcc, 20, v4")
A("v_cndmask_b32 v4, v5, v4, vcc")
A("v_lshlrev_b32 v4, 10, v4")
A(f"s_lshl_b32 s57, {sX}, 7")
A(f"s_add_u32 s57, s57, {ARR}")
A(f"buffer_load_dwordx2 v[2:3], v4, {WS}, s57 offen sc1")
A("s_waitcnt vmcnt(0)")
A(f"v_cmp_eq_u32 vcc, {sTAG}, v2")
A(f"v_cmp_ne_u32 s[56:57], {sXCC}, v3")
A("s_and_b64 vcc, vcc, s[56:57]")
A("s_cbranch_scc1 L_fb")
A(f"s_cmp_lt_u32 s59, {POLL_LIMIT}")
A("s_cbranch_scc1 L_poll")
A("s_branch L_synced")
A("L_fb:")
A(f"s_mov_b32 s57, {FLB}")
A(f"s_mov_b32 s60, {YT2}")
A(f"s_mov_b32 s61, {FLB}")
A(f"s_cmp_lg_u32 {sW}, 0")
A("s_cbranch_scc1 L_nowb")
A("buffer_wbl2 sc1")
A("s_waitcnt vmcnt(0)")
setexec(1)
A(f"buffer_store_dwordx2 v[10:11], v12, {WS}, s57 offen sc1")
setexec(ALL)
A("L_nowb:")
A(f"s_cmp_ge_u32 {sJ}, 20")
A("s_cbranch_scc1 L_synced")
A("s_mov_b32 s59, 0")
A("L_pollb:")
A(f"buffer_load_dwordx2 v[2:3], v1, {WS}, s57 offen sc1")
A("s_add_u32 s59, s59, 1")
A("s_waitcnt vmcnt(0)")
A(f"v_cmp_eq_u32 vcc, {sTAG}, v2")
A("s_cmp_eq_u64 vcc, -1")
A("s_cbranch_scc1 L_bok")
A("s_sleep 2")
A(f"s_cmp_lt_u32 s59, {POLL_LIMIT}")
A("s_cbranch_scc1 L_pollb")
A("L_bok:")
A("buffer_inv sc1")
A("s_waitcnt vmcnt(0)")
A("s_branch L_synced")

A("L_hi4:")
A(f"s_cmp_lt_u32 {sJ}, 20")
A("s_cbranch_scc1 L_mfma")
A(f"s_cmp_ge_u32 {sJ}, 30")
A("s_cbranch_scc1 L_special")
A(f"s_cmp_lg_u32 s2, {28*8}")
A("s_cbranch_scc1 L_fin")
A(f"s_cmp_lg_u32 {sW}, 7")
A("s_cbranch_scc1 L_fin")
A("v_lshlrev_b32 v1, 7, v0")
for i in range(4):
    A(f"s_mov_b32 s{54+i}, {ARR + 8192*i}")


def arr_loads():
    A("s_sleep 8")
    for i in range(4):
        A(f"buffer_load_dword v{6+i}, v1, {WS}, s{54+i} offen sc1")


arr_loads()
A("s_waitcnt vmcnt(0)")
tag_check("L_ep", [6, 7, 8, 9], arr_loads)
A(f"v_mov_b32 v10, {sTAG}")
A(f"v_mov_b32 v11, {EPOCH}")
setexec(1)
A(f"buffer_store_dword v10, v11, {WS}, 0 offen sc1")
setexec(ALL)
A("s_branch L_fin")

A("L_mfma:")
A(f"s_sub_u32 s53, {sW}, 4")
A(f"s_mul_i32 s54, s53, {A_C}")
A("v_lshl_add_u32 v8, v0, 4, s54")
for i in range(4):
    A(f"ds_read_b128 {vr(16+16*i,4)}, v8 offset:{3*A_CP + 32 + 1024*i}")
    A(f"ds_read_b128 {vr(20+16*i,4)}, v8 offset:{3*A_CP + 48 + 1024*i}")
for i in range(4):
    b = 16 + 16*i
    A(f"s_waitcnt lgkmcnt({6 + i})")
    A(f"ds_write_b128 v8, {vr(b+2,4)} offset:{A_CP + 48 + 1024*i}")
    for q in range(6):
        A(f"v_mov_b32 v{b+8+q}, v{b+1+q}")
    A(f"ds_write_b128 v8, {vr(b+8,4)} offset:{48 + 1024*i}")
    A(f"ds_write_b128 v8, {vr(b+10,4)} offset:{2*A_CP + 48 + 1024*i}")
A("v_and_b32 v6, 3, v0")
A(f"v_mul_u32_u24 v1, {A_CP}, v6")
A("v_bfe_u32 v6, v0, 2, 2")
A("v_lshrrev_b32 v7, 4, v0")
A("v_add_u32 v6, v6, v7")
A("v_lshl_add_u32 v1, v6, 4, v1")
A("v_add_u32 v1, s54, v1")
A("v_and_b32 v6, 1, v0")
A(f"v_mul_u32_u24 v2, {U_P}, v6")
A("v_bfe_u32 v6, v0, 1, 3")
A("v_lshlrev_b32 v6, 2, v6")
A("v_sub_u32 v6, v6, v7")
A("v_lshl_add_u32 v2, v6, 4, v2")
A(f"s_mul_i32 s54, s53, {U_C}")
A(f"s_add_u32 s54, s54, {LU + 48}")
A("v_add_u32 v2, s54, v2")
A("v_bfe_u32 v6, v0, 1, 3")
A("v_lshl_add_u32 v6, v6, 2, v7")
A("v_and_b32 v5, 1, v0")
A("v_lshlrev_b32 v4, 4, v6")
A("v_lshl_add_u32 v4, v5, 3, v4")
A("s_lshl_b32 s54, s62, 12")
A("v_add_u32 v4, s54, v4")
A(f"s_mul_i32 s54, {sX}, {2048 - 320}")
A("s_lshl_b32 s55, s62, 2")
A("s_add_u32 s54, s54, s55")
A("v_mov_b32 v5, s54")
A(f"v_mov_b32 v6, {sTAG}")
A(f"v_mov_b32 v7, {LF}")
A("s_bitcmp1_b32 s62, 0")
A("s_cselect_b32 s54, 16, 0")
A("s_lshr_b32 s63, s63, s54")
A("s_and_b32 s63, s63, 0xffff")
A("v_lshrrev_b32 v12, 4, v0")
A("v_and_b32 v13, 15, v0")
A("v_lshl_add_u32 v12, v12, 2, v13")
A("v_mov_b32 v13, s63")
for i in range(4):
    A(f"v_cmp_eq_u32 vcc, {15-i}, v12")
    A(f"v_cndmask_b32 v{8+i}, 0, v13, vcc")
A("v_mov_b32 v12, -1")
A("v_mov_b32 v13, -1")
A(f"s_mov_b32 s60, {KVT}")
A(f"s_mov_b32 s61, {FLG}")
A(f"s_mov_b32 s56, {YT2}")
A(f"s_mov_b32 s57, {FLB}")
A("s_waitcnt lgkmcnt(0)")
n = 0
for rho in range(OPT["resid"]):
    for a in range(4):
        A(f"ds_read_b128 a[{(rho*4+a)*4}:{(rho*4+a)*4+3}], v1 offset:{64*rho + 512*a}")
        n += 1
        if n % 8 == 0:
            A("s_waitcnt lgkmcnt(7)")
if OPT["malign"]:
    A("s_branch L_mbody")
    SLOW_AT = len(A.lines)
    A(".p2align 12")
    A("L_mbody:")
stamp(5)
if OPT["prio"]:
    A(f"s_setprio {OPT['prio']}")
A("s_waitcnt lgkmcnt(0)")
A("s_barrier")
if PROF:
    A("s_memtime s[90:91]")
stamp(6, True)


slow_sites = []


def ystore(txt_fast, txt_slow):
    k = len(slow_sites)
    slow_sites.append(txt_slow)
    return f"s_cbranch_scc1 L_ys{k}\n{txt_fast}\nL_yr{k}:"


def mfma_schedule():
    passes = [(0, 1, 2, 3), (4, 5, 6, 7)]
    seq = []
    for pi, tiles in enumerate(passes):
        for rho in range(8):
            for b in range(max(tiles) + 1):
                for n in tiles:
                    if n >= b:
                        a = n - b
                        ak = ("A", a, rho) if a <= 3 else ("A", a, rho, pi)
                        seq.append((pi, n, ak, ("B", b, rho, pi)))
                        if a == 0 and rho == 0:
                            seq.append((pi, n, ("D",), ("B", b, rho, pi)))
    N = len(seq)
    end = [max(i for i, e in enumerate(seq) if e[0] == pi) for pi in range(2)]
    reg, pos = {}, {}
    side = {}

    def put(i, key, fn):
        while len(side.get(i, [])) >= 1 and i < N - 1:
            i += 1
        side.setdefault(i, []).append((key, fn))
        return i

    def acc(n, t):
        return 96 + 4*n + t

    def pack_store(n, i):
        i = put(i, None, lambda n=n: f"v_cvt_pk_bf16_f32 v{acc(n,0)}, v{acc(n,0)}, v{acc(n,1)}")
        i = put(i, None, lambda n=n: f"v_cvt_pk_bf16_f32 v{acc(n,1)}, v{acc(n,2)}, v{acc(n,3)}")
        return put(i, None, lambda n=n: ystore(
            f"buffer_store_dwordx2 {vr(acc(n,0),2)}, v4, {WS}, s60 offen offset:{512*n}" + (" sc1" if OPT["ya"] and n < 4 else ""),
            f"buffer_store_dwordx2 {vr(acc(n,0),2)}, v4, {WS}, s56 offen offset:{512*n} sc1"))

    def flag(pi, i):
        return put(i, None, lambda pi=pi: "s_waitcnt vmcnt(0)\ns_mov_b64 exec, 1\n" + ystore(
            f"buffer_store_dword v6, v5, {WS}, s61 offen offset:{512*(pi+1)}",
            f"buffer_store_dword v6, v5, {WS}, s57 offen offset:{512*(pi+1)} sc1") + "\ns_mov_b64 exec, -1" + ("\ns_memrealtime s[82:83]" if PROF and pi == 0 else ""))

    put(24, ("M",), lambda: f"v_readfirstlane_b32 s54, v15\ns_cmp_lg_u32 s54, {FLG}")
    i = OPT['sent']
    for n in passes[1]:
        i = put(i + 3, None, lambda n=n: ystore(
            f"buffer_store_dwordx2 v[12:13], v4, {WS}, s60 offen offset:{512*n}",
            f"buffer_store_dwordx2 v[12:13], v4, {WS}, s56 offen offset:{512*n} sc1"))
    i = end[0] + 5
    for n in passes[0]:
        i = pack_store(n, i)
    flag(0, i + OPT["ackgap"])

    first, last = {}, {}
    for i, (_, _, ak, bk) in enumerate(seq):
        ks = [k for k in (bk, ak) if len(k) == 4 or (len(k) == 3 and k[2] >= OPT["resid"])]
        ks += [k for k, _ in side.get(i, []) if k and k[0] == "K"]
        for k in ks:
            first.setdefault(k, i)
            last[k] = i
    loads = sorted(first, key=lambda k: (first[k], k[0] != "B"))
    free = [16 + 4*s for s in range(20)]
    issued = []
    st = dict(done=0, li=0)
    LOOK, SETTLE = OPT["look"], OPT["settle"]
    started = set()

    def rname(k):
        if len(k) == 1:
            return "v[8:11]"
        if len(k) == 3:
            return f"a[{(k[2]*4 + k[1])*4}:{(k[2]*4 + k[1])*4 + 3}]"
        return vr(reg[k], 4)

    def issue_loads(i, maxn):
        cnt = 0
        while st["li"] < len(loads) and cnt < maxn:
            k = loads[st["li"]]
            if first[k] > i + LOOK or len(issued) - st["done"] >= 14 or not free:
                break
            if len(k) == 4:
                reg[k] = free.pop(0)
            if k[0] == "A":
                A(f"ds_read_b128 {rname(k)}, v1 offset:{64*k[2] + 512*k[1]}")
            elif k[0] == "B":
                A(f"ds_read_b128 {rname(k)}, v2 offset:{512*k[1] + 64*(7-k[2])}")
            else:
                A(f"ds_read_b128 {rname(k)}, v3 offset:{512*k[1]}")
            pos[k] = len(issued)
            issued.append((k, i))
            st["li"] += 1
            cnt += 1

    def wait_for(keys, i):
        needp = max([pos[k] for k in keys if k in pos] + [-1]) + 1
        for k in keys:
            assert k in pos or k not in first, (k, i)
        if needp > st["done"]:
            tgt = needp
            while tgt < len(issued) and issued[tgt][1] <= i - SETTLE:
                tgt += 1
            A(f"s_waitcnt lgkmcnt({len(issued) - tgt})")
            st["done"] = tgt

    issue_loads(-1, 10)
    A("ds_read_b32 v15, v7")
    pos[("M",)] = len(issued)
    issued.append((None, -1))
    for i, (pi, n, ak, bk) in enumerate(seq):
        wait_for([ak, bk] + [k for k, _ in side.get(i, []) if k], i)
        a_ = vr(96 + 4*n, 4)
        c = a_ if n in started else "0"
        started.add(n)
        A(f"v_mfma_f32_16x16x32_bf16 {a_}, {rname(ak)}, {rname(bk)}, {c}")
        for k, fn in side.get(i, []):
            t_ = fn()
            if not (OPT["noside"] and t_.startswith("v_") and "readfirst" not in t_):
                A(t_)
        for k in list(reg):
            if last[k] == i:
                free.append(reg[k])
        behind = st["li"] < len(loads) and first[loads[st["li"]]] <= i + 8
        issue_loads(i, OPT["maxn"] + (1 if behind else 0))
    side.clear()
    i = N - 1
    for n in passes[1]:
        pack_store(n, i)
    put(i, None, lambda: "s_barrier")
    flag(1, i)
    if PROF:
        A("s_memtime s[92:93]")
    stamp(8)
    for k, fn in side[N-1]:
        A(fn())


mfma_schedule()
stamp(7)
A("s_branch L_fin")
_sl = []
for k, t in enumerate(slow_sites):
    _sl += [f"L_ys{k}:", t, f"s_branch L_yr{k}"]
if OPT["malign"]:
    A.lines[SLOW_AT:SLOW_AT] = _sl
else:
    A.lines += _sl

A("L_nonp1:")
A("v_lshrrev_b32 v1, 2, v0")
A("v_mul_u32_u24 v1, 3456, v1")
A("v_lshrrev_b32 v2, 4, v0")
A("v_and_b32 v2, 2, v2")
A("v_and_b32 v3, 3, v0")
A("v_xor_b32 v2, v2, v3")
A("v_lshl_add_u32 v100, v2, 4, v1")
A("v_subrev_u32 v9, 64, v9")
for k in range(11):
    A(f"v_add_u32 v1, {256*k}, v9")
    A("v_mul_u32_u24 v2, 1599, v1")
    A("v_lshrrev_b32 v2, 17, v2")
    A("v_mul_u32_u24 v3, 82, v2")
    A("v_sub_u32 v1, v1, v3")
    A("v_min_u32 v1, 79, v1")
    A("v_mul_u32_u24 v2, 1280, v2")
    A(f"v_lshl_add_u32 v{101+k}, v1, 4, v2")
after_kernarg()
if OPT["bq"]:
    A("s_barrier")
if OPT["codewarm"] == 1:
    A("s_getpc_b64 s[54:55]")
    A("L_pc:")
    A(f"s_sub_u32 s54, s54, L_pc-{NAME}_kernel")
    A("s_subb_u32 s55, s55, 0")
    A("v_lshlrev_b32 v1, 7, v9")
    A(f"v_cmp_gt_u32 vcc, L_codeend-{NAME}_kernel, v1")
    A("s_and_saveexec_b64 s[56:57], vcc")
    A("s_cbranch_execz L_nocw")
    A("global_load_dword v127, v1, s[54:55]")
    A("L_nocw:")
    setexec(ALL)
make_tag()
A("s_barrier")

A("L_moe:")
A(f"s_cmp_lt_u32 {sX}, 3")
A("s_cselect_b32 s54, 8, 6")
A("s_cselect_b32 s55, 0, 6")
A("s_cmp_ge_u32 s63, s54")
A("s_cbranch_scc1 L_fin")
A(f"s_mul_i32 s56, {sX}, s54")
A("s_add_u32 s56, s56, s55")
A("s_add_u32 s53, s63, s56")
A("s_mov_b32 s57, 0x3f803f80")
for i in range(4):
    A(f"v_mov_b32 v{16+i}, s57")
A(f"s_mov_b32 s57, {LX + 2*X_P}")
A("v_lshl_add_u32 v2, v0, 4, s57")
A("ds_write_b128 v2, v[16:19]")
A("ds_write_b128 v2, v[16:19] offset:256")
A("v_bfe_u32 v1, v0, 3, 1")
A("v_lshrrev_b32 v2, 4, v0")
A("v_bfe_u32 v10, v0, 2, 2")
A("v_and_b32 v11, 3, v0")
A("v_lshl_add_u32 v14, v2, 3, v10")
A(f"v_mul_u32_u24 v12, {WD_P}, v14")
A(f"s_mul_i32 s57, {sW}, 160")
A(f"s_add_u32 s57, s57, {LWD}")
A("v_lshl_add_u32 v13, v11, 3, s57")
A("v_add_u32 v12, v12, v13")
A(f"s_and_b32 s60, {sW}, 1")
A(f"s_lshr_b32 s61, {sW}, 1")
A("v_lshlrev_b32 v14, 6, v14")
A("v_lshrrev_b32 v15, 1, v11")
A(f"v_mul_u32_u24 v15, {LWU}, v15")
A("v_add_u32 v14, v14, v15")
A("v_and_b32 v15, 1, v11")
A("v_lshl_add_u32 v14, v15, 3, v14")
A("v_and_b32 v15, 1, v2")
A("v_lshlrev_b32 v15, 1, v15")
A("v_xor_b32 v15, s61, v15")
A("v_lshl_add_u32 v14, v15, 4, v14")
A(f"s_mul_i32 s57, s60, {320*64}")
A("v_add_u32 v14, s57, v14")
A("v_and_b32 v10, 7, v0")
A("v_lshl_add_u32 v11, v2, 3, v10")
A("v_lshlrev_b32 v11, 2, v11")
A(f"v_add_u32 v37, {LRED + 512}, v11")
A("v_lshl_add_u32 v36, v1, 8, v11")
A(f"v_add_u32 v36, {LRED}, v36")
A("v_and_b32 v18, 1, v10")
A("v_mov_b32 v19, 0xffff")
A(f"v_mov_b32 v20, {sHI}")
A("v_cmp_eq_u32 vcc, 1, v18")
A("v_cndmask_b32 v18, v19, v20, vcc")
A("v_lshrrev_b32 v13, 1, v10")
for i in range(4):
    A(f"v_cmp_eq_u32 vcc, {i}, v13")
    A(f"v_cndmask_b32 v{80+i}, 0, v18, vcc")
A("v_and_b32 v38, 15, v0")
A("v_lshlrev_b32 v38, 8, v38")
A("v_lshrrev_b32 v39, 1, v2")
A("v_lshl_add_u32 v38, v39, 7, v38")
A("v_and_b32 v39, 1, v2")
A("v_lshl_add_u32 v38, v39, 4, v38")
A("s_mul_i32 s57, s60, 768")
A("s_lshl_b32 s59, s61, 5")
A("s_add_u32 s57, s57, s59")
A(f"s_add_u32 s57, s57, {LRED}")
A("v_add_u32 v38, s57, v38")
A("v_mul_u32_u24 v39, 640, v1")
A("v_lshl_add_u32 v39, v10, 4, v39")
A("v_mul_u32_u24 v15, 80, v2")
A("v_add_u32 v39, v39, v15")
A("s_mul_i32 s57, s53, 10240")
A(f"s_mul_i32 s59, {sW}, 1280")
A("s_add_u32 s57, s57, s59")
A(f"s_add_u32 s57, s57, {PART}")
A("v_add_u32 v39, s57, v39")
A(f"s_mov_b32 s57, {LK}")
A("v_lshl_add_u32 v13, v1, 2, s57")
A("v_and_b32 v6, 15, v0")
A("v_min_u32 v6, 2, v6")
A(f"v_mul_u32_u24 v6, {X_P}, v6")
A("s_mul_i32 s57, s60, 640")
A(f"s_add_u32 s57, s57, {LX}")
A("v_lshl_add_u32 v7, v2, 4, s57")
A("v_add_u32 v6, v6, v7")
for i in range(4):
    A(f"v_mov_b32 v{85+2*i}, {sTAG}")
A(f"s_sub_u32 s58, {sW}, 1")
A(f"s_cmp_ge_u32 s58, {0 if OPT['noW'] else 4}")
A("s_cbranch_scc1 L_noload")
srd(40, pWG, WBYTES)
srd(44, pWU, WBYTES)
srd(48, pWD, WBYTES)
A(f"s_mul_i32 s55, s58, {160*3456}")
A("s_lshl_b32 s56, s53, 6")
A("s_add_u32 s55, s55, s56")
A("s_mul_i32 s54, s58, 10240")
if OPT["rot"]:
    A("s_bitcmp1_b32 s53, 0")
    A("s_cselect_b32 s59, 5, 0")
    A(f"s_mul_i32 s56, s59, {16*3456}")
    A("s_add_u32 s55, s55, s56")
    A("s_lshl_b32 s59, s59, 10")
    A("s_add_u32 s54, s54, s59")
    A("s_lshl_b32 s56, s56, 1")
    A("s_lshl_b32 s59, s59, 1")
for i in range(10):
    if OPT["rot"] and i == 5:
        A("s_sub_u32 s55, s55, s56")
        A("s_sub_u32 s54, s54, s59")
    A(f"s_add_u32 m0, s54, {LWG + 1024*i}")
    A("buffer_load_dwordx4 v100, s[40:43], s55 offen lds")
    pc = OPT["pace1"] if 2*i + 1 <= OPT["n1"] else OPT["pace"]
    A(f"s_waitcnt vmcnt({pc})")
    A(f"s_add_u32 m0, s54, {LWU + 1024*i}")
    A("buffer_load_dwordx4 v100, s[44:47], s55 offen lds")
    pc = OPT["pace1"] if 2*i + 2 <= OPT["n1"] else OPT["pace"]
    A(f"s_waitcnt vmcnt({pc})")
    A(f"s_add_u32 s55, s55, {16*3456}")
    if i == OPT["mp"] - 1:
        A("s_barrier")
A("s_mul_i32 s55, s53, 40960")
A("s_lshl_b32 s54, s58, 10")
A("s_cmp_lg_u32 s58, 0")
A("s_cbranch_scc1 L_nod11")
A(f"s_mov_b32 m0, {LWD + 40960}")
A("buffer_load_dwordx4 v111, s[48:51], s55 offen lds")
A("L_nod11:")
for k in range(10):
    A(f"s_add_u32 m0, s54, {LWD + 4096*k}")
    A(f"buffer_load_dwordx4 v{101+k}, s[48:51], s55 offen lds")
stamp(4)
A("s_branch L_nopoll")
A("L_noload:")
A("s_barrier")
A(f"s_cmp_lg_u32 {sW}, 0")
A("s_cbranch_scc1 L_nopoll")
A("v_lshlrev_b32 v32, 4, v0")
A(f"s_mov_b32 s58, {CAND}")
if OPT["polldelay"]:
    A(f"s_sleep {OPT['polldelay']}")
cand_loads(16, 32, "s58", " sc1")
srd(40, pQ, TBYTES)
A("s_waitcnt vmcnt(0)")
tag_check("L_cm", [17 + 2*i for i in range(8)], lambda: cand_loads(16, 32, "s58", " sc1"))
top2_merge(16)
stamp(7)
A("s_andn2_b32 s56, 0x7ff, s54")
A("s_andn2_b32 s57, 0x7ff, s55")
A("s_mul_i32 s56, s56, 1280")
A("s_mul_i32 s57, s57, 1280")
A(f"s_mov_b32 m0, {LX}")
A("buffer_load_dwordx4 v32, s[40:43], s56 offen lds")
setexec(0xffff)
A("buffer_load_dwordx4 v32, s[40:43], s56 offen offset:1024 lds")
setexec(ALL)
A(f"s_mov_b32 m0, {LX + X_P}")
A("buffer_load_dwordx4 v32, s[40:43], s57 offen lds")
setexec(0xffff)
A("buffer_load_dwordx4 v32, s[40:43], s57 offen offset:1024 lds")
setexec(ALL)
A("v_mov_b32 v16, s54")
A("v_mov_b32 v17, s55")
A("v_cmp_eq_u32 vcc, 1, v1")
A("v_cndmask_b32 v5, v16, v17, vcc")
A("v_not_b32 v3, v5")
A("v_and_b32 v7, 0x7ff, v3")
A("v_lshlrev_b32 v7, 3, v7")
A(f"s_mov_b32 s57, {ESTAT}")


def mstat():
    A(f"buffer_load_dwordx2 v[8:9], v7, {WS}, s57 offen sc1")


mstat()
A(f"v_and_b32 v5, {sHI}, v5")
A("v_ashrrev_i32 v10, 31, v5")
A("v_not_b32 v10, v10")
A("v_or_b32 v10, 0x80000000, v10")
A("v_xor_b32 v5, v5, v10")
A(f"v_and_b32 v5, {sHI}, v5")
A("v_mul_f32 v5, 0xbfb8aa3b, v5")
A("v_exp_f32 v5, v5")
A("v_add_f32 v5, 1.0, v5")
A("v_rcp_f32 v5, v5")
A("s_waitcnt vmcnt(0)")
tag_check("L_ms", [9], mstat)
A("ds_write2_b32 v13, v5, v8 offset0:0 offset1:2")
stamp(11)
A("L_nopoll:")
for t in range(1, 5):
    m = (1 << t) * 0x01010101
    A(f"s_mov_b32 s{40+2*t}, {m:#x}")
    A(f"s_mov_b32 s{41+2*t}, {m:#x}")
A("s_waitcnt vmcnt(10) lgkmcnt(0)")
stamp(5)
A("s_barrier")
stamp(6, True)
for s in range(10):
    A(f"ds_read_b64_tr_b16 a[{4*s}:{4*s+1}], v14 offset:{2048*s}")
    A(f"ds_read_b64_tr_b16 a[{4*s+2}:{4*s+3}], v14 offset:{2048*s + 256}")
    A(f"ds_read_b128 {vr(40+4*s,4)}, v6 offset:{64*s}")
    if s >= 4:
        q = s - 4
        A("s_waitcnt lgkmcnt(12)")
        c = "0" if q == 0 else "v[28:31]"
        A(f"v_mfma_f32_16x16x32_bf16 v[28:31], a[{4*q}:{4*q+3}], {vr(40+4*q,4)}, {c}")
A("ds_read2_b32 v[4:5], v13 offset0:2 offset1:0")
for q in range(6, 10):
    A(f"s_waitcnt lgkmcnt({3*(9-q) + 1})")
    A(f"v_mfma_f32_16x16x32_bf16 v[28:31], a[{4*q}:{4*q+3}], {vr(40+4*q,4)}, v[28:31]")
A("s_waitcnt lgkmcnt(0)")
A(f"v_and_b32 v9, {sHI}, v4")
A("v_lshlrev_b32 v8, 16, v4")
A("v_rcp_f32 v9, v9")
setexec(0x0007000700070007)
A("ds_write_b128 v38, v[28:31]")
setexec(ALL)
A("s_waitcnt vmcnt(0) lgkmcnt(0)")
A("s_barrier")
stamp(3, True)
A("ds_read2_b32 v[28:29], v36 offset0:0 offset1:32")
A("ds_read2_b32 v[30:31], v36 offset0:192 offset1:224")
A("ds_read2_b32 v[32:33], v37 offset0:0 offset1:32")
A("ds_read2_b32 v[34:35], v37 offset0:192 offset1:224")
for t in range(5):
    A(f"ds_read_b64_tr_b16 a[{40+4*t}:{41+4*t}], v12 offset:{32*t}")
    A(f"ds_read_b64_tr_b16 a[{42+4*t}:{43+4*t}], v12 offset:{32*t + 4*WD_P}")
A("s_waitcnt lgkmcnt(12)")
A("v_add_f32 v28, v28, v30")
A("v_add_f32 v29, v29, v31")
A("s_waitcnt lgkmcnt(10)")
A("v_add_f32 v32, v32, v34")
A("v_add_f32 v33, v33, v35")
A("v_fma_f32 v28, -v8, v32, v28")
A("v_fma_f32 v29, -v8, v33, v29")
A("v_mul_f32 v28, v28, v9")
A("v_mul_f32 v29, v29, v9")
A("v_mul_f32 v30, 0xbfb8aa3b, v28")
A("v_exp_f32 v30, v30")
A("v_mul_f32 v29, v29, v28")
A("v_add_f32 v30, 1.0, v30")
A("v_rcp_f32 v30, v30")
A("v_mul_f32 v29, v29, v30")
A("v_cvt_pk_bf16_f32 v29, v29, v29")
for i in range(4):
    A(f"v_and_b32 v{32+i}, v29, v{80+i}")
for r in ("quad_perm:[1,0,3,2]", "quad_perm:[2,3,0,1]", "row_half_mirror"):
    for i in range(4):
        A(f"v_or_b32_dpp v{32+i}, v{32+i}, v{32+i} {r} row_mask:0xf bank_mask:0xf")
A("s_waitcnt lgkmcnt(0)")
for t in range(5):
    A(f"v_mfma_f32_16x16x32_bf16 {vr(40+4*t,4)}, a[{40+4*t}:{43+4*t}], v[32:35], 0")
for t in range(1, 5):
    for i in range(4):
        A(f"v_cndmask_b32 v{40+i}, v{40+i}, v{40+4*t+i}, s[{40+2*t}:{41+2*t}]")
for i in range(4):
    A(f"v_mul_f32 v{84+2*i}, v{40+i}, v5")
setexec(0x1f1f1f1f1f1f1f1f)
A(f"buffer_store_dwordx4 v[84:87], v39, {WS}, 0 offen sc1")
A(f"buffer_store_dwordx4 v[88:91], v39, {WS}, 0 offen offset:320 sc1")
setexec(ALL)
stamp(12)
if OPT["wb"]:
    A(f"s_lshl_b32 s54, {sW}, 5")
    A(f"s_add_u32 s54, s54, {sJ}")
    A("s_cmp_lg_u32 s54, 20")
    A("s_cbranch_scc1 L_fin")
    if OPT["wb"] & 1:
        A("buffer_wbl2 sc1")
        A("s_waitcnt vmcnt(0)")
        stamp(10)
    if OPT["wb"] & 2:
        A("v_min_u32 v1, 39, v0")
        A(f"s_lshl_b32 s54, {sX}, 11")
        A("v_lshl_add_u32 v1, v1, 3, s54")
        A(f"s_mov_b32 s56, {FLG + 1024}")
        A(f"s_mov_b32 s57, {FLB + 1024}")
        A("s_mov_b32 s59, 0")
        A("L_wbp:")
        A("s_add_u32 s59, s59, 1")
        A("s_and_b32 s58, s59, 15")
        A("s_cselect_b32 s58, s56, s57")
        A(f"buffer_load_dwordx2 v[10:11], v1, {WS}, s58 offen sc1")
        A("s_waitcnt vmcnt(0)")
        A(f"v_cmp_ne_u32 vcc, {sTAG}, v10")
        A(f"v_cmp_ne_u32 s[54:55], {sTAG}, v11")
        A("s_or_b64 vcc, vcc, s[54:55]")
        A("s_cbranch_scc0 L_wbok")
        A(f"s_cmp_lt_u32 s59, {POLL_LIMIT}")
        A("s_cbranch_scc1 L_wbp")
        A("L_wbok:")
        A("buffer_wbl2 sc1")

A("L_fin:")
if PROF:
    A("s_waitcnt vmcnt(0)")
    stamp(15)
    A("s_waitcnt lgkmcnt(0)")
    if OPT["diag"] >= 0:
        k = OPT["diag"]
        A(f"s_sub_u32 s53, s{64+2*k}, s64")
        A(f"s_cmp_eq_u32 s{64+2*k}, 0")
        A("s_cselect_b32 s53, 0, s53")
        if OPT["drole"] == 1:
            A(f"s_cmp_ge_u32 {sJ}, 20")
            A("s_cselect_b32 s53, 0, s53")
        if OPT["drole"] == 2:
            A(f"s_sub_u32 s54, {sJ}, 20")
            A("s_cmp_ge_u32 s54, 8")
            A("s_cselect_b32 s53, 0, s53")
        A(f"s_mul_i32 s53, s53, {OPT['dmul']}")
        A("s_add_u32 s53, s53, 4000")
        A("L_diag:")
        A("s_sleep 4")
        A("s_memrealtime s[54:55]")
        A("s_waitcnt lgkmcnt(0)")
        A("s_sub_u32 s54, s54, s64")
        A("s_cmp_lt_u32 s54, s53")
        A("s_cbranch_scc1 L_diag")
    A("s_lshl_b32 s53, s2, 3")
    A(f"s_add_u32 s53, s53, {sW}")
    A("s_lshl_b32 s53, s53, 6")
    A(f"s_add_u32 s53, s53, {PROFB}")
    A("v_mov_b32 v1, s53")
    setexec(1)
    for k in range(16):
        A(f"v_mov_b32 v2, s{64+2*k}")
        A(f"buffer_store_dword v2, v1, {WS}, 0 offen offset:{4*k}")
A("L_end:")
A("s_endpgm")
A("L_codeend:")

hdr = open(os.path.join(os.path.dirname(os.path.abspath(__file__)), "..", "cdna_kernels", NAME + ".s.ref")).read().split("\n")
hdr = [l for l in hdr if l.startswith(";") and "@launch" not in l]
out = hdr + [f"; @launch grid=(256,1,1) block=(512,1,1) lds={LDS_BYTES}",
             '.amdgcn_target "amdgcn-amd-amdhsa--gfx950"', ".text", f".globl {NAME}_kernel", ".p2align 8",
             f".type {NAME}_kernel,@function"]
if not PROF:
    A.lines = ["s_endpgm" if l == "s_branch L_fin" else l for l in A.lines]
out += A.padded()
out += ['.section .rodata,"a"', ".p2align 6", f".amdhsa_kernel {NAME}_kernel",
        "  .amdhsa_next_free_vgpr 256", "  .amdhsa_next_free_sgpr 102", "  .amdhsa_accum_offset 128",
        "  .amdhsa_group_segment_fixed_size 0", "  .amdhsa_kernarg_size 112", "  .amdhsa_user_sgpr_count 2",
        "  .amdhsa_user_sgpr_kernarg_segment_ptr 1", "  .amdhsa_system_sgpr_workgroup_id_x 1",
        "  .amdhsa_float_denorm_mode_32 3", ".end_amdhsa_kernel", ""]
open(sys.argv[1], "w").write("\n".join(out))
```

```python
import sys, os
sys.path.insert(0, os.path.dirname(os.path.abspath(__file__)))
from asmlib import Asm

NAME = "parallel_sum__ssm_conv_h3__moe_arch_mod__prompt"
OPT = dict(prof=0, codewarm=2, force_fb=0, diag=-1, dmul=4, prio=2, look=16, settle=7, pace=4, polldelay=0,
           bq=1, resid=4, pace1=1, n1=6, noW=0, nopre=0, noh=0, maxn=1, ackgap=20, mp=5, noepi=0, noside=0, drole=0, outA=0, outB=0, wb=0, sent=70, rot=0, probe=0, malign=1, ya=0, dx=-1)
for a in sys.argv[2:]:
    k, v = a.split("=")
    assert k in OPT, k
    OPT[k] = int(v)
PROF = OPT["prof"]

EPOCH, FLG, FLB, CAND, ARR, ESTAT, PART = 0, 0x1000, 0x5000, 0x9000, 0x10000, 0x18000, 0x20000
TOP = 0xA000
KVT, YT2, PROFB = 0x100000, 0x400000, 0x800000
WS_BYTES = 0x1000000
TBYTES = 2621440
WBYTES = 2211840
NMOE, NP1 = 54, 24
OOB = 0x7ffffff0
LA, A_C, A_CP = 0, 16640, 4160
LU, U_C, U_P = 66560, 9120, 4576
LY = 103040
LS, S_T = 103040, 15552
LF = 139776
LDS_BYTES = 140032
LWG, LWU, LWD, WD_P, LRED, LK, LX, X_P = 0, 40976, 81984, 1312, 123968, 125504, 125568, 1344
POLL_LIMIT = 1 << 16

sX, sJ, sW, sTAG, sXCC = "s3", "s4", "s5", "s6", "s7"
pQ, pK, pV, pSH, pH, pD, pWR, pWG, pWU, pWD, pOUT, pWS = 8, 10, 12, 14, 16, 18, 22, 24, 26, 28, 30, 34
WS = "s[36:39]"
sHI = "s52"
ALL = (1 << 64) - 1
A = Asm()


def sp(p):
    return f"s[{p}:{p+1}]"


def srd(reg, ptr, nbytes):
    A(f"s_mov_b32 s{reg}, s{ptr}")
    A(f"s_mov_b32 s{reg+1}, s{ptr+1}")
    A(f"s_mov_b32 s{reg+2}, {nbytes:#x}")
    A(f"s_mov_b32 s{reg+3}, 0x20000")


def stamp(k, wait=False):
    if PROF:
        A(f"s_memrealtime s[{64+2*k}:{65+2*k}]")
        if wait:
            A("s_waitcnt lgkmcnt(0)")


def vr(b, n):
    return f"v[{b}:{b+n-1}]"


def setexec(m):
    lo, hi = m & 0xffffffff, m >> 32
    if m == ALL:
        A("s_mov_b64 exec, -1")
    elif hi == 0 and lo < 0x80000000:
        A(f"s_mov_b64 exec, {lo:#x}")
    else:
        A(f"s_mov_b32 exec_lo, {lo:#x}")
        A(f"s_mov_b32 exec_hi, {hi:#x}")


def after_kernarg():
    A("s_waitcnt lgkmcnt(0)")
    A(f"s_load_dword {sTAG}, {sp(pWS)}, {EPOCH}")
    srd(36, pWS, WS_BYTES)


def make_tag():
    A("s_waitcnt lgkmcnt(0)")
    A(f"s_mul_i32 {sTAG}, {sTAG}, 0x9E3779B1")
    A(f"s_add_u32 {sTAG}, {sTAG}, 0x7F4A7C15")


def or_tree(regs):
    regs = list(regs)
    while len(regs) > 1:
        nxt = []
        i = 0
        while i < len(regs):
            if i + 2 < len(regs):
                A(f"v_or3_b32 v{regs[i]}, v{regs[i]}, v{regs[i+1]}, v{regs[i+2]}")
                nxt.append(regs[i]); i += 3
            elif i + 1 < len(regs):
                A(f"v_or_b32 v{regs[i]}, v{regs[i]}, v{regs[i+1]}")
                nxt.append(regs[i]); i += 2
            else:
                nxt.append(regs[i]); i += 1
        regs = nxt
    return regs[0]


def tag_check(lbl, tagregs, reissue, restore=None):
    A("s_mov_b32 s59, 0")
    A(f"{lbl}:")
    for r in tagregs:
        A(f"v_xor_b32 v{r}, {sTAG}, v{r}")
    r = or_tree(tagregs)
    A(f"v_cmp_ne_u32 vcc, 0, v{r}")
    A(f"s_cbranch_vccz {lbl}_ok")
    if restore:
        restore()
    reissue()
    A("s_add_u32 s59, s59, 1")
    A(f"s_cmp_lt_u32 s59, {POLL_LIMIT}")
    A("s_waitcnt vmcnt(0)")
    A(f"s_cbranch_scc1 {lbl}")
    A(f"{lbl}_ok:")


def merge_dpp(a, rs):
    for r in rs:
        d = f"row_ror:{r} row_mask:0xf bank_mask:0xf"
        A(f"v_min_u32_dpp v{a+1}, v{a}, v{a} {d}")
        A(f"v_max_u32_dpp v{a+3}, v{a+2}, v{a+2} {d}")
        A(f"v_max_u32_dpp v{a}, v{a}, v{a} {d}")
        A(f"v_max_u32 v{a+2}, v{a+1}, v{a+3}")


def cand_loads(t0, va, so, fl):
    for i in range(4):
        A(f"buffer_load_dwordx4 {vr(t0+4*i,4)}, v{va}, {WS}, {so} offen offset:{1024*i}{fl}")


def top2_merge(t0):
    def merge(a, b, tmp):
        A(f"v_min_u32 v{tmp}, v{a}, v{b}")
        A(f"v_max_u32 v{a}, v{a}, v{b}")
        A(f"v_max3_u32 v{a+2}, v{a+2}, v{b+2}, v{tmp}")
    merge(t0, t0+4, t0+1)
    merge(t0+8, t0+12, t0+3)
    merge(t0, t0+8, t0+1)
    merge_dpp(t0, (1, 2, 4, 8))
    A(f"v_readlane_b32 s54, v{t0}, 0")
    A(f"v_readlane_b32 s55, v{t0+2}, 0")
    for row in (16, 32, 48):
        A(f"v_readlane_b32 s56, v{t0}, {row}")
        A(f"v_readlane_b32 s59, v{t0+2}, {row}")
        A("s_max_u32 s55, s55, s59")
        A("s_min_u32 s59, s54, s56")
        A("s_max_u32 s54, s54, s56")
        A("s_max_u32 s55, s55, s59")


A(f"{NAME}_kernel:")
A("s_cmp_ge_u32 s2, 256")
A("s_cbranch_scc1 L_end")
A("s_load_dwordx16 s[8:23], s[0:1], 0")
A("s_load_dwordx8 s[24:31], s[0:1], 64")
A("s_load_dwordx4 s[32:35], s[0:1], 96")
A("v_lshrrev_b32 v1, 6, v0")
A("v_mov_b32 v9, v0")
A("v_and_b32 v0, 63, v0")
A(f"s_and_b32 {sX}, s2, 7")
A(f"s_lshr_b32 {sJ}, s2, 3")
A(f"v_readfirstlane_b32 {sW}, v1")
A(f"s_getreg_b32 {sXCC}, hwreg(HW_REG_XCC_ID)")
if OPT["force_fb"]:
    A(f"s_add_u32 {sXCC}, {sXCC}, {sJ}")
A(f"s_mov_b32 {sHI}, 0xffff0000")
if PROF:
    for k in range(64, 96):
        A(f"s_mov_b32 s{k}, 0")
stamp(0)
A(f"s_mul_i32 s53, {sX}, 20")
A(f"s_add_u32 s53, s53, {sJ}")
A(f"s_sub_u32 s63, {sJ}, 20")
if OPT["codewarm"] == 2:
    A("s_cmp_ge_u32 s63, 8")
    A("s_cbranch_scc1 L_nocw2")
    A("s_getpc_b64 s[54:55]")
    A("L_pc2:")
    A(f"s_sub_u32 s54, s54, L_pc2-{NAME}_kernel")
    A("s_subb_u32 s55, s55, 0")
    A("v_subrev_u32 v1, 320, v9")
    A("v_lshlrev_b32 v1, 7, v1")
    A(f"v_cmp_gt_u32 vcc, L_codeend-{NAME}_kernel, v1")
    A("s_and_saveexec_b64 s[56:57], vcc")
    A("s_cbranch_execz L_nocw3")
    A("global_load_dword v127, v1, s[54:55]")
    A("L_nocw3:")
    setexec(ALL)
    A("L_nocw2:")
A(f"s_sub_u32 s58, {sJ}, 8")
A(f"s_cmp_lt_u32 {sJ}, 20")
A(f"s_cselect_b32 s58, {sJ}, s58")
A(f"s_cmp_lg_u32 {sW}, 0")
A("s_cbranch_scc1 L_not7")

A("v_and_b32 v1, 7, v0")
A("v_bfe_u32 v2, v0, 3, 1")
A("v_lshrrev_b32 v3, 4, v0")
A("v_mul_u32_u24 v4, 1280, v1")
A("v_mul_u32_u24 v5, 640, v2")
A("v_add_u32 v4, v4, v5")
A("v_lshl_add_u32 v4, v3, 4, v4")
A("s_mul_i32 s55, s2, 10240")
A("v_add_u32 v4, s55, v4")
A("v_and_b32 v5, 15, v0")
A("v_cmp_lt_u32 vcc, 1, v5")
A("v_mov_b32 v6, 640")
A("v_cndmask_b32 v6, 0, v6, vcc")
A("v_lshl_add_u32 v6, v3, 4, v6")
A("s_mov_b32 s55, 0x3f803f80")
for i in range(44):
    A(f"v_mov_b32 v{56+i}, s55")
A("s_waitcnt lgkmcnt(0)")
for s in range(10):
    A(f"global_load_dwordx4 {vr(16+4*s,4)}, v4, {sp(pQ)} offset:{64*s}")
setexec(0x0006000600060006)
for s in range(10):
    A(f"global_load_dwordx4 {vr(56+4*s,4)}, v6, {sp(pWR)} offset:{64*s}")
setexec(ALL)
if OPT["bq"]:
    A("s_barrier")
after_kernarg()
stamp(1)
A("v_lshrrev_b32 v7, 2, v5")
A("v_lshl_add_u32 v7, v7, 4, v5")
A("v_lshlrev_b32 v7, 2, v7")
A("s_lshl_b32 s55, s2, 6")
A(f"s_add_u32 s55, s55, {ESTAT}")
A("v_lshl_add_u32 v122, v1, 3, s55")
A("s_lshl_b32 s56, s2, 3")
A("s_sub_u32 s56, 2047, s56")
A("v_sub_u32 v9, s56, v1")
for r, m in ((40, 0x22222222), (42, 0x44444444), (44, 0x88888888), (46, 0xff00ff00)):
    A(f"s_mov_b32 s{r}, {m:#x}")
    A(f"s_mov_b32 s{r+1}, {m:#x}")
A("s_lshl_b32 s55, s2, 4")
A(f"s_add_u32 s55, s55, {CAND}")
A("v_mov_b32 v8, s55")
for s in range(10):
    A(f"s_waitcnt vmcnt({19-s})")
    c = "0" if s == 0 else "v[100:103]"
    A(f"v_mfma_f32_16x16x32_bf16 v[100:103], {vr(16+4*s,4)}, {vr(16+4*s,4)}, {c}")
stamp(2)
for s in range(10):
    A(f"s_waitcnt vmcnt({9-s})")
    c = "0" if s == 0 else "v[104:107]"
    A(f"v_mfma_f32_16x16x32_bf16 v[104:107], {vr(56+4*s,4)}, {vr(16+4*s,4)}, {c}")
    c = "0" if s == 0 else "v[108:111]"
    A(f"v_mfma_f32_16x16x32_bf16 v[108:111], {vr(56+4*s,4)}, v[96:99], {c}")
    if s == 3:
        A("v_cndmask_b32 v100, v100, v101, s[40:41]")
        A("v_cndmask_b32 v100, v100, v102, s[42:43]")
        A("v_cndmask_b32 v100, v100, v103, s[44:45]")
        A("ds_bpermute_b32 v100, v7, v100")
stamp(9)
make_tag()
ROR8 = "row_ror:8 row_mask:0xf bank_mask:0xf"
A(f"v_add_f32_dpp v100, v100, v100 {ROR8}")
A("v_mul_f32 v100, 0x3acccccd, v100")
A(f"v_mov_b32 v121, {sTAG}")
A("v_mov_b32 v14, 0")
A(f"v_add_f32_dpp v104, v104, v104 {ROR8}")
A("v_cndmask_b32 v105, v105, v106, s[46:47]")
A("v_mul_f32 v104, 0x3acccccd, v104")
A("v_add_f32 v109, v109, v110")
A("v_fma_f32 v100, -v104, v104, v100")
A(f"v_add_f32_dpp v105, v105, v105 {ROR8}")
A("v_max_f32 v100, 0, v100")
A("v_cvt_pk_bf16_f32 v104, v104, v100")
A(f"v_and_b32 v100, {sHI}, v104")
A("v_add_f32 v100, 0x3727c5ac, v100")
A("v_cvt_pk_bf16_f32 v100, v100, v100")
A(f"v_and_b32 v100, {sHI}, v100")
A("v_sqrt_f32 v100, v100")
A("v_lshlrev_b32 v106, 16, v104")
A("v_cvt_pk_bf16_f32 v120, v106, v100")
A(f"v_and_b32 v100, {sHI}, v120")
A("v_rcp_f32 v100, v100")
A("v_fma_f32 v105, -v106, v109, v105")
A("v_mul_f32 v105, v105, v100")
A("v_cvt_pk_bf16_f32 v105, v105, v105")
A("v_ashrrev_i32 v106, 31, v105")
A("v_or_b32 v106, 0x80000000, v106")
A("v_xor_b32 v105, v105, v106")
A(f"v_and_or_b32 v12, v105, {sHI}, v9")
merge_dpp(12, (1, 2, 4))
A(f"v_mov_b32 v13, {sTAG}")
A(f"v_mov_b32 v15, {sTAG}")
setexec(1)
A(f"buffer_store_dwordx4 v[12:15], v8, {WS}, 0 offen sc1")
setexec(0xff)
A(f"buffer_store_dwordx2 v[120:121], v122, {WS}, 0 offen sc1")
setexec(ALL)
stamp(8)
A(f"s_cmp_ge_u32 {sJ}, 20")
A("s_cbranch_scc1 L_b1")
A("s_lshl_b32 s54, s53, 14")
A(f"s_add_u32 s55, s54, {KVT}")
A("v_lshl_add_u32 v2, v0, 7, s55")
A(f"s_lshl_b32 s55, {sX}, 11")
A(f"s_add_u32 s55, s55, {FLG}")
A("v_and_b32 v3, 15, v0")
A("v_lshl_add_u32 v3, v3, 7, s55")
A("s_movk_i32 s55, 8192")
if not OPT["nopre"]:
    A(f"buffer_load_dword v127, v2, {WS}, 0 offen sc1")
    A(f"buffer_load_dword v127, v2, {WS}, s55 offen sc1")
A(f"buffer_load_dword v127, v3, {WS}, 0 offen sc1")
srd(48, pH, TBYTES)
A("v_lshlrev_b32 v2, 4, v0")
for c in range(0 if OPT["noh"] else 4):
    A(f"s_mov_b32 m0, {LA + c*A_C + 3*A_CP + 48}")
    for i in range(4):
        A(f"buffer_load_dwordx4 v2, s[48:51], s54 offen offset:{1024*i} lds")
    A("s_add_u32 s54, s54, 4096")
stamp(11)
A("L_b1:")
A("s_lshl_b32 s59, s2, 7")
A(f"s_add_u32 s59, s59, {ARR}")
A(f"v_mov_b32 v10, {sTAG}")
A(f"v_mov_b32 v11, {sXCC}")
A("v_mov_b32 v12, s59")
A("s_barrier")
setexec(1)
A(f"buffer_store_dwordx2 v[10:11], v12, {WS}, 0 offen sc1")
setexec(ALL)
A("s_cmp_ge_u32 s63, 8")
A("s_cbranch_scc1 L_kvdone")
A("s_branch L_moe")

A("L_not7:")
A("s_cmp_lt_u32 s63, 8")
A("s_cbranch_scc1 L_nonp1")
A("v_subrev_u32 v9, 64, v9")
A("s_mul_i32 s60, s58, 11")
A("s_min_u32 s60, s60, 245")
A(f"s_mul_i32 s55, s60, {8*1280}")
A(f"s_mul_i32 s54, {sX}, 160")
A("s_add_u32 s55, s55, s54")
A(f"s_sub_u32 s55, s55, {8*1280}")
A(f"v_mov_b32 v7, {OOB:#x}")
for i in range(3):
    d = 1 + i
    A(f"v_add_u32 v4, {12+448*i}, v9")
    A("v_mul_u32_u24 v5, 1619, v4")
    A("v_lshrrev_b32 v5, 17, v5")
    A("v_mul_u32_u24 v6, 81, v5")
    if i == 0:
        A("v_cmp_gt_u32 vcc, 50, v4")
    A("v_sub_u32 v4, v4, v6")
    A("v_mul_u32_u24 v6, 205, v4")
    A("v_lshrrev_b32 v6, 11, v6")
    A("v_lshl_add_u32 v5, v5, 3, v6")
    A("v_mul_u32_u24 v6, 10, v6")
    A("v_sub_u32 v4, v4, v6")
    A("v_mul_u32_u24 v5, 1280, v5")
    A("v_lshl_add_u32 v5, v4, 4, v5")
    A(f"v_add_u32 v{d}, s55, v5")
    if i == 0:
        A("v_cndmask_b32 v1, v1, v7, vcc")
A("v_min_u32 v9, 439, v9")
A("v_mul_u32_u24 v7, 2979, v9")
A("v_lshrrev_b32 v7, 15, v7")
A("v_mul_u32_u24 v8, 11, v7")
A("v_sub_u32 v8, v9, v8")
A(f"s_mul_i32 s54, {sX}, 640")
A("v_lshl_add_u32 v9, v7, 4, s54")
A(f"s_lshl_b32 s56, {sW}, 10")
A(f"s_add_u32 s56, s56, {LS + 12*16 - 1024}")
after_kernarg()
srd(40, pK, TBYTES)
srd(44, pV, TBYTES)
if OPT["bq"]:
    A("s_barrier")
for i in range(3):
    if i == 2:
        A(f"s_cmp_lg_u32 {sW}, 1")
        A("s_cbranch_scc1 L_no3")
    for t, r in enumerate((40, 44)):
        A(f"s_add_u32 m0, s56, {t*S_T + 7168*i}")
        A(f"buffer_load_dwordx4 v{1+i}, s[{r}:{r+3}], 0 offen lds")
A("L_no3:")
A(f"global_load_dwordx4 v[20:23], v9, {sp(pSH)}")
A("s_lshl_b32 s62, s53, 2")
A(f"s_and_b32 s54, {sW}, 3")
A("s_add_u32 s62, s62, s54")
A("s_min_u32 s62, s62, 639")
A("s_lshl_b32 s54, s62, 1")
A("s_and_b32 s54, s54, -4")
A(f"s_load_dword s63, {sp(pD)}, s54")
stamp(1)
A("v_mul_u32_u24 v1, 1296, v8")
A("v_lshl_add_u32 v1, v7, 2, v1")
A(f"v_add_u32 v1, {LS}, v1")
A(f"s_mul_i32 s55, {sX}, {80*4096}")
A("s_lshl_b32 s57, s60, 4")
A("s_add_u32 s55, s55, s57")
A(f"s_add_u32 s55, s55, {KVT}")
A("v_lshlrev_b32 v5, 13, v7")
A("v_lshl_add_u32 v5, v8, 4, v5")
A("v_add_u32 v5, s55, v5")
A(f"s_cmp_lg_u32 {sW}, 3")
A("s_cbranch_scc1 L_nz")
for i in range(4):
    A(f"v_mov_b32 v{16+i}, 0")
A("v_lshrrev_b32 v2, 5, v0")
A(f"v_mul_u32_u24 v2, {U_P}, v2")
A("v_and_b32 v3, 31, v0")
A("v_min_u32 v3, 27, v3")
A("v_lshl_add_u32 v2, v3, 4, v2")
A(f"v_add_u32 v2, {LU}, v2")
for c in range(4):
    A(f"ds_write_b128 v2, v[16:19] offset:{c*U_C}")
A("v_lshrrev_b32 v2, 2, v0")
A(f"v_mul_u32_u24 v2, {A_CP}, v2")
A("v_and_b32 v3, 3, v0")
A("v_min_u32 v3, 2, v3")
A("v_lshl_add_u32 v2, v3, 4, v2")
A("ds_write_b128 v2, v[16:19]")
A("L_nz:")
make_tag()
A("s_waitcnt vmcnt(0)")
A("v_lshlrev_b32 v10, 16, v20")
A("v_lshlrev_b32 v11, 16, v22")
A(f"v_and_b32 v12, {sHI}, v20")
A(f"v_and_b32 v13, {sHI}, v22")
A("v_lshlrev_b32 v14, 16, v21")
A("v_lshlrev_b32 v15, 16, v23")
A(f"v_and_b32 v16, {sHI}, v21")
A(f"v_and_b32 v17, {sHI}, v23")
A("s_barrier")
stamp(2, True)


def koff(t):
    return (1296 + 160*t) if t >= 0 else 160*(8 + t)


def Kp(t):
    return vr(40 + 2*(t + 3), 2)


for i, t in enumerate(range(-3, 8)):
    A(f"ds_read_b32 v{20+i}, v1 offset:{koff(t)}")
for t in range(4):
    A(f"ds_read_b32 v{32+t}, v1 offset:{S_T + koff(t)}")
for i in range(11):
    if i in (0, 4, 8):
        A(f"s_waitcnt lgkmcnt({(11, 7, 8)[i//4]})")
    A(f"v_lshlrev_b32 v{40+2*i}, 16, v{20+i}")
    A(f"v_and_b32 v{41+2*i}, {sHI}, v{20+i}")
    if i == 7:
        for t in range(4, 8):
            A(f"ds_read_b32 v{32+t}, v1 offset:{S_T + koff(t)}")
for t in range(8):
    A(f"v_pk_mul_f32 {vr(96+2*t,2)}, v[16:17], {Kp(t-3)}")
for t in range(8):
    A(f"v_pk_fma_f32 {vr(96+2*t,2)}, v[14:15], {Kp(t-2)}, {vr(96+2*t,2)}")
for t in range(8):
    A(f"v_pk_fma_f32 {vr(96+2*t,2)}, v[12:13], {Kp(t-1)}, {vr(96+2*t,2)}")
for t in range(8):
    A(f"v_pk_fma_f32 {vr(96+2*t,2)}, v[10:11], {Kp(t)}, {vr(96+2*t,2)}")
A("s_waitcnt lgkmcnt(0)")
for t in range(8):
    A(f"v_lshlrev_b32 v{62+2*t}, 16, v{32+t}")
    A(f"v_and_b32 v{63+2*t}, {sHI}, v{32+t}")
for t in range(8):
    A(f"v_pk_mul_f32 {vr(96+2*t,2)}, {vr(96+2*t,2)}, {vr(62+2*t,2)}")
A("s_mov_b32 s55, 4096")
for c in range(2):
    for i in range(4):
        A(f"v_cvt_pk_bf16_f32 v{80+4*c+i}, v{96+2*(7-2*i)+c}, v{96+2*(6-2*i)+c}")
    A(f"buffer_store_dwordx4 {vr(80+4*c,4)}, v5, {WS}, {'s55' if c else '0'} offen")
stamp(3)
A("L_kvdone:")
A(f"s_lshl_b32 s55, {sX}, 11")
A("s_lshl_b32 s57, s58, 3")
A("s_add_u32 s57, s57, s55")
A(f"v_mov_b32 v10, {sTAG}")
A(f"v_mov_b32 v11, {sXCC}")
A("v_mov_b32 v12, s57")
A(f"v_min_u32 v1, {NP1-1}, v0")
A("v_lshl_add_u32 v1, v1, 3, s55")
A("s_lshl_b32 s54, s53, 2")
A(f"s_add_u32 s54, s54, {sW}")
A("s_lshl_b32 s54, s54, 12")
A(f"s_add_u32 s54, s54, {KVT}")
A("v_lshl_add_u32 v13, v0, 4, s54")
A("v_subrev_u32 v14, 16, v13")
A("v_cmp_eq_u32 vcc, 0, v0")
A(f"v_mov_b32 v3, {OOB:#x}")
A("v_cndmask_b32 v14, v14, v3, vcc")
A(f"s_mov_b32 s55, {FLG}")
A("s_mov_b32 s59, 0")
A(f"s_mov_b32 s60, {KVT}")
A(f"s_mov_b32 s61, {FLG}")
A("s_waitcnt vmcnt(0)")
A("s_barrier")
stamp(4, True)
A(f"s_cmp_ge_u32 {sW}, 4")
A("s_cbranch_scc1 L_hi4")
A(f"s_cmp_lg_u32 {sW}, 0")
A("s_cbranch_scc1 L_poll")
setexec(1)
A(f"buffer_store_dwordx2 v[10:11], v12, {WS}, s55 offen")
setexec(ALL)
A("L_poll:")
A(f"buffer_load_dwordx2 v[2:3], v1, {WS}, s55 offen sc1")
A("s_add_u32 s59, s59, 1")
A("s_waitcnt vmcnt(0)")
A("v_cmp_eq_u64 vcc, s[6:7], v[2:3]")
A("s_cmp_eq_u64 vcc, -1")
A("s_cbranch_scc1 L_synced")
A("s_and_b32 s57, s59, 15")
A("s_cmp_lg_u32 s57, 0")
A("s_cbranch_scc1 L_poll")
A("s_branch L_slowsync")
A("L_synced:")
stamp(5)
A(f"s_cmp_ge_u32 {sJ}, 20")
A("s_cbranch_scc1 L_final")

for i in range(4):
    A(f"buffer_load_dwordx4 {vr(16+4*i,4)}, v13, {WS}, 0 offen offset:{1024*i} sc1")
    if i == 0:
        A(f"buffer_load_dword v32, v14, {WS}, 0 offen sc1")
    else:
        A(f"buffer_load_dword v{32+i}, v13, {WS}, 0 offen offset:{1024*i-16} sc1")
A(f"s_mul_i32 s55, {sW}, {U_C}")
A(f"s_add_u32 s55, s55, {LU + 28*16}")
A("v_lshl_add_u32 v7, v0, 4, s55")
A(f"v_mov_b32 v2, {LF}")
A("v_mov_b32 v3, s61")
A("ds_write_b32 v2, v3")
for i in range(4):
    A(f"s_waitcnt vmcnt({2*(3-i)})")
    b = 16 + 4*i
    A(f"ds_write_b128 v7, {vr(b,4)} offset:{U_P + 1024*i}")
    A(f"v_alignbyte_b32 v{40+4*i}, v{b+1}, v{b}, 2")
    A(f"v_alignbyte_b32 v{41+4*i}, v{b+2}, v{b+1}, 2")
    A(f"v_alignbyte_b32 v{42+4*i}, v{b+3}, v{b+2}, 2")
    A(f"v_alignbyte_b32 v{43+4*i}, v{32+i}, v{b+3}, 2")
    A(f"ds_write_b128 v7, {vr(40+4*i,4)} offset:{1024*i}")
stamp(6)
A("s_waitcnt lgkmcnt(0)")
A("s_barrier")

A("L_final:")
if OPT["noepi"]:
    A("s_cmp_lt_u32 s58, 22")
    A("s_cbranch_scc1 L_fin")
A("s_cmp_ge_u32 s58, 22")
A("s_cbranch_scc1 L_special")
XR, SR = (48, 56), (16, 32)
XN, CC = (64, 96), (80, 112)
OCT, CPO, QOF = (1, 2), (3, 3), (5, 6)
A(f"s_mul_i32 s54, {sX}, 160")
A(f"s_lshl_b32 s55, {sW}, 6")
A("s_mul_i32 s56, s58, 6")
A("s_min_u32 s56, s56, 122")
A("v_add_u32 v8, s55, v0")
A("v_min_u32 v8, 239, v8")
A("v_mul_u32_u24 v9, 1639, v8")
A("v_lshrrev_b32 v9, 16, v9")
A("v_mul_u32_u24 v10, 40, v9")
A("v_sub_u32 v8, v8, v10")
A("v_add_u32 v1, s56, v9")
A("v_add_u32 v2, 128, v1")
A("v_lshlrev_b32 v3, 3, v8")
A("v_mul_u32_u24 v9, 10240, v1")
A("v_lshl_add_u32 v9, v8, 2, v9")
A("v_add_u32 v5, s54, v9")
A(f"v_add_u32 v6, {1024*1280}, v5")
srd(40, pQ, TBYTES)
A("s_movk_i32 s49, 5120")
A(f"s_mov_b32 s57, {ESTAT}")
A(f"s_mov_b32 s58, {ESTAT + 8192}")
A("v_and_b32 v7, 7, v0")
A("v_lshl_add_u32 v7, v1, 3, v7")
A("v_lshlrev_b32 v7, 3, v7")


def stat_loads(fl):
    A(f"buffer_load_dwordx2 v[12:13], v7, {WS}, s57 offen{fl}")
    A(f"buffer_load_dwordx2 v[14:15], v7, {WS}, s58 offen{fl}")


def ofl(task):
    return ("", " sc1", " nt", " sc0 sc1")[OPT["outB" if task else "outA"]]


def rows(op, reg, task):
    for t in range(8):
        fl = ofl(task) if op == "store" else ""
        A(f"buffer_{op}_dword v{reg+t}, v{QOF[task]}, s[40:43], {'s49' if t >= 4 else '0'} offen offset:{1280*(t&3)}{fl}")


stat_loads("")
rows("load", XR[0], 0)
rows("load", XR[1], 1)
A(f"s_mov_b32 s40, s{pOUT}")
A(f"s_mov_b32 s41, s{pOUT+1}")
A(f"s_mul_i32 s54, {sX}, {80*4096}")
A("s_add_u32 s60, s60, s54")
A("s_add_u32 s48, s60, 4096")
A(f"s_lshl_b32 s54, {sX}, 11")
A("s_add_u32 s61, s61, s54")
A("s_add_u32 s61, s61, 512")
A("v_lshlrev_b32 v8, 10, v3")
A("v_lshl_add_u32 v8, v1, 4, v8")
A(f"s_lshl_b32 s54, {sX}, 7")
A(f"s_add_u32 s54, s54, {TOP}")
A("v_mov_b32 v9, s54")
A("s_waitcnt vmcnt(16)")
tag_check("L_st", [13, 15], lambda: stat_loads(" sc1"))
for st in (12, 14):
    A(f"v_and_b32 v{st+1}, {sHI}, v{st}")
    A(f"v_rcp_f32 v{st+1}, v{st+1}")
    A(f"v_lshlrev_b32 v{st}, 16, v{st}")
for st in (12, 14):
    A(f"v_mul_f32 v{st}, v{st}, v{st+1}")


def precompute(task):
    for t in range(8):
        if t == 7:
            A("s_waitcnt lgkmcnt(6)")
        A(f"ds_swizzle_b32 v{16+2*t}, v{12+2*task} offset:{(t << 5) | 0x18}")
        A(f"ds_swizzle_b32 v{17+2*t}, v{13+2*task} offset:{(t << 5) | 0x18}")
    A(f"s_waitcnt vmcnt(8)")
    for t in range(8):
        cc = CC[task] + 2*t
        A(f"v_lshlrev_b32 v{cc}, 16, v{XR[task]+t}")
        A(f"v_and_b32 v{cc+1}, {sHI}, v{XR[task]+t}")
    A("s_waitcnt lgkmcnt(0)")
    for t in range(8):
        st, xn, cc = 16 + 2*t, XN[task] + 2*t, CC[task] + 2*t
        A(f"v_fma_f32 v{xn}, v{cc}, v{st+1}, -v{st}")
        A(f"v_fma_f32 v{xn+1}, v{cc+1}, v{st+1}, -v{st}")
        A(f"v_add_f32 v{cc}, v{cc}, v{xn}")
        A(f"v_add_f32 v{cc+1}, v{cc+1}, v{xn+1}")


def yflag_poll(lbl, va, so):
    A("s_mov_b32 s59, 0")
    A(f"{lbl}:")
    A(f"buffer_load_dwordx2 v[10:11], v{va}, {WS}, {so} offen sc1")
    A("s_add_u32 s59, s59, 1")
    A("s_waitcnt vmcnt(0)")
    A(f"v_cmp_ne_u32 vcc, {sTAG}, v10")
    A(f"v_cmp_ne_u32 s[54:55], {sTAG}, v11")
    A("s_or_b64 vcc, vcc, s[54:55]")
    A(f"s_cbranch_scc0 {lbl}_ok")
    A(f"s_cmp_lt_u32 s59, {POLL_LIMIT}")
    A(f"s_cbranch_scc1 {lbl}")
    A(f"{lbl}_ok:")


def top_load():
    A(f"buffer_load_dwordx2 v[10:11], v9, {WS}, 0 offen sc1")


def y_loads(task):
    A(f"buffer_load_dwordx4 v[16:19], v8, {WS}, s60 offen offset:{2048*task} sc1")
    A(f"buffer_load_dwordx4 v[20:23], v8, {WS}, s48 offen offset:{2048*task} sc1")


for task in range(2):
    precompute(task)
    if task == 0:
        stamp(7)
        top_load()
        A("s_waitcnt vmcnt(0)")
        tag_check("L_tp", [11], top_load)
        A("v_readfirstlane_b32 s62, v10")
        A("s_lshr_b32 s63, s62, 16")
        A("s_and_b32 s62, s62, 0xffff")
        stamp(12)
    A("s_lshr_b32 s56, s62, 3")
    A("s_lshr_b32 s57, s63, 3")
    A(f"v_cmp_eq_u32 s[44:45], s56, v{OCT[task]}")
    A(f"v_cmp_eq_u32 s[46:47], s57, v{OCT[task]}")
    if task == 0:
        yflag_poll("L_yf0", 3, "s61")
        y_loads(0)
        A("s_waitcnt vmcnt(0)")
    else:
        A(f"s_cmp_ge_u32 {sJ}, 20")
        A("s_cbranch_scc1 L_nb5")
        A("s_barrier")
        A("L_nb5:")
        A("s_mov_b32 s59, 0")
        A("L_ys:")
        y_loads(1)
        A("s_add_u32 s59, s59, 1")
        A("s_waitcnt vmcnt(0)")
        A("v_max3_u32 v24, v16, v17, v18")
        A("v_max3_u32 v25, v19, v20, v21")
        A("v_max3_u32 v24, v24, v22, v23")
        A("v_max_u32 v24, v24, v25")
        A("v_cmp_eq_u32 vcc, -1, v24")
        A("s_and_b64 exec, exec, vcc")
        A("s_cbranch_execz L_ysok")
        A("s_cmp_lt_u32 s59, 4096")
        A("s_cbranch_scc1 L_ys")
        setexec(ALL)
        A("s_add_u32 s61, s61, 512")
        yflag_poll("L_yf1", 3, "s61")
        y_loads(1)
        A("s_waitcnt vmcnt(0)")
        A("L_ysok:")
        setexec(ALL)
    stamp(8 + 2*task)
    for c in range(2):
        for i in range(4):
            A(f"v_lshlrev_b32 v{24+2*i}, 16, v{16+4*c+i}")
            A(f"v_and_b32 v{25+2*i}, {sHI}, v{16+4*c+i}")
        for pos in range(8):
            t = 2*(pos & 3) + (pos >> 2)
            A(f"v_fmac_f32 v{CC[task]+2*t+c}, v{XN[task]+2*t+c}, v{24+pos}")
    for t in range(8):
        A(f"v_cvt_pk_bf16_f32 v{32+8*task+t}, v{CC[task]+2*t}, v{CC[task]+2*t+1}")
    A("s_or_b64 s[54:55], s[44:45], s[46:47]")
    A(f"s_cbranch_scc1 L_msk{task}")
    rows("store", 32 + 8*task, task)
    A(f"L_mskd{task}:")
    stamp(9 + 2*task)
A("s_branch L_fin")
for task in range(2):
    A(f"L_msk{task}:")
    A("s_and_b32 s56, s62, 7")
    A("s_and_b32 s57, s63, 7")
    for t in range(8):
        A(f"s_cmp_eq_u32 s56, {t}")
        A("s_cselect_b64 s[54:55], s[44:45], 0")
        A(f"s_cmp_eq_u32 s57, {t}")
        A("s_cselect_b64 vcc, s[46:47], 0")
        A("s_nor_b64 exec, s[54:55], vcc")
        A(f"s_cbranch_execz L_ms{task}_{t}")
        A(f"buffer_store_dword v{32+8*task+t}, v{QOF[task]}, s[40:43], {'s49' if t >= 4 else '0'} offen offset:{1280*(t&3)}{ofl(task)}")
        A(f"L_ms{task}_{t}:")
    setexec(ALL)
    A(f"s_branch L_mskd{task}")

A("L_special:")
A("v_min_u32 v1, 39, v0")
A(f"s_cmp_lg_u32 {sW}, 0")
A("s_cbranch_scc1 L_sp1")
A("v_lshlrev_b32 v7, 4, v0")
A(f"s_mov_b32 s58, {CAND}")
cand_loads(16, 7, "s58", " sc1")
A("s_waitcnt vmcnt(0)")
tag_check("L_sc", [17 + 2*i for i in range(8)], lambda: cand_loads(16, 7, "s58", " sc1"))
top2_merge(16)
A("s_andn2_b32 s54, 0x7ff, s54")
A("s_andn2_b32 s62, 0x7ff, s55")
A(f"s_cmp_lg_u32 {sJ}, 30")
A("s_cbranch_scc1 L_ntp")
A("s_lshl_b32 s55, s62, 16")
A("s_or_b32 s55, s55, s54")
A("s_mov_b32 s62, s54")
A(f"s_lshl_b32 s54, {sX}, 7")
A(f"s_add_u32 s54, s54, {TOP}")
A("v_mov_b32 v8, s55")
A(f"v_mov_b32 v9, {sTAG}")
A("v_mov_b32 v3, s54")
setexec(1)
A(f"buffer_store_dwordx2 v[8:9], v3, {WS}, 0 offen sc1")
setexec(ALL)
A("L_ntp:")
srd(40, pQ, TBYTES)
A("s_mul_i32 s54, s62, 1280")
A(f"s_mul_i32 s55, {sX}, 160")
A("s_add_u32 s54, s54, s55")
A("v_lshl_add_u32 v2, v1, 2, s54")
A("buffer_load_dword v4, v2, s[40:43], 0 offen")
A("s_lshl_b32 s54, s62, 3")
A(f"s_add_u32 s54, s54, {ESTAT}")
A("v_mov_b32 v3, s54")


def sstat():
    A(f"buffer_load_dwordx2 v[8:9], v3, {WS}, 0 offen sc1")


sstat()
A("s_waitcnt vmcnt(0)")
tag_check("L_ss", [9], sstat)
A(f"v_and_b32 v9, {sHI}, v8")
A("v_rcp_f32 v9, v9")
A("v_lshlrev_b32 v8, 16, v8")
A("v_lshlrev_b32 v50, 16, v4")
A(f"v_and_b32 v51, {sHI}, v4")
A("v_sub_f32 v48, v50, v8")
A("v_sub_f32 v49, v51, v8")
A("v_mul_f32 v48, v48, v9")
A("v_mul_f32 v49, v49, v9")
A("v_add_f32 v50, v50, v48")
A("v_add_f32 v51, v51, v49")
A(f"s_lshl_b32 s55, {sX}, 11")
A("s_add_u32 s61, s61, s55")
A("s_add_u32 s61, s61, 512")
A(f"s_mul_i32 s54, {sX}, {80*4096}")
A("s_add_u32 s60, s60, s54")
A("s_lshr_b32 s54, s62, 3")
A("s_lshl_b32 s54, s54, 4")
A("s_add_u32 s60, s60, s54")
A("s_and_b32 s54, s62, 1")
A("s_lshl_b32 s54, s54, 3")
A("s_add_u32 s60, s60, s54")
A("s_and_b32 s54, s62, 4")
A("s_add_u32 s60, s60, s54")
A("s_add_u32 s48, s60, 4096")
A("s_bitcmp1_b32 s62, 1")
A("s_cselect_b32 s63, 0, 16")
A("v_lshlrev_b32 v3, 3, v1")
A("v_lshlrev_b32 v7, 13, v1")
A("v_lshrrev_b32 v6, 3, v1")
A("v_bfe_u32 v5, v1, 1, 2")
A("v_mad_u32_u24 v6, v5, 5, v6")
A("v_and_b32 v5, 1, v1")
A("v_mad_u32_u24 v6, v5, 20, v6")
A("v_lshlrev_b32 v6, 3, v6")
srd(40, pOUT, TBYTES)
yflag_poll("L_s0", 3, "s61")


def sy_loads():
    A(f"buffer_load_dword v32, v7, {WS}, s60 offen sc1")
    A(f"buffer_load_dword v33, v7, {WS}, s48 offen sc1")


sy_loads()
A("s_barrier")
A("s_barrier")
stamp(8)
for i in range(7):
    A(f"ds_read_b64 {vr(16+2*i,2)}, v6 offset:{512*i}")
A("s_waitcnt lgkmcnt(0)")
for i in range(1, 7):
    A(f"v_add_f32 v16, v16, v{16+2*i}")
    A(f"v_add_f32 v17, v17, v{17+2*i}")
A("v_add_f32 v50, v50, v16")
A("v_add_f32 v51, v51, v17")
A("s_mov_b32 s59, 0")
A("L_sy:")
A("s_waitcnt vmcnt(0)")
A("v_max_u32 v34, v32, v33")
A("v_cmp_eq_u32 vcc, -1, v34")
A("s_cbranch_vccz L_syok")
sy_loads()
A("s_add_u32 s59, s59, 1")
A("s_cmp_lt_u32 s59, 4096")
A("s_cbranch_scc1 L_sy")
A("s_add_u32 s61, s61, 512")
yflag_poll("L_s1", 3, "s61")
sy_loads()
A("s_waitcnt vmcnt(0)")
A("L_syok:")
A("v_lshlrev_b32 v32, s63, v32")
A("v_lshlrev_b32 v33, s63, v33")
A(f"v_and_b32 v32, {sHI}, v32")
A(f"v_and_b32 v33, {sHI}, v33")
A("v_fmac_f32 v50, v48, v32")
A("v_fmac_f32 v51, v49, v33")
A("v_cvt_pk_bf16_f32 v50, v50, v51")
A("buffer_store_dword v50, v2, s[40:43], 0 offen")
stamp(9)
A("s_branch L_fin")
A("L_sp1:")
A(f"s_sub_u32 s54, {sJ}, 30")
A("s_mul_i32 s54, s54, 640")
A(f"s_mul_i32 s55, {sX}, 1280")
A("s_add_u32 s54, s54, s55")
A(f"s_mul_i32 s55, {sW}, 10240")
A("s_add_u32 s54, s54, s55")
A(f"s_add_u32 s54, s54, {PART - 10240}")
A("v_lshl_add_u32 v5, v1, 4, s54")
A(f"s_cmp_lt_u32 {sW}, 6")
A("s_cselect_b32 s57, 7, 6")
A("s_cselect_b32 s58, 1.0, 0")
A("v_min_u32 v4, s57, v0")
A("v_mul_u32_u24 v4, 71680, v4")
A("v_add_u32 v4, s54, v4")
A("s_mul_i32 s57, s57, 71680")


def part_probe():
    A("s_sleep 2")
    A(f"buffer_load_dwordx2 v[16:17], v4, {WS}, 0 offen sc1")


def part_loads():
    A("s_mov_b32 s56, 0")
    for i in range(8):
        A(f"buffer_load_dwordx4 {vr(16+4*i,4)}, v5, {WS}, {'s57' if i == 7 else 's56'} offen sc1")
        if i < 6:
            A("s_add_u32 s56, s56, 71680")


A("s_barrier")
if OPT["probe"]:
    part_probe()
    A("s_waitcnt vmcnt(0)")
    tag_check("L_pq", [17], part_probe)
stamp(7)
part_loads()
A("s_waitcnt vmcnt(0)")
tag_check("L_pp", [17 + 2*i for i in range(16)], part_loads)
stamp(8)
for c in range(2):
    A(f"v_mul_f32 v{44+2*c}, s58, v{44+2*c}")
for i in (0, 2, 4, 6):
    for c in range(2):
        A(f"v_add_f32 v{16+4*i+2*c}, v{16+4*i+2*c}, v{20+4*i+2*c}")
for c in range(2):
    A(f"v_add_f32 v{16+2*c}, v{16+2*c}, v{24+2*c}")
    A(f"v_add_f32 v{32+2*c}, v{32+2*c}, v{40+2*c}")
A("v_add_f32 v16, v16, v32")
A("v_add_f32 v17, v18, v34")
A(f"s_lshl_b32 s54, {sW}, 9")
A("s_sub_u32 s54, s54, 512")
A("v_lshl_add_u32 v6, v0, 3, s54")
A("ds_write_b64 v6, v[16:17]")
A("s_waitcnt lgkmcnt(0)")
A("s_barrier")
A("s_branch L_fin")

A("L_slowsync:")
A(f"v_min_u32 v4, {NP1-1}, v0")
A("v_add_u32 v5, 8, v4")
A("v_cmp_gt_u32 vcc, 20, v4")
A("v_cndmask_b32 v4, v5, v4, vcc")
A("v_lshlrev_b32 v4, 10, v4")
A(f"s_lshl_b32 s57, {sX}, 7")
A(f"s_add_u32 s57, s57, {ARR}")
A(f"buffer_load_dwordx2 v[2:3], v4, {WS}, s57 offen sc1")
A("s_waitcnt vmcnt(0)")
A(f"v_cmp_eq_u32 vcc, {sTAG}, v2")
A(f"v_cmp_ne_u32 s[56:57], {sXCC}, v3")
A("s_and_b64 vcc, vcc, s[56:57]")
A("s_cbranch_scc1 L_fb")
A(f"s_cmp_lt_u32 s59, {POLL_LIMIT}")
A("s_cbranch_scc1 L_poll")
A("s_branch L_synced")
A("L_fb:")
A(f"s_mov_b32 s57, {FLB}")
A(f"s_mov_b32 s60, {YT2}")
A(f"s_mov_b32 s61, {FLB}")
A(f"s_cmp_lg_u32 {sW}, 0")
A("s_cbranch_scc1 L_nowb")
A("buffer_wbl2 sc1")
A("s_waitcnt vmcnt(0)")
setexec(1)
A(f"buffer_store_dwordx2 v[10:11], v12, {WS}, s57 offen sc1")
setexec(ALL)
A("L_nowb:")
A(f"s_cmp_ge_u32 {sJ}, 20")
A("s_cbranch_scc1 L_synced")
A("s_mov_b32 s59, 0")
A("L_pollb:")
A(f"buffer_load_dwordx2 v[2:3], v1, {WS}, s57 offen sc1")
A("s_add_u32 s59, s59, 1")
A("s_waitcnt vmcnt(0)")
A(f"v_cmp_eq_u32 vcc, {sTAG}, v2")
A("s_cmp_eq_u64 vcc, -1")
A("s_cbranch_scc1 L_bok")
A("s_sleep 2")
A(f"s_cmp_lt_u32 s59, {POLL_LIMIT}")
A("s_cbranch_scc1 L_pollb")
A("L_bok:")
A("buffer_inv sc1")
A("s_waitcnt vmcnt(0)")
A("s_branch L_synced")

A("L_hi4:")
A(f"s_cmp_lt_u32 {sJ}, 20")
A("s_cbranch_scc1 L_mfma")
A(f"s_cmp_ge_u32 {sJ}, 30")
A("s_cbranch_scc1 L_special")
A(f"s_cmp_lg_u32 s2, {28*8}")
A("s_cbranch_scc1 L_fin")
A(f"s_cmp_lg_u32 {sW}, 7")
A("s_cbranch_scc1 L_fin")
A("v_lshlrev_b32 v1, 7, v0")
for i in range(4):
    A(f"s_mov_b32 s{54+i}, {ARR + 8192*i}")


def arr_loads():
    A("s_sleep 8")
    for i in range(4):
        A(f"buffer_load_dword v{6+i}, v1, {WS}, s{54+i} offen sc1")


arr_loads()
A("s_waitcnt vmcnt(0)")
tag_check("L_ep", [6, 7, 8, 9], arr_loads)
A(f"v_mov_b32 v10, {sTAG}")
A(f"v_mov_b32 v11, {EPOCH}")
setexec(1)
A(f"buffer_store_dword v10, v11, {WS}, 0 offen sc1")
setexec(ALL)
A("s_branch L_fin")

A("L_mfma:")
A(f"s_sub_u32 s53, {sW}, 4")
A(f"s_mul_i32 s54, s53, {A_C}")
A("v_lshl_add_u32 v8, v0, 4, s54")
for i in range(4):
    A(f"ds_read_b128 {vr(16+16*i,4)}, v8 offset:{3*A_CP + 32 + 1024*i}")
    A(f"ds_read_b128 {vr(20+16*i,4)}, v8 offset:{3*A_CP + 48 + 1024*i}")
for i in range(4):
    b = 16 + 16*i
    A(f"s_waitcnt lgkmcnt({6 + i})")
    A(f"ds_write_b128 v8, {vr(b+2,4)} offset:{A_CP + 48 + 1024*i}")
    for q in range(6):
        A(f"v_mov_b32 v{b+8+q}, v{b+1+q}")
    A(f"ds_write_b128 v8, {vr(b+8,4)} offset:{48 + 1024*i}")
    A(f"ds_write_b128 v8, {vr(b+10,4)} offset:{2*A_CP + 48 + 1024*i}")
A("v_and_b32 v6, 3, v0")
A(f"v_mul_u32_u24 v1, {A_CP}, v6")
A("v_bfe_u32 v6, v0, 2, 2")
A("v_lshrrev_b32 v7, 4, v0")
A("v_add_u32 v6, v6, v7")
A("v_lshl_add_u32 v1, v6, 4, v1")
A("v_add_u32 v1, s54, v1")
A("v_and_b32 v6, 1, v0")
A(f"v_mul_u32_u24 v2, {U_P}, v6")
A("v_bfe_u32 v6, v0, 1, 3")
A("v_lshlrev_b32 v6, 2, v6")
A("v_sub_u32 v6, v6, v7")
A("v_lshl_add_u32 v2, v6, 4, v2")
A(f"s_mul_i32 s54, s53, {U_C}")
A(f"s_add_u32 s54, s54, {LU + 48}")
A("v_add_u32 v2, s54, v2")
A("v_bfe_u32 v6, v0, 1, 3")
A("v_lshl_add_u32 v6, v6, 2, v7")
A("v_and_b32 v5, 1, v0")
A("v_lshlrev_b32 v4, 4, v6")
A("v_lshl_add_u32 v4, v5, 3, v4")
A("s_lshl_b32 s54, s62, 12")
A("v_add_u32 v4, s54, v4")
A(f"s_mul_i32 s54, {sX}, {2048 - 320}")
A("s_lshl_b32 s55, s62, 2")
A("s_add_u32 s54, s54, s55")
A("v_mov_b32 v5, s54")
A(f"v_mov_b32 v6, {sTAG}")
A(f"v_mov_b32 v7, {LF}")
A("s_bitcmp1_b32 s62, 0")
A("s_cselect_b32 s54, 16, 0")
A("s_lshr_b32 s63, s63, s54")
A("s_and_b32 s63, s63, 0xffff")
A("v_lshrrev_b32 v12, 4, v0")
A("v_and_b32 v13, 15, v0")
A("v_lshl_add_u32 v12, v12, 2, v13")
A("v_mov_b32 v13, s63")
for i in range(4):
    A(f"v_cmp_eq_u32 vcc, {15-i}, v12")
    A(f"v_cndmask_b32 v{8+i}, 0, v13, vcc")
A("v_mov_b32 v12, -1")
A("v_mov_b32 v13, -1")
A(f"s_mov_b32 s60, {KVT}")
A(f"s_mov_b32 s61, {FLG}")
A(f"s_mov_b32 s56, {YT2}")
A(f"s_mov_b32 s57, {FLB}")
A("s_waitcnt lgkmcnt(0)")
n = 0
for rho in range(OPT["resid"]):
    for a in range(4):
        A(f"ds_read_b128 a[{(rho*4+a)*4}:{(rho*4+a)*4+3}], v1 offset:{64*rho + 512*a}")
        n += 1
        if n % 8 == 0:
            A("s_waitcnt lgkmcnt(7)")
if OPT["malign"]:
    A("s_branch L_mbody")
    SLOW_AT = len(A.lines)
    A(".p2align 12")
    A("L_mbody:")
stamp(5)
if OPT["prio"]:
    A(f"s_setprio {OPT['prio']}")
A("s_waitcnt lgkmcnt(0)")
A("s_barrier")
if PROF:
    A("s_memtime s[90:91]")
stamp(6, True)


slow_sites = []


def ystore(txt_fast, txt_slow):
    k = len(slow_sites)
    slow_sites.append(txt_slow)
    return f"s_cbranch_scc1 L_ys{k}\n{txt_fast}\nL_yr{k}:"


def mfma_schedule():
    passes = [(0, 1, 2, 3), (4, 5, 6, 7)]
    seq = []
    for pi, tiles in enumerate(passes):
        for rho in range(8):
            for b in range(max(tiles) + 1):
                for n in tiles:
                    if n >= b:
                        a = n - b
                        ak = ("A", a, rho) if a <= 3 else ("A", a, rho, pi)
                        seq.append((pi, n, ak, ("B", b, rho, pi)))
                        if a == 0 and rho == 0:
                            seq.append((pi, n, ("D",), ("B", b, rho, pi)))
    N = len(seq)
    end = [max(i for i, e in enumerate(seq) if e[0] == pi) for pi in range(2)]
    reg, pos = {}, {}
    side = {}

    def put(i, key, fn):
        while len(side.get(i, [])) >= 1 and i < N - 1:
            i += 1
        side.setdefault(i, []).append((key, fn))
        return i

    def acc(n, t):
        return 96 + 4*n + t

    def pack_store(n, i):
        i = put(i, None, lambda n=n: f"v_cvt_pk_bf16_f32 v{acc(n,0)}, v{acc(n,0)}, v{acc(n,1)}")
        i = put(i, None, lambda n=n: f"v_cvt_pk_bf16_f32 v{acc(n,1)}, v{acc(n,2)}, v{acc(n,3)}")
        return put(i, None, lambda n=n: ystore(
            f"buffer_store_dwordx2 {vr(acc(n,0),2)}, v4, {WS}, s60 offen offset:{512*n}" + (" sc1" if OPT["ya"] and n < 4 else ""),
            f"buffer_store_dwordx2 {vr(acc(n,0),2)}, v4, {WS}, s56 offen offset:{512*n} sc1"))

    def flag(pi, i):
        return put(i, None, lambda pi=pi: "s_waitcnt vmcnt(0)\ns_mov_b64 exec, 1\n" + ystore(
            f"buffer_store_dword v6, v5, {WS}, s61 offen offset:{512*(pi+1)}",
            f"buffer_store_dword v6, v5, {WS}, s57 offen offset:{512*(pi+1)} sc1") + "\ns_mov_b64 exec, -1" + ("\ns_memrealtime s[82:83]" if PROF and pi == 0 else ""))

    put(24, ("M",), lambda: f"v_readfirstlane_b32 s54, v15\ns_cmp_lg_u32 s54, {FLG}")
    i = OPT['sent']
    for n in passes[1]:
        i = put(i + 3, None, lambda n=n: ystore(
            f"buffer_store_dwordx2 v[12:13], v4, {WS}, s60 offen offset:{512*n}",
            f"buffer_store_dwordx2 v[12:13], v4, {WS}, s56 offen offset:{512*n} sc1"))
    i = end[0] + 5
    for n in passes[0]:
        i = pack_store(n, i)
    flag(0, i + OPT["ackgap"])

    first, last = {}, {}
    for i, (_, _, ak, bk) in enumerate(seq):
        ks = [k for k in (bk, ak) if len(k) == 4 or (len(k) == 3 and k[2] >= OPT["resid"])]
        ks += [k for k, _ in side.get(i, []) if k and k[0] == "K"]
        for k in ks:
            first.setdefault(k, i)
            last[k] = i
    loads = sorted(first, key=lambda k: (first[k], k[0] != "B"))
    free = [16 + 4*s for s in range(20)]
    issued = []
    st = dict(done=0, li=0)
    LOOK, SETTLE = OPT["look"], OPT["settle"]
    started = set()

    def rname(k):
        if len(k) == 1:
            return "v[8:11]"
        if len(k) == 3:
            return f"a[{(k[2]*4 + k[1])*4}:{(k[2]*4 + k[1])*4 + 3}]"
        return vr(reg[k], 4)

    def issue_loads(i, maxn):
        cnt = 0
        while st["li"] < len(loads) and cnt < maxn:
            k = loads[st["li"]]
            if first[k] > i + LOOK or len(issued) - st["done"] >= 14 or not free:
                break
            if len(k) == 4:
                reg[k] = free.pop(0)
            if k[0] == "A":
                A(f"ds_read_b128 {rname(k)}, v1 offset:{64*k[2] + 512*k[1]}")
            elif k[0] == "B":
                A(f"ds_read_b128 {rname(k)}, v2 offset:{512*k[1] + 64*(7-k[2])}")
            else:
                A(f"ds_read_b128 {rname(k)}, v3 offset:{512*k[1]}")
            pos[k] = len(issued)
            issued.append((k, i))
            st["li"] += 1
            cnt += 1

    def wait_for(keys, i):
        needp = max([pos[k] for k in keys if k in pos] + [-1]) + 1
        for k in keys:
            assert k in pos or k not in first, (k, i)
        if needp > st["done"]:
            tgt = needp
            while tgt < len(issued) and issued[tgt][1] <= i - SETTLE:
                tgt += 1
            A(f"s_waitcnt lgkmcnt({len(issued) - tgt})")
            st["done"] = tgt

    issue_loads(-1, 10)
    A("ds_read_b32 v15, v7")
    pos[("M",)] = len(issued)
    issued.append((None, -1))
    for i, (pi, n, ak, bk) in enumerate(seq):
        wait_for([ak, bk] + [k for k, _ in side.get(i, []) if k], i)
        a_ = vr(96 + 4*n, 4)
        c = a_ if n in started else "0"
        started.add(n)
        A(f"v_mfma_f32_16x16x32_bf16 {a_}, {rname(ak)}, {rname(bk)}, {c}")
        for k, fn in side.get(i, []):
            t_ = fn()
            if not (OPT["noside"] and t_.startswith("v_") and "readfirst" not in t_):
                A(t_)
        for k in list(reg):
            if last[k] == i:
                free.append(reg[k])
        behind = st["li"] < len(loads) and first[loads[st["li"]]] <= i + 8
        issue_loads(i, OPT["maxn"] + (1 if behind else 0))
    side.clear()
    i = N - 1
    for n in passes[1]:
        pack_store(n, i)
    put(i, None, lambda: "s_barrier")
    flag(1, i)
    if PROF:
        A("s_memtime s[92:93]")
    stamp(8)
    for k, fn in side[N-1]:
        A(fn())


mfma_schedule()
stamp(7)
A("s_branch L_fin")
_sl = []
for k, t in enumerate(slow_sites):
    _sl += [f"L_ys{k}:", t, f"s_branch L_yr{k}"]
if OPT["malign"]:
    A.lines[SLOW_AT:SLOW_AT] = _sl
else:
    A.lines += _sl

A("L_nonp1:")
A("v_lshrrev_b32 v1, 2, v0")
A("v_mul_u32_u24 v1, 3456, v1")
A("v_lshrrev_b32 v2, 4, v0")
A("v_and_b32 v2, 2, v2")
A("v_and_b32 v3, 3, v0")
A("v_xor_b32 v2, v2, v3")
A("v_lshl_add_u32 v100, v2, 4, v1")
A("v_subrev_u32 v9, 64, v9")
for k in range(11):
    A(f"v_add_u32 v1, {256*k}, v9")
    A("v_mul_u32_u24 v2, 1599, v1")
    A("v_lshrrev_b32 v2, 17, v2")
    A("v_mul_u32_u24 v3, 82, v2")
    A("v_sub_u32 v1, v1, v3")
    A("v_min_u32 v1, 79, v1")
    A("v_mul_u32_u24 v2, 1280, v2")
    A(f"v_lshl_add_u32 v{101+k}, v1, 4, v2")
after_kernarg()
if OPT["bq"]:
    A("s_barrier")
if OPT["codewarm"] == 1:
    A("s_getpc_b64 s[54:55]")
    A("L_pc:")
    A(f"s_sub_u32 s54, s54, L_pc-{NAME}_kernel")
    A("s_subb_u32 s55, s55, 0")
    A("v_lshlrev_b32 v1, 7, v9")
    A(f"v_cmp_gt_u32 vcc, L_codeend-{NAME}_kernel, v1")
    A("s_and_saveexec_b64 s[56:57], vcc")
    A("s_cbranch_execz L_nocw")
    A("global_load_dword v127, v1, s[54:55]")
    A("L_nocw:")
    setexec(ALL)
make_tag()
A("s_barrier")

A("L_moe:")
A(f"s_cmp_lt_u32 {sX}, 3")
A("s_cselect_b32 s54, 8, 6")
A("s_cselect_b32 s55, 0, 6")
A("s_cmp_ge_u32 s63, s54")
A("s_cbranch_scc1 L_fin")
A(f"s_mul_i32 s56, {sX}, s54")
A("s_add_u32 s56, s56, s55")
A("s_add_u32 s53, s63, s56")
A("s_mov_b32 s57, 0x3f803f80")
for i in range(4):
    A(f"v_mov_b32 v{16+i}, s57")
A(f"s_mov_b32 s57, {LX + 2*X_P}")
A("v_lshl_add_u32 v2, v0, 4, s57")
A("ds_write_b128 v2, v[16:19]")
A("ds_write_b128 v2, v[16:19] offset:256")
A("v_bfe_u32 v1, v0, 3, 1")
A("v_lshrrev_b32 v2, 4, v0")
A("v_bfe_u32 v10, v0, 2, 2")
A("v_and_b32 v11, 3, v0")
A("v_lshl_add_u32 v14, v2, 3, v10")
A(f"v_mul_u32_u24 v12, {WD_P}, v14")
A(f"s_mul_i32 s57, {sW}, 160")
A(f"s_add_u32 s57, s57, {LWD}")
A("v_lshl_add_u32 v13, v11, 3, s57")
A("v_add_u32 v12, v12, v13")
A(f"s_and_b32 s60, {sW}, 1")
A(f"s_lshr_b32 s61, {sW}, 1")
A("v_lshlrev_b32 v14, 6, v14")
A("v_lshrrev_b32 v15, 1, v11")
A(f"v_mul_u32_u24 v15, {LWU}, v15")
A("v_add_u32 v14, v14, v15")
A("v_and_b32 v15, 1, v11")
A("v_lshl_add_u32 v14, v15, 3, v14")
A("v_and_b32 v15, 1, v2")
A("v_lshlrev_b32 v15, 1, v15")
A("v_xor_b32 v15, s61, v15")
A("v_lshl_add_u32 v14, v15, 4, v14")
A(f"s_mul_i32 s57, s60, {320*64}")
A("v_add_u32 v14, s57, v14")
A("v_and_b32 v10, 7, v0")
A("v_lshl_add_u32 v11, v2, 3, v10")
A("v_lshlrev_b32 v11, 2, v11")
A(f"v_add_u32 v37, {LRED + 512}, v11")
A("v_lshl_add_u32 v36, v1, 8, v11")
A(f"v_add_u32 v36, {LRED}, v36")
A("v_and_b32 v18, 1, v10")
A("v_mov_b32 v19, 0xffff")
A(f"v_mov_b32 v20, {sHI}")
A("v_cmp_eq_u32 vcc, 1, v18")
A("v_cndmask_b32 v18, v19, v20, vcc")
A("v_lshrrev_b32 v13, 1, v10")
for i in range(4):
    A(f"v_cmp_eq_u32 vcc, {i}, v13")
    A(f"v_cndmask_b32 v{80+i}, 0, v18, vcc")
A("v_and_b32 v38, 15, v0")
A("v_lshlrev_b32 v38, 8, v38")
A("v_lshrrev_b32 v39, 1, v2")
A("v_lshl_add_u32 v38, v39, 7, v38")
A("v_and_b32 v39, 1, v2")
A("v_lshl_add_u32 v38, v39, 4, v38")
A("s_mul_i32 s57, s60, 768")
A("s_lshl_b32 s59, s61, 5")
A("s_add_u32 s57, s57, s59")
A(f"s_add_u32 s57, s57, {LRED}")
A("v_add_u32 v38, s57, v38")
A("v_mul_u32_u24 v39, 640, v1")
A("v_lshl_add_u32 v39, v10, 4, v39")
A("v_mul_u32_u24 v15, 80, v2")
A("v_add_u32 v39, v39, v15")
A("s_mul_i32 s57, s53, 10240")
A(f"s_mul_i32 s59, {sW}, 1280")
A("s_add_u32 s57, s57, s59")
A(f"s_add_u32 s57, s57, {PART}")
A("v_add_u32 v39, s57, v39")
A(f"s_mov_b32 s57, {LK}")
A("v_lshl_add_u32 v13, v1, 2, s57")
A("v_and_b32 v6, 15, v0")
A("v_min_u32 v6, 2, v6")
A(f"v_mul_u32_u24 v6, {X_P}, v6")
A("s_mul_i32 s57, s60, 640")
A(f"s_add_u32 s57, s57, {LX}")
A("v_lshl_add_u32 v7, v2, 4, s57")
A("v_add_u32 v6, v6, v7")
for i in range(4):
    A(f"v_mov_b32 v{85+2*i}, {sTAG}")
A(f"s_sub_u32 s58, {sW}, 1")
A(f"s_cmp_ge_u32 s58, {0 if OPT['noW'] else 4}")
A("s_cbranch_scc1 L_noload")
srd(40, pWG, WBYTES)
srd(44, pWU, WBYTES)
srd(48, pWD, WBYTES)
A(f"s_mul_i32 s55, s58, {160*3456}")
A("s_lshl_b32 s56, s53, 6")
A("s_add_u32 s55, s55, s56")
A("s_mul_i32 s54, s58, 10240")
if OPT["rot"]:
    A("s_bitcmp1_b32 s53, 0")
    A("s_cselect_b32 s59, 5, 0")
    A(f"s_mul_i32 s56, s59, {16*3456}")
    A("s_add_u32 s55, s55, s56")
    A("s_lshl_b32 s59, s59, 10")
    A("s_add_u32 s54, s54, s59")
    A("s_lshl_b32 s56, s56, 1")
    A("s_lshl_b32 s59, s59, 1")
for i in range(10):
    if OPT["rot"] and i == 5:
        A("s_sub_u32 s55, s55, s56")
        A("s_sub_u32 s54, s54, s59")
    A(f"s_add_u32 m0, s54, {LWG + 1024*i}")
    A("buffer_load_dwordx4 v100, s[40:43], s55 offen lds")
    pc = OPT["pace1"] if 2*i + 1 <= OPT["n1"] else OPT["pace"]
    A(f"s_waitcnt vmcnt({pc})")
    A(f"s_add_u32 m0, s54, {LWU + 1024*i}")
    A("buffer_load_dwordx4 v100, s[44:47], s55 offen lds")
    pc = OPT["pace1"] if 2*i + 2 <= OPT["n1"] else OPT["pace"]
    A(f"s_waitcnt vmcnt({pc})")
    A(f"s_add_u32 s55, s55, {16*3456}")
    if i == OPT["mp"] - 1:
        A("s_barrier")
A("s_mul_i32 s55, s53, 40960")
A("s_lshl_b32 s54, s58, 10")
A("s_cmp_lg_u32 s58, 0")
A("s_cbranch_scc1 L_nod11")
A(f"s_mov_b32 m0, {LWD + 40960}")
A("buffer_load_dwordx4 v111, s[48:51], s55 offen lds")
A("L_nod11:")
for k in range(10):
    A(f"s_add_u32 m0, s54, {LWD + 4096*k}")
    A(f"buffer_load_dwordx4 v{101+k}, s[48:51], s55 offen lds")
stamp(4)
A("s_branch L_nopoll")
A("L_noload:")
A("s_barrier")
A(f"s_cmp_lg_u32 {sW}, 0")
A("s_cbranch_scc1 L_nopoll")
A("v_lshlrev_b32 v32, 4, v0")
A(f"s_mov_b32 s58, {CAND}")
if OPT["polldelay"]:
    A(f"s_sleep {OPT['polldelay']}")
cand_loads(16, 32, "s58", " sc1")
srd(40, pQ, TBYTES)
A("s_waitcnt vmcnt(0)")
tag_check("L_cm", [17 + 2*i for i in range(8)], lambda: cand_loads(16, 32, "s58", " sc1"))
top2_merge(16)
stamp(7)
A("s_andn2_b32 s56, 0x7ff, s54")
A("s_andn2_b32 s57, 0x7ff, s55")
A("s_mul_i32 s56, s56, 1280")
A("s_mul_i32 s57, s57, 1280")
A(f"s_mov_b32 m0, {LX}")
A("buffer_load_dwordx4 v32, s[40:43], s56 offen lds")
setexec(0xffff)
A("buffer_load_dwordx4 v32, s[40:43], s56 offen offset:1024 lds")
setexec(ALL)
A(f"s_mov_b32 m0, {LX + X_P}")
A("buffer_load_dwordx4 v32, s[40:43], s57 offen lds")
setexec(0xffff)
A("buffer_load_dwordx4 v32, s[40:43], s57 offen offset:1024 lds")
setexec(ALL)
A("v_mov_b32 v16, s54")
A("v_mov_b32 v17, s55")
A("v_cmp_eq_u32 vcc, 1, v1")
A("v_cndmask_b32 v5, v16, v17, vcc")
A("v_not_b32 v3, v5")
A("v_and_b32 v7, 0x7ff, v3")
A("v_lshlrev_b32 v7, 3, v7")
A(f"s_mov_b32 s57, {ESTAT}")


def mstat():
    A(f"buffer_load_dwordx2 v[8:9], v7, {WS}, s57 offen sc1")


mstat()
A(f"v_and_b32 v5, {sHI}, v5")
A("v_ashrrev_i32 v10, 31, v5")
A("v_not_b32 v10, v10")
A("v_or_b32 v10, 0x80000000, v10")
A("v_xor_b32 v5, v5, v10")
A(f"v_and_b32 v5, {sHI}, v5")
A("v_mul_f32 v5, 0xbfb8aa3b, v5")
A("v_exp_f32 v5, v5")
A("v_add_f32 v5, 1.0, v5")
A("v_rcp_f32 v5, v5")
A("s_waitcnt vmcnt(0)")
tag_check("L_ms", [9], mstat)
A("ds_write2_b32 v13, v5, v8 offset0:0 offset1:2")
stamp(11)
A("L_nopoll:")
for t in range(1, 5):
    m = (1 << t) * 0x01010101
    A(f"s_mov_b32 s{40+2*t}, {m:#x}")
    A(f"s_mov_b32 s{41+2*t}, {m:#x}")
A("s_waitcnt vmcnt(10) lgkmcnt(0)")
stamp(5)
A("s_barrier")
stamp(6, True)
for s in range(10):
    A(f"ds_read_b64_tr_b16 a[{4*s}:{4*s+1}], v14 offset:{2048*s}")
    A(f"ds_read_b64_tr_b16 a[{4*s+2}:{4*s+3}], v14 offset:{2048*s + 256}")
    A(f"ds_read_b128 {vr(40+4*s,4)}, v6 offset:{64*s}")
    if s >= 4:
        q = s - 4
        A("s_waitcnt lgkmcnt(12)")
        c = "0" if q == 0 else "v[28:31]"
        A(f"v_mfma_f32_16x16x32_bf16 v[28:31], a[{4*q}:{4*q+3}], {vr(40+4*q,4)}, {c}")
A("ds_read2_b32 v[4:5], v13 offset0:2 offset1:0")
for q in range(6, 10):
    A(f"s_waitcnt lgkmcnt({3*(9-q) + 1})")
    A(f"v_mfma_f32_16x16x32_bf16 v[28:31], a[{4*q}:{4*q+3}], {vr(40+4*q,4)}, v[28:31]")
A("s_waitcnt lgkmcnt(0)")
A(f"v_and_b32 v9, {sHI}, v4")
A("v_lshlrev_b32 v8, 16, v4")
A("v_rcp_f32 v9, v9")
setexec(0x0007000700070007)
A("ds_write_b128 v38, v[28:31]")
setexec(ALL)
A("s_waitcnt vmcnt(0) lgkmcnt(0)")
A("s_barrier")
stamp(3, True)
A("ds_read2_b32 v[28:29], v36 offset0:0 offset1:32")
A("ds_read2_b32 v[30:31], v36 offset0:192 offset1:224")
A("ds_read2_b32 v[32:33], v37 offset0:0 offset1:32")
A("ds_read2_b32 v[34:35], v37 offset0:192 offset1:224")
for t in range(5):
    A(f"ds_read_b64_tr_b16 a[{40+4*t}:{41+4*t}], v12 offset:{32*t}")
    A(f"ds_read_b64_tr_b16 a[{42+4*t}:{43+4*t}], v12 offset:{32*t + 4*WD_P}")
A("s_waitcnt lgkmcnt(12)")
A("v_add_f32 v28, v28, v30")
A("v_add_f32 v29, v29, v31")
A("s_waitcnt lgkmcnt(10)")
A("v_add_f32 v32, v32, v34")
A("v_add_f32 v33, v33, v35")
A("v_fma_f32 v28, -v8, v32, v28")
A("v_fma_f32 v29, -v8, v33, v29")
A("v_mul_f32 v28, v28, v9")
A("v_mul_f32 v29, v29, v9")
A("v_mul_f32 v30, 0xbfb8aa3b, v28")
A("v_exp_f32 v30, v30")
A("v_mul_f32 v29, v29, v28")
A("v_add_f32 v30, 1.0, v30")
A("v_rcp_f32 v30, v30")
A("v_mul_f32 v29, v29, v30")
A("v_cvt_pk_bf16_f32 v29, v29, v29")
for i in range(4):
    A(f"v_and_b32 v{32+i}, v29, v{80+i}")
for r in ("quad_perm:[1,0,3,2]", "quad_perm:[2,3,0,1]", "row_half_mirror"):
    for i in range(4):
        A(f"v_or_b32_dpp v{32+i}, v{32+i}, v{32+i} {r} row_mask:0xf bank_mask:0xf")
A("s_waitcnt lgkmcnt(0)")
for t in range(5):
    A(f"v_mfma_f32_16x16x32_bf16 {vr(40+4*t,4)}, a[{40+4*t}:{43+4*t}], v[32:35], 0")
for t in range(1, 5):
    for i in range(4):
        A(f"v_cndmask_b32 v{40+i}, v{40+i}, v{40+4*t+i}, s[{40+2*t}:{41+2*t}]")
for i in range(4):
    A(f"v_mul_f32 v{84+2*i}, v{40+i}, v5")
setexec(0x1f1f1f1f1f1f1f1f)
A(f"buffer_store_dwordx4 v[84:87], v39, {WS}, 0 offen sc1")
A(f"buffer_store_dwordx4 v[88:91], v39, {WS}, 0 offen offset:320 sc1")
setexec(ALL)
stamp(12)
if OPT["wb"]:
    A(f"s_lshl_b32 s54, {sW}, 5")
    A(f"s_add_u32 s54, s54, {sJ}")
    A("s_cmp_lg_u32 s54, 20")
    A("s_cbranch_scc1 L_fin")
    if OPT["wb"] & 1:
        A("buffer_wbl2 sc1")
        A("s_waitcnt vmcnt(0)")
        stamp(10)
    if OPT["wb"] & 2:
        A("v_min_u32 v1, 39, v0")
        A(f"s_lshl_b32 s54, {sX}, 11")
        A("v_lshl_add_u32 v1, v1, 3, s54")
        A(f"s_mov_b32 s56, {FLG + 1024}")
        A(f"s_mov_b32 s57, {FLB + 1024}")
        A("s_mov_b32 s59, 0")
        A("L_wbp:")
        A("s_add_u32 s59, s59, 1")
        A("s_and_b32 s58, s59, 15")
        A("s_cselect_b32 s58, s56, s57")
        A(f"buffer_load_dwordx2 v[10:11], v1, {WS}, s58 offen sc1")
        A("s_waitcnt vmcnt(0)")
        A(f"v_cmp_ne_u32 vcc, {sTAG}, v10")
        A(f"v_cmp_ne_u32 s[54:55], {sTAG}, v11")
        A("s_or_b64 vcc, vcc, s[54:55]")
        A("s_cbranch_scc0 L_wbok")
        A(f"s_cmp_lt_u32 s59, {POLL_LIMIT}")
        A("s_cbranch_scc1 L_wbp")
        A("L_wbok:")
        A("buffer_wbl2 sc1")

A("L_fin:")
if PROF:
    A("s_waitcnt vmcnt(0)")
    stamp(15)
    A("s_waitcnt lgkmcnt(0)")
    if OPT["diag"] >= 0:
        k = OPT["diag"]
        A(f"s_sub_u32 s53, s{64+2*k}, s64")
        A(f"s_cmp_eq_u32 s{64+2*k}, 0")
        A("s_cselect_b32 s53, 0, s53")
        if OPT["drole"] == 1:
            A(f"s_cmp_ge_u32 {sJ}, 20")
            A("s_cselect_b32 s53, 0, s53")
        if OPT["drole"] == 2:
            A(f"s_sub_u32 s54, {sJ}, 20")
            A("s_cmp_ge_u32 s54, 8")
            A("s_cselect_b32 s53, 0, s53")
        A(f"s_mul_i32 s53, s53, {OPT['dmul']}")
        A("s_add_u32 s53, s53, 4000")
        if OPT["dx"] >= 0:
            A(f"s_cmp_lg_u32 {sX}, {OPT['dx']}")
            A("s_cselect_b32 s53, 0, s53")
        A("L_diag:")
        A("s_sleep 4")
        A("s_memrealtime s[54:55]")
        A("s_waitcnt lgkmcnt(0)")
        A("s_sub_u32 s54, s54, s64")
        A("s_cmp_lt_u32 s54, s53")
        A("s_cbranch_scc1 L_diag")
    A("s_lshl_b32 s53, s2, 3")
    A(f"s_add_u32 s53, s53, {sW}")
    A("s_lshl_b32 s53, s53, 6")
    A(f"s_add_u32 s53, s53, {PROFB}")
    A("v_mov_b32 v1, s53")
    setexec(1)
    for k in range(16):
        A(f"v_mov_b32 v2, s{64+2*k}")
        A(f"buffer_store_dword v2, v1, {WS}, 0 offen offset:{4*k}")
A("L_end:")
A("s_endpgm")
A("L_codeend:")

hdr = open(os.path.join(os.path.dirname(os.path.abspath(__file__)), "..", "cdna_kernels", NAME + ".s.ref")).read().split("\n")
hdr = [l for l in hdr if l.startswith(";") and "@launch" not in l]
out = hdr + [f"; @launch grid=(256,1,1) block=(512,1,1) lds={LDS_BYTES}",
             '.amdgcn_target "amdgcn-amd-amdhsa--gfx950"', ".text", f".globl {NAME}_kernel", ".p2align 8",
             f".type {NAME}_kernel,@function"]
if not PROF:
    A.lines = ["s_endpgm" if l == "s_branch L_fin" else l for l in A.lines]
out += A.padded()
out += ['.section .rodata,"a"', ".p2align 6", f".amdhsa_kernel {NAME}_kernel",
        "  .amdhsa_next_free_vgpr 256", "  .amdhsa_next_free_sgpr 102", "  .amdhsa_accum_offset 128",
        "  .amdhsa_group_segment_fixed_size 0", "  .amdhsa_kernarg_size 112", "  .amdhsa_user_sgpr_count 2",
        "  .amdhsa_user_sgpr_kernarg_segment_ptr 1", "  .amdhsa_system_sgpr_workgroup_id_x 1",
        "  .amdhsa_float_denorm_mode_32 3", ".end_amdhsa_kernel", ""]
open(sys.argv[1], "w").write("\n".join(out))
```

```python
import sys, os
sys.path.insert(0, os.path.dirname(os.path.abspath(__file__)))
from asmlib import Asm

NAME = "parallel_sum__ssm_conv_h3__moe_arch_mod__prompt"
OPT = dict(prof=0, codewarm=2, force_fb=0, diag=-1, dmul=4, prio=2, look=16, settle=7, pace=4, polldelay=0,
           bq=1, resid=4, pace1=1, n1=6, noW=0, nopre=0, noh=0, maxn=1, ackgap=20, mp=16, noepi=0, noside=0, drole=0, outA=0, outB=0, wb=0, sent=70, rot=0, probe=0, malign=1, ya=0, dx=-1, early=5, paced=8, hw=0, lastat=1, ks=4224)
for a in sys.argv[2:]:
    k, v = a.split("=")
    assert k in OPT, k
    OPT[k] = int(v)
PROF = OPT["prof"]

EPOCH, FLG, FLB, CAND, ARR, ESTAT, PART = 0, 0x1000, 0x5000, 0x9000, 0x10000, 0x18000, 0x20000
TOP = 0xA000
KVT, YT2, PROFB = 0x100000, 0x900000, 0x800000
KS = OPT['ks']
KV2D = 0x300000
WS_BYTES = 0x1000000
TBYTES = 2621440
WBYTES = 2211840
NMOE, NP1 = 54, 24
OOB = 0x7ffffff0
LA, A_C, A_CP = 0, 16640, 4160
LU, U_C, U_P = 66560, 9120, 4576
LY = 103040
LS, S_T = 103040, 12688
LF = 139776
LDS_BYTES = 140032
LWG, LWU, LWD, WD_P, LRED, LK, LX, X_P = 0, 40976, 81984, 1312, 123968, 125504, 125568, 1344
POLL_LIMIT = 1 << 16

sX, sJ, sW, sTAG, sXCC = "s3", "s4", "s5", "s6", "s7"
pQ, pK, pV, pSH, pH, pD, pWR, pWG, pWU, pWD, pOUT, pWS = 8, 10, 12, 14, 16, 18, 22, 24, 26, 28, 30, 34
WS = "s[36:39]"
sHI = "s52"
ALL = (1 << 64) - 1
A = Asm()


def sp(p):
    return f"s[{p}:{p+1}]"


def srd(reg, ptr, nbytes):
    A(f"s_mov_b32 s{reg}, s{ptr}")
    A(f"s_mov_b32 s{reg+1}, s{ptr+1}")
    A(f"s_mov_b32 s{reg+2}, {nbytes:#x}")
    A(f"s_mov_b32 s{reg+3}, 0x20000")


def stamp(k, wait=False):
    if PROF:
        A(f"s_memrealtime s[{64+2*k}:{65+2*k}]")
        if wait:
            A("s_waitcnt lgkmcnt(0)")


def vr(b, n):
    return f"v[{b}:{b+n-1}]"


def setexec(m):
    lo, hi = m & 0xffffffff, m >> 32
    if m == ALL:
        A("s_mov_b64 exec, -1")
    elif hi == 0 and lo < 0x80000000:
        A(f"s_mov_b64 exec, {lo:#x}")
    else:
        A(f"s_mov_b32 exec_lo, {lo:#x}")
        A(f"s_mov_b32 exec_hi, {hi:#x}")


def after_kernarg():
    A("s_waitcnt lgkmcnt(0)")
    A(f"s_load_dword {sTAG}, {sp(pWS)}, {EPOCH}")
    srd(36, pWS, WS_BYTES)


def make_tag():
    A("s_waitcnt lgkmcnt(0)")
    A(f"s_mul_i32 {sTAG}, {sTAG}, 0x9E3779B1")
    A(f"s_add_u32 {sTAG}, {sTAG}, 0x7F4A7C15")


def or_tree(regs):
    regs = list(regs)
    while len(regs) > 1:
        nxt = []
        i = 0
        while i < len(regs):
            if i + 2 < len(regs):
                A(f"v_or3_b32 v{regs[i]}, v{regs[i]}, v{regs[i+1]}, v{regs[i+2]}")
                nxt.append(regs[i]); i += 3
            elif i + 1 < len(regs):
                A(f"v_or_b32 v{regs[i]}, v{regs[i]}, v{regs[i+1]}")
                nxt.append(regs[i]); i += 2
            else:
                nxt.append(regs[i]); i += 1
        regs = nxt
    return regs[0]


def tag_check(lbl, tagregs, reissue, restore=None):
    A("s_mov_b32 s59, 0")
    A(f"{lbl}:")
    for r in tagregs:
        A(f"v_xor_b32 v{r}, {sTAG}, v{r}")
    r = or_tree(tagregs)
    A(f"v_cmp_ne_u32 vcc, 0, v{r}")
    A(f"s_cbranch_vccz {lbl}_ok")
    if restore:
        restore()
    reissue()
    A("s_add_u32 s59, s59, 1")
    A(f"s_cmp_lt_u32 s59, {POLL_LIMIT}")
    A("s_waitcnt vmcnt(0)")
    A(f"s_cbranch_scc1 {lbl}")
    A(f"{lbl}_ok:")


def merge_dpp(a, rs):
    for r in rs:
        d = f"row_ror:{r} row_mask:0xf bank_mask:0xf"
        A(f"v_min_u32_dpp v{a+1}, v{a}, v{a} {d}")
        A(f"v_max_u32_dpp v{a+3}, v{a+2}, v{a+2} {d}")
        A(f"v_max_u32_dpp v{a}, v{a}, v{a} {d}")
        A(f"v_max_u32 v{a+2}, v{a+1}, v{a+3}")


def cand_loads(t0, va, so, fl):
    for i in range(4):
        A(f"buffer_load_dwordx4 {vr(t0+4*i,4)}, v{va}, {WS}, {so} offen offset:{1024*i}{fl}")


def top2_merge(t0):
    def merge(a, b, tmp):
        A(f"v_min_u32 v{tmp}, v{a}, v{b}")
        A(f"v_max_u32 v{a}, v{a}, v{b}")
        A(f"v_max3_u32 v{a+2}, v{a+2}, v{b+2}, v{tmp}")
    merge(t0, t0+4, t0+1)
    merge(t0+8, t0+12, t0+3)
    merge(t0, t0+8, t0+1)
    merge_dpp(t0, (1, 2, 4, 8))
    A(f"v_readlane_b32 s54, v{t0}, 0")
    A(f"v_readlane_b32 s55, v{t0+2}, 0")
    for row in (16, 32, 48):
        A(f"v_readlane_b32 s56, v{t0}, {row}")
        A(f"v_readlane_b32 s59, v{t0+2}, {row}")
        A("s_max_u32 s55, s55, s59")
        A("s_min_u32 s59, s54, s56")
        A("s_max_u32 s54, s54, s56")
        A("s_max_u32 s55, s55, s59")


def moe_decode():
    A(f"s_cmp_lt_u32 {sX}, 3")
    A("s_cselect_b32 s54, 8, 6")
    A("s_cselect_b32 s55, 0, 6")
    A(f"s_mul_i32 s56, {sX}, s54")
    A("s_add_u32 s56, s56, s55")


def arr_store():
    A("s_lshl_b32 s59, s2, 7")
    A(f"s_add_u32 s59, s59, {ARR}")
    A(f"v_mov_b32 v32, {sTAG}")
    A(f"v_mov_b32 v33, {sXCC}")
    A("v_mov_b32 v34, s59")
    setexec(1)
    A(f"buffer_store_dwordx2 v[32:33], v34, {WS}, 0 offen sc1")
    setexec(ALL)


A(f"{NAME}_kernel:")
A("s_cmp_ge_u32 s2, 256")
A("s_cbranch_scc1 L_end")
A("s_load_dwordx16 s[8:23], s[0:1], 0")
A("s_load_dwordx8 s[24:31], s[0:1], 64")
A("s_load_dwordx4 s[32:35], s[0:1], 96")
A("v_lshrrev_b32 v1, 6, v0")
A("v_mov_b32 v9, v0")
A("v_and_b32 v0, 63, v0")
A(f"s_and_b32 {sX}, s2, 7")
A(f"s_lshr_b32 {sJ}, s2, 3")
A(f"v_readfirstlane_b32 {sW}, v1")
A(f"s_getreg_b32 {sXCC}, hwreg(HW_REG_XCC_ID)")
if OPT["force_fb"]:
    A(f"s_add_u32 {sXCC}, {sXCC}, {sJ}")
A(f"s_mov_b32 {sHI}, 0xffff0000")
if PROF:
    for k in range(64, 96):
        A(f"s_mov_b32 s{k}, 0")
stamp(0)
A(f"s_mul_i32 s53, {sX}, 20")
A(f"s_add_u32 s53, s53, {sJ}")
A(f"s_sub_u32 s63, {sJ}, 20")
if OPT["codewarm"] == 2:
    A("s_cmp_ge_u32 s63, 8")
    A("s_cbranch_scc1 L_nocw2")
    A("s_getpc_b64 s[54:55]")
    A("L_pc2:")
    A(f"s_sub_u32 s54, s54, L_pc2-{NAME}_kernel")
    A("s_subb_u32 s55, s55, 0")
    A("v_subrev_u32 v1, 320, v9")
    A("v_lshlrev_b32 v1, 7, v1")
    A(f"v_cmp_gt_u32 vcc, L_codeend-{NAME}_kernel, v1")
    A("s_and_saveexec_b64 s[56:57], vcc")
    A("s_cbranch_execz L_nocw3")
    A("global_load_dword v127, v1, s[54:55]")
    A("L_nocw3:")
    setexec(ALL)
    A("L_nocw2:")
A(f"s_sub_u32 s58, {sJ}, 8")
A(f"s_cmp_lt_u32 {sJ}, 20")
A(f"s_cselect_b32 s58, {sJ}, s58")
A(f"s_cmp_lg_u32 {sW}, 0")
A("s_cbranch_scc1 L_not7")
A("s_mov_b32 s99, s2")
A("L_ln:")

A("v_and_b32 v1, 7, v0")
A("v_bfe_u32 v2, v0, 3, 1")
A("v_lshrrev_b32 v3, 4, v0")
A("v_mul_u32_u24 v4, 1280, v1")
A("v_mul_u32_u24 v5, 640, v2")
A("v_add_u32 v4, v4, v5")
A("v_lshl_add_u32 v4, v3, 4, v4")
A("s_mul_i32 s55, s99, 10240")
A("v_add_u32 v4, s55, v4")
A("v_and_b32 v5, 15, v0")
A("v_cmp_lt_u32 vcc, 1, v5")
A("v_mov_b32 v6, 640")
A("v_cndmask_b32 v6, 0, v6, vcc")
A("v_lshl_add_u32 v6, v3, 4, v6")
A("s_mov_b32 s55, 0x3f803f80")
for i in range(44):
    A(f"v_mov_b32 v{56+i}, s55")
A("s_waitcnt lgkmcnt(0)")
for s in range(10):
    A(f"global_load_dwordx4 {vr(16+4*s,4)}, v4, {sp(pQ)} offset:{64*s}")
setexec(0x0006000600060006)
for s in range(10):
    A(f"global_load_dwordx4 {vr(56+4*s,4)}, v6, {sp(pWR)} offset:{64*s}")
setexec(ALL)
if OPT["bq"]:
    A("s_barrier")
A("s_branch L_lntail")
A("L_not7:")
A("s_cmp_lt_u32 s63, 8")
A("s_cbranch_scc1 L_nonp1")
A("v_subrev_u32 v9, 64, v9")
A("s_lshl_b32 s60, s58, 3")
A(f"s_mul_i32 s55, s60, {8*1280}")
A(f"s_mul_i32 s54, {sX}, 160")
A("s_add_u32 s55, s55, s54")
A(f"s_sub_u32 s55, s55, {8*1280}")
A(f"v_mov_b32 v7, {OOB:#x}")
for i in range(2):
    d = 1 + i
    A(f"v_add_u32 v4, {25+384*i}, v9")
    A("v_mul_u32_u24 v5, 1619, v4")
    A("v_lshrrev_b32 v5, 17, v5")
    A("v_mul_u32_u24 v6, 81, v5")
    A("v_cmp_gt_u32 vcc, 50, v4" if i == 0 else "v_cmp_lt_u32 vcc, 727, v4")
    A("v_sub_u32 v4, v4, v6")
    A("v_mul_u32_u24 v6, 205, v4")
    A("v_lshrrev_b32 v6, 11, v6")
    A("v_lshl_add_u32 v5, v5, 3, v6")
    A("v_mul_u32_u24 v6, 10, v6")
    A("v_sub_u32 v4, v4, v6")
    A("v_mul_u32_u24 v5, 1280, v5")
    A("v_lshl_add_u32 v5, v4, 4, v5")
    A(f"v_add_u32 v{d}, s55, v5")
    A(f"v_cndmask_b32 v{d}, v{d}, v7, vcc")
A("v_min_u32 v9, 319, v9")
A("v_lshrrev_b32 v7, 3, v9")
A("v_and_b32 v8, 7, v9")
A(f"s_mul_i32 s54, {sX}, 640")
A("v_lshl_add_u32 v9, v7, 4, s54")
A(f"s_lshl_b32 s56, {sW}, 10")
A(f"s_add_u32 s56, s56, {LS + 25*16 - 1024}")
after_kernarg()
srd(40, pK, TBYTES)
srd(44, pV, TBYTES)
if OPT["bq"]:
    A("s_barrier")
A(f"s_cmp_eq_u32 {sW}, 7")
A("s_cbranch_scc1 L_nodma")
for rd in range(3):
    if rd == 1:
        A(f"global_load_dwordx4 v[20:23], v9, {sp(pSH)}")
        A(f"s_cmp_lt_u32 {sJ}, 20")
        A("s_cbranch_scc1 L_nodma")
    if rd:
        A(f"s_mov_b32 s55, {rd*256*1280}")
    for i in range(2):
        for t, r in enumerate((40, 44)):
            A(f"s_add_u32 m0, s56, {t*S_T + 6144*i - rd*2*S_T}")
            A(f"buffer_load_dwordx4 v{1+i}, s[{r}:{r+3}], {'s55' if rd else '0'} offen lds")
A("L_nodma:")
A("s_lshl_b32 s62, s53, 2")
A(f"s_and_b32 s54, {sW}, 3")
A("s_add_u32 s62, s62, s54")
A("s_min_u32 s62, s62, 639")
A("s_lshl_b32 s54, s62, 1")
A("s_and_b32 s54, s54, -4")
A(f"s_load_dword s63, {sp(pD)}, s54")
stamp(1)
A("v_mul_u32_u24 v1, 1296, v8")
A("v_lshl_add_u32 v1, v7, 2, v1")
A(f"v_add_u32 v1, {LS}, v1")
A(f"s_mul_i32 s55, {sX}, {80*KS}")
A("s_lshl_b32 s57, s60, 4")
A("s_add_u32 s55, s55, s57")
A(f"s_add_u32 s55, s55, {KVT}")
A(f"v_mul_u32_u24 v5, {2*KS}, v7")
A("v_lshl_add_u32 v5, v8, 4, v5")
A("v_add_u32 v5, s55, v5")
A(f"s_cmp_lg_u32 {sW}, 7")
A("s_cbranch_scc1 L_nz")
A(f"s_cmp_ge_u32 {sJ}, 20")
A("s_cbranch_scc1 L_nz")
for i in range(4):
    A(f"v_mov_b32 v{16+i}, 0")
A("v_lshrrev_b32 v2, 5, v0")
A(f"v_mul_u32_u24 v2, {U_P}, v2")
A("v_and_b32 v3, 31, v0")
A("v_min_u32 v3, 27, v3")
A("v_lshl_add_u32 v2, v3, 4, v2")
A(f"v_add_u32 v2, {LU}, v2")
for c in range(4):
    A(f"ds_write_b128 v2, v[16:19] offset:{c*U_C}")
A("v_lshrrev_b32 v2, 2, v0")
A(f"v_mul_u32_u24 v2, {A_CP}, v2")
A("v_and_b32 v3, 3, v0")
A("v_min_u32 v3, 2, v3")
A("v_lshl_add_u32 v2, v3, 4, v2")
A("ds_write_b128 v2, v[16:19]")
A("L_nz:")
make_tag()
A(f"s_cmp_lt_u32 {sJ}, 20")
A("s_cselect_b32 s61, 0, 2")
A("s_cbranch_scc0 L_w8")
A("s_waitcnt vmcnt(0)")
A("L_w8:")
A("s_waitcnt vmcnt(8)")
A("v_lshlrev_b32 v10, 16, v20")
A("v_lshlrev_b32 v11, 16, v22")
A(f"v_and_b32 v12, {sHI}, v20")
A(f"v_and_b32 v13, {sHI}, v22")
A("v_lshlrev_b32 v14, 16, v21")
A("v_lshlrev_b32 v15, 16, v23")
A(f"v_and_b32 v16, {sHI}, v21")
A(f"v_and_b32 v17, {sHI}, v23")
A("L_round:")
A("s_barrier")
stamp(2, True)
A(f"s_cmp_ge_u32 {sW}, 6")
A("s_cbranch_scc1 L_nokv")


def koff(t):
    return (1296 + 160*t) if t >= 0 else 160*(8 + t)


def Kp(t):
    return vr(40 + 2*(t + 3), 2)


for i, t in enumerate(range(-3, 8)):
    A(f"ds_read_b32 v{20+i}, v1 offset:{koff(t)}")
for t in range(4):
    A(f"ds_read_b32 v{32+t}, v1 offset:{S_T + koff(t)}")
for i in range(11):
    if i in (0, 4, 8):
        A(f"s_waitcnt lgkmcnt({(11, 7, 8)[i//4]})")
    A(f"v_lshlrev_b32 v{40+2*i}, 16, v{20+i}")
    A(f"v_and_b32 v{41+2*i}, {sHI}, v{20+i}")
    if i == 7:
        for t in range(4, 8):
            A(f"ds_read_b32 v{32+t}, v1 offset:{S_T + koff(t)}")
for t in range(8):
    A(f"v_pk_mul_f32 {vr(96+2*t,2)}, v[16:17], {Kp(t-3)}")
for t in range(8):
    A(f"v_pk_fma_f32 {vr(96+2*t,2)}, v[14:15], {Kp(t-2)}, {vr(96+2*t,2)}")
for t in range(8):
    A(f"v_pk_fma_f32 {vr(96+2*t,2)}, v[12:13], {Kp(t-1)}, {vr(96+2*t,2)}")
for t in range(8):
    A(f"v_pk_fma_f32 {vr(96+2*t,2)}, v[10:11], {Kp(t)}, {vr(96+2*t,2)}")
A("s_waitcnt lgkmcnt(0)")
for t in range(8):
    A(f"v_lshlrev_b32 v{62+2*t}, 16, v{32+t}")
    A(f"v_and_b32 v{63+2*t}, {sHI}, v{32+t}")
for t in range(8):
    A(f"v_pk_mul_f32 {vr(96+2*t,2)}, {vr(96+2*t,2)}, {vr(62+2*t,2)}")
A(f"s_mov_b32 s55, {KS}")
for c in range(2):
    for i in range(4):
        A(f"v_cvt_pk_bf16_f32 v{80+4*c+i}, v{96+2*(7-2*i)+c}, v{96+2*(6-2*i)+c}")
    A(f"buffer_store_dwordx4 {vr(80+4*c,4)}, v5, {WS}, {'s55' if c else '0'} offen")
stamp(3)
A("L_nokv:")
A("s_sub_u32 s61, s61, 1")
A("s_cbranch_scc1 L_kvdone")
A(f"v_subrev_u32 v1, {2*S_T}, v1")
A("v_add_u32 v5, 512, v5")
A("s_waitcnt vmcnt(4)")
A("s_cmp_lg_u32 s61, 0")
A("s_cbranch_scc1 L_round")
A(f"v_add_u32 v5, {KV2D}, v5")
A("s_waitcnt vmcnt(0)")
A("s_branch L_round")
A("L_kvdone:")
A(f"s_lshl_b32 s55, {sX}, 11")
A("s_lshl_b32 s57, s58, 3")
A("s_add_u32 s57, s57, s55")
A(f"v_mov_b32 v10, {sTAG}")
A(f"v_mov_b32 v11, {sXCC}")
A("v_mov_b32 v12, s57")
A(f"v_min_u32 v1, {NP1-1}, v0")
A("v_lshl_add_u32 v1, v1, 3, s55")
A("s_lshl_b32 s54, s53, 2")
A(f"s_add_u32 s54, s54, {sW}")
A(f"s_mul_i32 s54, s54, {KS}")
A(f"s_add_u32 s54, s54, {KVT}")
A("v_lshl_add_u32 v44, v0, 4, s54")
A("v_subrev_u32 v14, 16, v44")
A("v_cmp_eq_u32 vcc, 0, v0")
A(f"v_mov_b32 v3, {OOB:#x}")
A("v_cndmask_b32 v14, v14, v3, vcc")
A(f"s_mov_b32 s55, {FLG}")
A("s_mov_b32 s59, 0")
A(f"s_mov_b32 s60, {KVT}")
A(f"s_mov_b32 s61, {FLG}")
A("s_waitcnt vmcnt(0)")
A("s_barrier")
stamp(4, True)
A(f"s_cmp_ge_u32 {sW}, 4")
A("s_cbranch_scc1 L_hi4")
A(f"s_cmp_lg_u32 {sW}, 0")
A("s_cbranch_scc1 L_poll")
A(f"s_cmp_lt_u32 {sJ}, 20")
A(f"s_cselect_b32 s57, s55, {FLG + 64}")
setexec(1)
A(f"buffer_store_dwordx2 v[10:11], v12, {WS}, s57 offen")
setexec(ALL)
A("L_poll:")
A(f"buffer_load_dwordx2 v[2:3], v1, {WS}, s55 offen sc1")
A("s_add_u32 s59, s59, 1")
A("s_waitcnt vmcnt(0)")
A("v_cmp_eq_u64 vcc, s[6:7], v[2:3]")
A("s_cmp_eq_u64 vcc, -1")
A("s_cbranch_scc1 L_synced")
A("s_and_b32 s57, s59, 15")
A("s_cmp_lg_u32 s57, 0")
A("s_cbranch_scc1 L_poll")
A("s_branch L_slowsync")
A("L_synced:")
stamp(5)
A(f"s_cmp_ge_u32 {sJ}, 30")
A("s_cbranch_scc1 L_special")
A(f"s_cmp_ge_u32 {sJ}, 20")
A("s_cbranch_scc1 L_fin")

def stage(pieces, va, vprev0, vl, extra=0, so="0", fix=None):
    for i, (off, m) in enumerate(pieces):
        if m != ALL:
            setexec(m)
        A(f"buffer_load_dwordx4 {vr(16+4*i,4)}, v{va}, {WS}, {so} offen offset:{off} sc1")
        if off == 0:
            A(f"buffer_load_dword v{28+i}, v{vprev0}, {WS}, 0 offen sc1")
        else:
            if fix:
                setexec(m & ~1)
            A(f"buffer_load_dword v{28+i}, v{va}, {WS}, {so} offen offset:{off-16} sc1")
    setexec(ALL)
    yield
    n = len(pieces)
    for i, (off, m) in enumerate(pieces):
        A(f"s_waitcnt vmcnt({2*(n-1-i) + extra})")
        if m != ALL:
            setexec(m)
        b = 16 + 4*i
        if fix:
            A(fix)
        A(f"ds_write_b128 v{vl}, {vr(b,4)} offset:{U_P + off}")
        A(f"v_alignbyte_b32 v{32+4*i}, v{b+1}, v{b}, 2")
        A(f"v_alignbyte_b32 v{33+4*i}, v{b+2}, v{b+1}, 2")
        A(f"v_alignbyte_b32 v{34+4*i}, v{b+3}, v{b+2}, 2")
        A(f"v_alignbyte_b32 v{35+4*i}, v{28+i}, v{b+3}, 2")
        A(f"ds_write_b128 v{vl}, {vr(32+4*i,4)} offset:{off}")
    setexec(ALL)
    yield


HALF = 0xffffffff
g_ = stage([(0, ALL), (1024, ALL), (2048, HALF)], 44, 14, 45)
next(g_)
A(f"s_mul_i32 s55, {sW}, {U_C}")
A(f"s_add_u32 s55, s55, {LU + 28*16}")
A("v_lshl_add_u32 v45, v0, 4, s55")
A(f"v_mov_b32 v2, {LF}")
A("v_mov_b32 v3, s61")
A("ds_write_b32 v2, v3")
A("v_min_u32 v4, 15, v0")
A("v_lshl_add_u32 v4, v4, 7, s54")
A(f"v_add_u32 v5, {KV2D - 512}, v4")
A("v_cmp_lt_u32 vcc, 11, v0")
A("v_cndmask_b32 v4, v4, v5, vcc")
A(f"s_mul_i32 s54, {sX}, 160")
A(f"s_lshl_b32 s55, {sW}, 6")
A(f"s_lshl_b32 s56, {sJ}, 8")
A("s_add_u32 s55, s55, s56")
A("v_add_u32 v8, s55, v0")
A("v_mul_u32_u24 v1, 6554, v8")
A("v_lshrrev_b32 v1, 18, v1")
A("v_mul_u32_u24 v10, 40, v1")
A("v_sub_u32 v8, v8, v10")
A("v_add_u32 v2, 128, v1")
A("v_lshlrev_b32 v3, 3, v8")
A("v_mul_u32_u24 v9, 10240, v1")
A("v_lshl_add_u32 v9, v8, 2, v9")
A("v_add_u32 v5, s54, v9")
A(f"v_add_u32 v6, {1024*1280}, v5")
srd(40, pQ, TBYTES)
A("s_movk_i32 s49, 5120")
A(f"s_mov_b32 s57, {ESTAT}")
A(f"s_mov_b32 s58, {ESTAT + 8192}")
A("v_and_b32 v7, 7, v0")
A("v_lshl_add_u32 v7, v1, 3, v7")
A("v_lshlrev_b32 v7, 3, v7")

next(g_)
A("s_mov_b32 s51, s60")
A(f"s_mul_i32 s54, {sX}, {80*KS}")
A("s_add_u32 s60, s60, s54")
A(f"s_add_u32 s48, s60, {KS}")
A(f"s_lshl_b32 s54, {sX}, 11")
A("s_add_u32 s61, s61, s54")
A("s_add_u32 s61, s61, 512")
A(f"v_mul_u32_u24 v8, {KS//4}, v3")
A("v_lshl_add_u32 v8, v1, 4, v8")
A(f"s_lshl_b32 s54, {sX}, 7")
A(f"s_add_u32 s54, s54, {TOP}")
A("v_mov_b32 v9, s54")
A(f"s_lshl_b32 s55, {sW}, 2")
A(f"s_add_u32 s55, s55, {LF + 16}")
A("v_mov_b32 v47, s55")
A("v_and_b32 v46, 3, v0")
A("v_lshlrev_b32 v46, 3, v46")
A(f"s_cmp_eq_u32 s51, {KVT}")
A(f"s_cselect_b32 s96, {512 - 8*24}, {512 - 8*20}" if False else f"s_cselect_b32 s96, 24, 20")
A("s_cselect_b32 s97, 28, 20")
A("s_lshl_b32 s96, s96, 3")
A("s_lshl_b32 s97, s97, 3")
A("s_sub_u32 s55, s61, 512")
A("s_add_u32 s96, s96, s55")
A("s_add_u32 s97, s97, s55")


stamp(6)
A("s_waitcnt lgkmcnt(0)")
A("s_barrier")

A("L_final:")
XR, SR = (48, 56), (16, 32)
XN, CC = (64, 96), (80, 112)
OCT, CPO, QOF = (1, 2), (3, 3), (5, 6)


def stat_loads(fl):
    A(f"buffer_load_dwordx2 v[12:13], v7, {WS}, s57 offen{fl}")
    A(f"buffer_load_dwordx2 v[14:15], v7, {WS}, s58 offen{fl}")


def ofl(task):
    return ("", " sc1", " nt", " sc0 sc1")[OPT["outB" if task else "outA"]]


def rows(op, reg, task):
    for t in range(8):
        fl = ofl(task) if op == "store" else ""
        A(f"buffer_{op}_dword v{reg+t}, v{QOF[task]}, s[40:43], {'s49' if t >= 4 else '0'} offen offset:{1280*(t&3)}{fl}")


stat_loads("")
rows("load", XR[0], 0)
rows("load", XR[1], 1)
A(f"buffer_load_dword v41, v4, {WS}, 0 offen offset:2560 sc1")
A(f"s_mov_b32 s40, s{pOUT}")
A(f"s_mov_b32 s41, s{pOUT+1}")
A("s_waitcnt vmcnt(17)")
tag_check("L_st", [13, 15], lambda: stat_loads(" sc1"))
for st in (12, 14):
    A(f"v_and_b32 v{st+1}, {sHI}, v{st}")
    A(f"v_rcp_f32 v{st+1}, v{st+1}")
    A(f"v_lshlrev_b32 v{st}, 16, v{st}")
for st in (12, 14):
    A(f"v_mul_f32 v{st}, v{st}, v{st+1}")


def precompute(task):
    for t in range(8):
        if t == 7:
            A("s_waitcnt lgkmcnt(6)")
        A(f"ds_swizzle_b32 v{16+2*t}, v{12+2*task} offset:{(t << 5) | 0x18}")
        A(f"ds_swizzle_b32 v{17+2*t}, v{13+2*task} offset:{(t << 5) | 0x18}")
    A(f"s_waitcnt vmcnt({(9, 2)[task]})")
    for t in range(8):
        cc = CC[task] + 2*t
        A(f"v_lshlrev_b32 v{cc}, 16, v{XR[task]+t}")
        A(f"v_and_b32 v{cc+1}, {sHI}, v{XR[task]+t}")
    A("s_waitcnt lgkmcnt(0)")
    for t in range(8):
        st, xn, cc = 16 + 2*t, XN[task] + 2*t, CC[task] + 2*t
        A(f"v_fma_f32 v{xn}, v{cc}, v{st+1}, -v{st}")
        A(f"v_fma_f32 v{xn+1}, v{cc+1}, v{st+1}, -v{st}")
        A(f"v_add_f32 v{cc}, v{cc}, v{xn}")
        A(f"v_add_f32 v{cc+1}, v{cc+1}, v{xn+1}")


def yflag_poll(lbl, va, so):
    A("s_mov_b32 s59, 0")
    A(f"{lbl}:")
    A(f"buffer_load_dwordx2 v[10:11], v{va}, {WS}, {so} offen sc1")
    A("s_add_u32 s59, s59, 1")
    A("s_waitcnt vmcnt(0)")
    A(f"v_cmp_ne_u32 vcc, {sTAG}, v10")
    A(f"v_cmp_ne_u32 s[54:55], {sTAG}, v11")
    A("s_or_b64 vcc, vcc, s[54:55]")
    A(f"s_cbranch_scc0 {lbl}_ok")
    A(f"s_cmp_lt_u32 s59, {POLL_LIMIT}")
    A(f"s_cbranch_scc1 {lbl}")
    A(f"{lbl}_ok:")


def top_load():
    A(f"buffer_load_dwordx2 v[10:11], v9, {WS}, 0 offen sc1")


def y_loads(task):
    A(f"buffer_load_dwordx4 v[48:51], v8, {WS}, s60 offen offset:{2048*task} sc1")
    A(f"buffer_load_dwordx4 v[52:55], v8, {WS}, s48 offen offset:{2048*task} sc1")


def f1_loads():
    A(f"buffer_load_dword v40, v46, {WS}, s96 offen sc1")
    A(f"buffer_load_dwordx2 v[42:43], v3, {WS}, s61 offen sc1")


def f2_load():
    A(f"buffer_load_dword v40, v46, {WS}, s97 offen sc1")


def combine(task):
    for c in range(2):
        for i in range(4):
            A(f"v_lshlrev_b32 v{56+2*i}, 16, v{48+4*c+i}")
            A(f"v_and_b32 v{57+2*i}, {sHI}, v{48+4*c+i}")
        for pos in range(8):
            t = 2*(pos & 3) + (pos >> 2)
            A(f"v_fmac_f32 v{CC[task]+2*t+c}, v{XN[task]+2*t+c}, v{56+pos}")
    for t in range(8):
        A(f"v_cvt_pk_bf16_f32 v{48+t}, v{CC[task]+2*t}, v{CC[task]+2*t+1}")


def masks(task):
    A("s_lshr_b32 s56, s62, 3")
    A("s_lshr_b32 s57, s63, 3")
    A(f"v_cmp_eq_u32 s[44:45], s56, v{OCT[task]}")
    A(f"v_cmp_eq_u32 s[46:47], s57, v{OCT[task]}")


def out_stores(task):
    A("s_or_b64 s[54:55], s[44:45], s[46:47]")
    A(f"s_cbranch_scc1 L_msk{task}")
    rows("store", 48, task)
    A(f"L_mskd{task}:")


precompute(0)
top_load()
precompute(1)
f1_loads()
stamp(7)
A("s_waitcnt vmcnt(2)")
tag_check("L_tp", [11], top_load)
A("v_readfirstlane_b32 s62, v10")
A("s_lshr_b32 s63, s62, 16")
A("s_and_b32 s62, s62, 0xffff")
masks(0)
for i in range(4):
    A(f"v_mov_b32 v{12+i}, -1")
A(f"s_sub_u32 s56, s51, {KVT}")
A(f"s_lshl_b32 s54, {sJ}, 4")
A(f"s_lshl_b32 s55, {sW}, 2")
A("s_add_u32 s54, s54, s55")
A("v_mov_b32 v10, s54")
A(f"v_mov_b32 v11, {sTAG}")
A(f"s_mov_b32 s98, {KV2D}")
A("s_waitcnt vmcnt(0)")
tag_check("L_h2", [40, 42, 43], f1_loads)
g_ = stage([(2560, ALL)], 44, 44, 45, 2)
next(g_)
y_loads(0)
next(g_)
A("ds_write_b32 v47, v47")
A("v_readlane_b32 s99, v16, 63")
stamp(12)
A(f"s_cmp_lg_u32 s51, {KVT}")
A("s_cbranch_scc1 L_sslow")
A(f"buffer_store_dwordx4 v[12:15], v44, {WS}, s56 offen offset:2048")
A(f"buffer_store_dwordx4 v[12:15], v44, {WS}, s56 offen offset:3072")
f2_load()
A("s_waitcnt vmcnt(0)")
setexec(1)
A(f"buffer_store_dword v11, v10, {WS}, s61 offen offset:1024")
A("L_sback:")
setexec(ALL)
tag_check("L_h3", [40], f2_load)
g_ = stage([(3584, HALF)], 44, 44, 45, 0, "s98", "v_writelane_b32 v28, s99, 0")
next(g_)
combine(0)
next(g_)
A("ds_write_b32 v47, v47 offset:16")
stamp(8)
out_stores(0)
stamp(9)
masks(1)
A("s_add_u32 s57, s61, 1024")
yflag_poll("L_yfs", 3, "s57")
stamp(1)
A("s_barrier")
A("s_mov_b32 s59, 0")
A("L_ys:")
y_loads(1)
A("s_add_u32 s59, s59, 1")
A("s_waitcnt vmcnt(0)")
A("v_max3_u32 v24, v48, v49, v50")
A("v_max3_u32 v25, v51, v52, v53")
A("v_max3_u32 v24, v24, v54, v55")
A("v_max_u32 v24, v24, v25")
A("v_cmp_eq_u32 vcc, -1, v24")
A("s_and_b64 exec, exec, vcc")
A("s_cbranch_execz L_ysok")
A("s_cmp_lt_u32 s59, 4096")
A("s_cbranch_scc1 L_ys")
setexec(ALL)
A("s_add_u32 s61, s61, 512")
yflag_poll("L_yf1", 3, "s61")
y_loads(1)
A("s_waitcnt vmcnt(0)")
A("L_ysok:")
setexec(ALL)
stamp(10)
combine(1)
out_stores(1)
stamp(11)
A("s_branch L_fin")
A("L_sslow:")
A(f"buffer_store_dwordx4 v[12:15], v44, {WS}, s56 offen offset:2048 sc1")
A(f"buffer_store_dwordx4 v[12:15], v44, {WS}, s56 offen offset:3072 sc1")
f2_load()
A("s_waitcnt vmcnt(0)")
setexec(1)
A(f"buffer_store_dword v11, v10, {WS}, s61 offen offset:1024 sc1")
A("s_branch L_sback")
for task in range(2):
    A(f"L_msk{task}:")
    A("s_and_b32 s56, s62, 7")
    A("s_and_b32 s57, s63, 7")
    for t in range(8):
        A(f"s_cmp_eq_u32 s56, {t}")
        A("s_cselect_b64 s[54:55], s[44:45], 0")
        A(f"s_cmp_eq_u32 s57, {t}")
        A("s_cselect_b64 vcc, s[46:47], 0")
        A("s_nor_b64 exec, s[54:55], vcc")
        A(f"s_cbranch_execz L_ms{task}_{t}")
        A(f"buffer_store_dword v{48+t}, v{QOF[task]}, s[40:43], {'s49' if t >= 4 else '0'} offen offset:{1280*(t&3)}{ofl(task)}")
        A(f"L_ms{task}_{t}:")
    setexec(ALL)
    A(f"s_branch L_mskd{task}")

A("L_special:")
A("v_min_u32 v1, 39, v0")
A(f"s_cmp_lg_u32 {sW}, 0")
A("s_cbranch_scc1 L_sp1")
A(f"s_lshl_b32 s54, {sX}, 7")
A(f"s_add_u32 s54, s54, {TOP}")
A("v_mov_b32 v9, s54")
top_load()
A("s_waitcnt vmcnt(0)")
tag_check("L_sc", [11], top_load)
A("v_readfirstlane_b32 s62, v10")
A(f"s_cmp_eq_u32 {sJ}, 30")
A("s_cselect_b32 s54, 0, 16")
A("s_lshr_b32 s62, s62, s54")
A("s_and_b32 s62, s62, 0x7ff")
srd(40, pQ, TBYTES)
A("s_mul_i32 s54, s62, 1280")
A(f"s_mul_i32 s55, {sX}, 160")
A("s_add_u32 s54, s54, s55")
A("v_lshl_add_u32 v2, v1, 2, s54")
A("buffer_load_dword v4, v2, s[40:43], 0 offen")
A("s_lshl_b32 s54, s62, 3")
A(f"s_add_u32 s54, s54, {ESTAT}")
A("v_mov_b32 v3, s54")


def sstat():
    A(f"buffer_load_dwordx2 v[8:9], v3, {WS}, 0 offen sc1")


sstat()
A("s_waitcnt vmcnt(0)")
tag_check("L_ss", [9], sstat)
A(f"v_and_b32 v9, {sHI}, v8")
A("v_rcp_f32 v9, v9")
A("v_lshlrev_b32 v8, 16, v8")
A("v_lshlrev_b32 v50, 16, v4")
A(f"v_and_b32 v51, {sHI}, v4")
A("v_sub_f32 v48, v50, v8")
A("v_sub_f32 v49, v51, v8")
A("v_mul_f32 v48, v48, v9")
A("v_mul_f32 v49, v49, v9")
A("v_add_f32 v50, v50, v48")
A("v_add_f32 v51, v51, v49")
A(f"s_lshl_b32 s55, {sX}, 11")
A("s_add_u32 s61, s61, s55")
A("s_add_u32 s61, s61, 512")
A(f"s_mul_i32 s54, {sX}, {80*KS}")
A("s_add_u32 s60, s60, s54")
A("s_lshr_b32 s54, s62, 3")
A("s_lshl_b32 s54, s54, 4")
A("s_add_u32 s60, s60, s54")
A("s_and_b32 s54, s62, 1")
A("s_lshl_b32 s54, s54, 3")
A("s_add_u32 s60, s60, s54")
A("s_and_b32 s54, s62, 4")
A("s_add_u32 s60, s60, s54")
A(f"s_add_u32 s48, s60, {KS}")
A("s_bitcmp1_b32 s62, 1")
A("s_cselect_b32 s63, 0, 16")
A("v_lshlrev_b32 v3, 3, v1")
A(f"v_mul_u32_u24 v7, {2*KS}, v1")
A("v_lshrrev_b32 v6, 3, v1")
A("v_bfe_u32 v5, v1, 1, 2")
A("v_mad_u32_u24 v6, v5, 5, v6")
A("v_and_b32 v5, 1, v1")
A("v_mad_u32_u24 v6, v5, 20, v6")
A("v_lshlrev_b32 v6, 3, v6")
srd(40, pOUT, TBYTES)
yflag_poll("L_s0", 3, "s61")


def sy_loads():
    A(f"buffer_load_dword v32, v7, {WS}, s60 offen sc1")
    A(f"buffer_load_dword v33, v7, {WS}, s48 offen sc1")


A("s_barrier")
A("s_add_u32 s57, s61, 1024")
yflag_poll("L_sS", 3, "s57")
sy_loads()
A("s_barrier")
stamp(8)
for i in range(7):
    A(f"ds_read_b64 {vr(16+2*i,2)}, v6 offset:{512*i}")
A("s_waitcnt lgkmcnt(0)")
for i in range(1, 7):
    A(f"v_add_f32 v16, v16, v{16+2*i}")
    A(f"v_add_f32 v17, v17, v{17+2*i}")
A("v_add_f32 v50, v50, v16")
A("v_add_f32 v51, v51, v17")
A("s_mov_b32 s59, 0")
A("L_sy:")
A("s_waitcnt vmcnt(0)")
A("v_max_u32 v34, v32, v33")
A("v_cmp_eq_u32 vcc, -1, v34")
A("s_cbranch_vccz L_syok")
sy_loads()
A("s_add_u32 s59, s59, 1")
A("s_cmp_lt_u32 s59, 4096")
A("s_cbranch_scc1 L_sy")
A("s_add_u32 s61, s61, 512")
yflag_poll("L_s1", 3, "s61")
sy_loads()
A("s_waitcnt vmcnt(0)")
A("L_syok:")
A("v_lshlrev_b32 v32, s63, v32")
A("v_lshlrev_b32 v33, s63, v33")
A(f"v_and_b32 v32, {sHI}, v32")
A(f"v_and_b32 v33, {sHI}, v33")
A("v_fmac_f32 v50, v48, v32")
A("v_fmac_f32 v51, v49, v33")
A("v_cvt_pk_bf16_f32 v50, v50, v51")
A("buffer_store_dword v50, v2, s[40:43], 0 offen")
stamp(9)
A("s_branch L_fin")
A("L_sp1:")
A(f"s_sub_u32 s54, {sJ}, 30")
A("s_mul_i32 s54, s54, 640")
A(f"s_mul_i32 s55, {sX}, 1280")
A("s_add_u32 s54, s54, s55")
A(f"s_mul_i32 s55, {sW}, 10240")
A("s_add_u32 s54, s54, s55")
A(f"s_add_u32 s54, s54, {PART - 10240}")
A("v_lshl_add_u32 v5, v1, 4, s54")
A(f"s_cmp_lt_u32 {sW}, 6")
A("s_cselect_b32 s57, 7, 6")
A("s_cselect_b32 s58, 1.0, 0")
A("v_min_u32 v4, s57, v0")
A("v_mul_u32_u24 v4, 71680, v4")
A("v_add_u32 v4, s54, v4")
A("s_mul_i32 s57, s57, 71680")


def part_probe():
    A("s_sleep 2")
    A(f"buffer_load_dwordx2 v[16:17], v4, {WS}, 0 offen sc1")


def part_loads():
    A("s_mov_b32 s56, 0")
    for i in range(8):
        A(f"buffer_load_dwordx4 {vr(16+4*i,4)}, v5, {WS}, {'s57' if i == 7 else 's56'} offen sc1")
        if i < 6:
            A("s_add_u32 s56, s56, 71680")


A("s_barrier")
if OPT["probe"]:
    part_probe()
    A("s_waitcnt vmcnt(0)")
    tag_check("L_pq", [17], part_probe)
stamp(7)
part_loads()
A("s_waitcnt vmcnt(0)")
tag_check("L_pp", [17 + 2*i for i in range(16)], part_loads)
stamp(8)
for c in range(2):
    A(f"v_mul_f32 v{44+2*c}, s58, v{44+2*c}")
for i in (0, 2, 4, 6):
    for c in range(2):
        A(f"v_add_f32 v{16+4*i+2*c}, v{16+4*i+2*c}, v{20+4*i+2*c}")
for c in range(2):
    A(f"v_add_f32 v{16+2*c}, v{16+2*c}, v{24+2*c}")
    A(f"v_add_f32 v{32+2*c}, v{32+2*c}, v{40+2*c}")
A("v_add_f32 v16, v16, v32")
A("v_add_f32 v17, v18, v34")
A(f"s_lshl_b32 s54, {sW}, 9")
A("s_sub_u32 s54, s54, 512")
A("v_lshl_add_u32 v6, v0, 3, s54")
A("ds_write_b64 v6, v[16:17]")
A("s_waitcnt lgkmcnt(0)")
A("s_barrier")
A("s_branch L_fin")

A("L_lntail:")
after_kernarg()
stamp(1)
A("v_lshrrev_b32 v7, 2, v5")
A("v_lshl_add_u32 v7, v7, 4, v5")
A("v_lshlrev_b32 v7, 2, v7")
A("s_lshl_b32 s55, s99, 6")
A(f"s_add_u32 s55, s55, {ESTAT}")
A("v_lshl_add_u32 v122, v1, 3, s55")
A("s_lshl_b32 s56, s99, 3")
A("s_sub_u32 s56, 2047, s56")
A("v_sub_u32 v9, s56, v1")
for r, m in ((40, 0x22222222), (42, 0x44444444), (44, 0x88888888), (46, 0xff00ff00)):
    A(f"s_mov_b32 s{r}, {m:#x}")
    A(f"s_mov_b32 s{r+1}, {m:#x}")
A("s_lshl_b32 s55, s99, 4")
A(f"s_add_u32 s55, s55, {CAND}")
A("v_mov_b32 v8, s55")
for s in range(10):
    A(f"s_waitcnt vmcnt({19-s})")
    c = "0" if s == 0 else "v[100:103]"
    A(f"v_mfma_f32_16x16x32_bf16 v[100:103], {vr(16+4*s,4)}, {vr(16+4*s,4)}, {c}")
stamp(2)
for s in range(10):
    A(f"s_waitcnt vmcnt({9-s})")
    c = "0" if s == 0 else "v[104:107]"
    A(f"v_mfma_f32_16x16x32_bf16 v[104:107], {vr(56+4*s,4)}, {vr(16+4*s,4)}, {c}")
    c = "0" if s == 0 else "v[108:111]"
    A(f"v_mfma_f32_16x16x32_bf16 v[108:111], {vr(56+4*s,4)}, v[96:99], {c}")
    if s == 3:
        A("v_cndmask_b32 v100, v100, v101, s[40:41]")
        A("v_cndmask_b32 v100, v100, v102, s[42:43]")
        A("v_cndmask_b32 v100, v100, v103, s[44:45]")
        A("ds_bpermute_b32 v100, v7, v100")
stamp(9)
make_tag()
ROR8 = "row_ror:8 row_mask:0xf bank_mask:0xf"
A(f"v_add_f32_dpp v100, v100, v100 {ROR8}")
A("v_mul_f32 v100, 0x3acccccd, v100")
A(f"v_mov_b32 v121, {sTAG}")
A("v_mov_b32 v14, 0")
A(f"v_add_f32_dpp v104, v104, v104 {ROR8}")
A("v_cndmask_b32 v105, v105, v106, s[46:47]")
A("v_mul_f32 v104, 0x3acccccd, v104")
A("v_add_f32 v109, v109, v110")
A("v_fma_f32 v100, -v104, v104, v100")
A(f"v_add_f32_dpp v105, v105, v105 {ROR8}")
A("v_max_f32 v100, 0, v100")
A("v_cvt_pk_bf16_f32 v104, v104, v100")
A(f"v_and_b32 v100, {sHI}, v104")
A("v_add_f32 v100, 0x3727c5ac, v100")
A("v_cvt_pk_bf16_f32 v100, v100, v100")
A(f"v_and_b32 v100, {sHI}, v100")
A("v_sqrt_f32 v100, v100")
A("v_lshlrev_b32 v106, 16, v104")
A("v_cvt_pk_bf16_f32 v120, v106, v100")
A(f"v_and_b32 v100, {sHI}, v120")
A("v_rcp_f32 v100, v100")
A("v_fma_f32 v105, -v106, v109, v105")
A("v_mul_f32 v105, v105, v100")
A("v_cvt_pk_bf16_f32 v105, v105, v105")
A("v_ashrrev_i32 v106, 31, v105")
A("v_or_b32 v106, 0x80000000, v106")
A("v_xor_b32 v105, v105, v106")
A(f"v_and_or_b32 v12, v105, {sHI}, v9")
merge_dpp(12, (1, 2, 4))
A(f"v_mov_b32 v13, {sTAG}")
A(f"v_mov_b32 v15, {sTAG}")
setexec(1)
A(f"buffer_store_dwordx4 v[12:15], v8, {WS}, 0 offen sc1")
setexec(0xff)
A(f"buffer_store_dwordx2 v[120:121], v122, {WS}, 0 offen sc1")
setexec(ALL)
stamp(8)
A("s_cmp_lt_u32 s63, 8")
A("s_cbranch_scc1 L_moe0")
A(f"s_cmp_ge_u32 {sJ}, 20")
A("s_cbranch_scc1 L_h0")
A("s_lshl_b32 s54, s53, 14")
A(f"s_mul_i32 s55, s53, {4*KS}")
A(f"s_add_u32 s55, s55, {KVT}")
A("v_and_b32 v2, 31, v0")
A("v_min_u32 v2, 19, v2")
A("v_lshl_add_u32 v2, v2, 7, s55")
A("v_lshrrev_b32 v3, 5, v0")
A(f"v_mul_u32_u24 v3, {KS}, v3")
A("v_add_u32 v2, v2, v3")
A(f"s_lshl_b32 s55, {sX}, 11")
A(f"s_add_u32 s55, s55, {FLG}")
A("v_and_b32 v3, 15, v0")
A("v_lshl_add_u32 v3, v3, 7, s55")
A(f"s_movk_i32 s55, {2*KS}")
if not OPT["nopre"]:
    A(f"buffer_load_dword v127, v2, {WS}, 0 offen sc1")
    A(f"buffer_load_dword v127, v2, {WS}, s55 offen sc1")
A(f"buffer_load_dword v127, v3, {WS}, 0 offen sc1")
srd(48, pH, TBYTES)
A("v_lshlrev_b32 v2, 4, v0")
for c in range(0 if OPT["noh"] else 4):
    A(f"s_mov_b32 m0, {LA + c*A_C + 3*A_CP + 48}")
    for i in range(4):
        A(f"buffer_load_dwordx4 v2, s[48:51], s54 offen offset:{1024*i} lds")
    A("s_add_u32 s54, s54, 4096")
stamp(11)
A("L_b1:")
A("s_lshl_b32 s59, s2, 7")
A(f"s_add_u32 s59, s59, {ARR}")
A(f"v_mov_b32 v10, {sTAG}")
A(f"v_mov_b32 v11, {sXCC}")
A("v_mov_b32 v12, s59")
A("s_barrier")
setexec(1)
A(f"buffer_store_dwordx2 v[10:11], v12, {WS}, 0 offen sc1")
setexec(ALL)
A(f"s_cmp_lt_u32 {sJ}, 20")
A("s_cbranch_scc1 L_kvdone")
A(f"s_lshl_b32 s55, {sX}, 11")
A("s_lshl_b32 s57, s58, 3")
A("s_add_u32 s57, s57, s55")
A(f"s_add_u32 s57, s57, {FLG}")
A("v_mov_b32 v12, s57")
A("s_barrier")
A("s_barrier")
setexec(1)
A(f"buffer_store_dwordx2 v[10:11], v12, {WS}, 0 offen offset:32")
setexec(ALL)
A("s_branch L_kvdone")
A("L_h0:")
A(f"s_lshl_b32 s55, {sX}, 11")
A("s_lshl_b32 s57, s58, 3")
A("s_add_u32 s57, s57, s55")
A(f"s_add_u32 s57, s57, {FLG}")
A(f"v_mov_b32 v10, {sTAG}")
A(f"v_mov_b32 v11, {sXCC}")
A("v_mov_b32 v12, s57")
setexec(1)
A(f"buffer_store_dwordx2 v[10:11], v12, {WS}, 0 offen")
setexec(ALL)
A("s_branch L_b1")

A("L_slowsync:")
A(f"v_min_u32 v4, {NP1-1}, v0")
A("v_add_u32 v5, 8, v4")
A("v_cmp_gt_u32 vcc, 20, v4")
A("v_cndmask_b32 v4, v5, v4, vcc")
A("v_lshlrev_b32 v4, 10, v4")
A(f"s_lshl_b32 s57, {sX}, 7")
A(f"s_add_u32 s57, s57, {ARR}")
A(f"buffer_load_dwordx2 v[2:3], v4, {WS}, s57 offen sc1")
A("s_waitcnt vmcnt(0)")
A(f"v_cmp_eq_u32 vcc, {sTAG}, v2")
A(f"v_cmp_ne_u32 s[56:57], {sXCC}, v3")
A("s_and_b64 vcc, vcc, s[56:57]")
A("s_cbranch_scc1 L_fb")
A(f"s_cmp_lt_u32 s59, {POLL_LIMIT}")
A("s_cbranch_scc1 L_poll")
A("s_branch L_synced")
A("L_fb:")
A(f"s_mov_b32 s57, {FLB}")
A(f"s_mov_b32 s60, {YT2}")
A(f"s_mov_b32 s61, {FLB}")
A(f"s_cmp_lg_u32 {sW}, 0")
A("s_cbranch_scc1 L_nowb")
A("buffer_wbl2 sc1")
A("s_waitcnt vmcnt(0)")
setexec(1)
A(f"buffer_store_dwordx2 v[10:11], v12, {WS}, s57 offen sc1")
setexec(ALL)
A("L_nowb:")
A(f"s_cmp_ge_u32 {sJ}, 20")
A("s_cbranch_scc1 L_synced")
A("s_mov_b32 s59, 0")
A("L_pollb:")
A(f"buffer_load_dwordx2 v[2:3], v1, {WS}, s57 offen sc1")
A("s_add_u32 s59, s59, 1")
A("s_waitcnt vmcnt(0)")
A(f"v_cmp_eq_u32 vcc, {sTAG}, v2")
A("s_cmp_eq_u64 vcc, -1")
A("s_cbranch_scc1 L_bok")
A("s_sleep 2")
A(f"s_cmp_lt_u32 s59, {POLL_LIMIT}")
A("s_cbranch_scc1 L_pollb")
A("L_bok:")
A("buffer_inv sc1")
A("s_waitcnt vmcnt(0)")
A("s_branch L_synced")

A("L_hi4:")
A(f"s_cmp_lt_u32 {sJ}, 20")
A("s_cbranch_scc1 L_mfma")
A(f"s_cmp_ge_u32 {sJ}, 30")
A("s_cbranch_scc1 L_special")
A(f"s_cmp_lg_u32 s2, {28*8}")
A("s_cbranch_scc1 L_fin")
A(f"s_cmp_lg_u32 {sW}, 7")
A("s_cbranch_scc1 L_fin")
A("v_lshlrev_b32 v1, 7, v0")
for i in range(4):
    A(f"s_mov_b32 s{54+i}, {ARR + 8192*i}")


def arr_loads():
    A("s_sleep 8")
    for i in range(4):
        A(f"buffer_load_dword v{6+i}, v1, {WS}, s{54+i} offen sc1")


arr_loads()
A("s_waitcnt vmcnt(0)")
tag_check("L_ep", [6, 7, 8, 9], arr_loads)
A(f"v_mov_b32 v10, {sTAG}")
A(f"v_mov_b32 v11, {EPOCH}")
setexec(1)
A(f"buffer_store_dword v10, v11, {WS}, 0 offen sc1")
setexec(ALL)
A("s_branch L_fin")

A("L_mfma:")
A(f"s_sub_u32 s53, {sW}, 4")
A(f"s_mul_i32 s54, s53, {A_C}")
A("v_lshl_add_u32 v8, v0, 4, s54")
for i in range(4):
    A(f"ds_read_b128 {vr(16+16*i,4)}, v8 offset:{3*A_CP + 32 + 1024*i}")
    A(f"ds_read_b128 {vr(20+16*i,4)}, v8 offset:{3*A_CP + 48 + 1024*i}")
for i in range(4):
    b = 16 + 16*i
    A(f"s_waitcnt lgkmcnt({6 + i})")
    A(f"ds_write_b128 v8, {vr(b+2,4)} offset:{A_CP + 48 + 1024*i}")
    for q in range(6):
        A(f"v_mov_b32 v{b+8+q}, v{b+1+q}")
    A(f"ds_write_b128 v8, {vr(b+8,4)} offset:{48 + 1024*i}")
    A(f"ds_write_b128 v8, {vr(b+10,4)} offset:{2*A_CP + 48 + 1024*i}")
A("v_and_b32 v6, 3, v0")
A(f"v_mul_u32_u24 v1, {A_CP}, v6")
A("v_bfe_u32 v6, v0, 2, 2")
A("v_lshrrev_b32 v7, 4, v0")
A("v_add_u32 v6, v6, v7")
A("v_lshl_add_u32 v1, v6, 4, v1")
A("v_add_u32 v1, s54, v1")
A("v_and_b32 v6, 1, v0")
A(f"v_mul_u32_u24 v2, {U_P}, v6")
A("v_bfe_u32 v6, v0, 1, 3")
A("v_lshlrev_b32 v6, 2, v6")
A("v_sub_u32 v6, v6, v7")
A("v_lshl_add_u32 v2, v6, 4, v2")
A(f"s_mul_i32 s54, s53, {U_C}")
A(f"s_add_u32 s54, s54, {LU + 48}")
A("v_add_u32 v2, s54, v2")
A("v_bfe_u32 v6, v0, 1, 3")
A("v_lshl_add_u32 v6, v6, 2, v7")
A("v_and_b32 v5, 1, v0")
A("v_lshlrev_b32 v4, 4, v6")
A("v_lshl_add_u32 v4, v5, 3, v4")
A(f"s_mul_i32 s54, s62, {KS}")
A("v_add_u32 v4, s54, v4")
A(f"s_mul_i32 s54, {sX}, {2048 - 320}")
A("s_lshl_b32 s55, s62, 2")
A("s_add_u32 s54, s54, s55")
A("v_mov_b32 v5, s54")
A(f"v_mov_b32 v6, {sTAG}")
A(f"v_mov_b32 v7, {LF}")
A("s_bitcmp1_b32 s62, 0")
A("s_cselect_b32 s54, 16, 0")
A("s_lshr_b32 s63, s63, s54")
A("s_and_b32 s63, s63, 0xffff")
A("v_lshrrev_b32 v12, 4, v0")
A("v_and_b32 v13, 15, v0")
A("v_lshl_add_u32 v12, v12, 2, v13")
A("v_mov_b32 v13, s63")
for i in range(4):
    A(f"v_cmp_eq_u32 vcc, {15-i}, v12")
    A(f"v_cndmask_b32 v{8+i}, 0, v13, vcc")
A("s_lshl_b32 s54, s53, 2")
A(f"s_add_u32 s54, s54, {LF + 16}")
A("v_mov_b32 v12, s54")
A("v_mov_b32 v13, 0")
A("ds_write2_b32 v12, v13, v13 offset0:0 offset1:4")
A(f"s_mov_b32 s60, {KVT}")
A(f"s_mov_b32 s61, {FLG}")
A(f"s_mov_b32 s56, {YT2}")
A(f"s_mov_b32 s57, {FLB}")
A("s_waitcnt lgkmcnt(0)")
n = 0
for rho in range(OPT["resid"]):
    for a in range(4):
        A(f"ds_read_b128 a[{(rho*4+a)*4}:{(rho*4+a)*4+3}], v1 offset:{64*rho + 512*a}")
        n += 1
        if n % 8 == 0:
            A("s_waitcnt lgkmcnt(7)")
if OPT["malign"]:
    A("s_branch L_mbody")
    SLOW_AT = len(A.lines)
    A(".p2align 12")
    A("L_mbody:")
stamp(5)
if OPT["prio"]:
    A(f"s_setprio {OPT['prio']}")
A("s_waitcnt lgkmcnt(0)")
A("s_barrier")
if PROF:
    A("s_memtime s[90:91]")
stamp(6, True)


slow_sites = []


def ystore(txt_fast, txt_slow):
    k = len(slow_sites)
    slow_sites.append(txt_slow)
    return f"s_cbranch_scc1 L_ys{k}\n{txt_fast}\nL_yr{k}:"


def mfma_schedule():
    passes = [((0, 1, 2, 3), range(0, 4)), ((4, 5, 6, 7), range(0, 5)), ((5, 6, 7), range(5, 7)), ((7,), range(7, 8))]
    seq = []
    for pi, (tiles, bs) in enumerate(passes):
        for rho in range(8):
            for b in bs:
                for n in tiles:
                    if n >= b:
                        a = n - b
                        ak = ("A", a, rho) if a <= 3 else ("A", a, rho, pi)
                        seq.append((pi, n, ak, ("B", b, rho, pi)))
                        if a == 0 and rho == 0:
                            seq.append((pi, n, ("D",), ("B", b, rho, pi)))
    N = len(seq)
    end = [max(i for i, e in enumerate(seq) if e[0] == pi) for pi in range(4)]
    reg, pos = {}, {}
    side = {}

    def put(i, key, fn):
        while len(side.get(i, [])) >= 1 and i < N - 1:
            i += 1
        side.setdefault(i, []).append((key, fn))
        return i

    def acc(n, t):
        return 96 + 4*n + t

    def pack_store(n, i):
        i = put(i, None, lambda n=n: f"v_cvt_pk_bf16_f32 v{acc(n,0)}, v{acc(n,0)}, v{acc(n,1)}")
        i = put(i, None, lambda n=n: f"v_cvt_pk_bf16_f32 v{acc(n,1)}, v{acc(n,2)}, v{acc(n,3)}")
        return put(i, None, lambda n=n: ystore(
            f"buffer_store_dwordx2 {vr(acc(n,0),2)}, v4, {WS}, s60 offen offset:{512*n}" + (" sc1" if OPT["ya"] and n < 4 else ""),
            f"buffer_store_dwordx2 {vr(acc(n,0),2)}, v4, {WS}, s56 offen offset:{512*n} sc1"))

    def flag(pi, i):
        return put(i, None, lambda pi=pi: "s_waitcnt vmcnt(0)\ns_mov_b64 exec, 1\n" + ystore(
            f"buffer_store_dword v6, v5, {WS}, s61 offen offset:{512*(pi+1)}",
            f"buffer_store_dword v6, v5, {WS}, s57 offen offset:{512*(pi+1)} sc1") + "\ns_mov_b64 exec, -1" + ("\ns_memrealtime s[82:83]" if PROF and pi == 0 else ""))

    put(24, ("M",), lambda: f"v_readfirstlane_b32 s54, v15\ns_cmp_lg_u32 s54, {FLG}")
    i = end[0] + 5
    for n in passes[0][0]:
        i = pack_store(n, i)
    flag(0, i + OPT["ackgap"])

    FENCE = end[1] - 9
    put(FENCE, ("K", 0, 0, 0), lambda: "v_cmp_eq_u32 vcc, 0, v14\ns_cbranch_vccnz L_s2wait\nL_s2go:")
    FENCE2 = end[2] - 9
    put(FENCE2, ("K", 1, 0, 0), lambda: "v_cmp_eq_u32 vcc, 0, v14\ns_cbranch_vccnz L_s3wait\nL_s3go:")
    pack_store(4, FENCE2 + 1)
    pack_store(5, end[2] + 3)
    first, last = {}, {}
    for i, (_, _, ak, bk) in enumerate(seq):
        ks = [k for k in (bk, ak) if len(k) == 4 or (len(k) == 3 and k[2] >= OPT["resid"])]
        ks += [k for k, _ in side.get(i, []) if k and k[0] == "K"]
        for k in ks:
            first.setdefault(k, i)
            last[k] = i
    loads = sorted(first, key=lambda k: (first[k], k[0] != "B"))
    free = [16 + 4*s for s in range(20)]
    issued = []
    st = dict(done=0, li=0)
    LOOK, SETTLE = OPT["look"], OPT["settle"]
    started = set()

    def rname(k):
        if len(k) == 1:
            return "v[8:11]"
        if len(k) == 3:
            return f"a[{(k[2]*4 + k[1])*4}:{(k[2]*4 + k[1])*4 + 3}]"
        return vr(reg[k], 4)

    def issue_loads(i, maxn):
        cnt = 0
        while st["li"] < len(loads) and cnt < maxn:
            k = loads[st["li"]]
            if first[k] > i + LOOK or len(issued) - st["done"] >= 14 or not free:
                break
            if k[0] == "B" and k[3] == 2 and i < FENCE:
                break
            if k[0] == "B" and k[3] == 3 and i < FENCE2:
                break
            if k[0] == "K" and first[k] > i + 8:
                break
            if len(k) == 4:
                reg[k] = free.pop(0)
            if k[0] == "A":
                A(f"ds_read_b128 {rname(k)}, v1 offset:{64*k[2] + 512*k[1]}")
            elif k[0] == "B":
                A(f"ds_read_b128 {rname(k)}, v2 offset:{512*k[1] + 64*(7-k[2])}")
            else:
                A(f"ds_read_b32 v14, v12 offset:{16*k[1]}")
            pos[k] = len(issued)
            issued.append((k, i))
            st["li"] += 1
            cnt += 1

    def wait_for(keys, i):
        needp = max([pos[k] for k in keys if k in pos] + [-1]) + 1
        for k in keys:
            assert k in pos or k not in first, (k, i)
        if needp > st["done"]:
            tgt = needp
            while tgt < len(issued) and issued[tgt][1] <= i - SETTLE:
                tgt += 1
            A(f"s_waitcnt lgkmcnt({len(issued) - tgt})")
            st["done"] = tgt

    issue_loads(-1, 10)
    A("ds_read_b32 v15, v7")
    pos[("M",)] = len(issued)
    issued.append((None, -1))
    for i, (pi, n, ak, bk) in enumerate(seq):
        wait_for([ak, bk] + [k for k, _ in side.get(i, []) if k], i)
        a_ = vr(96 + 4*n, 4)
        c = a_ if n in started else "0"
        started.add(n)
        A(f"v_mfma_f32_16x16x32_bf16 {a_}, {rname(ak)}, {rname(bk)}, {c}")
        for k, fn in side.get(i, []):
            t_ = fn()
            if not (OPT["noside"] and t_.startswith("v_") and "readfirst" not in t_):
                A(t_)
        for k in list(reg):
            if last[k] == i:
                free.append(reg[k])
        behind = st["li"] < len(loads) and first[loads[st["li"]]] <= i + 8
        issue_loads(i, OPT["maxn"] + (1 if behind else 0))
    side.clear()
    i = N - 1
    for n in (6, 7):
        pack_store(n, i)
    put(i, None, lambda: "s_barrier")
    flag(1, i)
    if PROF:
        A("s_memtime s[92:93]")
    stamp(8)
    for k, fn in side[N-1]:
        A(fn())


mfma_schedule()
stamp(7)
A("s_branch L_fin")
_sl = []
for q_ in (2, 3):
    _sl += [f"L_s{q_}wait:", "s_mov_b32 s59, 0", f"L_s{q_}w:", f"ds_read_b32 v14, v12 offset:{16*(q_-2)}",
            "s_cselect_b32 s58, 1, 0", "s_add_u32 s59, s59, 1", f"s_cmp_ge_u32 s59, {16*POLL_LIMIT}",
            "s_cselect_b32 s54, 1, 0", "s_cmp_lg_u32 s58, 0", "s_waitcnt lgkmcnt(0)", "v_or_b32 v14, s54, v14",
            "v_cmp_eq_u32 vcc, 0, v14", f"s_cbranch_vccnz L_s{q_}w", f"s_branch L_s{q_}go"]
for k, t in enumerate(slow_sites):
    _sl += [f"L_ys{k}:", t, f"s_branch L_yr{k}"]
if OPT["malign"]:
    A.lines[SLOW_AT:SLOW_AT] = _sl
else:
    A.lines += _sl

A("L_nonp1:")
A("v_lshrrev_b32 v1, 2, v0")
A("v_mul_u32_u24 v1, 3456, v1")
A("v_lshrrev_b32 v2, 4, v0")
A("v_and_b32 v2, 2, v2")
A("v_and_b32 v3, 3, v0")
A("v_xor_b32 v2, v2, v3")
A("v_lshl_add_u32 v100, v2, 4, v1")
moe_decode()
A("s_add_u32 s53, s63, s56")
A("s_cmp_ge_u32 s63, s54")
A("s_cselect_b32 s58, 100, -1")
A(f"s_add_u32 s58, s58, {sW}")
A(f"s_mul_i32 s55, s58, {160*3456}")
A("s_lshl_b32 s56, s53, 6")
A("s_add_u32 s55, s55, s56")
A("s_mul_i32 s54, s58, 10240")
A("s_bitcmp1_b32 s53, 0")
A("s_cselect_b32 s96, 5, 0")
A(f"s_mul_i32 s62, s96, {16*3456}")
A("s_add_u32 s55, s55, s62")
A("s_lshl_b32 s96, s96, 10")
A("s_add_u32 s54, s54, s96")
A("s_lshl_b32 s62, s62, 1")
A("s_lshl_b32 s96, s96, 1")
after_kernarg()
srd(40, pWG, WBYTES)
srd(44, pWU, WBYTES)
srd(48, pWD, WBYTES)
if OPT["bq"]:
    A("s_barrier")
wl = []
for i in range(10):
    if i == 5:
        wl.append(["s_mul_i32 s97, s53, 40960", "s_lshl_b32 s98, s58, 10", "s_cmp_lg_u32 s58, 0", "s_cbranch_scc1 L_nod11",
                   f"s_mov_b32 m0, {LWD + 40960}", "buffer_load_dwordx4 v111, s[48:51], s97 offen lds", "L_nod11:",
                   f"s_add_u32 m0, s98, {LWD}", "buffer_load_dwordx4 v101, s[48:51], s97 offen lds"])
        for k in range(1, 10):
            wl.append([f"s_add_u32 m0, s98, {LWD + 4096*k}", f"buffer_load_dwordx4 v{101+k}, s[48:51], s97 offen lds"])
    pre = ["s_sub_u32 s55, s55, s62", "s_sub_u32 s54, s54, s96"] if i == 5 else []
    wl.append(pre + [f"s_add_u32 m0, s54, {LWG + 1024*i}", "buffer_load_dwordx4 v100, s[40:43], s55 offen lds"])
    wl.append([f"s_add_u32 m0, s54, {LWU + 1024*i}", "buffer_load_dwordx4 v100, s[44:47], s55 offen lds",
               f"s_add_u32 s55, s55, {16*3456}"])
A("s_cmp_ge_u32 s58, 4")
A("s_cbranch_scc1 L_noe")
for g in wl[:OPT["early"]]:
    for t in g:
        A(t)
A("L_noe:")
A("v_subrev_u32 v9, 64, v9")
for k in range(11):
    A(f"v_add_u32 v1, {256*k}, v9")
    A("v_mul_u32_u24 v2, 1599, v1")
    A("v_lshrrev_b32 v2, 17, v2")
    A("v_mul_u32_u24 v3, 82, v2")
    A("v_sub_u32 v1, v1, v3")
    A("v_min_u32 v1, 79, v1")
    A("v_mul_u32_u24 v2, 1280, v2")
    A(f"v_lshl_add_u32 v{101+k}, v1, 4, v2")
make_tag()
A("s_cmp_lt_u32 s58, 100")
A("s_cbranch_scc1 L_moe")
A("s_barrier")
A("s_branch L_fin")
A("L_moe0:")
moe_decode()
A("s_add_u32 s53, s63, s56")
A("s_mov_b32 s58, -1")
A("s_cmp_lt_u32 s63, s54")
A("s_cbranch_scc1 L_moe")
A("s_barrier")
A(f"s_cmp_lg_u32 {sW}, 0")
A("s_cbranch_scc1 L_fin")
arr_store()
A("s_branch L_fin")

A("L_moe:")
A("s_mov_b32 s57, 0x3f803f80")
for i in range(4):
    A(f"v_mov_b32 v{16+i}, s57")
A(f"s_mov_b32 s57, {LX + 2*X_P}")
A("v_lshl_add_u32 v2, v0, 4, s57")
A("ds_write_b128 v2, v[16:19]")
A("ds_write_b128 v2, v[16:19] offset:256")
A("v_bfe_u32 v1, v0, 3, 1")
A("v_lshrrev_b32 v2, 4, v0")
A("v_bfe_u32 v10, v0, 2, 2")
A("v_and_b32 v11, 3, v0")
A("v_lshl_add_u32 v14, v2, 3, v10")
A(f"v_mul_u32_u24 v12, {WD_P}, v14")
A(f"s_mul_i32 s57, {sW}, 160")
A(f"s_add_u32 s57, s57, {LWD}")
A("v_lshl_add_u32 v13, v11, 3, s57")
A("v_add_u32 v12, v12, v13")
A(f"s_and_b32 s60, {sW}, 1")
A(f"s_lshr_b32 s61, {sW}, 1")
A("v_lshlrev_b32 v14, 6, v14")
A("v_lshrrev_b32 v15, 1, v11")
A(f"v_mul_u32_u24 v15, {LWU}, v15")
A("v_add_u32 v14, v14, v15")
A("v_and_b32 v15, 1, v11")
A("v_lshl_add_u32 v14, v15, 3, v14")
A("v_and_b32 v15, 1, v2")
A("v_lshlrev_b32 v15, 1, v15")
A("v_xor_b32 v15, s61, v15")
A("v_lshl_add_u32 v14, v15, 4, v14")
A(f"s_mul_i32 s57, s60, {320*64}")
A("v_add_u32 v14, s57, v14")
A("v_and_b32 v10, 7, v0")
A("v_lshl_add_u32 v11, v2, 3, v10")
A("v_lshlrev_b32 v11, 2, v11")
A(f"v_add_u32 v37, {LRED + 512}, v11")
A("v_lshl_add_u32 v36, v1, 8, v11")
A(f"v_add_u32 v36, {LRED}, v36")
A("v_and_b32 v18, 1, v10")
A("v_mov_b32 v19, 0xffff")
A(f"v_mov_b32 v20, {sHI}")
A("v_cmp_eq_u32 vcc, 1, v18")
A("v_cndmask_b32 v18, v19, v20, vcc")
A("v_lshrrev_b32 v13, 1, v10")
for i in range(4):
    A(f"v_cmp_eq_u32 vcc, {i}, v13")
    A(f"v_cndmask_b32 v{80+i}, 0, v18, vcc")
A("v_and_b32 v38, 15, v0")
A("v_lshlrev_b32 v38, 8, v38")
A("v_lshrrev_b32 v39, 1, v2")
A("v_lshl_add_u32 v38, v39, 7, v38")
A("v_and_b32 v39, 1, v2")
A("v_lshl_add_u32 v38, v39, 4, v38")
A("s_mul_i32 s57, s60, 768")
A("s_lshl_b32 s59, s61, 5")
A("s_add_u32 s57, s57, s59")
A(f"s_add_u32 s57, s57, {LRED}")
A("v_add_u32 v38, s57, v38")
A("v_mul_u32_u24 v39, 640, v1")
A("v_lshl_add_u32 v39, v10, 4, v39")
A("v_mul_u32_u24 v15, 80, v2")
A("v_add_u32 v39, v39, v15")
A("s_mul_i32 s57, s53, 10240")
A(f"s_mul_i32 s59, {sW}, 1280")
A("s_add_u32 s57, s57, s59")
A(f"s_add_u32 s57, s57, {PART}")
A("v_add_u32 v39, s57, v39")
A(f"s_mov_b32 s57, {LK}")
A("v_lshl_add_u32 v13, v1, 2, s57")
A("v_and_b32 v6, 15, v0")
A("v_min_u32 v6, 2, v6")
A(f"v_mul_u32_u24 v6, {X_P}, v6")
A("s_mul_i32 s57, s60, 640")
A(f"s_add_u32 s57, s57, {LX}")
A("v_lshl_add_u32 v7, v2, 4, s57")
A("v_add_u32 v6, v6, v7")
for i in range(4):
    A(f"v_mov_b32 v{85+2*i}, {sTAG}")
A("s_cmp_ge_u32 s58, 4")
A("s_cbranch_scc1 L_noload")
srd(40, pWG, WBYTES)
srd(44, pWU, WBYTES)
srd(48, pWD, WBYTES)
for n_, g in enumerate(wl):
    if n_ < OPT["early"]:
        continue
    A(f"s_waitcnt vmcnt({OPT['paced'] if 10 <= n_ < 24 else OPT['pace']})")
    for t in g:
        A(t)
    if n_ == OPT["mp"] - 1:
        A("s_barrier")
stamp(4)
A("s_branch L_nopoll")
A("L_noload:")
A("s_barrier")
A(f"s_cmp_lg_u32 {sW}, 0")
A("s_cbranch_scc1 L_nopoll")
arr_store()
A("v_lshlrev_b32 v32, 4, v0")
A(f"s_mov_b32 s58, {CAND}")
if OPT["polldelay"]:
    A(f"s_sleep {OPT['polldelay']}")
cand_loads(16, 32, "s58", " sc1")
srd(40, pQ, TBYTES)
A("s_waitcnt vmcnt(0)")
tag_check("L_cm", [17 + 2*i for i in range(8)], lambda: cand_loads(16, 32, "s58", " sc1"))
top2_merge(16)
stamp(7)
A("s_andn2_b32 s56, 0x7ff, s54")
A("s_andn2_b32 s57, 0x7ff, s55")
A(f"s_cmp_lg_u32 {sJ}, 20")
A("s_cbranch_scc1 L_ntp")
A("s_lshl_b32 s59, s57, 16")
A("s_or_b32 s59, s59, s56")
A("v_mov_b32 v8, s59")
A(f"s_lshl_b32 s59, {sX}, 7")
A(f"s_add_u32 s59, s59, {TOP}")
A(f"v_mov_b32 v9, {sTAG}")
A("v_mov_b32 v3, s59")
setexec(1)
A(f"buffer_store_dwordx2 v[8:9], v3, {WS}, 0 offen sc1")
setexec(ALL)
A("L_ntp:")
A("s_mul_i32 s56, s56, 1280")
A("s_mul_i32 s57, s57, 1280")
A(f"s_mov_b32 m0, {LX}")
A("buffer_load_dwordx4 v32, s[40:43], s56 offen lds")
setexec(0xffff)
A("buffer_load_dwordx4 v32, s[40:43], s56 offen offset:1024 lds")
setexec(ALL)
A(f"s_mov_b32 m0, {LX + X_P}")
A("buffer_load_dwordx4 v32, s[40:43], s57 offen lds")
setexec(0xffff)
A("buffer_load_dwordx4 v32, s[40:43], s57 offen offset:1024 lds")
setexec(ALL)
A("v_mov_b32 v16, s54")
A("v_mov_b32 v17, s55")
A("v_cmp_eq_u32 vcc, 1, v1")
A("v_cndmask_b32 v5, v16, v17, vcc")
A("v_not_b32 v3, v5")
A("v_and_b32 v7, 0x7ff, v3")
A("v_lshlrev_b32 v7, 3, v7")
A(f"s_mov_b32 s57, {ESTAT}")


def mstat():
    A(f"buffer_load_dwordx2 v[8:9], v7, {WS}, s57 offen sc1")


mstat()
A(f"v_and_b32 v5, {sHI}, v5")
A("v_ashrrev_i32 v10, 31, v5")
A("v_not_b32 v10, v10")
A("v_or_b32 v10, 0x80000000, v10")
A("v_xor_b32 v5, v5, v10")
A(f"v_and_b32 v5, {sHI}, v5")
A("v_mul_f32 v5, 0xbfb8aa3b, v5")
A("v_exp_f32 v5, v5")
A("v_add_f32 v5, 1.0, v5")
A("v_rcp_f32 v5, v5")
A("s_waitcnt vmcnt(0)")
tag_check("L_ms", [9], mstat)
A("ds_write2_b32 v13, v5, v8 offset0:0 offset1:2")
stamp(11)
A("L_nopoll:")
for t in range(1, 5):
    m = (1 << t) * 0x01010101
    A(f"s_mov_b32 s{40+2*t}, {m:#x}")
    A(f"s_mov_b32 s{41+2*t}, {m:#x}")
A("s_waitcnt vmcnt(0) lgkmcnt(0)")
stamp(5)
A("s_barrier")
stamp(6, True)
for s in range(10):
    A(f"ds_read_b64_tr_b16 a[{4*s}:{4*s+1}], v14 offset:{2048*s}")
    A(f"ds_read_b64_tr_b16 a[{4*s+2}:{4*s+3}], v14 offset:{2048*s + 256}")
    A(f"ds_read_b128 {vr(40+4*s,4)}, v6 offset:{64*s}")
    if s >= 4:
        q = s - 4
        A("s_waitcnt lgkmcnt(12)")
        c = "0" if q == 0 else "v[28:31]"
        A(f"v_mfma_f32_16x16x32_bf16 v[28:31], a[{4*q}:{4*q+3}], {vr(40+4*q,4)}, {c}")
A("ds_read2_b32 v[4:5], v13 offset0:2 offset1:0")
for q in range(6, 10):
    A(f"s_waitcnt lgkmcnt({3*(9-q) + 1})")
    A(f"v_mfma_f32_16x16x32_bf16 v[28:31], a[{4*q}:{4*q+3}], {vr(40+4*q,4)}, v[28:31]")
A("s_waitcnt lgkmcnt(0)")
A(f"v_and_b32 v9, {sHI}, v4")
A("v_lshlrev_b32 v8, 16, v4")
A("v_rcp_f32 v9, v9")
setexec(0x0007000700070007)
A("ds_write_b128 v38, v[28:31]")
setexec(ALL)
A("s_waitcnt vmcnt(0) lgkmcnt(0)")
A("s_barrier")
stamp(3, True)
A("ds_read2_b32 v[28:29], v36 offset0:0 offset1:32")
A("ds_read2_b32 v[30:31], v36 offset0:192 offset1:224")
A("ds_read2_b32 v[32:33], v37 offset0:0 offset1:32")
A("ds_read2_b32 v[34:35], v37 offset0:192 offset1:224")
for t in range(5):
    A(f"ds_read_b64_tr_b16 a[{40+4*t}:{41+4*t}], v12 offset:{32*t}")
    A(f"ds_read_b64_tr_b16 a[{42+4*t}:{43+4*t}], v12 offset:{32*t + 4*WD_P}")
A("s_waitcnt lgkmcnt(12)")
A("v_add_f32 v28, v28, v30")
A("v_add_f32 v29, v29, v31")
A("s_waitcnt lgkmcnt(10)")
A("v_add_f32 v32, v32, v34")
A("v_add_f32 v33, v33, v35")
A("v_fma_f32 v28, -v8, v32, v28")
A("v_fma_f32 v29, -v8, v33, v29")
A("v_mul_f32 v28, v28, v9")
A("v_mul_f32 v29, v29, v9")
A("v_mul_f32 v30, 0xbfb8aa3b, v28")
A("v_exp_f32 v30, v30")
A("v_mul_f32 v29, v29, v28")
A("v_add_f32 v30, 1.0, v30")
A("v_rcp_f32 v30, v30")
A("v_mul_f32 v29, v29, v30")
A("v_cvt_pk_bf16_f32 v29, v29, v29")
for i in range(4):
    A(f"v_and_b32 v{32+i}, v29, v{80+i}")
for r in ("quad_perm:[1,0,3,2]", "quad_perm:[2,3,0,1]", "row_half_mirror"):
    for i in range(4):
        A(f"v_or_b32_dpp v{32+i}, v{32+i}, v{32+i} {r} row_mask:0xf bank_mask:0xf")
A("s_waitcnt lgkmcnt(0)")
for t in range(5):
    A(f"v_mfma_f32_16x16x32_bf16 {vr(40+4*t,4)}, a[{40+4*t}:{43+4*t}], v[32:35], 0")
for t in range(1, 5):
    for i in range(4):
        A(f"v_cndmask_b32 v{40+i}, v{40+i}, v{40+4*t+i}, s[{40+2*t}:{41+2*t}]")
for i in range(4):
    A(f"v_mul_f32 v{84+2*i}, v{40+i}, v5")
setexec(0x1f1f1f1f1f1f1f1f)
A(f"buffer_store_dwordx4 v[84:87], v39, {WS}, 0 offen sc1")
A(f"buffer_store_dwordx4 v[88:91], v39, {WS}, 0 offen offset:320 sc1")
setexec(ALL)
stamp(12)
if OPT["wb"]:
    A(f"s_lshl_b32 s54, {sW}, 5")
    A(f"s_add_u32 s54, s54, {sJ}")
    A("s_cmp_lg_u32 s54, 20")
    A("s_cbranch_scc1 L_fin")
    if OPT["wb"] & 1:
        A("buffer_wbl2 sc1")
        A("s_waitcnt vmcnt(0)")
        stamp(10)
    if OPT["wb"] & 2:
        A("v_min_u32 v1, 39, v0")
        A(f"s_lshl_b32 s54, {sX}, 11")
        A("v_lshl_add_u32 v1, v1, 3, s54")
        A(f"s_mov_b32 s56, {FLG + 1024}")
        A(f"s_mov_b32 s57, {FLB + 1024}")
        A("s_mov_b32 s59, 0")
        A("L_wbp:")
        A("s_add_u32 s59, s59, 1")
        A("s_and_b32 s58, s59, 15")
        A("s_cselect_b32 s58, s56, s57")
        A(f"buffer_load_dwordx2 v[10:11], v1, {WS}, s58 offen sc1")
        A("s_waitcnt vmcnt(0)")
        A(f"v_cmp_ne_u32 vcc, {sTAG}, v10")
        A(f"v_cmp_ne_u32 s[54:55], {sTAG}, v11")
        A("s_or_b64 vcc, vcc, s[54:55]")
        A("s_cbranch_scc0 L_wbok")
        A(f"s_cmp_lt_u32 s59, {POLL_LIMIT}")
        A("s_cbranch_scc1 L_wbp")
        A("L_wbok:")
        A("buffer_wbl2 sc1")

A("L_fin:")
if PROF:
    A("s_waitcnt vmcnt(0)")
    stamp(15)
    A("s_waitcnt lgkmcnt(0)")
    if OPT["diag"] >= 0:
        k = OPT["diag"]
        A(f"s_sub_u32 s53, s{64+2*k}, s64")
        A(f"s_cmp_eq_u32 s{64+2*k}, 0")
        A("s_cselect_b32 s53, 0, s53")
        if OPT["drole"] == 1:
            A(f"s_cmp_ge_u32 {sJ}, 20")
            A("s_cselect_b32 s53, 0, s53")
        if OPT["drole"] == 2:
            A(f"s_sub_u32 s54, {sJ}, 20")
            A("s_cmp_ge_u32 s54, 8")
            A("s_cselect_b32 s53, 0, s53")
        A(f"s_mul_i32 s53, s53, {OPT['dmul']}")
        A("s_add_u32 s53, s53, 4000")
        if OPT["dx"] >= 0:
            A(f"s_cmp_lg_u32 {sX}, {OPT['dx']}")
            A("s_cselect_b32 s53, 0, s53")
        A("L_diag:")
        A("s_sleep 4")
        A("s_memrealtime s[54:55]")
        A("s_waitcnt lgkmcnt(0)")
        A("s_sub_u32 s54, s54, s64")
        A("s_cmp_lt_u32 s54, s53")
        A("s_cbranch_scc1 L_diag")
    A("s_lshl_b32 s53, s2, 3")
    A(f"s_add_u32 s53, s53, {sW}")
    A("s_lshl_b32 s53, s53, 6")
    A(f"s_add_u32 s53, s53, {PROFB}")
    A("v_mov_b32 v1, s53")
    setexec(1)
    for k in range(16):
        A(f"v_mov_b32 v2, s{64+2*k}")
        A(f"buffer_store_dword v2, v1, {WS}, 0 offen offset:{4*k}")
A("L_end:")
A("s_endpgm")
A("L_codeend:")

hdr = open(os.path.join(os.path.dirname(os.path.abspath(__file__)), "..", "cdna_kernels", NAME + ".s.ref")).read().split("\n")
hdr = [l for l in hdr if l.startswith(";") and "@launch" not in l]
out = hdr + [f"; @launch grid=(256,1,1) block=(512,1,1) lds={LDS_BYTES}",
             '.amdgcn_target "amdgcn-amd-amdhsa--gfx950"', ".text", f".globl {NAME}_kernel", ".p2align 8",
             f".type {NAME}_kernel,@function"]
if not PROF:
    A.lines = ["s_endpgm" if l == "s_branch L_fin" else l for l in A.lines]
out += A.padded()
out += ['.section .rodata,"a"', ".p2align 6", f".amdhsa_kernel {NAME}_kernel",
        "  .amdhsa_next_free_vgpr 256", "  .amdhsa_next_free_sgpr 102", "  .amdhsa_accum_offset 128",
        "  .amdhsa_group_segment_fixed_size 0", "  .amdhsa_kernarg_size 112", "  .amdhsa_user_sgpr_count 2",
        "  .amdhsa_user_sgpr_kernarg_segment_ptr 1", "  .amdhsa_system_sgpr_workgroup_id_x 1",
        "  .amdhsa_float_denorm_mode_32 3", ".end_amdhsa_kernel", ""]
open(sys.argv[1], "w").write("\n".join(out))
```

```python
import sys, os
sys.path.insert(0, os.path.dirname(os.path.abspath(__file__)))
from asmlib import Asm

NAME = "parallel_sum__ssm_conv_h3__moe_arch_mod__prompt"
OPT = dict(prof=0, codewarm=2, force_fb=0, diag=-1, dmul=4, prio=2, look=16, settle=7, pace=5, polldelay=0,
           bq=1, resid=4, pace1=1, n1=6, noW=0, nopre=0, noh=0, maxn=1, ackgap=20, mp=10, noepi=0, noside=0, drole=0, outA=0, outB=0, wb=0, sent=70, rot=0, probe=0, malign=1, ya=0, dx=-1, early=6, paced=10, hw=0, lastat=1, ks=4224, sp0=2, tc=9, bl=1, nb1=4)
for a in sys.argv[2:]:
    k, v = a.split("=")
    assert k in OPT, k
    OPT[k] = int(v)
PROF = OPT["prof"]

EPOCH, FLG, FLB, CAND, ARR, ESTAT, PART = 0, 0x1000, 0x5000, 0x9000, 0x10000, 0x18000, 0x20000
TOP = 0xA000
KVT, YT2, PROFB = 0x100000, 0x900000, 0x800000
KS = OPT['ks']
KV2D = 0x300000
WS_BYTES = 0x1000000
TBYTES = 2621440
WBYTES = 2211840
NMOE, NP1 = 54, 24
OOB = 0x7ffffff0
LA, A_C, A_CP = 0, 16640, 4160
LU, U_C, U_P = 66560, 9120, 4576
LY = 103040
LS, S_T = 103040, 15136
TC, TH, NR = ((9, 10, 2), (8, 8, 3))[OPT['tc'] == 8]
LF = 139776
LDS_BYTES = 140032
LWG, LWU, LWD, WD_P, LRED, LK, LX, X_P = 0, 40976, 81984, 1312, 123968, 125504, 125568, 1344
POLL_LIMIT = 1 << 16

sX, sJ, sW, sTAG, sXCC = "s3", "s4", "s5", "s6", "s7"
pQ, pK, pV, pSH, pH, pD, pWR, pWG, pWU, pWD, pOUT, pWS = 8, 10, 12, 14, 16, 18, 22, 24, 26, 28, 30, 34
WS = "s[36:39]"
sHI = "s52"
ALL = (1 << 64) - 1
A = Asm()


def sp(p):
    return f"s[{p}:{p+1}]"


def srd(reg, ptr, nbytes):
    A(f"s_mov_b32 s{reg}, s{ptr}")
    A(f"s_mov_b32 s{reg+1}, s{ptr+1}")
    A(f"s_mov_b32 s{reg+2}, {nbytes:#x}")
    A(f"s_mov_b32 s{reg+3}, 0x20000")


def stamp(k, wait=False):
    if PROF:
        A(f"s_memrealtime s[{64+2*k}:{65+2*k}]")
        if wait:
            A("s_waitcnt lgkmcnt(0)")


def vr(b, n):
    return f"v[{b}:{b+n-1}]"


def setexec(m):
    lo, hi = m & 0xffffffff, m >> 32
    if m == ALL:
        A("s_mov_b64 exec, -1")
    elif hi == 0 and lo < 0x80000000:
        A(f"s_mov_b64 exec, {lo:#x}")
    else:
        A(f"s_mov_b32 exec_lo, {lo:#x}")
        A(f"s_mov_b32 exec_hi, {hi:#x}")


def after_kernarg():
    A("s_waitcnt lgkmcnt(0)")
    A(f"s_load_dword {sTAG}, {sp(pWS)}, {EPOCH}")
    srd(36, pWS, WS_BYTES)


def make_tag():
    A("s_waitcnt lgkmcnt(0)")
    A(f"s_mul_i32 {sTAG}, {sTAG}, 0x9E3779B1")
    A(f"s_add_u32 {sTAG}, {sTAG}, 0x7F4A7C15")


def or_tree(regs):
    regs = list(regs)
    while len(regs) > 1:
        nxt = []
        i = 0
        while i < len(regs):
            if i + 2 < len(regs):
                A(f"v_or3_b32 v{regs[i]}, v{regs[i]}, v{regs[i+1]}, v{regs[i+2]}")
                nxt.append(regs[i]); i += 3
            elif i + 1 < len(regs):
                A(f"v_or_b32 v{regs[i]}, v{regs[i]}, v{regs[i+1]}")
                nxt.append(regs[i]); i += 2
            else:
                nxt.append(regs[i]); i += 1
        regs = nxt
    return regs[0]


def tag_check(lbl, tagregs, reissue, restore=None):
    A("s_mov_b32 s59, 0")
    A(f"{lbl}:")
    for r in tagregs:
        A(f"v_xor_b32 v{r}, {sTAG}, v{r}")
    r = or_tree(tagregs)
    A(f"v_cmp_ne_u32 vcc, 0, v{r}")
    A(f"s_cbranch_vccz {lbl}_ok")
    if restore:
        restore()
    reissue()
    A("s_add_u32 s59, s59, 1")
    A(f"s_cmp_lt_u32 s59, {POLL_LIMIT}")
    A("s_waitcnt vmcnt(0)")
    A(f"s_cbranch_scc1 {lbl}")
    A(f"{lbl}_ok:")


def merge_dpp(a, rs):
    for r in rs:
        d = f"row_ror:{r} row_mask:0xf bank_mask:0xf"
        A(f"v_min_u32_dpp v{a+1}, v{a}, v{a} {d}")
        A(f"v_max_u32_dpp v{a+3}, v{a+2}, v{a+2} {d}")
        A(f"v_max_u32_dpp v{a}, v{a}, v{a} {d}")
        A(f"v_max_u32 v{a+2}, v{a+1}, v{a+3}")


def cand_loads(t0, va, so, fl):
    for i in range(4):
        A(f"buffer_load_dwordx4 {vr(t0+4*i,4)}, v{va}, {WS}, {so} offen offset:{1024*i}{fl}")


def top2_merge(t0):
    def merge(a, b, tmp):
        A(f"v_min_u32 v{tmp}, v{a}, v{b}")
        A(f"v_max_u32 v{a}, v{a}, v{b}")
        A(f"v_max3_u32 v{a+2}, v{a+2}, v{b+2}, v{tmp}")
    merge(t0, t0+4, t0+1)
    merge(t0+8, t0+12, t0+3)
    merge(t0, t0+8, t0+1)
    merge_dpp(t0, (1, 2, 4, 8))
    A(f"v_readlane_b32 s54, v{t0}, 0")
    A(f"v_readlane_b32 s55, v{t0+2}, 0")
    for row in (16, 32, 48):
        A(f"v_readlane_b32 s56, v{t0}, {row}")
        A(f"v_readlane_b32 s59, v{t0+2}, {row}")
        A("s_max_u32 s55, s55, s59")
        A("s_min_u32 s59, s54, s56")
        A("s_max_u32 s54, s54, s56")
        A("s_max_u32 s55, s55, s59")


def moe_decode():
    A(f"s_cmp_lt_u32 {sX}, 3")
    A("s_cselect_b32 s54, 8, 6")
    A("s_cselect_b32 s55, 0, 6")
    A(f"s_mul_i32 s56, {sX}, s54")
    A("s_add_u32 s56, s56, s55")


def arr_store():
    A("s_lshl_b32 s59, s2, 7")
    A(f"s_add_u32 s59, s59, {ARR}")
    A(f"v_mov_b32 v32, {sTAG}")
    A(f"v_mov_b32 v33, {sXCC}")
    A("v_mov_b32 v34, s59")
    setexec(1)
    A(f"buffer_store_dwordx2 v[32:33], v34, {WS}, 0 offen sc1")
    setexec(ALL)


A(f"{NAME}_kernel:")
A("s_cmp_ge_u32 s2, 256")
A("s_cbranch_scc1 L_end")
A("s_load_dwordx16 s[8:23], s[0:1], 0")
A("s_load_dwordx8 s[24:31], s[0:1], 64")
A("s_load_dwordx4 s[32:35], s[0:1], 96")
A("v_lshrrev_b32 v1, 6, v0")
A("v_mov_b32 v9, v0")
A("v_and_b32 v0, 63, v0")
A(f"s_and_b32 {sX}, s2, 7")
A(f"s_lshr_b32 {sJ}, s2, 3")
A(f"v_readfirstlane_b32 {sW}, v1")
A(f"s_getreg_b32 {sXCC}, hwreg(HW_REG_XCC_ID)")
if OPT["force_fb"]:
    A(f"s_add_u32 {sXCC}, {sXCC}, {sJ}")
A(f"s_mov_b32 {sHI}, 0xffff0000")
if PROF:
    for k in range(64, 96):
        A(f"s_mov_b32 s{k}, 0")
stamp(0)
A(f"s_mul_i32 s53, {sX}, 20")
A(f"s_add_u32 s53, s53, {sJ}")
A(f"s_sub_u32 s63, {sJ}, 20")
if OPT["codewarm"] == 2:
    A("s_cmp_ge_u32 s63, 8")
    A("s_cbranch_scc1 L_nocw2")
    A("s_getpc_b64 s[54:55]")
    A("L_pc2:")
    A(f"s_sub_u32 s54, s54, L_pc2-{NAME}_kernel")
    A("s_subb_u32 s55, s55, 0")
    A("v_subrev_u32 v1, 320, v9")
    A("v_lshlrev_b32 v1, 7, v1")
    A(f"v_cmp_gt_u32 vcc, L_codeend-{NAME}_kernel, v1")
    A("s_and_saveexec_b64 s[56:57], vcc")
    A("s_cbranch_execz L_nocw3")
    A("global_load_dword v127, v1, s[54:55]")
    A("L_nocw3:")
    setexec(ALL)
    A("L_nocw2:")
A(f"s_sub_u32 s58, {sJ}, 8")
A(f"s_cmp_lt_u32 {sJ}, 20")
A(f"s_cselect_b32 s58, {sJ}, s58")
A(f"s_cmp_lg_u32 {sW}, 0")
A("s_cbranch_scc1 L_not7")
A("s_mov_b32 s99, s2")
A("L_ln:")

A("v_and_b32 v1, 7, v0")
A("v_bfe_u32 v2, v0, 3, 1")
A("v_lshrrev_b32 v3, 4, v0")
A("v_mul_u32_u24 v4, 1280, v1")
A("v_mul_u32_u24 v5, 640, v2")
A("v_add_u32 v4, v4, v5")
A("v_lshl_add_u32 v4, v3, 4, v4")
A("s_mul_i32 s55, s99, 10240")
A("v_add_u32 v4, s55, v4")
A("v_and_b32 v5, 15, v0")
A("v_cmp_lt_u32 vcc, 1, v5")
A("v_mov_b32 v6, 640")
A("v_cndmask_b32 v6, 0, v6, vcc")
A("v_lshl_add_u32 v6, v3, 4, v6")
A("s_mov_b32 s55, 0x3f803f80")
for i in range(44):
    A(f"v_mov_b32 v{56+i}, s55")
A("s_waitcnt lgkmcnt(0)")
for s in range(10):
    A(f"global_load_dwordx4 {vr(16+4*s,4)}, v4, {sp(pQ)} offset:{64*s}")
setexec(0x0006000600060006)
for s in range(10):
    A(f"global_load_dwordx4 {vr(56+4*s,4)}, v6, {sp(pWR)} offset:{64*s}")
setexec(ALL)
if OPT["bq"]:
    A("s_barrier")
A("s_branch L_lntail")
A("L_not7:")
A("s_cmp_lt_u32 s63, 8")
A("s_cbranch_scc1 L_nonp1")
A("v_subrev_u32 v9, 64, v9")
A(f"s_mul_i32 s60, s58, {NR*TH}")
A(f"s_sub_u32 s60, s60, {24*NR*TH - 256}")
A(f"s_mul_i32 s55, s58, {TC}")
MAG = {8: 4096, 9: 3641, 10: 3277}
A(f"s_movk_i32 s57, {MAG[TC]}")
A(f"s_cmp_lt_u32 {sJ}, 20")
A("s_cselect_b32 s60, s55, s60")
A(f"s_cselect_b32 s61, {TC}, {TH}")
A(f"s_cselect_b32 s57, s57, {MAG[TH]}")
A("s_mul_i32 s59, s61, 81")
A("s_add_u32 s59, s59, 79")
A(f"s_mul_i32 s55, s60, {8*1280}")
A(f"s_mul_i32 s54, {sX}, 160")
A("s_add_u32 s55, s55, s54")
A(f"s_sub_u32 s55, s55, {8*1280}")
A(f"v_mov_b32 v7, {OOB:#x}")
for i in range(2):
    d = 1 + i
    A(f"v_add_u32 v4, {50+448*i}, v9")
    A("v_mul_u32_u24 v5, 1619, v4")
    A("v_lshrrev_b32 v5, 17, v5")
    A("v_mul_u32_u24 v6, 81, v5")
    A("v_cmp_gt_u32 vcc, 81, v4" if i == 0 else "v_cmp_lt_u32 vcc, s59, v4")
    A("v_sub_u32 v4, v4, v6")
    A("v_mul_u32_u24 v6, 205, v4")
    A("v_lshrrev_b32 v6, 11, v6")
    A("v_lshl_add_u32 v5, v5, 3, v6")
    A("v_mul_u32_u24 v6, 10, v6")
    A("v_sub_u32 v4, v4, v6")
    A("v_mul_u32_u24 v5, 1280, v5")
    A("v_lshl_add_u32 v5, v4, 4, v5")
    A(f"v_add_u32 v{d}, s55, v5")
    A(f"v_cndmask_b32 v{3 if i == 0 else 2}, v{d}, v7, vcc")
A("s_mul_i32 s96, s61, 40")
A("s_sub_u32 s59, s96, 1")
A("v_min_u32 v9, s59, v9")
A("v_mul_u32_u24 v7, s57, v9")
A("v_lshrrev_b32 v7, 15, v7")
A("v_mul_u32_u24 v8, s61, v7")
A("v_sub_u32 v8, v9, v8")
A(f"s_mul_i32 s54, {sX}, 640")
A("v_lshl_add_u32 v9, v7, 4, s54")
A(f"s_lshl_b32 s56, {sW}, 10")
A(f"s_add_u32 s56, s56, {LS + 50*16 - 1024}")
A(f"s_lshl_b32 s97, {sW}, 6")
A("s_add_u32 s96, s96, 64")
after_kernarg()
srd(40, pK, TBYTES)
srd(44, pV, TBYTES)
if OPT["bq"]:
    A("s_barrier")
for rd in range(NR):
    if rd == 1:
        A(f"global_load_dwordx4 v[20:23], v9, {sp(pSH)}")
        A(f"s_cmp_lt_u32 {sJ}, 20")
        A("s_cbranch_scc1 L_nodma")
        if OPT["bl"]:
            A("s_barrier")
    if rd:
        A(f"s_mov_b32 s55, {rd*TH*8*1280}")
    for i in range(2):
        for t, r in enumerate((40, 44)):
            A(f"s_add_u32 m0, s56, {t*S_T + 7168*i - rd*2*S_T}")
            A(f"buffer_load_dwordx4 v{2 if i else (3 if t else 1)}, s[{r}:{r+3}], {'s55' if rd else '0'} offen lds")
A("L_nodma:")
A("s_lshl_b32 s62, s53, 2")
A(f"s_and_b32 s54, {sW}, 3")
A("s_add_u32 s62, s62, s54")
A("s_min_u32 s62, s62, 639")
A("s_lshl_b32 s54, s62, 1")
A("s_and_b32 s54, s54, -4")
A(f"s_load_dword s63, {sp(pD)}, s54")
stamp(1)
A("v_mul_u32_u24 v1, 1296, v8")
A("v_lshl_add_u32 v1, v7, 2, v1")
A(f"v_add_u32 v1, {LS}, v1")
A(f"s_mul_i32 s55, {sX}, {80*KS}")
A("s_lshl_b32 s57, s60, 4")
A("s_add_u32 s55, s55, s57")
A(f"s_add_u32 s55, s55, {KVT}")
A(f"v_mul_u32_u24 v5, {2*KS}, v7")
A("v_lshl_add_u32 v5, v8, 4, v5")
A("v_add_u32 v5, s55, v5")
A(f"s_cmp_lg_u32 {sW}, 7")
A("s_cbranch_scc1 L_nz")
A(f"s_cmp_ge_u32 {sJ}, 20")
A("s_cbranch_scc1 L_nz")
for i in range(4):
    A(f"v_mov_b32 v{16+i}, 0")
A("v_lshrrev_b32 v2, 5, v0")
A(f"v_mul_u32_u24 v2, {U_P}, v2")
A("v_and_b32 v3, 31, v0")
A("v_min_u32 v3, 27, v3")
A("v_lshl_add_u32 v2, v3, 4, v2")
A(f"v_add_u32 v2, {LU}, v2")
for c in range(4):
    A(f"ds_write_b128 v2, v[16:19] offset:{c*U_C}")
A("v_lshrrev_b32 v2, 2, v0")
A(f"v_mul_u32_u24 v2, {A_CP}, v2")
A("v_and_b32 v3, 3, v0")
A("v_min_u32 v3, 2, v3")
A("v_lshl_add_u32 v2, v3, 4, v2")
A("ds_write_b128 v2, v[16:19]")
A("L_nz:")
make_tag()
A(f"s_cmp_lt_u32 {sJ}, 20")
A(f"s_cselect_b32 s61, 0, {NR-1}")
A("s_cbranch_scc0 L_w8")
A("s_waitcnt vmcnt(0)")
A("L_w8:")
A(f"s_waitcnt vmcnt({4*(NR-1)})")
A("v_lshlrev_b32 v10, 16, v20")
A("v_lshlrev_b32 v11, 16, v22")
A(f"v_and_b32 v12, {sHI}, v20")
A(f"v_and_b32 v13, {sHI}, v22")
A("v_lshlrev_b32 v14, 16, v21")
A("v_lshlrev_b32 v15, 16, v23")
A(f"v_and_b32 v16, {sHI}, v21")
A(f"v_and_b32 v17, {sHI}, v23")
A("L_round:")
A("s_barrier")
stamp(2, True)
A("s_cmp_ge_u32 s97, s96")
A("s_cbranch_scc1 L_nokv")


def koff(t):
    return (1296 + 160*t) if t >= 0 else 160*(8 + t)


def Kp(t):
    return vr(40 + 2*(t + 3), 2)


for i, t in enumerate(range(-3, 8)):
    A(f"ds_read_b32 v{20+i}, v1 offset:{koff(t)}")
for t in range(4):
    A(f"ds_read_b32 v{32+t}, v1 offset:{S_T + koff(t)}")
for i in range(11):
    if i in (0, 4, 8):
        A(f"s_waitcnt lgkmcnt({(11, 7, 8)[i//4]})")
    A(f"v_lshlrev_b32 v{40+2*i}, 16, v{20+i}")
    A(f"v_and_b32 v{41+2*i}, {sHI}, v{20+i}")
    if i == 7:
        for t in range(4, 8):
            A(f"ds_read_b32 v{32+t}, v1 offset:{S_T + koff(t)}")
for t in range(8):
    A(f"v_pk_mul_f32 {vr(96+2*t,2)}, v[16:17], {Kp(t-3)}")
for t in range(8):
    A(f"v_pk_fma_f32 {vr(96+2*t,2)}, v[14:15], {Kp(t-2)}, {vr(96+2*t,2)}")
for t in range(8):
    A(f"v_pk_fma_f32 {vr(96+2*t,2)}, v[12:13], {Kp(t-1)}, {vr(96+2*t,2)}")
for t in range(8):
    A(f"v_pk_fma_f32 {vr(96+2*t,2)}, v[10:11], {Kp(t)}, {vr(96+2*t,2)}")
A("s_waitcnt lgkmcnt(0)")
for t in range(8):
    A(f"v_lshlrev_b32 v{62+2*t}, 16, v{32+t}")
    A(f"v_and_b32 v{63+2*t}, {sHI}, v{32+t}")
for t in range(8):
    A(f"v_pk_mul_f32 {vr(96+2*t,2)}, {vr(96+2*t,2)}, {vr(62+2*t,2)}")
A(f"s_mov_b32 s55, {KS}")
for c in range(2):
    for i in range(4):
        A(f"v_cvt_pk_bf16_f32 v{80+4*c+i}, v{96+2*(7-2*i)+c}, v{96+2*(6-2*i)+c}")
    A(f"buffer_store_dwordx4 {vr(80+4*c,4)}, v5, {WS}, {'s55' if c else '0'} offen")
stamp(3)
A("L_nokv:")
A("s_sub_u32 s61, s61, 1")
A("s_cbranch_scc1 L_kvdone")
A(f"v_subrev_u32 v1, {2*S_T}, v1")
A(f"v_add_u32 v5, {16*TH}, v5")
if NR == 3:
    A("s_waitcnt vmcnt(4)")
    A("s_cmp_lg_u32 s61, 0")
    A("s_cbranch_scc1 L_round")
    A("s_waitcnt vmcnt(0)")
else:
    A("s_waitcnt vmcnt(2)")
A("s_branch L_round")
A("L_kvdone:")
A(f"s_lshl_b32 s55, {sX}, 11")
A("s_lshl_b32 s57, s58, 3")
A("s_add_u32 s57, s57, s55")
A(f"v_mov_b32 v10, {sTAG}")
A(f"v_mov_b32 v11, {sXCC}")
A("v_mov_b32 v12, s57")
A(f"v_min_u32 v1, {NP1-1}, v0")
A("v_lshl_add_u32 v1, v1, 3, s55")
A("s_lshl_b32 s54, s53, 2")
A(f"s_add_u32 s54, s54, {sW}")
A(f"s_mul_i32 s54, s54, {KS}")
A(f"s_add_u32 s54, s54, {KVT}")
A("v_lshl_add_u32 v44, v0, 4, s54")
A("v_subrev_u32 v14, 16, v44")
A("v_cmp_eq_u32 vcc, 0, v0")
A(f"v_mov_b32 v3, {OOB:#x}")
A("v_cndmask_b32 v14, v14, v3, vcc")
A(f"s_mov_b32 s55, {FLG}")
A("s_mov_b32 s59, 0")
A(f"s_mov_b32 s60, {KVT}")
A(f"s_mov_b32 s61, {FLG}")
A("s_waitcnt vmcnt(0)")
A("s_barrier")
stamp(4, True)
A(f"s_cmp_ge_u32 {sW}, 4")
A("s_cbranch_scc1 L_hi4")
A(f"s_cmp_lg_u32 {sW}, 0")
A("s_cbranch_scc1 L_poll")
A(f"s_cmp_lt_u32 {sJ}, 20")
A(f"s_cselect_b32 s57, s55, {FLG + 32}")
setexec(1)
A(f"buffer_store_dwordx2 v[10:11], v12, {WS}, s57 offen")
setexec(ALL)
A("L_poll:")
A(f"buffer_load_dwordx2 v[2:3], v1, {WS}, s55 offen sc1")
A("s_add_u32 s59, s59, 1")
A("s_waitcnt vmcnt(0)")
A("v_cmp_eq_u64 vcc, s[6:7], v[2:3]")
A("s_cmp_eq_u64 vcc, -1")
A("s_cbranch_scc1 L_synced")
A("s_and_b32 s57, s59, 15")
A("s_cmp_lg_u32 s57, 0")
A("s_cbranch_scc1 L_poll")
A("s_branch L_slowsync")
A("L_synced:")
stamp(5)
A(f"s_cmp_ge_u32 {sJ}, 30")
A("s_cbranch_scc1 L_special")
A(f"s_cmp_ge_u32 {sJ}, 20")
A("s_cbranch_scc1 L_fin")

def stage(pieces, va, vprev0, vl, extra=0, so="0", fix=None, base=16):
    pv, tm = (28, 32) if base == 16 else (42, 16)
    for i, (off, m) in enumerate(pieces):
        if m != ALL:
            setexec(m)
        A(f"buffer_load_dwordx4 {vr(base+4*i,4)}, v{va}, {WS}, {so} offen offset:{off} sc1")
        if off == 0:
            A(f"buffer_load_dword v{28+i}, v{vprev0}, {WS}, 0 offen sc1")
        else:
            if fix:
                setexec(m & ~1)
            A(f"buffer_load_dword v{pv+i}, v{va}, {WS}, {so} offen offset:{off-16} sc1")
    setexec(ALL)
    yield
    n = len(pieces)
    for i, (off, m) in enumerate(pieces):
        A(f"s_waitcnt vmcnt({2*(n-1-i) + extra})")
        if m != ALL:
            setexec(m)
        b = base + 4*i
        if fix:
            A(fix)
        A(f"ds_write_b128 v{vl}, {vr(b,4)} offset:{U_P + off}")
        A(f"v_alignbyte_b32 v{tm+0+4*i}, v{b+1}, v{b}, 2")
        A(f"v_alignbyte_b32 v{tm+1+4*i}, v{b+2}, v{b+1}, 2")
        A(f"v_alignbyte_b32 v{tm+2+4*i}, v{b+3}, v{b+2}, 2")
        A(f"v_alignbyte_b32 v{tm+3+4*i}, v{pv+i}, v{b+3}, 2")
        A(f"ds_write_b128 v{vl}, {vr(tm+4*i,4)} offset:{off}")
    setexec(ALL)
    yield


HALF = 0xffffffff
g_ = stage([(0, ALL), (1024, ALL), (2048, HALF)], 44, 14, 45)
next(g_)
A(f"s_mul_i32 s55, {sW}, {U_C}")
A(f"s_add_u32 s55, s55, {LU + 28*16}")
A("v_lshl_add_u32 v45, v0, 4, s55")
A(f"v_mov_b32 v2, {LF}")
A("v_mov_b32 v3, s61")
A("ds_write_b32 v2, v3")
A("v_min_u32 v4, 11, v0")
A("v_lshl_add_u32 v4, v4, 7, s54")
A(f"s_mul_i32 s54, {sX}, 160")
A(f"s_lshl_b32 s55, {sW}, 6")
A(f"s_lshl_b32 s56, {sJ}, 8")
A("s_add_u32 s55, s55, s56")
A("v_add_u32 v8, s55, v0")
A("v_mul_u32_u24 v1, 6554, v8")
A("v_lshrrev_b32 v1, 18, v1")
A("v_mul_u32_u24 v10, 40, v1")
A("v_sub_u32 v8, v8, v10")
A("v_add_u32 v2, 128, v1")
A("v_lshlrev_b32 v3, 3, v8")
A("v_mul_u32_u24 v9, 10240, v1")
A("v_lshl_add_u32 v9, v8, 2, v9")
A("v_add_u32 v5, s54, v9")
A(f"v_add_u32 v6, {1024*1280}, v5")
srd(40, pQ, TBYTES)
A("s_movk_i32 s49, 5120")
A(f"s_mov_b32 s57, {ESTAT}")
A(f"s_mov_b32 s58, {ESTAT + 8192}")
A("v_and_b32 v7, 7, v0")
A("v_lshl_add_u32 v7, v1, 3, v7")
A("v_lshlrev_b32 v7, 3, v7")

next(g_)
A("s_mov_b32 s51, s60")
A(f"s_mul_i32 s54, {sX}, {80*KS}")
A("s_add_u32 s60, s60, s54")
A(f"s_add_u32 s48, s60, {KS}")
A(f"s_lshl_b32 s54, {sX}, 11")
A("s_add_u32 s61, s61, s54")
A("s_add_u32 s61, s61, 512")
A(f"v_mul_u32_u24 v8, {KS//4}, v3")
A("v_lshl_add_u32 v8, v1, 4, v8")
A(f"s_lshl_b32 s54, {sX}, 7")
A(f"s_add_u32 s54, s54, {TOP}")
A("v_mov_b32 v9, s54")
A(f"s_lshl_b32 s55, {sW}, 2")
A(f"s_add_u32 s55, s55, {LF + 16}")
A("v_mov_b32 v47, s55")
A("v_and_b32 v46, 3, v0")
A("v_lshlrev_b32 v46, 3, v46")
A(f"s_cmp_eq_u32 s51, {KVT}")
A(f"s_cselect_b32 s96, {512 - 8*24}, {512 - 8*20}" if False else f"s_cselect_b32 s96, 24, 20")
A("s_lshl_b32 s96, s96, 3")
A("s_sub_u32 s55, s61, 512")
A("s_add_u32 s96, s96, s55")


stamp(6)
A("s_waitcnt lgkmcnt(0)")
A("s_barrier")

A("L_final:")
XR, SR = (48, 56), (16, 32)
XN, CC = (64, 96), (80, 112)
OCT, CPO, QOF = (1, 2), (3, 3), (5, 6)


def stat_loads(fl):
    A(f"buffer_load_dwordx2 v[12:13], v7, {WS}, s57 offen{fl}")
    A(f"buffer_load_dwordx2 v[14:15], v7, {WS}, s58 offen{fl}")


def ofl(task):
    return ("", " sc1", " nt", " sc0 sc1")[OPT["outB" if task else "outA"]]


def rows(op, reg, task):
    for t in range(8):
        fl = ofl(task) if op == "store" else ""
        A(f"buffer_{op}_dword v{reg+t}, v{QOF[task]}, s[40:43], {'s49' if t >= 4 else '0'} offen offset:{1280*(t&3)}{fl}")


stat_loads("")
rows("load", XR[0], 0)
A(f"buffer_load_dword v40, v46, {WS}, s96 offen sc1")
rows("load", XR[1], 1)
A(f"buffer_load_dword v41, v4, {WS}, 0 offen offset:2560 sc1")
A(f"s_mov_b32 s40, s{pOUT}")
A(f"s_mov_b32 s41, s{pOUT+1}")
A("s_waitcnt vmcnt(18)")
tag_check("L_st", [13, 15], lambda: stat_loads(" sc1"))
for st in (12, 14):
    A(f"v_and_b32 v{st+1}, {sHI}, v{st}")
    A(f"v_rcp_f32 v{st+1}, v{st+1}")
    A(f"v_lshlrev_b32 v{st}, 16, v{st}")
for st in (12, 14):
    A(f"v_mul_f32 v{st}, v{st}, v{st+1}")


def precompute(task):
    for t in range(8):
        if t == 7:
            A("s_waitcnt lgkmcnt(6)")
        A(f"ds_swizzle_b32 v{16+2*t}, v{12+2*task} offset:{(t << 5) | 0x18}")
        A(f"ds_swizzle_b32 v{17+2*t}, v{13+2*task} offset:{(t << 5) | 0x18}")
    A(f"s_waitcnt vmcnt({(9, 6)[task]})")
    for t in range(8):
        cc = CC[task] + 2*t
        A(f"v_lshlrev_b32 v{cc}, 16, v{XR[task]+t}")
        A(f"v_and_b32 v{cc+1}, {sHI}, v{XR[task]+t}")
    A("s_waitcnt lgkmcnt(0)")
    for t in range(8):
        st, xn, cc = 16 + 2*t, XN[task] + 2*t, CC[task] + 2*t
        A(f"v_fma_f32 v{xn}, v{cc}, v{st+1}, -v{st}")
        A(f"v_fma_f32 v{xn+1}, v{cc+1}, v{st+1}, -v{st}")
        A(f"v_add_f32 v{cc}, v{cc}, v{xn}")
        A(f"v_add_f32 v{cc+1}, v{cc+1}, v{xn+1}")


def yflag_poll(lbl, va, so):
    A("s_mov_b32 s59, 0")
    A(f"{lbl}:")
    A(f"buffer_load_dwordx2 v[10:11], v{va}, {WS}, {so} offen sc1")
    A("s_add_u32 s59, s59, 1")
    A("s_waitcnt vmcnt(0)")
    A(f"v_cmp_ne_u32 vcc, {sTAG}, v10")
    A(f"v_cmp_ne_u32 s[54:55], {sTAG}, v11")
    A("s_or_b64 vcc, vcc, s[54:55]")
    A(f"s_cbranch_scc0 {lbl}_ok")
    A(f"s_cmp_lt_u32 s59, {POLL_LIMIT}")
    A(f"s_cbranch_scc1 {lbl}")
    A(f"{lbl}_ok:")


def top_load():
    A(f"buffer_load_dwordx2 v[10:11], v9, {WS}, 0 offen sc1")


def y_loads(task):
    A(f"buffer_load_dwordx4 v[48:51], v8, {WS}, s60 offen offset:{2048*task} sc1")
    A(f"buffer_load_dwordx4 v[52:55], v8, {WS}, s48 offen offset:{2048*task} sc1")


def f1_load():
    A(f"buffer_load_dword v40, v46, {WS}, s96 offen sc1")


def f0_load():
    A(f"buffer_load_dwordx2 v[42:43], v3, {WS}, s61 offen sc1")


def combine(task):
    for c in range(2):
        for i in range(4):
            A(f"v_lshlrev_b32 v{56+2*i}, 16, v{48+4*c+i}")
            A(f"v_and_b32 v{57+2*i}, {sHI}, v{48+4*c+i}")
        for pos in range(8):
            t = 2*(pos & 3) + (pos >> 2)
            A(f"v_fmac_f32 v{CC[task]+2*t+c}, v{XN[task]+2*t+c}, v{56+pos}")
    for t in range(8):
        A(f"v_cvt_pk_bf16_f32 v{48+t}, v{CC[task]+2*t}, v{CC[task]+2*t+1}")


def masks(task):
    A("s_lshr_b32 s56, s62, 3")
    A("s_lshr_b32 s57, s63, 3")
    A(f"v_cmp_eq_u32 s[44:45], s56, v{OCT[task]}")
    A(f"v_cmp_eq_u32 s[46:47], s57, v{OCT[task]}")


def out_stores(task):
    A("s_or_b64 s[54:55], s[44:45], s[46:47]")
    A(f"s_cbranch_scc1 L_msk{task}")
    rows("store", 48, task)
    A(f"L_mskd{task}:")


precompute(0)
tag_check("L_h2", [40], f1_load)
g_ = stage([(2560, ALL), (3584, HALF)], 44, 44, 45, 1, base=32)
next(g_)
top_load()
precompute(1)
stamp(7)
for i in range(4):
    A(f"v_mov_b32 v{12+i}, -1")
A(f"s_sub_u32 s56, s51, {KVT}")
A(f"s_lshl_b32 s54, {sJ}, 4")
A(f"s_lshl_b32 s55, {sW}, 2")
A("s_add_u32 s54, s54, s55")
A("v_mov_b32 v30, s54")
A(f"v_mov_b32 v31, {sTAG}")
next(g_)
A("ds_write_b32 v47, v47")
stamp(12)
A(f"s_cmp_lg_u32 s51, {KVT}")
A("s_cbranch_scc1 L_sslow")
A(f"buffer_store_dwordx4 v[12:15], v44, {WS}, s56 offen offset:2048")
A(f"buffer_store_dwordx4 v[12:15], v44, {WS}, s56 offen offset:3072")
f0_load()
A("s_waitcnt vmcnt(0)")
setexec(1)
A(f"buffer_store_dword v31, v30, {WS}, s61 offen offset:1024")
A("L_sback:")
setexec(ALL)
A("ds_write_b32 v47, v47 offset:16")
tag_check("L_h3", [42, 43], f0_load)
y_loads(0)
tag_check("L_tp", [11], top_load)
A("v_readfirstlane_b32 s62, v10")
A("s_lshr_b32 s63, s62, 16")
A("s_and_b32 s62, s62, 0xffff")
masks(0)
A("s_waitcnt vmcnt(0)")
stamp(8)
combine(0)
out_stores(0)
stamp(9)
masks(1)
A("s_add_u32 s57, s61, 1024")
yflag_poll("L_yfs", 3, "s57")
stamp(1)
A("s_barrier")
A("s_mov_b32 s59, 0")
A("L_ys:")
y_loads(1)
A("s_add_u32 s59, s59, 1")
A("s_waitcnt vmcnt(0)")
A("v_max3_u32 v24, v48, v49, v50")
A("v_max3_u32 v25, v51, v52, v53")
A("v_max3_u32 v24, v24, v54, v55")
A("v_max_u32 v24, v24, v25")
A("v_cmp_eq_u32 vcc, -1, v24")
A("s_and_b64 exec, exec, vcc")
A("s_cbranch_execz L_ysok")
A("s_cmp_lt_u32 s59, 4096")
A("s_cbranch_scc1 L_ys")
setexec(ALL)
A("s_add_u32 s61, s61, 512")
yflag_poll("L_yf1", 3, "s61")
y_loads(1)
A("s_waitcnt vmcnt(0)")
A("L_ysok:")
setexec(ALL)
stamp(10)
combine(1)
out_stores(1)
stamp(11)
A("s_branch L_fin")
A("L_sslow:")
A(f"buffer_store_dwordx4 v[12:15], v44, {WS}, s56 offen offset:2048 sc1")
A(f"buffer_store_dwordx4 v[12:15], v44, {WS}, s56 offen offset:3072 sc1")
f0_load()
A("s_waitcnt vmcnt(0)")
setexec(1)
A(f"buffer_store_dword v31, v30, {WS}, s61 offen offset:1024 sc1")
A("s_branch L_sback")
for task in range(2):
    A(f"L_msk{task}:")
    A("s_and_b32 s56, s62, 7")
    A("s_and_b32 s57, s63, 7")
    for t in range(8):
        A(f"s_cmp_eq_u32 s56, {t}")
        A("s_cselect_b64 s[54:55], s[44:45], 0")
        A(f"s_cmp_eq_u32 s57, {t}")
        A("s_cselect_b64 vcc, s[46:47], 0")
        A("s_nor_b64 exec, s[54:55], vcc")
        A(f"s_cbranch_execz L_ms{task}_{t}")
        A(f"buffer_store_dword v{48+t}, v{QOF[task]}, s[40:43], {'s49' if t >= 4 else '0'} offen offset:{1280*(t&3)}{ofl(task)}")
        A(f"L_ms{task}_{t}:")
    setexec(ALL)
    A(f"s_branch L_mskd{task}")

A("L_special:")
A("v_min_u32 v1, 39, v0")
A(f"s_cmp_lg_u32 {sW}, 0")
A("s_cbranch_scc1 L_sp1")
A(f"s_lshl_b32 s54, {sX}, 7")
A(f"s_add_u32 s54, s54, {TOP}")
A("v_mov_b32 v9, s54")
top_load()
A("s_waitcnt vmcnt(0)")
tag_check("L_sc", [11], top_load)
A("v_readfirstlane_b32 s62, v10")
A(f"s_cmp_eq_u32 {sJ}, 30")
A("s_cselect_b32 s54, 0, 16")
A("s_lshr_b32 s62, s62, s54")
A("s_and_b32 s62, s62, 0x7ff")
srd(40, pQ, TBYTES)
A("s_mul_i32 s54, s62, 1280")
A(f"s_mul_i32 s55, {sX}, 160")
A("s_add_u32 s54, s54, s55")
A("v_lshl_add_u32 v2, v1, 2, s54")
A("buffer_load_dword v4, v2, s[40:43], 0 offen")
A("s_lshl_b32 s54, s62, 3")
A(f"s_add_u32 s54, s54, {ESTAT}")
A("v_mov_b32 v3, s54")


def sstat():
    A(f"buffer_load_dwordx2 v[8:9], v3, {WS}, 0 offen sc1")


sstat()
A("s_waitcnt vmcnt(0)")
tag_check("L_ss", [9], sstat)
A(f"v_and_b32 v9, {sHI}, v8")
A("v_rcp_f32 v9, v9")
A("v_lshlrev_b32 v8, 16, v8")
A("v_lshlrev_b32 v50, 16, v4")
A(f"v_and_b32 v51, {sHI}, v4")
A("v_sub_f32 v48, v50, v8")
A("v_sub_f32 v49, v51, v8")
A("v_mul_f32 v48, v48, v9")
A("v_mul_f32 v49, v49, v9")
A("v_add_f32 v50, v50, v48")
A("v_add_f32 v51, v51, v49")
A(f"s_lshl_b32 s55, {sX}, 11")
A("s_add_u32 s61, s61, s55")
A("s_add_u32 s61, s61, 512")
A(f"s_mul_i32 s54, {sX}, {80*KS}")
A("s_add_u32 s60, s60, s54")
A("s_lshr_b32 s54, s62, 3")
A("s_lshl_b32 s54, s54, 4")
A("s_add_u32 s60, s60, s54")
A("s_and_b32 s54, s62, 1")
A("s_lshl_b32 s54, s54, 3")
A("s_add_u32 s60, s60, s54")
A("s_and_b32 s54, s62, 4")
A("s_add_u32 s60, s60, s54")
A(f"s_add_u32 s48, s60, {KS}")
A("s_bitcmp1_b32 s62, 1")
A("s_cselect_b32 s63, 0, 16")
A("v_lshlrev_b32 v3, 3, v1")
A(f"v_mul_u32_u24 v7, {2*KS}, v1")
A("v_lshrrev_b32 v6, 3, v1")
A("v_bfe_u32 v5, v1, 1, 2")
A("v_mad_u32_u24 v6, v5, 5, v6")
A("v_and_b32 v5, 1, v1")
A("v_mad_u32_u24 v6, v5, 20, v6")
A("v_lshlrev_b32 v6, 3, v6")
srd(40, pOUT, TBYTES)
if OPT["sp0"] == 2:
    A(f"s_sub_u32 s54, {sJ}, 30")
    A("s_mul_i32 s54, s54, 640")
    A(f"s_mul_i32 s55, {sX}, {1280 + 6*10240}")
    A("s_add_u32 s54, s54, s55")
    A(f"s_add_u32 s54, s54, {PART}")
    A("v_mov_b32 v4, s54")

    def probe1():
        A("s_sleep 2")
        A(f"buffer_load_dwordx2 v[16:17], v4, {WS}, 0 offen sc1")
    probe1()
    A("s_waitcnt vmcnt(0)")
    tag_check("L_p1", [17], probe1)
    A("s_barrier")
yflag_poll("L_s0", 3, "s61")


def sy_loads():
    A(f"buffer_load_dword v32, v7, {WS}, s60 offen sc1")
    A(f"buffer_load_dword v33, v7, {WS}, s48 offen sc1")


if OPT["sp0"] == 0:
    A("s_barrier")
A("s_add_u32 s57, s61, 1024")
yflag_poll("L_sS", 3, "s57")
sy_loads()
if OPT["sp0"] == 1:
    A("s_barrier")
A("s_barrier")
stamp(8)
for i in range(7):
    A(f"ds_read_b64 {vr(16+2*i,2)}, v6 offset:{512*i}")
A("s_waitcnt lgkmcnt(0)")
for i in range(1, 7):
    A(f"v_add_f32 v16, v16, v{16+2*i}")
    A(f"v_add_f32 v17, v17, v{17+2*i}")
A("v_add_f32 v50, v50, v16")
A("v_add_f32 v51, v51, v17")
A("s_mov_b32 s59, 0")
A("L_sy:")
A("s_waitcnt vmcnt(0)")
A("v_max_u32 v34, v32, v33")
A("v_cmp_eq_u32 vcc, -1, v34")
A("s_cbranch_vccz L_syok")
sy_loads()
A("s_add_u32 s59, s59, 1")
A("s_cmp_lt_u32 s59, 4096")
A("s_cbranch_scc1 L_sy")
A("s_add_u32 s61, s61, 512")
yflag_poll("L_s1", 3, "s61")
sy_loads()
A("s_waitcnt vmcnt(0)")
A("L_syok:")
A("v_lshlrev_b32 v32, s63, v32")
A("v_lshlrev_b32 v33, s63, v33")
A(f"v_and_b32 v32, {sHI}, v32")
A(f"v_and_b32 v33, {sHI}, v33")
A("v_fmac_f32 v50, v48, v32")
A("v_fmac_f32 v51, v49, v33")
A("v_cvt_pk_bf16_f32 v50, v50, v51")
A("buffer_store_dword v50, v2, s[40:43], 0 offen")
stamp(9)
A("s_branch L_fin")
A("L_sp1:")
A(f"s_sub_u32 s54, {sJ}, 30")
A("s_mul_i32 s54, s54, 640")
A(f"s_mul_i32 s55, {sX}, 1280")
A("s_add_u32 s54, s54, s55")
A(f"s_mul_i32 s55, {sW}, 10240")
A("s_add_u32 s54, s54, s55")
A(f"s_add_u32 s54, s54, {PART - 10240}")
A("v_lshl_add_u32 v5, v1, 4, s54")
A(f"s_cmp_lt_u32 {sW}, 6")
A("s_cselect_b32 s57, 7, 6")
A("s_cselect_b32 s58, 1.0, 0")
A("v_min_u32 v4, s57, v0")
A("v_mul_u32_u24 v4, 71680, v4")
A("v_add_u32 v4, s54, v4")
A("s_mul_i32 s57, s57, 71680")


def part_probe():
    A("s_sleep 2")
    A(f"buffer_load_dwordx2 v[16:17], v4, {WS}, 0 offen sc1")


def part_loads():
    A("s_mov_b32 s56, 0")
    for i in range(8):
        A(f"buffer_load_dwordx4 {vr(16+4*i,4)}, v5, {WS}, {'s57' if i == 7 else 's56'} offen sc1")
        if i < 6:
            A("s_add_u32 s56, s56, 71680")


A("s_barrier")
if OPT["probe"]:
    part_probe()
    A("s_waitcnt vmcnt(0)")
    tag_check("L_pq", [17], part_probe)
stamp(7)
part_loads()
A("s_waitcnt vmcnt(0)")
tag_check("L_pp", [17 + 2*i for i in range(16)], part_loads)
stamp(8)
for c in range(2):
    A(f"v_mul_f32 v{44+2*c}, s58, v{44+2*c}")
for i in (0, 2, 4, 6):
    for c in range(2):
        A(f"v_add_f32 v{16+4*i+2*c}, v{16+4*i+2*c}, v{20+4*i+2*c}")
for c in range(2):
    A(f"v_add_f32 v{16+2*c}, v{16+2*c}, v{24+2*c}")
    A(f"v_add_f32 v{32+2*c}, v{32+2*c}, v{40+2*c}")
A("v_add_f32 v16, v16, v32")
A("v_add_f32 v17, v18, v34")
A(f"s_lshl_b32 s54, {sW}, 9")
A("s_sub_u32 s54, s54, 512")
A("v_lshl_add_u32 v6, v0, 3, s54")
A("ds_write_b64 v6, v[16:17]")
A("s_waitcnt lgkmcnt(0)")
A("s_barrier")
A("s_branch L_fin")

A("L_lntail:")
after_kernarg()
stamp(1)
A("v_lshrrev_b32 v7, 2, v5")
A("v_lshl_add_u32 v7, v7, 4, v5")
A("v_lshlrev_b32 v7, 2, v7")
A("s_lshl_b32 s55, s99, 6")
A(f"s_add_u32 s55, s55, {ESTAT}")
A("v_lshl_add_u32 v122, v1, 3, s55")
A("s_lshl_b32 s56, s99, 3")
A("s_sub_u32 s56, 2047, s56")
A("v_sub_u32 v9, s56, v1")
for r, m in ((40, 0x22222222), (42, 0x44444444), (44, 0x88888888), (46, 0xff00ff00)):
    A(f"s_mov_b32 s{r}, {m:#x}")
    A(f"s_mov_b32 s{r+1}, {m:#x}")
A("s_lshl_b32 s55, s99, 4")
A(f"s_add_u32 s55, s55, {CAND}")
A("v_mov_b32 v8, s55")
for s in range(10):
    A(f"s_waitcnt vmcnt({19-s})")
    c = "0" if s == 0 else "v[100:103]"
    A(f"v_mfma_f32_16x16x32_bf16 v[100:103], {vr(16+4*s,4)}, {vr(16+4*s,4)}, {c}")
stamp(2)
for s in range(10):
    A(f"s_waitcnt vmcnt({9-s})")
    c = "0" if s == 0 else "v[104:107]"
    A(f"v_mfma_f32_16x16x32_bf16 v[104:107], {vr(56+4*s,4)}, {vr(16+4*s,4)}, {c}")
    c = "0" if s == 0 else "v[108:111]"
    A(f"v_mfma_f32_16x16x32_bf16 v[108:111], {vr(56+4*s,4)}, v[96:99], {c}")
    if s == 3:
        A("v_cndmask_b32 v100, v100, v101, s[40:41]")
        A("v_cndmask_b32 v100, v100, v102, s[42:43]")
        A("v_cndmask_b32 v100, v100, v103, s[44:45]")
        A("ds_bpermute_b32 v100, v7, v100")
stamp(9)
make_tag()
ROR8 = "row_ror:8 row_mask:0xf bank_mask:0xf"
A(f"v_add_f32_dpp v100, v100, v100 {ROR8}")
A("v_mul_f32 v100, 0x3acccccd, v100")
A(f"v_mov_b32 v121, {sTAG}")
A("v_mov_b32 v14, 0")
A(f"v_add_f32_dpp v104, v104, v104 {ROR8}")
A("v_cndmask_b32 v105, v105, v106, s[46:47]")
A("v_mul_f32 v104, 0x3acccccd, v104")
A("v_add_f32 v109, v109, v110")
A("v_fma_f32 v100, -v104, v104, v100")
A(f"v_add_f32_dpp v105, v105, v105 {ROR8}")
A("v_max_f32 v100, 0, v100")
A("v_cvt_pk_bf16_f32 v104, v104, v100")
A(f"v_and_b32 v100, {sHI}, v104")
A("v_add_f32 v100, 0x3727c5ac, v100")
A("v_cvt_pk_bf16_f32 v100, v100, v100")
A(f"v_and_b32 v100, {sHI}, v100")
A("v_sqrt_f32 v100, v100")
A("v_lshlrev_b32 v106, 16, v104")
A("v_cvt_pk_bf16_f32 v120, v106, v100")
A(f"v_and_b32 v100, {sHI}, v120")
A("v_rcp_f32 v100, v100")
A("v_fma_f32 v105, -v106, v109, v105")
A("v_mul_f32 v105, v105, v100")
A("v_cvt_pk_bf16_f32 v105, v105, v105")
A("v_ashrrev_i32 v106, 31, v105")
A("v_or_b32 v106, 0x80000000, v106")
A("v_xor_b32 v105, v105, v106")
A(f"v_and_or_b32 v12, v105, {sHI}, v9")
merge_dpp(12, (1, 2, 4))
A(f"v_mov_b32 v13, {sTAG}")
A(f"v_mov_b32 v15, {sTAG}")
setexec(1)
A(f"buffer_store_dwordx4 v[12:15], v8, {WS}, 0 offen sc1")
setexec(0xff)
A(f"buffer_store_dwordx2 v[120:121], v122, {WS}, 0 offen sc1")
setexec(ALL)
stamp(8)
A("s_cmp_lt_u32 s63, 8")
A("s_cbranch_scc1 L_moe0")
A(f"s_cmp_ge_u32 {sJ}, 20")
A("s_cbranch_scc1 L_h0")
A("s_lshl_b32 s54, s53, 14")
A(f"s_mul_i32 s55, s53, {4*KS}")
A(f"s_add_u32 s55, s55, {KVT}")
A("v_and_b32 v2, 31, v0")
A("v_min_u32 v2, 19, v2")
A("v_lshl_add_u32 v2, v2, 7, s55")
A("v_lshrrev_b32 v3, 5, v0")
A(f"v_mul_u32_u24 v3, {KS}, v3")
A("v_add_u32 v2, v2, v3")
A(f"s_lshl_b32 s55, {sX}, 11")
A(f"s_add_u32 s55, s55, {FLG}")
A("v_and_b32 v3, 15, v0")
A("v_lshl_add_u32 v3, v3, 7, s55")
A(f"s_movk_i32 s55, {2*KS}")
if not OPT["nopre"]:
    A(f"buffer_load_dword v127, v2, {WS}, 0 offen sc1")
    A(f"buffer_load_dword v127, v2, {WS}, s55 offen sc1")
A(f"buffer_load_dword v127, v3, {WS}, 0 offen sc1")
srd(48, pH, TBYTES)
A("v_lshlrev_b32 v2, 4, v0")
for c in range(0 if OPT["noh"] else 4):
    A(f"s_mov_b32 m0, {LA + c*A_C + 3*A_CP + 48}")
    for i in range(4):
        A(f"buffer_load_dwordx4 v2, s[48:51], s54 offen offset:{1024*i} lds")
    A("s_add_u32 s54, s54, 4096")
stamp(11)
A("L_b1:")
A("s_lshl_b32 s59, s2, 7")
A(f"s_add_u32 s59, s59, {ARR}")
A(f"v_mov_b32 v10, {sTAG}")
A(f"v_mov_b32 v11, {sXCC}")
A("v_mov_b32 v12, s59")
A("s_barrier")
setexec(1)
A(f"buffer_store_dwordx2 v[10:11], v12, {WS}, 0 offen sc1")
setexec(ALL)
A(f"s_cmp_lt_u32 {sJ}, 20")
A("s_cbranch_scc1 L_kvdone")
for _ in range(NR - 1):
    A("s_barrier")
A("s_branch L_kvdone")
A("L_h0:")
A(f"s_lshl_b32 s55, {sX}, 11")
A("s_lshl_b32 s57, s58, 3")
A("s_add_u32 s57, s57, s55")
A(f"s_add_u32 s57, s57, {FLG}")
A(f"v_mov_b32 v10, {sTAG}")
A(f"v_mov_b32 v11, {sXCC}")
A("v_mov_b32 v12, s57")
setexec(1)
A(f"buffer_store_dwordx2 v[10:11], v12, {WS}, 0 offen")
setexec(ALL)
if OPT["bl"]:
    A("s_barrier")
A("s_branch L_b1")

A("L_slowsync:")
A(f"v_min_u32 v4, {NP1-1}, v0")
A("v_add_u32 v5, 8, v4")
A("v_cmp_gt_u32 vcc, 20, v4")
A("v_cndmask_b32 v4, v5, v4, vcc")
A("v_lshlrev_b32 v4, 10, v4")
A(f"s_lshl_b32 s57, {sX}, 7")
A(f"s_add_u32 s57, s57, {ARR}")
A(f"buffer_load_dwordx2 v[2:3], v4, {WS}, s57 offen sc1")
A("s_waitcnt vmcnt(0)")
A(f"v_cmp_eq_u32 vcc, {sTAG}, v2")
A(f"v_cmp_ne_u32 s[56:57], {sXCC}, v3")
A("s_and_b64 vcc, vcc, s[56:57]")
A("s_cbranch_scc1 L_fb")
A(f"s_cmp_lt_u32 s59, {POLL_LIMIT}")
A("s_cbranch_scc1 L_poll")
A("s_branch L_synced")
A("L_fb:")
A(f"s_mov_b32 s57, {FLB}")
A(f"s_mov_b32 s60, {YT2}")
A(f"s_mov_b32 s61, {FLB}")
A(f"s_cmp_lg_u32 {sW}, 0")
A("s_cbranch_scc1 L_nowb")
A("buffer_wbl2 sc1")
A("s_waitcnt vmcnt(0)")
setexec(1)
A(f"buffer_store_dwordx2 v[10:11], v12, {WS}, s57 offen sc1")
setexec(ALL)
A("L_nowb:")
A(f"s_cmp_ge_u32 {sJ}, 20")
A("s_cbranch_scc1 L_synced")
A("s_mov_b32 s59, 0")
A("L_pollb:")
A(f"buffer_load_dwordx2 v[2:3], v1, {WS}, s57 offen sc1")
A("s_add_u32 s59, s59, 1")
A("s_waitcnt vmcnt(0)")
A(f"v_cmp_eq_u32 vcc, {sTAG}, v2")
A("s_cmp_eq_u64 vcc, -1")
A("s_cbranch_scc1 L_bok")
A("s_sleep 2")
A(f"s_cmp_lt_u32 s59, {POLL_LIMIT}")
A("s_cbranch_scc1 L_pollb")
A("L_bok:")
A("buffer_inv sc1")
A("s_waitcnt vmcnt(0)")
A("s_branch L_synced")

A("L_hi4:")
A(f"s_cmp_lt_u32 {sJ}, 20")
A("s_cbranch_scc1 L_mfma")
A(f"s_cmp_ge_u32 {sJ}, 30")
A("s_cbranch_scc1 L_special")
A(f"s_cmp_lg_u32 s2, {28*8}")
A("s_cbranch_scc1 L_fin")
A(f"s_cmp_lg_u32 {sW}, 7")
A("s_cbranch_scc1 L_fin")
A("v_lshlrev_b32 v1, 7, v0")
for i in range(4):
    A(f"s_mov_b32 s{54+i}, {ARR + 8192*i}")


def arr_loads():
    A("s_sleep 8")
    for i in range(4):
        A(f"buffer_load_dword v{6+i}, v1, {WS}, s{54+i} offen sc1")


arr_loads()
A("s_waitcnt vmcnt(0)")
tag_check("L_ep", [6, 7, 8, 9], arr_loads)
A(f"v_mov_b32 v10, {sTAG}")
A(f"v_mov_b32 v11, {EPOCH}")
setexec(1)
A(f"buffer_store_dword v10, v11, {WS}, 0 offen sc1")
setexec(ALL)
A("s_branch L_fin")

A("L_mfma:")
A(f"s_sub_u32 s53, {sW}, 4")
A(f"s_mul_i32 s54, s53, {A_C}")
A("v_lshl_add_u32 v8, v0, 4, s54")
for i in range(4):
    A(f"ds_read_b128 {vr(16+16*i,4)}, v8 offset:{3*A_CP + 32 + 1024*i}")
    A(f"ds_read_b128 {vr(20+16*i,4)}, v8 offset:{3*A_CP + 48 + 1024*i}")
for i in range(4):
    b = 16 + 16*i
    A(f"s_waitcnt lgkmcnt({6 + i})")
    A(f"ds_write_b128 v8, {vr(b+2,4)} offset:{A_CP + 48 + 1024*i}")
    for q in range(6):
        A(f"v_mov_b32 v{b+8+q}, v{b+1+q}")
    A(f"ds_write_b128 v8, {vr(b+8,4)} offset:{48 + 1024*i}")
    A(f"ds_write_b128 v8, {vr(b+10,4)} offset:{2*A_CP + 48 + 1024*i}")
A("v_and_b32 v6, 3, v0")
A(f"v_mul_u32_u24 v1, {A_CP}, v6")
A("v_bfe_u32 v6, v0, 2, 2")
A("v_lshrrev_b32 v7, 4, v0")
A("v_add_u32 v6, v6, v7")
A("v_lshl_add_u32 v1, v6, 4, v1")
A("v_add_u32 v1, s54, v1")
A("v_and_b32 v6, 1, v0")
A(f"v_mul_u32_u24 v2, {U_P}, v6")
A("v_bfe_u32 v6, v0, 1, 3")
A("v_lshlrev_b32 v6, 2, v6")
A("v_sub_u32 v6, v6, v7")
A("v_lshl_add_u32 v2, v6, 4, v2")
A(f"s_mul_i32 s54, s53, {U_C}")
A(f"s_add_u32 s54, s54, {LU + 48}")
A("v_add_u32 v2, s54, v2")
A("v_bfe_u32 v6, v0, 1, 3")
A("v_lshl_add_u32 v6, v6, 2, v7")
A("v_and_b32 v5, 1, v0")
A("v_lshlrev_b32 v4, 4, v6")
A("v_lshl_add_u32 v4, v5, 3, v4")
A(f"s_mul_i32 s54, s62, {KS}")
A("v_add_u32 v4, s54, v4")
A(f"s_mul_i32 s54, {sX}, {2048 - 320}")
A("s_lshl_b32 s55, s62, 2")
A("s_add_u32 s54, s54, s55")
A("v_mov_b32 v5, s54")
A(f"v_mov_b32 v6, {sTAG}")
A(f"v_mov_b32 v7, {LF}")
A("s_bitcmp1_b32 s62, 0")
A("s_cselect_b32 s54, 16, 0")
A("s_lshr_b32 s63, s63, s54")
A("s_and_b32 s63, s63, 0xffff")
A("v_lshrrev_b32 v12, 4, v0")
A("v_and_b32 v13, 15, v0")
A("v_lshl_add_u32 v12, v12, 2, v13")
A("v_mov_b32 v13, s63")
for i in range(4):
    A(f"v_cmp_eq_u32 vcc, {15-i}, v12")
    A(f"v_cndmask_b32 v{8+i}, 0, v13, vcc")
A("s_lshl_b32 s54, s53, 2")
A(f"s_add_u32 s54, s54, {LF + 16}")
A("v_mov_b32 v12, s54")
A("v_mov_b32 v13, 0")
A("ds_write2_b32 v12, v13, v13 offset0:0 offset1:4")
A(f"s_mov_b32 s60, {KVT}")
A(f"s_mov_b32 s61, {FLG}")
A(f"s_mov_b32 s56, {YT2}")
A(f"s_mov_b32 s57, {FLB}")
A("s_waitcnt lgkmcnt(0)")
n = 0
for rho in range(OPT["resid"]):
    for a in range(4):
        A(f"ds_read_b128 a[{(rho*4+a)*4}:{(rho*4+a)*4+3}], v1 offset:{64*rho + 512*a}")
        n += 1
        if n % 8 == 0:
            A("s_waitcnt lgkmcnt(7)")
if OPT["malign"]:
    A("s_branch L_mbody")
    SLOW_AT = len(A.lines)
    A(".p2align 12")
    A("L_mbody:")
stamp(5)
if OPT["prio"]:
    A(f"s_setprio {OPT['prio']}")
A("s_waitcnt lgkmcnt(0)")
A("s_barrier")
if PROF:
    A("s_memtime s[90:91]")
stamp(6, True)


slow_sites = []


def ystore(txt_fast, txt_slow):
    k = len(slow_sites)
    slow_sites.append(txt_slow)
    return f"s_cbranch_scc1 L_ys{k}\n{txt_fast}\nL_yr{k}:"


def mfma_schedule():
    passes = [((0, 1, 2, 3), range(0, 4)), ((4, 5, 6, 7), range(0, 5)), ((5, 6, 7), range(5, 7)), ((7,), range(7, 8))]
    seq = []
    for pi, (tiles, bs) in enumerate(passes):
        for rho in range(8):
            for b in bs:
                for n in tiles:
                    if n >= b:
                        a = n - b
                        ak = ("A", a, rho) if a <= 3 else ("A", a, rho, pi)
                        seq.append((pi, n, ak, ("B", b, rho, pi)))
                        if a == 0 and rho == 0:
                            seq.append((pi, n, ("D",), ("B", b, rho, pi)))
    N = len(seq)
    end = [max(i for i, e in enumerate(seq) if e[0] == pi) for pi in range(4)]
    reg, pos = {}, {}
    side = {}

    def put(i, key, fn):
        while len(side.get(i, [])) >= 1 and i < N - 1:
            i += 1
        side.setdefault(i, []).append((key, fn))
        return i

    def acc(n, t):
        return 96 + 4*n + t

    def pack_store(n, i):
        i = put(i, None, lambda n=n: f"v_cvt_pk_bf16_f32 v{acc(n,0)}, v{acc(n,0)}, v{acc(n,1)}")
        i = put(i, None, lambda n=n: f"v_cvt_pk_bf16_f32 v{acc(n,1)}, v{acc(n,2)}, v{acc(n,3)}")
        return put(i, None, lambda n=n: ystore(
            f"buffer_store_dwordx2 {vr(acc(n,0),2)}, v4, {WS}, s60 offen offset:{512*n}" + (" sc1" if OPT["ya"] and n < 4 else ""),
            f"buffer_store_dwordx2 {vr(acc(n,0),2)}, v4, {WS}, s56 offen offset:{512*n} sc1"))

    def flag(pi, i):
        return put(i, None, lambda pi=pi: "s_waitcnt vmcnt(0)\ns_mov_b64 exec, 1\n" + ystore(
            f"buffer_store_dword v6, v5, {WS}, s61 offen offset:{512*(pi+1)}",
            f"buffer_store_dword v6, v5, {WS}, s57 offen offset:{512*(pi+1)} sc1") + "\ns_mov_b64 exec, -1" + ("\ns_memrealtime s[82:83]" if PROF and pi == 0 else ""))

    put(24, ("M",), lambda: f"v_readfirstlane_b32 s54, v15\ns_cmp_lg_u32 s54, {FLG}")
    i = end[0] + 5
    for n in passes[0][0]:
        i = pack_store(n, i)
    flag(0, i + OPT["ackgap"])

    FENCE = end[1] - 9
    put(FENCE, ("K", 0, 0, 0), lambda: "v_cmp_eq_u32 vcc, 0, v14\ns_cbranch_vccnz L_s2wait\nL_s2go:")
    FENCE2 = FENCE
    put(end[2] - 4, ("K", 1, 0, 0), lambda: "v_cmp_eq_u32 vcc, 0, v14\ns_cbranch_vccnz L_s3wait\nL_s3go:")
    pack_store(4, end[2] - 3)
    pack_store(5, end[2] + 3)
    first, last = {}, {}
    for i, (_, _, ak, bk) in enumerate(seq):
        ks = [k for k in (bk, ak) if len(k) == 4 or (len(k) == 3 and k[2] >= OPT["resid"])]
        ks += [k for k, _ in side.get(i, []) if k and k[0] == "K"]
        for k in ks:
            first.setdefault(k, i)
            last[k] = i
    loads = sorted(first, key=lambda k: (first[k], k[0] != "B"))
    free = [16 + 4*s for s in range(20)]
    issued = []
    st = dict(done=0, li=0)
    LOOK, SETTLE = OPT["look"], OPT["settle"]
    started = set()

    def rname(k):
        if len(k) == 1:
            return "v[8:11]"
        if len(k) == 3:
            return f"a[{(k[2]*4 + k[1])*4}:{(k[2]*4 + k[1])*4 + 3}]"
        return vr(reg[k], 4)

    def issue_loads(i, maxn):
        cnt = 0
        while st["li"] < len(loads) and cnt < maxn:
            k = loads[st["li"]]
            if first[k] > i + LOOK or len(issued) - st["done"] >= 14 or not free:
                break
            if k[0] == "B" and k[3] == 2 and i < FENCE:
                break
            if k[0] == "B" and k[3] == 3 and i < FENCE2:
                break
            if k[0] == "K" and first[k] > i + 8:
                break
            if len(k) == 4:
                reg[k] = free.pop(0)
            if k[0] == "A":
                A(f"ds_read_b128 {rname(k)}, v1 offset:{64*k[2] + 512*k[1]}")
            elif k[0] == "B":
                A(f"ds_read_b128 {rname(k)}, v2 offset:{512*k[1] + 64*(7-k[2])}")
            else:
                A(f"ds_read_b32 v14, v12 offset:{16*k[1]}")
            pos[k] = len(issued)
            issued.append((k, i))
            st["li"] += 1
            cnt += 1

    def wait_for(keys, i):
        needp = max([pos[k] for k in keys if k in pos] + [-1]) + 1
        for k in keys:
            assert k in pos or k not in first, (k, i)
        if needp > st["done"]:
            tgt = needp
            while tgt < len(issued) and issued[tgt][1] <= i - SETTLE:
                tgt += 1
            A(f"s_waitcnt lgkmcnt({len(issued) - tgt})")
            st["done"] = tgt

    issue_loads(-1, 10)
    A("ds_read_b32 v15, v7")
    pos[("M",)] = len(issued)
    issued.append((None, -1))
    for i, (pi, n, ak, bk) in enumerate(seq):
        wait_for([ak, bk] + [k for k, _ in side.get(i, []) if k], i)
        a_ = vr(96 + 4*n, 4)
        c = a_ if n in started else "0"
        started.add(n)
        A(f"v_mfma_f32_16x16x32_bf16 {a_}, {rname(ak)}, {rname(bk)}, {c}")
        for k, fn in side.get(i, []):
            t_ = fn()
            if not (OPT["noside"] and t_.startswith("v_") and "readfirst" not in t_):
                A(t_)
        for k in list(reg):
            if last[k] == i:
                free.append(reg[k])
        behind = st["li"] < len(loads) and first[loads[st["li"]]] <= i + 8
        issue_loads(i, OPT["maxn"] + (1 if behind else 0))
    side.clear()
    i = N - 1
    for n in (6, 7):
        pack_store(n, i)
    put(i, None, lambda: "s_barrier")
    flag(1, i)
    if PROF:
        A("s_memtime s[92:93]")
    stamp(8)
    for k, fn in side[N-1]:
        A(fn())


mfma_schedule()
stamp(7)
A("s_branch L_fin")
_sl = []
for q_ in (2, 3):
    _sl += [f"L_s{q_}wait:", "s_mov_b32 s59, 0", f"L_s{q_}w:", f"ds_read_b32 v14, v12 offset:{16*(q_-2)}",
            "s_cselect_b32 s58, 1, 0", "s_add_u32 s59, s59, 1", f"s_cmp_ge_u32 s59, {16*POLL_LIMIT}",
            "s_cselect_b32 s54, 1, 0", "s_cmp_lg_u32 s58, 0", "s_waitcnt lgkmcnt(0)", "v_or_b32 v14, s54, v14",
            "v_cmp_eq_u32 vcc, 0, v14", f"s_cbranch_vccnz L_s{q_}w", f"s_branch L_s{q_}go"]
for k, t in enumerate(slow_sites):
    _sl += [f"L_ys{k}:", t, f"s_branch L_yr{k}"]
if OPT["malign"]:
    A.lines[SLOW_AT:SLOW_AT] = _sl
else:
    A.lines += _sl

A("L_nonp1:")
A("v_lshrrev_b32 v1, 2, v0")
A("v_mul_u32_u24 v1, 3456, v1")
A("v_lshrrev_b32 v2, 4, v0")
A("v_and_b32 v2, 2, v2")
A("v_and_b32 v3, 3, v0")
A("v_xor_b32 v2, v2, v3")
A("v_lshl_add_u32 v100, v2, 4, v1")
moe_decode()
A("s_add_u32 s53, s63, s56")
A("s_cmp_ge_u32 s63, s54")
A("s_cselect_b32 s58, 100, -1")
A(f"s_add_u32 s58, s58, {sW}")
A(f"s_mul_i32 s55, s58, {160*3456}")
A("s_lshl_b32 s56, s53, 6")
A("s_add_u32 s55, s55, s56")
A("s_mul_i32 s54, s58, 10240")
A("s_bitcmp1_b32 s53, 0")
A("s_cselect_b32 s96, 5, 0")
A(f"s_mul_i32 s62, s96, {16*3456}")
A("s_add_u32 s55, s55, s62")
A("s_lshl_b32 s96, s96, 10")
A("s_add_u32 s54, s54, s96")
A("s_lshl_b32 s62, s62, 1")
A("s_lshl_b32 s96, s96, 1")
after_kernarg()
srd(40, pWG, WBYTES)
srd(44, pWU, WBYTES)
srd(48, pWD, WBYTES)
if OPT["bq"]:
    A("s_barrier")
gu, dn = [], []
for i in range(10):
    pre = ["s_sub_u32 s55, s55, s62", "s_sub_u32 s54, s54, s96"] if i == 5 else []
    gu.append(pre + [f"s_add_u32 m0, s54, {LWG + 1024*i}", "buffer_load_dwordx4 v100, s[40:43], s55 offen lds"])
    gu.append([f"s_add_u32 m0, s54, {LWU + 1024*i}", "buffer_load_dwordx4 v100, s[44:47], s55 offen lds",
               f"s_add_u32 s55, s55, {16*3456}"])
    dn.append([f"s_add_u32 m0, s98, {LWD + 4096*i}", f"buffer_load_dwordx4 v{101+i}, s[48:51], s97 offen lds"])
NB1 = OPT["nb1"]
wl = gu[:10] + dn[:NB1] + gu[10:] + dn[NB1:]
A("s_mul_i32 s97, s53, 40960")
A("s_lshl_b32 s98, s58, 10")
A("s_cmp_ge_u32 s58, 4")
A("s_cbranch_scc1 L_noe")
for g in wl[:OPT["early"]]:
    for t in g:
        A(t)
A("L_noe:")
A("v_subrev_u32 v9, 64, v9")
for k in range(11):
    A(f"v_add_u32 v1, {256*k}, {'v0' if k == 10 else 'v9'}")
    A("v_mul_u32_u24 v2, 1599, v1")
    A("v_lshrrev_b32 v2, 17, v2")
    A("v_mul_u32_u24 v3, 82, v2")
    A("v_sub_u32 v1, v1, v3")
    A("v_min_u32 v1, 79, v1")
    A("v_mul_u32_u24 v2, 1280, v2")
    A(f"v_lshl_add_u32 v{101+k}, v1, 4, v2")
make_tag()
A("s_cmp_lt_u32 s58, 100")
A("s_cbranch_scc1 L_moe")
A("s_barrier")
A("s_branch L_fin")
A("L_moe0:")
moe_decode()
A("s_add_u32 s53, s63, s56")
A("s_mov_b32 s58, -1")
A("s_cmp_lt_u32 s63, s54")
A("s_cbranch_scc1 L_moe")
A("s_barrier")
A(f"s_cmp_lg_u32 {sW}, 0")
A("s_cbranch_scc1 L_fin")
arr_store()
A("s_branch L_fin")

A("L_moe:")
A("s_mov_b32 s57, 0x3f803f80")
for i in range(4):
    A(f"v_mov_b32 v{16+i}, s57")
A(f"s_mov_b32 s57, {LX + 2*X_P}")
A("v_lshl_add_u32 v2, v0, 4, s57")
A("ds_write_b128 v2, v[16:19]")
A("ds_write_b128 v2, v[16:19] offset:256")
A("v_bfe_u32 v1, v0, 3, 1")
A("v_lshrrev_b32 v2, 4, v0")
A("v_bfe_u32 v10, v0, 2, 2")
A("v_and_b32 v11, 3, v0")
A("v_lshl_add_u32 v14, v2, 3, v10")
A(f"v_mul_u32_u24 v12, {WD_P}, v14")
A(f"s_mul_i32 s57, {sW}, 160")
A(f"s_add_u32 s57, s57, {LWD}")
A("v_lshl_add_u32 v13, v11, 3, s57")
A("v_add_u32 v12, v12, v13")
A(f"s_and_b32 s60, {sW}, 1")
A(f"s_lshr_b32 s61, {sW}, 1")
A("v_lshlrev_b32 v14, 6, v14")
A("v_lshrrev_b32 v15, 1, v11")
A(f"v_mul_u32_u24 v15, {LWU}, v15")
A("v_add_u32 v14, v14, v15")
A("v_and_b32 v15, 1, v11")
A("v_lshl_add_u32 v14, v15, 3, v14")
A("v_and_b32 v15, 1, v2")
A("v_lshlrev_b32 v15, 1, v15")
A("v_xor_b32 v15, s61, v15")
A("v_lshl_add_u32 v14, v15, 4, v14")
A(f"s_mul_i32 s57, s60, {320*64}")
A("v_add_u32 v14, s57, v14")
A("v_and_b32 v10, 7, v0")
A("v_lshl_add_u32 v11, v2, 3, v10")
A("v_lshlrev_b32 v11, 2, v11")
A(f"v_add_u32 v37, {LRED + 512}, v11")
A("v_lshl_add_u32 v36, v1, 8, v11")
A(f"v_add_u32 v36, {LRED}, v36")
A("v_and_b32 v18, 1, v10")
A("v_mov_b32 v19, 0xffff")
A(f"v_mov_b32 v20, {sHI}")
A("v_cmp_eq_u32 vcc, 1, v18")
A("v_cndmask_b32 v18, v19, v20, vcc")
A("v_lshrrev_b32 v13, 1, v10")
for i in range(4):
    A(f"v_cmp_eq_u32 vcc, {i}, v13")
    A(f"v_cndmask_b32 v{80+i}, 0, v18, vcc")
A("v_and_b32 v38, 15, v0")
A("v_lshlrev_b32 v38, 8, v38")
A("v_lshrrev_b32 v39, 1, v2")
A("v_lshl_add_u32 v38, v39, 7, v38")
A("v_and_b32 v39, 1, v2")
A("v_lshl_add_u32 v38, v39, 4, v38")
A("s_mul_i32 s57, s60, 768")
A("s_lshl_b32 s59, s61, 5")
A("s_add_u32 s57, s57, s59")
A(f"s_add_u32 s57, s57, {LRED}")
A("v_add_u32 v38, s57, v38")
A("v_mul_u32_u24 v39, 640, v1")
A("v_lshl_add_u32 v39, v10, 4, v39")
A("v_mul_u32_u24 v15, 80, v2")
A("v_add_u32 v39, v39, v15")
A("s_mul_i32 s57, s53, 10240")
A(f"s_mul_i32 s59, {sW}, 1280")
A("s_add_u32 s57, s57, s59")
A(f"s_add_u32 s57, s57, {PART}")
A("v_add_u32 v39, s57, v39")
A(f"s_mov_b32 s57, {LK}")
A("v_lshl_add_u32 v13, v1, 2, s57")
A("v_and_b32 v6, 15, v0")
A("v_min_u32 v6, 2, v6")
A(f"v_mul_u32_u24 v6, {X_P}, v6")
A("s_mul_i32 s57, s60, 640")
A(f"s_add_u32 s57, s57, {LX}")
A("v_lshl_add_u32 v7, v2, 4, s57")
A("v_add_u32 v6, v6, v7")
for i in range(4):
    A(f"v_mov_b32 v{85+2*i}, {sTAG}")
A("s_cmp_ge_u32 s58, 4")
A("s_cbranch_scc1 L_noload")
srd(40, pWG, WBYTES)
srd(44, pWU, WBYTES)
srd(48, pWD, WBYTES)
for n_, g in enumerate(wl):
    if n_ < OPT["early"]:
        continue
    if n_ < 10 + NB1:
        A(f"s_waitcnt vmcnt({OPT['pace']})")
    if n_ == 20 + NB1:
        A("s_barrier")
    for t in g:
        A(t)
    if n_ == OPT["mp"] + NB1 - 1:
        A("s_barrier")
        A("s_barrier")
A(f"s_waitcnt vmcnt({10 - NB1})")
stamp(4)
A("s_branch L_nopoll")
A("L_noload:")
A("s_barrier")
A(f"s_cmp_eq_u32 {sW}, 0")
A("s_cbranch_scc1 L_poller")
A("s_barrier")
A("s_barrier")
A(f"s_cmp_lg_u32 {sW}, 5")
A("s_cbranch_scc1 L_nopoll")
srd(48, pWD, WBYTES)
A(f"s_mov_b32 m0, {LWD + 40960}")
A("buffer_load_dwordx4 v111, s[48:51], s97 offen lds")
arr_store()
A("s_branch L_nopoll")
A("L_poller:")
A("v_lshlrev_b32 v32, 4, v0")
A(f"s_mov_b32 s58, {CAND}")
if OPT["polldelay"]:
    A(f"s_sleep {OPT['polldelay']}")
cand_loads(16, 32, "s58", " sc1")
A("s_barrier")
srd(40, pQ, TBYTES)
A("s_waitcnt vmcnt(0)")
tag_check("L_cm", [17 + 2*i for i in range(8)], lambda: cand_loads(16, 32, "s58", " sc1"))
top2_merge(16)
stamp(7)
A("s_andn2_b32 s56, 0x7ff, s54")
A("s_andn2_b32 s57, 0x7ff, s55")
A("s_mul_i32 s56, s56, 1280")
A("s_mul_i32 s57, s57, 1280")
A(f"s_mov_b32 m0, {LX}")
A("buffer_load_dwordx4 v32, s[40:43], s56 offen lds")
setexec(0xffff)
A("buffer_load_dwordx4 v32, s[40:43], s56 offen offset:1024 lds")
setexec(ALL)
A(f"s_mov_b32 m0, {LX + X_P}")
A("buffer_load_dwordx4 v32, s[40:43], s57 offen lds")
setexec(0xffff)
A("buffer_load_dwordx4 v32, s[40:43], s57 offen offset:1024 lds")
setexec(ALL)
A("v_mov_b32 v16, s54")
A("v_mov_b32 v17, s55")
A("v_cmp_eq_u32 vcc, 1, v1")
A("v_cndmask_b32 v5, v16, v17, vcc")
A("v_not_b32 v3, v5")
A("v_and_b32 v7, 0x7ff, v3")
A("v_lshlrev_b32 v7, 3, v7")
A(f"s_mov_b32 s57, {ESTAT}")


def mstat():
    A(f"buffer_load_dwordx2 v[8:9], v7, {WS}, s57 offen sc1")


mstat()
A("s_andn2_b32 s56, 0x7ff, s54")
A("s_andn2_b32 s58, 0x7ff, s55")
A(f"s_cmp_lg_u32 {sJ}, 20")
A("s_cbranch_scc1 L_ntp")
A("s_lshl_b32 s59, s58, 16")
A("s_or_b32 s59, s59, s56")
A("v_mov_b32 v16, s59")
A(f"s_lshl_b32 s59, {sX}, 7")
A(f"s_add_u32 s59, s59, {TOP}")
A(f"v_mov_b32 v17, {sTAG}")
A("v_mov_b32 v3, s59")
setexec(1)
A(f"buffer_store_dwordx2 v[16:17], v3, {WS}, 0 offen sc1")
setexec(ALL)
A("L_ntp:")
A("s_barrier")
A(f"v_and_b32 v5, {sHI}, v5")
A("v_ashrrev_i32 v10, 31, v5")
A("v_not_b32 v10, v10")
A("v_or_b32 v10, 0x80000000, v10")
A("v_xor_b32 v5, v5, v10")
A(f"v_and_b32 v5, {sHI}, v5")
A("v_mul_f32 v5, 0xbfb8aa3b, v5")
A("v_exp_f32 v5, v5")
A("v_add_f32 v5, 1.0, v5")
A("v_rcp_f32 v5, v5")
A(f"s_cmp_eq_u32 {sJ}, 20")
A("s_cbranch_scc1 L_w1")
A("s_waitcnt vmcnt(0)")
A("L_w1:")
A("s_waitcnt vmcnt(1)")
tag_check("L_ms", [9], mstat)
A("ds_write2_b32 v13, v5, v8 offset0:0 offset1:2")
stamp(11)
A("L_nopoll:")
for t in range(1, 5):
    m = (1 << t) * 0x01010101
    A(f"s_mov_b32 s{40+2*t}, {m:#x}")
    A(f"s_mov_b32 s{41+2*t}, {m:#x}")
A("s_waitcnt lgkmcnt(0)")
stamp(5)
A("s_barrier")
stamp(6, True)
for s in range(10):
    A(f"ds_read_b64_tr_b16 a[{4*s}:{4*s+1}], v14 offset:{2048*s}")
    A(f"ds_read_b64_tr_b16 a[{4*s+2}:{4*s+3}], v14 offset:{2048*s + 256}")
    A(f"ds_read_b128 {vr(40+4*s,4)}, v6 offset:{64*s}")
    if s >= 4:
        q = s - 4
        A("s_waitcnt lgkmcnt(12)")
        c = "0" if q == 0 else "v[28:31]"
        A(f"v_mfma_f32_16x16x32_bf16 v[28:31], a[{4*q}:{4*q+3}], {vr(40+4*q,4)}, {c}")
A("ds_read2_b32 v[4:5], v13 offset0:2 offset1:0")
for q in range(6, 10):
    A(f"s_waitcnt lgkmcnt({3*(9-q) + 1})")
    A(f"v_mfma_f32_16x16x32_bf16 v[28:31], a[{4*q}:{4*q+3}], {vr(40+4*q,4)}, v[28:31]")
A("s_waitcnt lgkmcnt(0)")
A(f"v_and_b32 v9, {sHI}, v4")
A("v_lshlrev_b32 v8, 16, v4")
A("v_rcp_f32 v9, v9")
A("v_mul_f32 v5, v5, v9")
setexec(0x0007000700070007)
A("ds_write_b128 v38, v[28:31]")
setexec(ALL)
A("s_waitcnt lgkmcnt(0)")
A("s_barrier")
stamp(3, True)
A("ds_read2_b32 v[28:29], v36 offset0:0 offset1:32")
A("ds_read2_b32 v[30:31], v36 offset0:192 offset1:224")
A("ds_read2_b32 v[32:33], v37 offset0:0 offset1:32")
A("ds_read2_b32 v[34:35], v37 offset0:192 offset1:224")
A("s_waitcnt lgkmcnt(2)")
A("v_add_f32 v28, v28, v30")
A("v_add_f32 v29, v29, v31")
A("s_waitcnt lgkmcnt(0)")
A("v_add_f32 v32, v32, v34")
A("v_add_f32 v33, v33, v35")
A("v_fma_f32 v28, -v8, v32, v28")
A("v_fma_f32 v29, -v8, v33, v29")
A("v_mul_f32 v28, v28, v9")
A("v_mul_f32 v29, v29, v5")
A("v_mul_f32 v30, 0xbfb8aa3b, v28")
A("v_exp_f32 v30, v30")
A("v_mul_f32 v29, v29, v28")
A("v_add_f32 v30, 1.0, v30")
A("v_rcp_f32 v30, v30")
A("v_mul_f32 v29, v29, v30")
A("v_cvt_pk_bf16_f32 v29, v29, v29")
for i in range(4):
    A(f"v_and_b32 v{32+i}, v29, v{80+i}")
for r in ("quad_perm:[1,0,3,2]", "quad_perm:[2,3,0,1]", "row_half_mirror"):
    for i in range(4):
        A(f"v_or_b32_dpp v{32+i}, v{32+i}, v{32+i} {r} row_mask:0xf bank_mask:0xf")
stamp(9)
A("s_waitcnt vmcnt(0)")
A("s_barrier")
stamp(10, True)
for t in range(5):
    A(f"ds_read_b64_tr_b16 a[{40+4*t}:{41+4*t}], v12 offset:{32*t}")
    A(f"ds_read_b64_tr_b16 a[{42+4*t}:{43+4*t}], v12 offset:{32*t + 4*WD_P}")
for t in range(5):
    A(f"s_waitcnt lgkmcnt({8-2*t})")
    A(f"v_mfma_f32_16x16x32_bf16 {vr(40+4*t,4)}, a[{40+4*t}:{43+4*t}], v[32:35], 0")
for t in range(1, 5):
    for i in range(4):
        A(f"v_cndmask_b32 v{84+2*i if t == 4 else 40+i}, v{40+i}, v{40+4*t+i}, s[{40+2*t}:{41+2*t}]")
setexec(0x1f1f1f1f1f1f1f1f)
A(f"buffer_store_dwordx4 v[84:87], v39, {WS}, 0 offen sc1")
A(f"buffer_store_dwordx4 v[88:91], v39, {WS}, 0 offen offset:320 sc1")
setexec(ALL)
stamp(12)
if OPT["wb"]:
    A(f"s_lshl_b32 s54, {sW}, 5")
    A(f"s_add_u32 s54, s54, {sJ}")
    A("s_cmp_lg_u32 s54, 20")
    A("s_cbranch_scc1 L_fin")
    if OPT["wb"] & 1:
        A("buffer_wbl2 sc1")
        A("s_waitcnt vmcnt(0)")
        stamp(10)
    if OPT["wb"] & 2:
        A("v_min_u32 v1, 39, v0")
        A(f"s_lshl_b32 s54, {sX}, 11")
        A("v_lshl_add_u32 v1, v1, 3, s54")
        A(f"s_mov_b32 s56, {FLG + 1024}")
        A(f"s_mov_b32 s57, {FLB + 1024}")
        A("s_mov_b32 s59, 0")
        A("L_wbp:")
        A("s_add_u32 s59, s59, 1")
        A("s_and_b32 s58, s59, 15")
        A("s_cselect_b32 s58, s56, s57")
        A(f"buffer_load_dwordx2 v[10:11], v1, {WS}, s58 offen sc1")
        A("s_waitcnt vmcnt(0)")
        A(f"v_cmp_ne_u32 vcc, {sTAG}, v10")
        A(f"v_cmp_ne_u32 s[54:55], {sTAG}, v11")
        A("s_or_b64 vcc, vcc, s[54:55]")
        A("s_cbranch_scc0 L_wbok")
        A(f"s_cmp_lt_u32 s59, {POLL_LIMIT}")
        A("s_cbranch_scc1 L_wbp")
        A("L_wbok:")
        A("buffer_wbl2 sc1")

A("L_fin:")
if PROF:
    A("s_waitcnt vmcnt(0)")
    stamp(15)
    A("s_waitcnt lgkmcnt(0)")
    if OPT["diag"] >= 0:
        k = OPT["diag"]
        A(f"s_sub_u32 s53, s{64+2*k}, s64")
        A(f"s_cmp_eq_u32 s{64+2*k}, 0")
        A("s_cselect_b32 s53, 0, s53")
        if OPT["drole"] == 1:
            A(f"s_cmp_ge_u32 {sJ}, 20")
            A("s_cselect_b32 s53, 0, s53")
        if OPT["drole"] == 2:
            A(f"s_sub_u32 s54, {sJ}, 20")
            A("s_cmp_ge_u32 s54, 8")
            A("s_cselect_b32 s53, 0, s53")
        A(f"s_mul_i32 s53, s53, {OPT['dmul']}")
        A("s_add_u32 s53, s53, 4000")
        if OPT["dx"] >= 0:
            A(f"s_cmp_lg_u32 {sX}, {OPT['dx']}")
            A("s_cselect_b32 s53, 0, s53")
        A("L_diag:")
        A("s_sleep 4")
        A("s_memrealtime s[54:55]")
        A("s_waitcnt lgkmcnt(0)")
        A("s_sub_u32 s54, s54, s64")
        A("s_cmp_lt_u32 s54, s53")
        A("s_cbranch_scc1 L_diag")
    A("s_lshl_b32 s53, s2, 3")
    A(f"s_add_u32 s53, s53, {sW}")
    A("s_lshl_b32 s53, s53, 6")
    A(f"s_add_u32 s53, s53, {PROFB}")
    A("v_mov_b32 v1, s53")
    setexec(1)
    for k in range(16):
        A(f"v_mov_b32 v2, s{64+2*k}")
        A(f"buffer_store_dword v2, v1, {WS}, 0 offen offset:{4*k}")
A("L_end:")
A("s_endpgm")
A("L_codeend:")

hdr = open(os.path.join(os.path.dirname(os.path.abspath(__file__)), "..", "cdna_kernels", NAME + ".s.ref")).read().split("\n")
hdr = [l for l in hdr if l.startswith(";") and "@launch" not in l]
out = hdr + [f"; @launch grid=(256,1,1) block=(512,1,1) lds={LDS_BYTES}",
             '.amdgcn_target "amdgcn-amd-amdhsa--gfx950"', ".text", f".globl {NAME}_kernel", ".p2align 8",
             f".type {NAME}_kernel,@function"]
if not PROF:
    A.lines = ["s_endpgm" if l == "s_branch L_fin" else l for l in A.lines]
out += A.padded()
out += ['.section .rodata,"a"', ".p2align 6", f".amdhsa_kernel {NAME}_kernel",
        "  .amdhsa_next_free_vgpr 256", "  .amdhsa_next_free_sgpr 102", "  .amdhsa_accum_offset 128",
        "  .amdhsa_group_segment_fixed_size 0", "  .amdhsa_kernarg_size 112", "  .amdhsa_user_sgpr_count 2",
        "  .amdhsa_user_sgpr_kernarg_segment_ptr 1", "  .amdhsa_system_sgpr_workgroup_id_x 1",
        "  .amdhsa_float_denorm_mode_32 3", ".end_amdhsa_kernel", ""]
open(sys.argv[1], "w").write("\n".join(out))
```

```python
import sys, os
sys.path.insert(0, os.path.dirname(os.path.abspath(__file__)))
from asmlib import Asm

NAME = "parallel_sum__ssm_conv_h3__moe_arch_mod__prompt"
OPT = dict(prof=0, codewarm=2, force_fb=0, diag=-1, dmul=4, prio=2, look=16, settle=7, pace=5, polldelay=0,
           bq=1, resid=4, pace1=1, n1=6, noW=0, nopre=0, noh=0, maxn=1, ackgap=50, mp=10, noepi=0, noside=0, drole=0, outA=0, outB=0, wb=0, sent=70, rot=0, probe=0, malign=1, ya=0, dx=-1, early=2, paced=10, hw=0, lastat=1, ks=4224, sp0=2, tc=9, bl=1, nb1=0, xe=2, one=0, hb=0, ml=1, moal=1, pf=1)
for a in sys.argv[2:]:
    k, v = a.split("=")
    assert k in OPT, k
    OPT[k] = int(v)
PROF = OPT["prof"]

EPOCH, FLG, FLB, CAND, ARR, ESTAT, PART = 0, 0x1000, 0x5000, 0x9000, 0x10000, 0x18000, 0x20000
TOP = 0xA000
KVT, YT2, PROFB = 0x100000, 0x900000, 0x800000
KS = OPT['ks']
KV2D = 0x300000
WS_BYTES = 0x1000000
TBYTES = 2621440
WBYTES = 2211840
NMOE, NP1 = 54, 24
OOB = 0x7ffffff0
LA, A_C, A_CP = 0, 16640, 4160
LU, U_C, U_P = 66560, 9120, 4576
LY = 103040
LS, S_T = 103040, 15136
TC, TH, NR = ((9, 10, 2), (8, 8, 3))[OPT['tc'] == 8]
LF = 139776
LDS_BYTES = 140032
LWG, LWU, LWD, WD_P, LRED, LK, LX, X_P = 0, 40976, 81984, 1312, 123968, 125504, 125568, 1344
POLL_LIMIT = 1 << 16

sX, sJ, sW, sTAG, sXCC = "s3", "s4", "s5", "s6", "s7"
pQ, pK, pV, pSH, pH, pD, pWR, pWG, pWU, pWD, pOUT, pWS = 8, 10, 12, 14, 16, 18, 22, 24, 26, 28, 30, 34
WS = "s[36:39]"
sHI = "s52"
ALL = (1 << 64) - 1
A = Asm()


def sp(p):
    return f"s[{p}:{p+1}]"


def srd(reg, ptr, nbytes):
    A(f"s_mov_b32 s{reg}, s{ptr}")
    A(f"s_mov_b32 s{reg+1}, s{ptr+1}")
    A(f"s_mov_b32 s{reg+2}, {nbytes:#x}")
    A(f"s_mov_b32 s{reg+3}, 0x20000")


def stamp(k, wait=False):
    if PROF:
        A(f"s_memrealtime s[{64+2*k}:{65+2*k}]")
        if wait:
            A("s_waitcnt lgkmcnt(0)")


def vr(b, n):
    return f"v[{b}:{b+n-1}]"


def setexec(m):
    lo, hi = m & 0xffffffff, m >> 32
    if m == ALL:
        A("s_mov_b64 exec, -1")
    elif hi == 0 and lo < 0x80000000:
        A(f"s_mov_b64 exec, {lo:#x}")
    else:
        A(f"s_mov_b32 exec_lo, {lo:#x}")
        A(f"s_mov_b32 exec_hi, {hi:#x}")


def after_kernarg():
    A("s_waitcnt lgkmcnt(0)")
    A(f"s_load_dword {sTAG}, {sp(pWS)}, {EPOCH}")
    srd(36, pWS, WS_BYTES)


def make_tag():
    A("s_waitcnt lgkmcnt(0)")
    A(f"s_mul_i32 {sTAG}, {sTAG}, 0x9E3779B1")
    A(f"s_add_u32 {sTAG}, {sTAG}, 0x7F4A7C15")


def or_tree(regs):
    regs = list(regs)
    while len(regs) > 1:
        nxt = []
        i = 0
        while i < len(regs):
            if i + 2 < len(regs):
                A(f"v_or3_b32 v{regs[i]}, v{regs[i]}, v{regs[i+1]}, v{regs[i+2]}")
                nxt.append(regs[i]); i += 3
            elif i + 1 < len(regs):
                A(f"v_or_b32 v{regs[i]}, v{regs[i]}, v{regs[i+1]}")
                nxt.append(regs[i]); i += 2
            else:
                nxt.append(regs[i]); i += 1
        regs = nxt
    return regs[0]


def tag_check(lbl, tagregs, reissue, restore=None):
    A("s_mov_b32 s59, 0")
    A(f"{lbl}:")
    for r in tagregs:
        A(f"v_xor_b32 v{r}, {sTAG}, v{r}")
    r = or_tree(tagregs)
    A(f"v_cmp_ne_u32 vcc, 0, v{r}")
    A(f"s_cbranch_vccz {lbl}_ok")
    if restore:
        restore()
    reissue()
    A("s_add_u32 s59, s59, 1")
    A(f"s_cmp_lt_u32 s59, {POLL_LIMIT}")
    A("s_waitcnt vmcnt(0)")
    A(f"s_cbranch_scc1 {lbl}")
    A(f"{lbl}_ok:")


def merge_dpp(a, rs):
    for r in rs:
        d = f"row_ror:{r} row_mask:0xf bank_mask:0xf"
        A(f"v_min_u32_dpp v{a+1}, v{a}, v{a} {d}")
        A(f"v_max_u32_dpp v{a+3}, v{a+2}, v{a+2} {d}")
        A(f"v_max_u32_dpp v{a}, v{a}, v{a} {d}")
        A(f"v_max_u32 v{a+2}, v{a+1}, v{a+3}")


def cand_loads(t0, va, so, fl):
    for i in range(4):
        A(f"buffer_load_dwordx4 {vr(t0+4*i,4)}, v{va}, {WS}, {so} offen offset:{1024*i}{fl}")


def top2_merge(t0):
    def merge(a, b, tmp):
        A(f"v_min_u32 v{tmp}, v{a}, v{b}")
        A(f"v_max_u32 v{a}, v{a}, v{b}")
        A(f"v_max3_u32 v{a+2}, v{a+2}, v{b+2}, v{tmp}")
    merge(t0, t0+4, t0+1)
    merge(t0+8, t0+12, t0+3)
    merge(t0, t0+8, t0+1)
    merge_dpp(t0, (1, 2, 4, 8))
    A(f"v_readlane_b32 s54, v{t0}, 0")
    A(f"v_readlane_b32 s55, v{t0+2}, 0")
    for row in (16, 32, 48):
        A(f"v_readlane_b32 s56, v{t0}, {row}")
        A(f"v_readlane_b32 s59, v{t0+2}, {row}")
        A("s_max_u32 s55, s55, s59")
        A("s_min_u32 s59, s54, s56")
        A("s_max_u32 s54, s54, s56")
        A("s_max_u32 s55, s55, s59")


def moe_decode():
    A(f"s_cmp_lt_u32 {sX}, 3")
    A("s_cselect_b32 s54, 8, 6")
    A("s_cselect_b32 s55, 0, 6")
    A(f"s_mul_i32 s56, {sX}, s54")
    A("s_add_u32 s56, s56, s55")


def arr_store():
    A("s_lshl_b32 s59, s2, 7")
    A(f"s_add_u32 s59, s59, {ARR}")
    A(f"v_mov_b32 v32, {sTAG}")
    A(f"v_mov_b32 v33, {sXCC}")
    A("v_mov_b32 v34, s59")
    setexec(1)
    A(f"buffer_store_dwordx2 v[32:33], v34, {WS}, 0 offen sc1")
    setexec(ALL)


A(f"{NAME}_kernel:")
A("s_cmp_ge_u32 s2, 256")
A("s_cbranch_scc1 L_end")
A("s_load_dwordx16 s[8:23], s[0:1], 0")
A("s_load_dwordx8 s[24:31], s[0:1], 64")
A("s_load_dwordx4 s[32:35], s[0:1], 96")
A("v_lshrrev_b32 v1, 6, v0")
A("v_mov_b32 v9, v0")
A("v_and_b32 v0, 63, v0")
A(f"s_and_b32 {sX}, s2, 7")
A(f"s_lshr_b32 {sJ}, s2, 3")
A(f"v_readfirstlane_b32 {sW}, v1")
A(f"s_getreg_b32 {sXCC}, hwreg(HW_REG_XCC_ID)")
if OPT["force_fb"]:
    A(f"s_add_u32 {sXCC}, {sXCC}, {sJ}")
A(f"s_mov_b32 {sHI}, 0xffff0000")
if PROF:
    for k in range(64, 96):
        A(f"s_mov_b32 s{k}, 0")
stamp(0)
A(f"s_mul_i32 s53, {sX}, 20")
A(f"s_add_u32 s53, s53, {sJ}")
A(f"s_sub_u32 s63, {sJ}, 20")
if OPT["codewarm"] == 2:
    A("s_cmp_ge_u32 s63, 8")
    A("s_cbranch_scc1 L_nocw2")
    A("s_getpc_b64 s[54:55]")
    A("L_pc2:")
    A(f"s_sub_u32 s54, s54, L_pc2-{NAME}_kernel")
    A("s_subb_u32 s55, s55, 0")
    A("v_subrev_u32 v1, 320, v9")
    A("v_lshlrev_b32 v1, 7, v1")
    A(f"v_cmp_gt_u32 vcc, L_codeend-{NAME}_kernel, v1")
    A("s_and_saveexec_b64 s[56:57], vcc")
    A("s_cbranch_execz L_nocw3")
    A("global_load_dword v127, v1, s[54:55]")
    A("L_nocw3:")
    setexec(ALL)
    A("L_nocw2:")
A(f"s_sub_u32 s58, {sJ}, 8")
A(f"s_cmp_lt_u32 {sJ}, 20")
A(f"s_cselect_b32 s58, {sJ}, s58")
A(f"s_cmp_lg_u32 {sW}, 0")
A("s_cbranch_scc1 L_not7")
A("s_mov_b32 s99, s2")
A("L_ln:")

A("v_and_b32 v1, 7, v0")
A("v_bfe_u32 v2, v0, 3, 1")
A("v_lshrrev_b32 v3, 4, v0")
A("v_mul_u32_u24 v4, 1280, v1")
A("v_mul_u32_u24 v5, 640, v2")
A("v_add_u32 v4, v4, v5")
A("v_lshl_add_u32 v4, v3, 4, v4")
A("s_mul_i32 s55, s99, 10240")
A("v_add_u32 v4, s55, v4")
A("v_and_b32 v5, 15, v0")
A("v_cmp_lt_u32 vcc, 1, v5")
A("v_mov_b32 v6, 640")
A("v_cndmask_b32 v6, 0, v6, vcc")
A("v_lshl_add_u32 v6, v3, 4, v6")
A("s_mov_b32 s55, 0x3f803f80")
for i in range(44):
    A(f"v_mov_b32 v{56+i}, s55")
A("s_waitcnt lgkmcnt(0)")
for s in range(10):
    A(f"global_load_dwordx4 {vr(16+4*s,4)}, v4, {sp(pQ)} offset:{64*s}")
setexec(0x0006000600060006)
for s in range(10):
    A(f"global_load_dwordx4 {vr(56+4*s,4)}, v6, {sp(pWR)} offset:{64*s}")
setexec(ALL)
if OPT["bq"]:
    A("s_barrier")
A("s_branch L_lntail")
A("L_not7:")
A("s_cmp_lt_u32 s63, 8")
A("s_cbranch_scc1 L_nonp1")
A("v_subrev_u32 v9, 64, v9")
A(f"s_mul_i32 s60, s58, {NR*TH}")
A(f"s_sub_u32 s60, s60, {24*NR*TH - 256}")
A(f"s_mul_i32 s55, s58, {TC}")
MAG = {8: 4096, 9: 3641, 10: 3277}
A(f"s_movk_i32 s57, {MAG[TC]}")
A(f"s_cmp_lt_u32 {sJ}, 20")
A("s_cselect_b32 s60, s55, s60")
A(f"s_cselect_b32 s61, {TC}, {TH}")
A(f"s_cselect_b32 s57, s57, {MAG[TH]}")
A("s_mul_i32 s59, s61, 81")
A("s_add_u32 s59, s59, 79")
A(f"s_mul_i32 s55, s60, {8*1280}")
A(f"s_mul_i32 s54, {sX}, 160")
A("s_add_u32 s55, s55, s54")
A(f"s_sub_u32 s55, s55, {8*1280}")
A(f"v_mov_b32 v7, {OOB:#x}")
for i in range(2):
    d = 1 + i
    A(f"v_add_u32 v4, {50+448*i}, v9")
    A("v_mul_u32_u24 v5, 1619, v4")
    A("v_lshrrev_b32 v5, 17, v5")
    A("v_mul_u32_u24 v6, 81, v5")
    A("v_cmp_gt_u32 vcc, 81, v4" if i == 0 else "v_cmp_lt_u32 vcc, s59, v4")
    A("v_sub_u32 v4, v4, v6")
    A("v_mul_u32_u24 v6, 205, v4")
    A("v_lshrrev_b32 v6, 11, v6")
    A("v_lshl_add_u32 v5, v5, 3, v6")
    A("v_mul_u32_u24 v6, 10, v6")
    A("v_sub_u32 v4, v4, v6")
    A("v_mul_u32_u24 v5, 1280, v5")
    A("v_lshl_add_u32 v5, v4, 4, v5")
    A(f"v_add_u32 v{d}, s55, v5")
    A(f"v_cndmask_b32 v{3 if i == 0 else 2}, v{d}, v7, vcc")
A("s_mul_i32 s96, s61, 40")
A("s_sub_u32 s59, s96, 1")
A("v_min_u32 v9, s59, v9")
A("v_mul_u32_u24 v7, s57, v9")
A("v_lshrrev_b32 v7, 15, v7")
A("v_mul_u32_u24 v8, s61, v7")
A("v_sub_u32 v8, v9, v8")
A(f"s_mul_i32 s54, {sX}, 640")
A("v_lshl_add_u32 v9, v7, 4, s54")
A(f"s_lshl_b32 s56, {sW}, 10")
A(f"s_add_u32 s56, s56, {LS + 50*16 - 1024}")
A(f"s_lshl_b32 s97, {sW}, 6")
A("s_add_u32 s96, s96, 64")
after_kernarg()
srd(40, pK, TBYTES)
srd(44, pV, TBYTES)
if OPT["bq"]:
    A("s_barrier")
if OPT["hb"]:
    A(f"s_cmp_lt_u32 {sJ}, 20")
    A("s_cbranch_scc1 L_nhb")
    A("s_barrier")
    A("L_nhb:")
for rd in range(NR):
    if rd == 1:
        A(f"global_load_dwordx4 v[20:23], v9, {sp(pSH)}")
        A(f"s_cmp_lt_u32 {sJ}, 20")
        A("s_cbranch_scc1 L_nodma")
        if OPT["bl"] and not OPT["hb"]:
            A("s_barrier")
    if rd:
        A(f"s_mov_b32 s55, {rd*TH*8*1280}")
    for i in range(2):
        for t, r in enumerate((40, 44)):
            A(f"s_add_u32 m0, s56, {t*S_T + 7168*i - rd*2*S_T}")
            A(f"buffer_load_dwordx4 v{2 if i else (3 if t else 1)}, s[{r}:{r+3}], {'s55' if rd else '0'} offen lds")
A("L_nodma:")
A("s_lshl_b32 s62, s53, 2")
A(f"s_and_b32 s54, {sW}, 3")
A("s_add_u32 s62, s62, s54")
A("s_min_u32 s62, s62, 639")
A("s_lshl_b32 s54, s62, 1")
A("s_and_b32 s54, s54, -4")
A(f"s_load_dword s63, {sp(pD)}, s54")
stamp(1)
A("v_mul_u32_u24 v1, 1296, v8")
A("v_lshl_add_u32 v1, v7, 2, v1")
A(f"v_add_u32 v1, {LS}, v1")
A(f"s_mul_i32 s55, {sX}, {80*KS}")
A("s_lshl_b32 s57, s60, 4")
A("s_add_u32 s55, s55, s57")
A(f"s_add_u32 s55, s55, {KVT}")
A(f"v_mul_u32_u24 v5, {2*KS}, v7")
A("v_lshl_add_u32 v5, v8, 4, v5")
A("v_add_u32 v5, s55, v5")
A(f"s_cmp_lg_u32 {sW}, 7")
A("s_cbranch_scc1 L_nz")
A(f"s_cmp_ge_u32 {sJ}, 20")
A("s_cbranch_scc1 L_nz")
for i in range(4):
    A(f"v_mov_b32 v{16+i}, 0")
A("v_lshrrev_b32 v2, 5, v0")
A(f"v_mul_u32_u24 v2, {U_P}, v2")
A("v_and_b32 v3, 31, v0")
A("v_min_u32 v3, 27, v3")
A("v_lshl_add_u32 v2, v3, 4, v2")
A(f"v_add_u32 v2, {LU}, v2")
for c in range(4):
    A(f"ds_write_b128 v2, v[16:19] offset:{c*U_C}")
A("v_lshrrev_b32 v2, 2, v0")
A(f"v_mul_u32_u24 v2, {A_CP}, v2")
A("v_and_b32 v3, 3, v0")
A("v_min_u32 v3, 2, v3")
A("v_lshl_add_u32 v2, v3, 4, v2")
A("ds_write_b128 v2, v[16:19]")
A("L_nz:")
make_tag()
A(f"s_cmp_lt_u32 {sJ}, 20")
A(f"s_cselect_b32 s61, 0, {NR-1}")
A("s_cbranch_scc0 L_w8")
A("s_waitcnt vmcnt(0)")
A("L_w8:")
A(f"s_waitcnt vmcnt({4*(NR-1)})")
A("v_lshlrev_b32 v10, 16, v20")
A("v_lshlrev_b32 v11, 16, v22")
A(f"v_and_b32 v12, {sHI}, v20")
A(f"v_and_b32 v13, {sHI}, v22")
A("v_lshlrev_b32 v14, 16, v21")
A("v_lshlrev_b32 v15, 16, v23")
A(f"v_and_b32 v16, {sHI}, v21")
A(f"v_and_b32 v17, {sHI}, v23")
A("L_round:")
A("s_barrier")
stamp(2, True)
A("s_cmp_ge_u32 s97, s96")
A("s_cbranch_scc1 L_nokv")


def koff(t):
    return (1296 + 160*t) if t >= 0 else 160*(8 + t)


def Kp(t):
    return vr(40 + 2*(t + 3), 2)


for i, t in enumerate(range(-3, 8)):
    A(f"ds_read_b32 v{20+i}, v1 offset:{koff(t)}")
for t in range(4):
    A(f"ds_read_b32 v{32+t}, v1 offset:{S_T + koff(t)}")
for i in range(11):
    if i in (0, 4, 8):
        A(f"s_waitcnt lgkmcnt({(11, 7, 8)[i//4]})")
    A(f"v_lshlrev_b32 v{40+2*i}, 16, v{20+i}")
    A(f"v_and_b32 v{41+2*i}, {sHI}, v{20+i}")
    if i == 7:
        for t in range(4, 8):
            A(f"ds_read_b32 v{32+t}, v1 offset:{S_T + koff(t)}")
for t in range(8):
    A(f"v_pk_mul_f32 {vr(96+2*t,2)}, v[16:17], {Kp(t-3)}")
for t in range(8):
    A(f"v_pk_fma_f32 {vr(96+2*t,2)}, v[14:15], {Kp(t-2)}, {vr(96+2*t,2)}")
for t in range(8):
    A(f"v_pk_fma_f32 {vr(96+2*t,2)}, v[12:13], {Kp(t-1)}, {vr(96+2*t,2)}")
for t in range(8):
    A(f"v_pk_fma_f32 {vr(96+2*t,2)}, v[10:11], {Kp(t)}, {vr(96+2*t,2)}")
A("s_waitcnt lgkmcnt(0)")
for t in range(8):
    A(f"v_lshlrev_b32 v{62+2*t}, 16, v{32+t}")
    A(f"v_and_b32 v{63+2*t}, {sHI}, v{32+t}")
for t in range(8):
    A(f"v_pk_mul_f32 {vr(96+2*t,2)}, {vr(96+2*t,2)}, {vr(62+2*t,2)}")
A(f"s_mov_b32 s55, {KS}")
for c in range(2):
    for i in range(4):
        A(f"v_cvt_pk_bf16_f32 v{80+4*c+i}, v{96+2*(7-2*i)+c}, v{96+2*(6-2*i)+c}")
    A(f"buffer_store_dwordx4 {vr(80+4*c,4)}, v5, {WS}, {'s55' if c else '0'} offen")
stamp(3)
A("L_nokv:")
A("s_sub_u32 s61, s61, 1")
A("s_cbranch_scc1 L_kvdone")
A(f"v_subrev_u32 v1, {2*S_T}, v1")
A(f"v_add_u32 v5, {16*TH}, v5")
if NR == 3:
    A("s_waitcnt vmcnt(4)")
    A("s_cmp_lg_u32 s61, 0")
    A("s_cbranch_scc1 L_round")
    A("s_waitcnt vmcnt(0)")
else:
    A("s_waitcnt vmcnt(2)")
A("s_branch L_round")
A("L_kvdone:")
A(f"s_lshl_b32 s55, {sX}, 11")
A("s_lshl_b32 s57, s58, 3")
A("s_add_u32 s57, s57, s55")
A(f"v_mov_b32 v10, {sTAG}")
A(f"v_mov_b32 v11, {sXCC}")
A("v_mov_b32 v12, s57")
A(f"v_min_u32 v1, {NP1-1}, v0")
A("v_lshl_add_u32 v1, v1, 3, s55")
A("s_lshl_b32 s54, s53, 2")
A(f"s_add_u32 s54, s54, {sW}")
A(f"s_mul_i32 s54, s54, {KS}")
A(f"s_add_u32 s54, s54, {KVT}")
A("v_lshl_add_u32 v44, v0, 4, s54")
A("v_subrev_u32 v14, 16, v44")
A("v_cmp_eq_u32 vcc, 0, v0")
A(f"v_mov_b32 v3, {OOB:#x}")
A("v_cndmask_b32 v14, v14, v3, vcc")
A(f"s_mov_b32 s55, {FLG}")
A("s_mov_b32 s59, 0")
A(f"s_mov_b32 s60, {KVT}")
A(f"s_mov_b32 s61, {FLG}")
A("s_waitcnt vmcnt(0)")
A("s_barrier")
stamp(4, True)
A(f"s_cmp_ge_u32 {sW}, 4")
A("s_cbranch_scc1 L_hi4")
A(f"s_cmp_lg_u32 {sW}, 0")
A("s_cbranch_scc1 L_poll")
A(f"s_cmp_lt_u32 {sJ}, 20")
A(f"s_cselect_b32 s57, s55, {FLG + 32}")
setexec(1)
A(f"buffer_store_dwordx2 v[10:11], v12, {WS}, s57 offen")
setexec(ALL)
A("L_poll:")
A(f"buffer_load_dwordx2 v[2:3], v1, {WS}, s55 offen sc1")
A("s_add_u32 s59, s59, 1")
A("s_waitcnt vmcnt(0)")
A("v_cmp_eq_u64 vcc, s[6:7], v[2:3]")
A("s_cmp_eq_u64 vcc, -1")
A("s_cbranch_scc1 L_synced")
A("s_and_b32 s57, s59, 15")
A("s_cmp_lg_u32 s57, 0")
A("s_cbranch_scc1 L_poll")
A("s_branch L_slowsync")
A("L_synced:")
stamp(5)
A(f"s_cmp_ge_u32 {sJ}, 20")
A("s_cbranch_scc1 L_special")

def stage(pieces, va, vprev0, vl, extra=0, so="0", fix=None, base=16):
    pv, tm = (28, 32) if base == 16 else (42, 16)
    for i, (off, m) in enumerate(pieces):
        if m != ALL:
            setexec(m)
        A(f"buffer_load_dwordx4 {vr(base+4*i,4)}, v{va}, {WS}, {so} offen offset:{off} sc1")
        if off == 0:
            A(f"buffer_load_dword v{28+i}, v{vprev0}, {WS}, 0 offen sc1")
        else:
            if fix:
                setexec(m & ~1)
            A(f"buffer_load_dword v{pv+i}, v{va}, {WS}, {so} offen offset:{off-16} sc1")
    setexec(ALL)
    yield
    n = len(pieces)
    for i, (off, m) in enumerate(pieces):
        A(f"s_waitcnt vmcnt({2*(n-1-i) + extra})")
        if m != ALL:
            setexec(m)
        b = base + 4*i
        if fix:
            A(fix)
        A(f"ds_write_b128 v{vl}, {vr(b,4)} offset:{U_P + off}")
        A(f"v_alignbyte_b32 v{tm+0+4*i}, v{b+1}, v{b}, 2")
        A(f"v_alignbyte_b32 v{tm+1+4*i}, v{b+2}, v{b+1}, 2")
        A(f"v_alignbyte_b32 v{tm+2+4*i}, v{b+3}, v{b+2}, 2")
        A(f"v_alignbyte_b32 v{tm+3+4*i}, v{pv+i}, v{b+3}, 2")
        A(f"ds_write_b128 v{vl}, {vr(tm+4*i,4)} offset:{off}")
    setexec(ALL)
    yield


XR, SR = (48, 56), (16, 32)
XN, CC = (64, 96), (80, 112)
OCT, CPO, QOF = (1, 2), (3, 3), (5, 6)


def stat_loads(fl):
    A(f"buffer_load_dwordx2 v[12:13], v7, {WS}, s57 offen{fl}")
    A(f"buffer_load_dwordx2 v[14:15], v7, {WS}, s58 offen{fl}")


def ofl(task):
    return ("", " sc1", " nt", " sc0 sc1")[OPT["outB" if task else "outA"]]


def rows(op, reg, task):
    for t in range(8):
        fl = ofl(task) if op == "store" else ""
        A(f"buffer_{op}_dword v{reg+t}, v{QOF[task]}, s[40:43], {'s49' if t >= 4 else '0'} offen offset:{1280*(t&3)}{fl}")


HALF = 0xffffffff
g_ = stage([(0, ALL), (1024, ALL), (2048, HALF)], 44, 14, 45)
next(g_)
A(f"s_mul_i32 s55, {sW}, {U_C}")
A(f"s_add_u32 s55, s55, {LU + 28*16}")
A("v_lshl_add_u32 v45, v0, 4, s55")
A(f"v_mov_b32 v2, {LF}")
A("v_mov_b32 v3, s61")
A("ds_write_b32 v2, v3")
A("v_min_u32 v4, 11, v0")
A("v_lshl_add_u32 v4, v4, 7, s54")
A(f"s_mul_i32 s54, {sX}, 160")
A(f"s_lshl_b32 s55, {sW}, 6")
A(f"s_lshl_b32 s56, {sJ}, 8")
A("s_add_u32 s55, s55, s56")
A("v_add_u32 v8, s55, v0")
A("v_mul_u32_u24 v1, 6554, v8")
A("v_lshrrev_b32 v1, 18, v1")
A("v_mul_u32_u24 v10, 40, v1")
A("v_sub_u32 v8, v8, v10")
A("v_add_u32 v2, 128, v1")
A("v_lshlrev_b32 v3, 3, v8")
A("v_mul_u32_u24 v9, 10240, v1")
A("v_lshl_add_u32 v9, v8, 2, v9")
A("v_add_u32 v5, s54, v9")
A(f"v_add_u32 v6, {1024*1280}, v5")
srd(40, pQ, TBYTES)
A("s_movk_i32 s49, 5120")
A(f"s_mov_b32 s57, {ESTAT}")
A(f"s_mov_b32 s58, {ESTAT + 8192}")
A("v_and_b32 v7, 7, v0")
A("v_lshl_add_u32 v7, v1, 3, v7")
A("v_lshlrev_b32 v7, 3, v7")

next(g_)
A("s_mov_b32 s51, s60")
A(f"s_mul_i32 s54, {sX}, {80*KS}")
A("s_add_u32 s60, s60, s54")
A(f"s_add_u32 s48, s60, {KS}")
A(f"s_lshl_b32 s54, {sX}, 11")
A("s_add_u32 s61, s61, s54")
A("s_add_u32 s61, s61, 512")
A(f"v_mul_u32_u24 v8, {KS//4}, v3")
A("v_lshl_add_u32 v8, v1, 4, v8")
A(f"s_lshl_b32 s54, {sX}, 7")
A(f"s_add_u32 s54, s54, {TOP}")
A("v_mov_b32 v9, s54")
A(f"s_lshl_b32 s55, {sW}, 2")
A(f"s_add_u32 s55, s55, {LF + 16}")
A("v_mov_b32 v47, s55")
A("v_and_b32 v46, 3, v0")
A("v_lshlrev_b32 v46, 3, v46")
A(f"s_cmp_eq_u32 s51, {KVT}")
A(f"s_cselect_b32 s96, {512 - 8*24}, {512 - 8*20}" if False else f"s_cselect_b32 s96, 24, 20")
A("s_lshl_b32 s96, s96, 3")
A("s_sub_u32 s55, s61, 512")
A("s_add_u32 s96, s96, s55")


if OPT["xe"] >= 1:
    stat_loads("")
if OPT["xe"] >= 2:
    rows("load", XR[0], 0)
stamp(6)
A("s_waitcnt lgkmcnt(0)")
A("s_barrier")

A("L_final:")
if OPT["xe"] < 1:
    stat_loads("")
if OPT["xe"] < 2:
    rows("load", XR[0], 0)
A(f"buffer_load_dword v40, v46, {WS}, s96 offen sc1")
rows("load", XR[1], 1)
A(f"buffer_load_dword v41, v4, {WS}, 0 offen offset:2560 sc1")
A(f"s_mov_b32 s40, s{pOUT}")
A(f"s_mov_b32 s41, s{pOUT+1}")
if PROF == 2:
    stamp(2)
A("s_waitcnt vmcnt(18)")
if PROF == 2:
    stamp(3)
tag_check("L_st", [13, 15], lambda: stat_loads(" sc1"))
for st in (12, 14):
    A(f"v_and_b32 v{st+1}, {sHI}, v{st}")
    A(f"v_rcp_f32 v{st+1}, v{st+1}")
    A(f"v_lshlrev_b32 v{st}, 16, v{st}")
for st in (12, 14):
    A(f"v_mul_f32 v{st}, v{st}, v{st+1}")


def precompute(task):
    for t in range(8):
        if t == 7:
            A("s_waitcnt lgkmcnt(6)")
        A(f"ds_swizzle_b32 v{16+2*t}, v{12+2*task} offset:{(t << 5) | 0x18}")
        A(f"ds_swizzle_b32 v{17+2*t}, v{13+2*task} offset:{(t << 5) | 0x18}")
    A(f"s_waitcnt vmcnt({(9, 6)[task]})")
    if PROF == 2:
        stamp(4 + 2*task)
    for t in range(8):
        cc = CC[task] + 2*t
        A(f"v_lshlrev_b32 v{cc}, 16, v{XR[task]+t}")
        A(f"v_and_b32 v{cc+1}, {sHI}, v{XR[task]+t}")
    A("s_waitcnt lgkmcnt(0)")
    for t in range(8):
        st, xn, cc = 16 + 2*t, XN[task] + 2*t, CC[task] + 2*t
        A(f"v_fma_f32 v{xn}, v{cc}, v{st+1}, -v{st}")
        A(f"v_fma_f32 v{xn+1}, v{cc+1}, v{st+1}, -v{st}")
        if not OPT["one"]:
            A(f"v_add_f32 v{cc}, v{cc}, v{xn}")
            A(f"v_add_f32 v{cc+1}, v{cc+1}, v{xn+1}")


def yflag_poll(lbl, va, so):
    A("s_mov_b32 s59, 0")
    A(f"{lbl}:")
    A(f"buffer_load_dwordx2 v[10:11], v{va}, {WS}, {so} offen sc1")
    A("s_add_u32 s59, s59, 1")
    A("s_waitcnt vmcnt(0)")
    A(f"v_cmp_ne_u32 vcc, {sTAG}, v10")
    A(f"v_cmp_ne_u32 s[54:55], {sTAG}, v11")
    A("s_or_b64 vcc, vcc, s[54:55]")
    A(f"s_cbranch_scc0 {lbl}_ok")
    A(f"s_cmp_lt_u32 s59, {POLL_LIMIT}")
    A(f"s_cbranch_scc1 {lbl}")
    A(f"{lbl}_ok:")


def top_load():
    A(f"buffer_load_dwordx2 v[10:11], v9, {WS}, 0 offen sc1")


def y_loads(task):
    A(f"buffer_load_dwordx4 v[48:51], v8, {WS}, s60 offen offset:{2048*task} sc1")
    A(f"buffer_load_dwordx4 v[52:55], v8, {WS}, s48 offen offset:{2048*task} sc1")


def f1_load():
    A(f"buffer_load_dword v40, v46, {WS}, s96 offen sc1")


def f0_load():
    A(f"buffer_load_dwordx2 v[42:43], v3, {WS}, s61 offen sc1")


def combine(task):
    for c in range(2):
        for i in range(4):
            A(f"v_lshlrev_b32 v{56+2*i}, 16, v{48+4*c+i}")
            A(f"v_and_b32 v{57+2*i}, {sHI}, v{48+4*c+i}")
        for pos in range(8):
            t = 2*(pos & 3) + (pos >> 2)
            A(f"v_fmac_f32 v{CC[task]+2*t+c}, v{XN[task]+2*t+c}, v{56+pos}")
    for t in range(8):
        A(f"v_cvt_pk_bf16_f32 v{48+t}, v{CC[task]+2*t}, v{CC[task]+2*t+1}")


def masks(task):
    A("s_lshr_b32 s56, s62, 3")
    A("s_lshr_b32 s57, s63, 3")
    A(f"v_cmp_eq_u32 s[44:45], s56, v{OCT[task]}")
    A(f"v_cmp_eq_u32 s[46:47], s57, v{OCT[task]}")


def out_stores(task):
    A("s_or_b64 s[54:55], s[44:45], s[46:47]")
    A(f"s_cbranch_scc1 L_msk{task}")
    rows("store", 48, task)
    A(f"L_mskd{task}:")


precompute(0)
if PROF == 2:
    stamp(5)
tag_check("L_h2", [40], f1_load)
g_ = stage([(2560, ALL), (3584, HALF)], 44, 44, 45, 1, base=32)
next(g_)
top_load()
precompute(1)
stamp(7)
for i in range(4):
    A(f"v_mov_b32 v{12+i}, -1")
A(f"s_sub_u32 s56, s51, {KVT}")
A(f"s_lshl_b32 s54, {sJ}, 4")
A(f"s_lshl_b32 s55, {sW}, 2")
A("s_add_u32 s54, s54, s55")
A("v_mov_b32 v30, s54")
A(f"v_mov_b32 v31, {sTAG}")
next(g_)
A("ds_write_b32 v47, v47")
stamp(12)
A(f"s_cmp_lg_u32 s51, {KVT}")
A("s_cbranch_scc1 L_sslow")
A(f"buffer_store_dwordx4 v[12:15], v44, {WS}, s56 offen offset:2048")
A(f"buffer_store_dwordx4 v[12:15], v44, {WS}, s56 offen offset:3072")
f0_load()
A("s_waitcnt vmcnt(0)")
setexec(1)
A(f"buffer_store_dword v31, v30, {WS}, s61 offen offset:1024")
A("L_sback:")
setexec(ALL)
A("ds_write_b32 v47, v47 offset:16")
tag_check("L_h3", [42, 43], f0_load)
y_loads(0)
tag_check("L_tp", [11], top_load)
A("v_readfirstlane_b32 s62, v10")
A("s_lshr_b32 s63, s62, 16")
A("s_and_b32 s62, s62, 0xffff")
masks(0)
A("s_waitcnt vmcnt(0)")
stamp(8)
combine(0)
out_stores(0)
stamp(9)
masks(1)
A("s_add_u32 s57, s61, 1024")
yflag_poll("L_yfs", 3, "s57")
stamp(1)
A("s_barrier")
A("s_mov_b32 s59, 0")
A("L_ys:")
y_loads(1)
A("s_add_u32 s59, s59, 1")
A("s_waitcnt vmcnt(0)")
A("v_max3_u32 v24, v48, v49, v50")
A("v_max3_u32 v25, v51, v52, v53")
A("v_max3_u32 v24, v24, v54, v55")
A("v_max_u32 v24, v24, v25")
A("v_cmp_eq_u32 vcc, -1, v24")
A("s_and_b64 exec, exec, vcc")
A("s_cbranch_execz L_ysok")
A("s_cmp_lt_u32 s59, 4096")
A("s_cbranch_scc1 L_ys")
setexec(ALL)
A("s_add_u32 s61, s61, 512")
yflag_poll("L_yf1", 3, "s61")
y_loads(1)
A("s_waitcnt vmcnt(0)")
A("L_ysok:")
setexec(ALL)
stamp(10)
combine(1)
out_stores(1)
stamp(11)
A("s_branch L_fin")
A("L_sslow:")
A(f"buffer_store_dwordx4 v[12:15], v44, {WS}, s56 offen offset:2048 sc1")
A(f"buffer_store_dwordx4 v[12:15], v44, {WS}, s56 offen offset:3072 sc1")
f0_load()
A("s_waitcnt vmcnt(0)")
setexec(1)
A(f"buffer_store_dword v31, v30, {WS}, s61 offen offset:1024 sc1")
A("s_branch L_sback")
for task in range(2):
    A(f"L_msk{task}:")
    A("s_and_b32 s56, s62, 7")
    A("s_and_b32 s57, s63, 7")
    for t in range(8):
        A(f"s_cmp_eq_u32 s56, {t}")
        A("s_cselect_b64 s[54:55], s[44:45], 0")
        A(f"s_cmp_eq_u32 s57, {t}")
        A("s_cselect_b64 vcc, s[46:47], 0")
        A("s_nor_b64 exec, s[54:55], vcc")
        A(f"s_cbranch_execz L_ms{task}_{t}")
        A(f"buffer_store_dword v{48+t}, v{QOF[task]}, s[40:43], {'s49' if t >= 4 else '0'} offen offset:{1280*(t&3)}{ofl(task)}")
        A(f"L_ms{task}_{t}:")
    setexec(ALL)
    A(f"s_branch L_mskd{task}")

A("L_special:")
A(f"s_and_b32 s96, {sJ}, 1")
A(f"s_bfe_u32 s97, {sJ}, 0x10001")
A("s_lshl_b32 s98, s96, 1")
A("s_add_u32 s98, s98, s97")
A("s_mul_i32 s98, s98, 320")
A(f"s_mul_i32 s55, {sX}, 1280")
A("s_add_u32 s98, s98, s55")
A(f"s_add_u32 s98, s98, {PART}")
A(f"s_cmp_lg_u32 {sW}, 0")
A("s_cbranch_scc1 L_sp1")
A("v_min_u32 v6, 19, v0")
A("v_mul_u32_u24 v5, 52, v6")
A("v_lshrrev_b32 v5, 8, v5")
A("v_mul_u32_u24 v1, 5, v5")
A("v_sub_u32 v1, v6, v1")
A("v_lshlrev_b32 v1, 3, v1")
A("v_lshl_add_u32 v1, v5, 1, v1")
A("v_add_u32 v1, s97, v1")
A("v_lshlrev_b32 v6, 3, v6")
A(f"s_lshl_b32 s54, {sX}, 7")
A(f"s_add_u32 s54, s54, {TOP}")
A("v_mov_b32 v9, s54")
top_load()
A("s_waitcnt vmcnt(0)")
tag_check("L_sc", [11], top_load)
A("v_readfirstlane_b32 s62, v10")
A("s_lshl_b32 s54, s96, 4")
A("s_lshr_b32 s62, s62, s54")
A("s_and_b32 s62, s62, 0x7ff")
srd(40, pQ, TBYTES)
A("s_mul_i32 s54, s62, 1280")
A(f"s_mul_i32 s55, {sX}, 160")
A("s_add_u32 s54, s54, s55")
A("v_lshl_add_u32 v2, v1, 2, s54")
A("buffer_load_dword v4, v2, s[40:43], 0 offen")
A("s_lshl_b32 s54, s62, 3")
A(f"s_add_u32 s54, s54, {ESTAT}")
A("v_mov_b32 v3, s54")


def sstat():
    A(f"buffer_load_dwordx2 v[8:9], v3, {WS}, 0 offen sc1")


sstat()
A("s_waitcnt vmcnt(0)")
tag_check("L_ss", [9], sstat)
A(f"v_and_b32 v9, {sHI}, v8")
A("v_rcp_f32 v9, v9")
A("v_lshlrev_b32 v8, 16, v8")
A("v_lshlrev_b32 v50, 16, v4")
A(f"v_and_b32 v51, {sHI}, v4")
A("v_sub_f32 v48, v50, v8")
A("v_sub_f32 v49, v51, v8")
A("v_mul_f32 v48, v48, v9")
A("v_mul_f32 v49, v49, v9")
if not OPT["one"]:
    A("v_add_f32 v50, v50, v48")
    A("v_add_f32 v51, v51, v49")
A(f"s_lshl_b32 s55, {sX}, 11")
A("s_add_u32 s61, s61, s55")
A("s_add_u32 s61, s61, 512")
A(f"s_mul_i32 s54, {sX}, {80*KS}")
A("s_add_u32 s60, s60, s54")
A("s_lshr_b32 s54, s62, 3")
A("s_lshl_b32 s54, s54, 4")
A("s_add_u32 s60, s60, s54")
A("s_and_b32 s54, s62, 1")
A("s_lshl_b32 s54, s54, 3")
A("s_add_u32 s60, s60, s54")
A("s_and_b32 s54, s62, 4")
A("s_add_u32 s60, s60, s54")
A(f"s_add_u32 s48, s60, {KS}")
A("s_bitcmp1_b32 s62, 1")
A("s_cselect_b32 s63, 0, 16")
A("v_lshlrev_b32 v3, 3, v1")
A(f"v_mul_u32_u24 v7, {2*KS}, v1")
srd(40, pOUT, TBYTES)


def sy_loads():
    A(f"buffer_load_dword v52, v7, {WS}, s60 offen sc1")
    A(f"buffer_load_dword v53, v7, {WS}, s48 offen sc1")


A("s_and_b32 s57, s62, 1024")
A("s_add_u32 s57, s57, s61")
if not OPT["pf"]:
    yflag_poll("L_s0", 3, "s57")
    sy_loads()
A(f"s_mul_i32 s55, {sX}, {6*10240}")
A("s_add_u32 s54, s98, s55")
A("v_mov_b32 v4, s54")


def probe1():
    if OPT["pf"]:
        A(f"buffer_load_dwordx2 v[18:19], v3, {WS}, s57 offen sc1")
    A(f"buffer_load_dwordx2 v[16:17], v4, {WS}, 0 offen sc1")


probe1()
A("s_waitcnt vmcnt(0)")
tag_check("L_p1", [17], probe1)
if OPT["pf"]:
    A(f"v_cmp_ne_u32 vcc, {sTAG}, v18")
    A(f"v_cmp_ne_u32 s[54:55], {sTAG}, v19")
    A("s_or_b64 vcc, vcc, s[54:55]")
    A("s_cbranch_scc1 L_pfl")
    sy_loads()
    A("s_barrier")
    A("s_branch L_pfd")
    A("L_pfl:")
    A("s_barrier")
    yflag_poll("L_s0", 3, "s57")
    sy_loads()
    A("L_pfd:")
else:
    A("s_barrier")
A("s_barrier")
stamp(8)
for i in range(18):
    if i == 12:
        A("s_waitcnt lgkmcnt(6)")
        for q in range(1, 6):
            A(f"v_add_f32 v12, v12, v{12+2*q}")
            A(f"v_add_f32 v13, v13, v{13+2*q}")
    A(f"ds_read_b64 {vr(12+2*i,2)}, v6 offset:{512*(i//3) + 160*(i%3)}")
A("v_add_f32 v50, v50, v12")
A("v_add_f32 v51, v51, v13")
A("s_waitcnt lgkmcnt(0)")
for q in range(1, 6):
    for h in (24, 36):
        A(f"v_add_f32 v{h}, v{h}, v{h+2*q}")
        A(f"v_add_f32 v{h+1}, v{h+1}, v{h+1+2*q}")
A("v_add_f32 v24, v24, v36")
A("v_add_f32 v25, v25, v37")
A("v_add_f32 v50, v50, v24")
A("v_add_f32 v51, v51, v25")
A("s_mov_b32 s59, 0")
A("L_sy:")
A("s_waitcnt vmcnt(0)")
A("v_max_u32 v34, v52, v53")
A("v_cmp_eq_u32 vcc, -1, v34")
A("s_cbranch_vccz L_syok")
sy_loads()
A("s_add_u32 s59, s59, 1")
A("s_cmp_lt_u32 s59, 4096")
A("s_cbranch_scc1 L_sy")
A("s_add_u32 s61, s61, 512")
yflag_poll("L_s1", 3, "s61")
sy_loads()
A("s_waitcnt vmcnt(0)")
A("L_syok:")
A("v_lshlrev_b32 v32, s63, v52")
A("v_lshlrev_b32 v33, s63, v53")
A(f"v_and_b32 v32, {sHI}, v32")
A(f"v_and_b32 v33, {sHI}, v33")
A("v_fmac_f32 v50, v48, v32")
A("v_fmac_f32 v51, v49, v33")
A("v_cvt_pk_bf16_f32 v50, v50, v51")
A("buffer_store_dword v50, v2, s[40:43], 0 offen")
stamp(9)
A("s_branch L_fin")
A("L_sp1:")
A("v_min_u32 v4, 59, v0")
A("v_mul_u32_u24 v5, 103, v4")
A("v_lshrrev_b32 v5, 11, v5")
A(f"v_mul_u32_u24 v5, {10240 - 320}, v5")
A("v_lshl_add_u32 v5, v4, 4, v5")
A(f"s_mul_i32 s55, {sW}, {9*10240}")
A("s_add_u32 s55, s55, s98")
A(f"s_sub_u32 s55, s55, {9*10240}")
A(f"s_add_u32 s56, s55, {3*10240}")
A(f"s_add_u32 s57, s55, {6*10240}")


def part_loads():
    for i in range(3):
        A(f"buffer_load_dwordx4 {vr(16+4*i,4)}, v5, {WS}, s{55+i} offen sc1")


A("s_barrier")
stamp(7)
part_loads()
A("s_waitcnt vmcnt(0)")
tag_check("L_pp", [17 + 2*i for i in range(6)], part_loads)
stamp(8)
A("v_add_f32 v16, v16, v20")
A("v_add_f32 v18, v18, v22")
A("v_add_f32 v16, v16, v24")
A("v_add_f32 v17, v18, v26")
A(f"s_lshl_b32 s54, {sW}, 9")
A("s_sub_u32 s54, s54, 512")
A("v_lshl_add_u32 v6, v0, 3, s54")
A("ds_write_b64 v6, v[16:17]")
A("s_waitcnt lgkmcnt(0)")
A("s_barrier")
A("s_branch L_fin")

A("L_lntail:")
after_kernarg()
stamp(1)
A("v_lshrrev_b32 v7, 2, v5")
A("v_lshl_add_u32 v7, v7, 4, v5")
A("v_lshlrev_b32 v7, 2, v7")
A("s_lshl_b32 s55, s99, 6")
A(f"s_add_u32 s55, s55, {ESTAT}")
A("v_lshl_add_u32 v122, v1, 3, s55")
A("s_lshl_b32 s56, s99, 3")
A("s_sub_u32 s56, 2047, s56")
A("v_sub_u32 v9, s56, v1")
for r, m in ((40, 0x22222222), (42, 0x44444444), (44, 0x88888888), (46, 0xff00ff00)):
    A(f"s_mov_b32 s{r}, {m:#x}")
    A(f"s_mov_b32 s{r+1}, {m:#x}")
A("s_lshl_b32 s55, s99, 4")
A(f"s_add_u32 s55, s55, {CAND}")
A("v_mov_b32 v8, s55")
for s in range(10):
    A(f"s_waitcnt vmcnt({19-s})")
    c = "0" if s == 0 else "v[100:103]"
    A(f"v_mfma_f32_16x16x32_bf16 v[100:103], {vr(16+4*s,4)}, {vr(16+4*s,4)}, {c}")
stamp(2)
for s in range(10):
    A(f"s_waitcnt vmcnt({9-s})")
    c = "0" if s == 0 else "v[104:107]"
    A(f"v_mfma_f32_16x16x32_bf16 v[104:107], {vr(56+4*s,4)}, {vr(16+4*s,4)}, {c}")
    c = "0" if s == 0 else "v[108:111]"
    A(f"v_mfma_f32_16x16x32_bf16 v[108:111], {vr(56+4*s,4)}, v[96:99], {c}")
    if s == 3:
        A("v_cndmask_b32 v100, v100, v101, s[40:41]")
        A("v_cndmask_b32 v100, v100, v102, s[42:43]")
        A("v_cndmask_b32 v100, v100, v103, s[44:45]")
        A("ds_bpermute_b32 v100, v7, v100")
stamp(9)
make_tag()
ROR8 = "row_ror:8 row_mask:0xf bank_mask:0xf"
A(f"v_add_f32_dpp v100, v100, v100 {ROR8}")
A("v_mul_f32 v100, 0x3acccccd, v100")
A(f"v_mov_b32 v121, {sTAG}")
A("v_mov_b32 v14, 0")
A(f"v_add_f32_dpp v104, v104, v104 {ROR8}")
A("v_cndmask_b32 v105, v105, v106, s[46:47]")
A("v_mul_f32 v104, 0x3acccccd, v104")
A("v_add_f32 v109, v109, v110")
A("v_fma_f32 v100, -v104, v104, v100")
A(f"v_add_f32_dpp v105, v105, v105 {ROR8}")
A("v_max_f32 v100, 0, v100")
A("v_cvt_pk_bf16_f32 v104, v104, v100")
A(f"v_and_b32 v100, {sHI}, v104")
A("v_add_f32 v100, 0x3727c5ac, v100")
A("v_cvt_pk_bf16_f32 v100, v100, v100")
A(f"v_and_b32 v100, {sHI}, v100")
A("v_sqrt_f32 v100, v100")
A("v_lshlrev_b32 v106, 16, v104")
A("v_cvt_pk_bf16_f32 v120, v106, v100")
A(f"v_and_b32 v100, {sHI}, v120")
A("v_rcp_f32 v100, v100")
A("v_fma_f32 v105, -v106, v109, v105")
A("v_mul_f32 v105, v105, v100")
A("v_cvt_pk_bf16_f32 v105, v105, v105")
A("v_ashrrev_i32 v106, 31, v105")
A("v_or_b32 v106, 0x80000000, v106")
A("v_xor_b32 v105, v105, v106")
A(f"v_and_or_b32 v12, v105, {sHI}, v9")
merge_dpp(12, (1, 2, 4))
A(f"v_mov_b32 v13, {sTAG}")
A(f"v_mov_b32 v15, {sTAG}")
setexec(1)
A(f"buffer_store_dwordx4 v[12:15], v8, {WS}, 0 offen sc1")
setexec(0xff)
A(f"buffer_store_dwordx2 v[120:121], v122, {WS}, 0 offen sc1")
setexec(ALL)
stamp(8)
A("s_cmp_lt_u32 s63, 8")
A("s_cbranch_scc1 L_moe0")
A(f"s_cmp_ge_u32 {sJ}, 20")
A("s_cbranch_scc1 L_h0")
A("s_lshl_b32 s54, s53, 14")
A(f"s_mul_i32 s55, s53, {4*KS}")
A(f"s_add_u32 s55, s55, {KVT}")
A("v_and_b32 v2, 31, v0")
A("v_min_u32 v2, 19, v2")
A("v_lshl_add_u32 v2, v2, 7, s55")
A("v_lshrrev_b32 v3, 5, v0")
A(f"v_mul_u32_u24 v3, {KS}, v3")
A("v_add_u32 v2, v2, v3")
A(f"s_lshl_b32 s55, {sX}, 11")
A(f"s_add_u32 s55, s55, {FLG}")
A("v_and_b32 v3, 15, v0")
A("v_lshl_add_u32 v3, v3, 7, s55")
A(f"s_movk_i32 s55, {2*KS}")
if not OPT["nopre"]:
    A(f"buffer_load_dword v127, v2, {WS}, 0 offen sc1")
    A(f"buffer_load_dword v127, v2, {WS}, s55 offen sc1")
A(f"buffer_load_dword v127, v3, {WS}, 0 offen sc1")
srd(48, pH, TBYTES)
A("v_lshlrev_b32 v2, 4, v0")
for c in range(0 if OPT["noh"] else 4):
    A(f"s_mov_b32 m0, {LA + c*A_C + 3*A_CP + 48}")
    for i in range(4):
        A(f"buffer_load_dwordx4 v2, s[48:51], s54 offen offset:{1024*i} lds")
    A("s_add_u32 s54, s54, 4096")
stamp(11)
A("L_b1:")
A("s_lshl_b32 s59, s2, 7")
A(f"s_add_u32 s59, s59, {ARR}")
A(f"v_mov_b32 v10, {sTAG}")
A(f"v_mov_b32 v11, {sXCC}")
A("v_mov_b32 v12, s59")
A("s_barrier")
setexec(1)
A(f"buffer_store_dwordx2 v[10:11], v12, {WS}, 0 offen sc1")
setexec(ALL)
A(f"s_cmp_lt_u32 {sJ}, 20")
A("s_cbranch_scc1 L_kvdone")
for _ in range(NR - 1):
    A("s_barrier")
A("s_branch L_kvdone")
A("L_h0:")
A(f"s_lshl_b32 s55, {sX}, 11")
A("s_lshl_b32 s57, s58, 3")
A("s_add_u32 s57, s57, s55")
A(f"s_add_u32 s57, s57, {FLG}")
A(f"v_mov_b32 v10, {sTAG}")
A(f"v_mov_b32 v11, {sXCC}")
A("v_mov_b32 v12, s57")
setexec(1)
A(f"buffer_store_dwordx2 v[10:11], v12, {WS}, 0 offen")
setexec(ALL)
if OPT["bl"]:
    A("s_barrier")
A("s_branch L_b1")

A("L_slowsync:")
A(f"v_min_u32 v4, {NP1-1}, v0")
A("v_add_u32 v5, 8, v4")
A("v_cmp_gt_u32 vcc, 20, v4")
A("v_cndmask_b32 v4, v5, v4, vcc")
A("v_lshlrev_b32 v4, 10, v4")
A(f"s_lshl_b32 s57, {sX}, 7")
A(f"s_add_u32 s57, s57, {ARR}")
A(f"buffer_load_dwordx2 v[2:3], v4, {WS}, s57 offen sc1")
A("s_waitcnt vmcnt(0)")
A(f"v_cmp_eq_u32 vcc, {sTAG}, v2")
A(f"v_cmp_ne_u32 s[56:57], {sXCC}, v3")
A("s_and_b64 vcc, vcc, s[56:57]")
A("s_cbranch_scc1 L_fb")
A(f"s_cmp_lt_u32 s59, {POLL_LIMIT}")
A("s_cbranch_scc1 L_poll")
A("s_branch L_synced")
A("L_fb:")
A(f"s_mov_b32 s57, {FLB}")
A(f"s_mov_b32 s60, {YT2}")
A(f"s_mov_b32 s61, {FLB}")
A(f"s_cmp_lg_u32 {sW}, 0")
A("s_cbranch_scc1 L_nowb")
A("buffer_wbl2 sc1")
A("s_waitcnt vmcnt(0)")
setexec(1)
A(f"buffer_store_dwordx2 v[10:11], v12, {WS}, s57 offen sc1")
setexec(ALL)
A("L_nowb:")
A(f"s_cmp_ge_u32 {sJ}, 20")
A("s_cbranch_scc1 L_synced")
A("s_mov_b32 s59, 0")
A("L_pollb:")
A(f"buffer_load_dwordx2 v[2:3], v1, {WS}, s57 offen sc1")
A("s_add_u32 s59, s59, 1")
A("s_waitcnt vmcnt(0)")
A(f"v_cmp_eq_u32 vcc, {sTAG}, v2")
A("s_cmp_eq_u64 vcc, -1")
A("s_cbranch_scc1 L_bok")
A("s_sleep 2")
A(f"s_cmp_lt_u32 s59, {POLL_LIMIT}")
A("s_cbranch_scc1 L_pollb")
A("L_bok:")
A("buffer_inv sc1")
A("s_waitcnt vmcnt(0)")
A("s_branch L_synced")

A("L_hi4:")
A(f"s_cmp_lt_u32 {sJ}, 20")
A("s_cbranch_scc1 L_mfma")
A(f"s_cmp_lg_u32 {sW}, 7")
A("s_cbranch_scc1 L_special")
A(f"s_cmp_lg_u32 s2, {28*8}")
A("s_cbranch_scc1 L_fin")
A("v_lshlrev_b32 v1, 7, v0")
for i in range(4):
    A(f"s_mov_b32 s{54+i}, {ARR + 8192*i}")


def arr_loads():
    A("s_sleep 8")
    for i in range(4):
        A(f"buffer_load_dword v{6+i}, v1, {WS}, s{54+i} offen sc1")


arr_loads()
A("s_waitcnt vmcnt(0)")
tag_check("L_ep", [6, 7, 8, 9], arr_loads)
A(f"v_mov_b32 v10, {sTAG}")
A(f"v_mov_b32 v11, {EPOCH}")
setexec(1)
A(f"buffer_store_dword v10, v11, {WS}, 0 offen sc1")
setexec(ALL)
A("s_branch L_fin")

A("L_mfma:")
A(f"s_sub_u32 s53, {sW}, 4")
A(f"s_mul_i32 s54, s53, {A_C}")
A("v_lshl_add_u32 v8, v0, 4, s54")
for i in range(4):
    A(f"ds_read_b128 {vr(16+16*i,4)}, v8 offset:{3*A_CP + 32 + 1024*i}")
    A(f"ds_read_b128 {vr(20+16*i,4)}, v8 offset:{3*A_CP + 48 + 1024*i}")
for i in range(4):
    b = 16 + 16*i
    A(f"s_waitcnt lgkmcnt({6 + i})")
    A(f"ds_write_b128 v8, {vr(b+2,4)} offset:{A_CP + 48 + 1024*i}")
    for q in range(6):
        A(f"v_mov_b32 v{b+8+q}, v{b+1+q}")
    A(f"ds_write_b128 v8, {vr(b+8,4)} offset:{48 + 1024*i}")
    A(f"ds_write_b128 v8, {vr(b+10,4)} offset:{2*A_CP + 48 + 1024*i}")
A("v_and_b32 v6, 3, v0")
A(f"v_mul_u32_u24 v1, {A_CP}, v6")
A("v_bfe_u32 v6, v0, 2, 2")
A("v_lshrrev_b32 v7, 4, v0")
A("v_add_u32 v6, v6, v7")
A("v_lshl_add_u32 v1, v6, 4, v1")
A("v_add_u32 v1, s54, v1")
A("v_and_b32 v6, 1, v0")
A(f"v_mul_u32_u24 v2, {U_P}, v6")
A("v_bfe_u32 v6, v0, 1, 3")
A("v_lshlrev_b32 v6, 2, v6")
A("v_sub_u32 v6, v6, v7")
A("v_lshl_add_u32 v2, v6, 4, v2")
A(f"s_mul_i32 s54, s53, {U_C}")
A(f"s_add_u32 s54, s54, {LU + 48}")
A("v_add_u32 v2, s54, v2")
A("v_bfe_u32 v6, v0, 1, 3")
A("v_lshl_add_u32 v6, v6, 2, v7")
A("v_and_b32 v5, 1, v0")
A("v_lshlrev_b32 v4, 4, v6")
A("v_lshl_add_u32 v4, v5, 3, v4")
A(f"s_mul_i32 s54, s62, {KS}")
A("v_add_u32 v4, s54, v4")
A(f"s_mul_i32 s54, {sX}, {2048 - 320}")
A("s_lshl_b32 s55, s62, 2")
A("s_add_u32 s54, s54, s55")
A("v_mov_b32 v5, s54")
A(f"v_mov_b32 v6, {sTAG}")
A(f"v_mov_b32 v7, {LF}")
A("s_bitcmp1_b32 s62, 0")
A("s_cselect_b32 s54, 16, 0")
A("s_lshr_b32 s63, s63, s54")
A("s_and_b32 s63, s63, 0xffff")
A("v_lshrrev_b32 v12, 4, v0")
A("v_and_b32 v13, 15, v0")
A("v_lshl_add_u32 v12, v12, 2, v13")
A("v_mov_b32 v13, s63")
for i in range(4):
    A(f"v_cmp_eq_u32 vcc, {15-i}, v12")
    A(f"v_cndmask_b32 v{8+i}, 0, v13, vcc")
A("s_lshl_b32 s54, s53, 2")
A(f"s_add_u32 s54, s54, {LF + 16}")
A("v_mov_b32 v12, s54")
A("v_mov_b32 v13, 0")
A("ds_write2_b32 v12, v13, v13 offset0:0 offset1:4")
A(f"s_mov_b32 s60, {KVT}")
A(f"s_mov_b32 s61, {FLG}")
A(f"s_mov_b32 s56, {YT2}")
A(f"s_mov_b32 s57, {FLB}")
A("s_waitcnt lgkmcnt(0)")
n = 0
for rho in range(OPT["resid"]):
    for a in range(4):
        A(f"ds_read_b128 a[{(rho*4+a)*4}:{(rho*4+a)*4+3}], v1 offset:{64*rho + 512*a}")
        n += 1
        if n % 8 == 0:
            A("s_waitcnt lgkmcnt(7)")
if OPT["malign"]:
    A("s_branch L_mbody")
    SLOW_AT = len(A.lines)
    A(".p2align 12")
    A("L_mbody:")
stamp(5)
if OPT["prio"]:
    A(f"s_setprio {OPT['prio']}")
A("s_waitcnt lgkmcnt(0)")
A("s_barrier")
if PROF:
    A("s_memtime s[90:91]")
stamp(6, True)


slow_sites = []


def ystore(txt_fast, txt_slow):
    k = len(slow_sites)
    slow_sites.append(txt_slow)
    return f"s_cbranch_scc1 L_ys{k}\n{txt_fast}\nL_yr{k}:"


def mfma_schedule():
    passes = [((0, 1, 2, 3), range(0, 4)), ((4, 5, 6, 7), range(0, 5)), ((5, 6, 7), range(5, 7)), ((7,), range(7, 8))]
    seq = []
    for pi, (tiles, bs) in enumerate(passes):
        for rho in range(8):
            for b in bs:
                for n in tiles:
                    if n >= b:
                        a = n - b
                        ak = ("A", a, rho) if a <= 3 else ("A", a, rho, pi)
                        seq.append((pi, n, ak, ("B", b, rho, pi)))
                        if a == 0 and rho == 0:
                            seq.append((pi, n, ("D",), ("B", b, rho, pi)))
    N = len(seq)
    end = [max(i for i, e in enumerate(seq) if e[0] == pi) for pi in range(4)]
    reg, pos = {}, {}
    side = {}

    def put(i, key, fn):
        while len(side.get(i, [])) >= 1 and i < N - 1:
            i += 1
        side.setdefault(i, []).append((key, fn))
        return i

    def acc(n, t):
        return 96 + 4*n + t

    def pack_store(n, i):
        i = put(i, None, lambda n=n: f"v_cvt_pk_bf16_f32 v{acc(n,0)}, v{acc(n,0)}, v{acc(n,1)}")
        i = put(i, None, lambda n=n: f"v_cvt_pk_bf16_f32 v{acc(n,1)}, v{acc(n,2)}, v{acc(n,3)}")
        return put(i, None, lambda n=n: ystore(
            f"buffer_store_dwordx2 {vr(acc(n,0),2)}, v4, {WS}, s60 offen offset:{512*n}" + (" sc1" if OPT["ya"] and n < 4 else ""),
            f"buffer_store_dwordx2 {vr(acc(n,0),2)}, v4, {WS}, s56 offen offset:{512*n} sc1"))

    def flag(pi, i):
        return put(i, None, lambda pi=pi: "s_waitcnt vmcnt(0)\ns_mov_b64 exec, 1\n" + ystore(
            f"buffer_store_dword v6, v5, {WS}, s61 offen offset:{512*(pi+1)}",
            f"buffer_store_dword v6, v5, {WS}, s57 offen offset:{512*(pi+1)} sc1") + "\ns_mov_b64 exec, -1" + ("\ns_memrealtime s[82:83]" if PROF and pi == 0 else ""))

    put(24, ("M",), lambda: f"v_readfirstlane_b32 s54, v15\ns_cmp_lg_u32 s54, {FLG}")
    i = end[0] + 5
    for n in passes[0][0]:
        i = pack_store(n, i)
    flag(0, i + OPT["ackgap"])

    FENCE = end[1] - 9
    put(FENCE, ("K", 0, 0, 0), lambda: "v_cmp_eq_u32 vcc, 0, v14\ns_cbranch_vccnz L_s2wait\nL_s2go:")
    FENCE2 = FENCE
    put(end[2] - 4, ("K", 1, 0, 0), lambda: "v_cmp_eq_u32 vcc, 0, v14\ns_cbranch_vccnz L_s3wait\nL_s3go:")
    pack_store(4, end[2] - 3)
    pack_store(5, end[2] + 3)
    first, last = {}, {}
    for i, (_, _, ak, bk) in enumerate(seq):
        ks = [k for k in (bk, ak) if len(k) == 4 or (len(k) == 3 and k[2] >= OPT["resid"])]
        ks += [k for k, _ in side.get(i, []) if k and k[0] == "K"]
        for k in ks:
            first.setdefault(k, i)
            last[k] = i
    loads = sorted(first, key=lambda k: (first[k], k[0] != "B"))
    free = [16 + 4*s for s in range(20)]
    issued = []
    st = dict(done=0, li=0)
    LOOK, SETTLE = OPT["look"], OPT["settle"]
    started = set()

    def rname(k):
        if len(k) == 1:
            return "v[8:11]"
        if len(k) == 3:
            return f"a[{(k[2]*4 + k[1])*4}:{(k[2]*4 + k[1])*4 + 3}]"
        return vr(reg[k], 4)

    def issue_loads(i, maxn):
        cnt = 0
        while st["li"] < len(loads) and cnt < maxn:
            k = loads[st["li"]]
            if first[k] > i + LOOK or len(issued) - st["done"] >= 14 or not free:
                break
            if k[0] == "B" and k[3] == 2 and i < FENCE:
                break
            if k[0] == "B" and k[3] == 3 and i < FENCE2:
                break
            if k[0] == "K" and first[k] > i + 8:
                break
            if len(k) == 4:
                reg[k] = free.pop(0)
            if k[0] == "A":
                A(f"ds_read_b128 {rname(k)}, v1 offset:{64*k[2] + 512*k[1]}")
            elif k[0] == "B":
                A(f"ds_read_b128 {rname(k)}, v2 offset:{512*k[1] + 64*(7-k[2])}")
            else:
                A(f"ds_read_b32 v14, v12 offset:{16*k[1]}")
            pos[k] = len(issued)
            issued.append((k, i))
            st["li"] += 1
            cnt += 1

    def wait_for(keys, i):
        needp = max([pos[k] for k in keys if k in pos] + [-1]) + 1
        for k in keys:
            assert k in pos or k not in first, (k, i)
        if needp > st["done"]:
            tgt = needp
            while tgt < len(issued) and issued[tgt][1] <= i - SETTLE:
                tgt += 1
            A(f"s_waitcnt lgkmcnt({len(issued) - tgt})")
            st["done"] = tgt

    issue_loads(-1, 10)
    A("ds_read_b32 v15, v7")
    pos[("M",)] = len(issued)
    issued.append((None, -1))
    for i, (pi, n, ak, bk) in enumerate(seq):
        wait_for([ak, bk] + [k for k, _ in side.get(i, []) if k], i)
        a_ = vr(96 + 4*n, 4)
        c = a_ if n in started else ("1.0" if OPT["one"] else "0")
        started.add(n)
        A(f"v_mfma_f32_16x16x32_bf16 {a_}, {rname(ak)}, {rname(bk)}, {c}")
        for k, fn in side.get(i, []):
            t_ = fn()
            if not (OPT["noside"] and t_.startswith("v_") and "readfirst" not in t_):
                A(t_)
        for k in list(reg):
            if last[k] == i:
                free.append(reg[k])
        behind = st["li"] < len(loads) and first[loads[st["li"]]] <= i + 8
        issue_loads(i, OPT["maxn"] + (1 if behind else 0))
    side.clear()
    i = N - 1
    for n in (6, 7):
        pack_store(n, i)
    put(i, None, lambda: "s_barrier")
    flag(1, i)
    if PROF:
        A("s_memtime s[92:93]")
    stamp(8)
    for k, fn in side[N-1]:
        A(fn())


mfma_schedule()
stamp(7)
A("s_branch L_fin")
_sl = []
for q_ in (2, 3):
    _sl += [f"L_s{q_}wait:", "s_mov_b32 s59, 0", f"L_s{q_}w:", f"ds_read_b32 v14, v12 offset:{16*(q_-2)}",
            "s_cselect_b32 s58, 1, 0", "s_add_u32 s59, s59, 1", f"s_cmp_ge_u32 s59, {16*POLL_LIMIT}",
            "s_cselect_b32 s54, 1, 0", "s_cmp_lg_u32 s58, 0", "s_waitcnt lgkmcnt(0)", "v_or_b32 v14, s54, v14",
            "v_cmp_eq_u32 vcc, 0, v14", f"s_cbranch_vccnz L_s{q_}w", f"s_branch L_s{q_}go"]
for k, t in enumerate(slow_sites):
    _sl += [f"L_ys{k}:", t, f"s_branch L_yr{k}"]
if OPT["malign"]:
    A.lines[SLOW_AT:SLOW_AT] = _sl
else:
    A.lines += _sl

A("L_nonp1:")
A("v_lshrrev_b32 v1, 2, v0")
A("v_mul_u32_u24 v1, 3456, v1")
A("v_lshrrev_b32 v2, 4, v0")
A("v_and_b32 v2, 2, v2")
A("v_and_b32 v3, 3, v0")
A("v_xor_b32 v2, v2, v3")
A("v_lshl_add_u32 v100, v2, 4, v1")
moe_decode()
A("s_add_u32 s53, s63, s56")
A("s_cmp_ge_u32 s63, s54")
A("s_cselect_b32 s58, 100, -1")
A(f"s_add_u32 s58, s58, {sW}")
A(f"s_mul_i32 s55, s58, {80*3456}")
A("s_lshl_b32 s56, s53, 6")
A("s_add_u32 s55, s55, s56")
A("s_mul_i32 s54, s58, 5120")
A("s_bitcmp1_b32 s53, 0")
A("s_cselect_b32 s96, 20, 0")
A(f"s_mul_i32 s62, s96, {16*3456}")
A("s_add_u32 s55, s55, s62")
A("s_lshl_b32 s57, s96, 10")
A("s_add_u32 s54, s54, s57")
A("s_lshl_b32 s96, s96, 1")
A("s_sub_u32 s96, 15, s96")
A(f"s_mul_i32 s62, s96, {16*3456}")
A("s_lshl_b32 s96, s96, 10")
after_kernarg()
srd(40, pWG, WBYTES)
srd(44, pWU, WBYTES)
srd(48, pWD, WBYTES)
if OPT["bq"]:
    A("s_barrier")
gu, dn = [], []
for i in range(10):
    pre = ["s_add_u32 s55, s55, s62", "s_add_u32 s54, s54, s96"] if i == 5 else []
    gu.append(pre + [f"s_add_u32 m0, s54, {LWG + 1024*i}", "buffer_load_dwordx4 v100, s[40:43], s55 offen lds"])
    gu.append([f"s_add_u32 m0, s54, {LWU + 1024*i}", "buffer_load_dwordx4 v100, s[44:47], s55 offen lds",
               f"s_add_u32 s55, s55, {16*3456}"])
    dn.append([f"s_add_u32 m0, s98, {LWD + 4096*i}", f"buffer_load_dwordx4 v{101+i}, s[48:51], s97 offen lds"])
NB1 = OPT["nb1"]
wl = gu[:10] + dn[:NB1] + gu[10:] + dn[NB1:]
A("s_mul_i32 s97, s53, 40960")
A("s_lshl_b32 s98, s58, 10")
A("s_cmp_ge_u32 s58, 4")
A("s_cbranch_scc1 L_noe")
for g in wl[:OPT["early"]]:
    for t in g:
        A(t)
A("L_noe:")
A("v_subrev_u32 v9, 64, v9")
for k in range(11):
    A(f"v_add_u32 v1, {256*k}, {'v0' if k == 10 else 'v9'}")
    A("v_mul_u32_u24 v2, 1599, v1")
    A("v_lshrrev_b32 v2, 17, v2")
    A("v_mul_u32_u24 v3, 82, v2")
    A("v_sub_u32 v1, v1, v3")
    A("v_min_u32 v1, 79, v1")
    A("v_mul_u32_u24 v2, 1280, v2")
    A(f"v_lshl_add_u32 v{101+k}, v1, 4, v2")
make_tag()
A("s_cmp_lt_u32 s58, 100")
A("s_cbranch_scc1 L_moe")
A("s_barrier")
A("s_branch L_fin")
A("L_moe0:")
moe_decode()
A("s_add_u32 s53, s63, s56")
A("s_mov_b32 s58, -1")
A("s_cmp_lt_u32 s63, s54")
A("s_cbranch_scc1 L_moe")
A("s_barrier")
A(f"s_cmp_lg_u32 {sW}, 0")
A("s_cbranch_scc1 L_fin")
arr_store()
A("s_branch L_fin")

if OPT["moal"]:
    A(".p2align 12")
A("L_moe:")
A("s_mov_b32 s57, 0x3f803f80")
for i in range(4):
    A(f"v_mov_b32 v{16+i}, s57")
A(f"s_mov_b32 s57, {LX + 2*X_P}")
A("v_lshl_add_u32 v2, v0, 4, s57")
A("ds_write_b128 v2, v[16:19]")
A("ds_write_b128 v2, v[16:19] offset:256")
A("v_bfe_u32 v1, v0, 3, 1")
A("v_lshrrev_b32 v2, 4, v0")
A("v_bfe_u32 v10, v0, 2, 2")
A("v_and_b32 v11, 3, v0")
A("v_lshl_add_u32 v14, v2, 3, v10")
A(f"v_mul_u32_u24 v12, {WD_P}, v14")
A(f"s_mul_i32 s57, {sW}, 160")
A(f"s_add_u32 s57, s57, {LWD}")
A("v_lshl_add_u32 v13, v11, 3, s57")
A("v_add_u32 v12, v12, v13")
A(f"s_and_b32 s60, {sW}, 1")
A(f"s_lshr_b32 s61, {sW}, 1")
A("v_lshlrev_b32 v14, 6, v14")
A("v_lshrrev_b32 v15, 1, v11")
A(f"v_mul_u32_u24 v15, {LWU}, v15")
A("v_add_u32 v14, v14, v15")
A("v_and_b32 v15, 1, v11")
A("v_lshl_add_u32 v14, v15, 3, v14")
A("v_and_b32 v15, 1, v2")
A("v_lshlrev_b32 v15, 1, v15")
A("v_xor_b32 v15, s61, v15")
A("v_lshl_add_u32 v14, v15, 4, v14")
A("s_bitcmp1_b32 s53, 0")
A("s_cselect_b32 s99, 2, 0")
A("s_add_u32 s59, s99, s60")
A(f"s_mul_i32 s57, s59, {160*64}")
A("v_add_u32 v92, s57, v14")
A("s_xor_b32 s57, s59, 2")
A(f"s_mul_i32 s57, s57, {160*64}")
A("v_add_u32 v14, s57, v14")
A("v_and_b32 v10, 7, v0")
A("v_lshl_add_u32 v11, v2, 3, v10")
A("v_lshlrev_b32 v11, 2, v11")
A(f"v_add_u32 v37, {LRED + 512}, v11")
A("v_lshl_add_u32 v36, v1, 8, v11")
A(f"v_add_u32 v36, {LRED}, v36")
A("v_and_b32 v18, 1, v10")
A("v_mov_b32 v19, 0xffff")
A(f"v_mov_b32 v20, {sHI}")
A("v_cmp_eq_u32 vcc, 1, v18")
A("v_cndmask_b32 v18, v19, v20, vcc")
A("v_lshrrev_b32 v13, 1, v10")
for i in range(4):
    A(f"v_cmp_eq_u32 vcc, {i}, v13")
    A(f"v_cndmask_b32 v{80+i}, 0, v18, vcc")
A("v_and_b32 v38, 15, v0")
A("v_lshlrev_b32 v38, 8, v38")
A("v_lshrrev_b32 v39, 1, v2")
A("v_lshl_add_u32 v38, v39, 7, v38")
A("v_and_b32 v39, 1, v2")
A("v_lshl_add_u32 v38, v39, 4, v38")
A("s_mul_i32 s57, s60, 768")
A("s_lshl_b32 s59, s61, 5")
A("s_add_u32 s57, s57, s59")
A(f"s_add_u32 s57, s57, {LRED}")
A("v_add_u32 v38, s57, v38")
A("v_mul_u32_u24 v39, 640, v1")
A("v_lshl_add_u32 v39, v10, 4, v39")
A("v_mul_u32_u24 v15, 80, v2")
A("v_add_u32 v39, v39, v15")
A("s_mul_i32 s57, s53, 10240")
A(f"s_mul_i32 s59, {sW}, 1280")
A("s_add_u32 s57, s57, s59")
A(f"s_add_u32 s57, s57, {PART}")
A("v_add_u32 v39, s57, v39")
A(f"s_mov_b32 s57, {LK}")
A("v_lshl_add_u32 v13, v1, 2, s57")
A("v_and_b32 v6, 15, v0")
A("v_min_u32 v6, 2, v6")
A(f"v_mul_u32_u24 v6, {X_P}, v6")
A("v_lshl_add_u32 v6, v2, 4, v6")
A("s_add_u32 s59, s99, s60")
A("s_mul_i32 s57, s59, 320")
A(f"s_add_u32 s57, s57, {LX}")
A("v_add_u32 v93, s57, v6")
A("s_xor_b32 s57, s59, 2")
A("s_mul_i32 s57, s57, 320")
A(f"s_add_u32 s57, s57, {LX}")
A("v_add_u32 v6, s57, v6")


def first_part():
    for s in range(5):
        A(f"ds_read_b64_tr_b16 a[{4*s}:{4*s+1}], v92 offset:{2048*s}")
        A(f"ds_read_b64_tr_b16 a[{4*s+2}:{4*s+3}], v92 offset:{2048*s + 256}")


for i in range(4):
    A(f"v_mov_b32 v{85+2*i}, {sTAG}")
if OPT["ml"]:
    A("s_barrier")
A("s_cmp_ge_u32 s58, 4")
A("s_cbranch_scc1 L_noload")
srd(40, pWG, WBYTES)
srd(44, pWU, WBYTES)
srd(48, pWD, WBYTES)
for n_, g in enumerate(wl):
    if n_ < OPT["early"]:
        continue
    if n_ < 10 + NB1:
        A(f"s_waitcnt vmcnt({OPT['pace']})")
    if n_ == 20 + NB1:
        A("s_waitcnt vmcnt(10)")
        A("s_barrier")
    for t in g:
        A(t)
    if n_ == OPT["mp"] + NB1 - 1:
        A("s_barrier")
        A("s_barrier")
first_part()
A(f"s_waitcnt vmcnt({10 - NB1})")
stamp(4)
A("s_branch L_nopoll")
A("L_noload:")
A("s_barrier")
A(f"s_cmp_eq_u32 {sW}, 0")
A("s_cbranch_scc1 L_poller")
A("s_barrier")
A("s_barrier")
first_part()
A(f"s_cmp_lg_u32 {sW}, 5")
A("s_cbranch_scc1 L_nopoll")
srd(48, pWD, WBYTES)
A(f"s_mov_b32 m0, {LWD + 40960}")
A("buffer_load_dwordx4 v111, s[48:51], s97 offen lds")
arr_store()
A("s_branch L_nopoll")
A("L_poller:")
A("v_lshlrev_b32 v32, 4, v0")
A(f"s_mov_b32 s58, {CAND}")
if OPT["polldelay"]:
    A(f"s_sleep {OPT['polldelay']}")
cand_loads(16, 32, "s58", " sc1")
A("s_barrier")
srd(40, pQ, TBYTES)
A("s_waitcnt vmcnt(0)")
tag_check("L_cm", [17 + 2*i for i in range(8)], lambda: cand_loads(16, 32, "s58", " sc1"))
top2_merge(16)
stamp(7)
A("s_andn2_b32 s56, 0x7ff, s54")
A("s_andn2_b32 s57, 0x7ff, s55")
A("s_mul_i32 s56, s56, 1280")
A("s_mul_i32 s57, s57, 1280")
A(f"s_mov_b32 m0, {LX}")
A("buffer_load_dwordx4 v32, s[40:43], s56 offen lds")
setexec(0xffff)
A("buffer_load_dwordx4 v32, s[40:43], s56 offen offset:1024 lds")
setexec(ALL)
A(f"s_mov_b32 m0, {LX + X_P}")
A("buffer_load_dwordx4 v32, s[40:43], s57 offen lds")
setexec(0xffff)
A("buffer_load_dwordx4 v32, s[40:43], s57 offen offset:1024 lds")
setexec(ALL)
A("v_mov_b32 v16, s54")
A("v_mov_b32 v17, s55")
A("v_cmp_eq_u32 vcc, 1, v1")
A("v_cndmask_b32 v5, v16, v17, vcc")
A("v_not_b32 v3, v5")
A("v_and_b32 v7, 0x7ff, v3")
A("v_lshlrev_b32 v7, 3, v7")
A(f"s_mov_b32 s57, {ESTAT}")


def mstat():
    A(f"buffer_load_dwordx2 v[8:9], v7, {WS}, s57 offen sc1")


mstat()
A("s_andn2_b32 s56, 0x7ff, s54")
A("s_andn2_b32 s58, 0x7ff, s55")
A(f"s_cmp_lg_u32 {sJ}, 20")
A("s_cbranch_scc1 L_ntp")
A("s_lshl_b32 s59, s58, 16")
A("s_or_b32 s59, s59, s56")
A("v_mov_b32 v16, s59")
A(f"s_lshl_b32 s59, {sX}, 7")
A(f"s_add_u32 s59, s59, {TOP}")
A(f"v_mov_b32 v17, {sTAG}")
A("v_mov_b32 v3, s59")
setexec(1)
A(f"buffer_store_dwordx2 v[16:17], v3, {WS}, 0 offen sc1")
setexec(ALL)
A("L_ntp:")
A("s_barrier")
first_part()
A(f"v_and_b32 v5, {sHI}, v5")
A("v_ashrrev_i32 v10, 31, v5")
A("v_not_b32 v10, v10")
A("v_or_b32 v10, 0x80000000, v10")
A("v_xor_b32 v5, v5, v10")
A(f"v_and_b32 v5, {sHI}, v5")
A("v_mul_f32 v5, 0xbfb8aa3b, v5")
A("v_exp_f32 v5, v5")
A("v_add_f32 v5, 1.0, v5")
A("v_rcp_f32 v5, v5")
A(f"s_cmp_eq_u32 {sJ}, 20")
A("s_cbranch_scc1 L_w1")
A("s_waitcnt vmcnt(0)")
A("L_w1:")
A("s_waitcnt vmcnt(1)")
tag_check("L_ms", [9], mstat)
A("ds_write2_b32 v13, v5, v8 offset0:0 offset1:2")
stamp(11)
A("L_nopoll:")
for t in range(1, 5):
    m = (1 << t) * 0x01010101
    A(f"s_mov_b32 s{40+2*t}, {m:#x}")
    A(f"s_mov_b32 s{41+2*t}, {m:#x}")
A("s_waitcnt lgkmcnt(0)")
stamp(5)
A("s_barrier")
stamp(6, True)
for s in range(5):
    A(f"ds_read_b128 {vr(40+4*s,4)}, v93 offset:{64*s}")
for s in range(3):
    A(f"ds_read_b64_tr_b16 a[{20+4*s}:{21+4*s}], v14 offset:{2048*s}")
    A(f"ds_read_b64_tr_b16 a[{22+4*s}:{23+4*s}], v14 offset:{2048*s + 256}")
    A(f"ds_read_b128 {vr(60+4*s,4)}, v6 offset:{64*s}")
A("s_waitcnt lgkmcnt(9)")
for s in range(5):
    c = "0" if s == 0 else "v[28:31]"
    A(f"v_mfma_f32_16x16x32_bf16 v[28:31], a[{4*s}:{4*s+3}], {vr(40+4*s,4)}, {c}")
    if s < 2:
        q = 3 + s
        A(f"ds_read_b64_tr_b16 a[{20+4*q}:{21+4*q}], v14 offset:{2048*q}")
        A(f"ds_read_b64_tr_b16 a[{22+4*q}:{23+4*q}], v14 offset:{2048*q + 256}")
        A(f"ds_read_b128 {vr(60+4*q,4)}, v6 offset:{64*q}")
for s in range(5):
    A(f"s_waitcnt lgkmcnt({3*(4-s) + (1 if s else 0)})")
    A(f"v_mfma_f32_16x16x32_bf16 v[28:31], a[{20+4*s}:{23+4*s}], {vr(60+4*s,4)}, v[28:31]")
    if s == 0:
        A("ds_read2_b32 v[4:5], v13 offset0:2 offset1:0")
A("s_waitcnt lgkmcnt(0)")
A(f"v_and_b32 v9, {sHI}, v4")
A("v_lshlrev_b32 v8, 16, v4")
A("v_rcp_f32 v9, v9")
A("v_mul_f32 v5, v5, v9")
setexec(0x0007000700070007)
A("ds_write_b128 v38, v[28:31]")
setexec(ALL)
A("s_waitcnt lgkmcnt(0)")
A("s_barrier")
stamp(3, True)
A("ds_read2_b32 v[28:29], v36 offset0:0 offset1:32")
A("ds_read2_b32 v[30:31], v36 offset0:192 offset1:224")
A("ds_read2_b32 v[32:33], v37 offset0:0 offset1:32")
A("ds_read2_b32 v[34:35], v37 offset0:192 offset1:224")
A("s_waitcnt lgkmcnt(2)")
A("v_add_f32 v28, v28, v30")
A("v_add_f32 v29, v29, v31")
A("s_waitcnt lgkmcnt(0)")
A("v_add_f32 v32, v32, v34")
A("v_add_f32 v33, v33, v35")
A("v_fma_f32 v28, -v8, v32, v28")
A("v_fma_f32 v29, -v8, v33, v29")
A("v_mul_f32 v28, v28, v9")
A("v_mul_f32 v29, v29, v5")
A("v_mul_f32 v30, 0xbfb8aa3b, v28")
A("v_exp_f32 v30, v30")
A("v_mul_f32 v29, v29, v28")
A("v_add_f32 v30, 1.0, v30")
A("v_rcp_f32 v30, v30")
A("v_mul_f32 v29, v29, v30")
A("v_cvt_pk_bf16_f32 v29, v29, v29")
for i in range(4):
    A(f"v_and_b32 v{32+i}, v29, v{80+i}")
for r in ("quad_perm:[1,0,3,2]", "quad_perm:[2,3,0,1]", "row_half_mirror"):
    for i in range(4):
        A(f"v_or_b32_dpp v{32+i}, v{32+i}, v{32+i} {r} row_mask:0xf bank_mask:0xf")
stamp(9)
A("s_waitcnt vmcnt(0)")
A("s_barrier")
stamp(10, True)
for t in range(5):
    A(f"ds_read_b64_tr_b16 a[{40+4*t}:{41+4*t}], v12 offset:{32*t}")
    A(f"ds_read_b64_tr_b16 a[{42+4*t}:{43+4*t}], v12 offset:{32*t + 4*WD_P}")
for t in range(5):
    A(f"s_waitcnt lgkmcnt({8-2*t})")
    A(f"v_mfma_f32_16x16x32_bf16 {vr(40+4*t,4)}, a[{40+4*t}:{43+4*t}], v[32:35], 0")
for t in range(1, 5):
    for i in range(4):
        A(f"v_cndmask_b32 v{84+2*i if t == 4 else 40+i}, v{40+i}, v{40+4*t+i}, s[{40+2*t}:{41+2*t}]")
setexec(0x1f1f1f1f1f1f1f1f)
A(f"buffer_store_dwordx4 v[84:87], v39, {WS}, 0 offen sc1")
A(f"buffer_store_dwordx4 v[88:91], v39, {WS}, 0 offen offset:320 sc1")
setexec(ALL)
stamp(12)
if OPT["wb"]:
    A(f"s_lshl_b32 s54, {sW}, 5")
    A(f"s_add_u32 s54, s54, {sJ}")
    A("s_cmp_lg_u32 s54, 20")
    A("s_cbranch_scc1 L_fin")
    if OPT["wb"] & 1:
        A("buffer_wbl2 sc1")
        A("s_waitcnt vmcnt(0)")
        stamp(10)
    if OPT["wb"] & 2:
        A("v_min_u32 v1, 39, v0")
        A(f"s_lshl_b32 s54, {sX}, 11")
        A("v_lshl_add_u32 v1, v1, 3, s54")
        A(f"s_mov_b32 s56, {FLG + 1024}")
        A(f"s_mov_b32 s57, {FLB + 1024}")
        A("s_mov_b32 s59, 0")
        A("L_wbp:")
        A("s_add_u32 s59, s59, 1")
        A("s_and_b32 s58, s59, 15")
        A("s_cselect_b32 s58, s56, s57")
        A(f"buffer_load_dwordx2 v[10:11], v1, {WS}, s58 offen sc1")
        A("s_waitcnt vmcnt(0)")
        A(f"v_cmp_ne_u32 vcc, {sTAG}, v10")
        A(f"v_cmp_ne_u32 s[54:55], {sTAG}, v11")
        A("s_or_b64 vcc, vcc, s[54:55]")
        A("s_cbranch_scc0 L_wbok")
        A(f"s_cmp_lt_u32 s59, {POLL_LIMIT}")
        A("s_cbranch_scc1 L_wbp")
        A("L_wbok:")
        A("buffer_wbl2 sc1")

A("L_fin:")
if PROF:
    A("s_waitcnt vmcnt(0)")
    stamp(15)
    A("s_waitcnt lgkmcnt(0)")
    if OPT["diag"] >= 0:
        k = OPT["diag"]
        A(f"s_sub_u32 s53, s{64+2*k}, s64")
        A(f"s_cmp_eq_u32 s{64+2*k}, 0")
        A("s_cselect_b32 s53, 0, s53")
        if OPT["drole"] == 1:
            A(f"s_cmp_ge_u32 {sJ}, 20")
            A("s_cselect_b32 s53, 0, s53")
        if OPT["drole"] == 2:
            A(f"s_sub_u32 s54, {sJ}, 20")
            A("s_cmp_ge_u32 s54, 8")
            A("s_cselect_b32 s53, 0, s53")
        A(f"s_mul_i32 s53, s53, {OPT['dmul']}")
        A("s_add_u32 s53, s53, 4000")
        if OPT["dx"] >= 0:
            A(f"s_cmp_lg_u32 {sX}, {OPT['dx']}")
            A("s_cselect_b32 s53, 0, s53")
        A("L_diag:")
        A("s_sleep 4")
        A("s_memrealtime s[54:55]")
        A("s_waitcnt lgkmcnt(0)")
        A("s_sub_u32 s54, s54, s64")
        A("s_cmp_lt_u32 s54, s53")
        A("s_cbranch_scc1 L_diag")
    A("s_lshl_b32 s53, s2, 3")
    A(f"s_add_u32 s53, s53, {sW}")
    A("s_lshl_b32 s53, s53, 6")
    A(f"s_add_u32 s53, s53, {PROFB}")
    A("v_mov_b32 v1, s53")
    setexec(1)
    for k in range(16):
        A(f"v_mov_b32 v2, s{64+2*k}")
        A(f"buffer_store_dword v2, v1, {WS}, 0 offen offset:{4*k}")
A("L_end:")
A("s_endpgm")
A("L_codeend:")

hdr = open(os.path.join(os.path.dirname(os.path.abspath(__file__)), "..", "cdna_kernels", NAME + ".s.ref")).read().split("\n")
hdr = [l for l in hdr if l.startswith(";") and "@launch" not in l]
out = hdr + [f"; @launch grid=(256,1,1) block=(512,1,1) lds={LDS_BYTES}",
             '.amdgcn_target "amdgcn-amd-amdhsa--gfx950"', ".text", f".globl {NAME}_kernel", ".p2align 8",
             f".type {NAME}_kernel,@function"]
def move(first, after_last, before, back=0):
    i, j = A.lines.index(first), A.lines.index(after_last) - back
    blk = A.lines[i:j]
    assert blk[-1].startswith(("s_branch", "s_endpgm")), blk[-1]
    del A.lines[i:j]
    k = A.lines.index(before)
    assert A.lines[k-1].startswith(("s_branch", "s_endpgm")), A.lines[k-1]
    A.lines[k:k] = blk


if OPT["moal"]:
    move("L_nonp1:", "L_moe:", "L_s2wait:", 1)
    move("L_sslow:", "L_special:", "L_codeend:")
    move("L_slowsync:", "L_hi4:", "L_lntail:")
    A.lines.insert(A.lines.index("L_lntail:"), ".p2align 12")
if not PROF:
    A.lines = ["s_endpgm" if l == "s_branch L_fin" else l for l in A.lines]
out += A.padded()
out += ['.section .rodata,"a"', ".p2align 6", f".amdhsa_kernel {NAME}_kernel",
        "  .amdhsa_next_free_vgpr 256", "  .amdhsa_next_free_sgpr 102", "  .amdhsa_accum_offset 128",
        "  .amdhsa_group_segment_fixed_size 0", "  .amdhsa_kernarg_size 112", "  .amdhsa_user_sgpr_count 2",
        "  .amdhsa_user_sgpr_kernarg_segment_ptr 1", "  .amdhsa_system_sgpr_workgroup_id_x 1",
        "  .amdhsa_float_denorm_mode_32 3", ".end_amdhsa_kernel", ""]
open(sys.argv[1], "w").write("\n".join(out))
```

```python
import sys, os
sys.path.insert(0, os.path.dirname(os.path.abspath(__file__)))
from asmlib import Asm

NAME = "parallel_sum__ssm_conv_h3__moe_arch_mod__prompt"
OPT = dict(prof=0, codewarm=2, force_fb=0, diag=-1, dmul=4, prio=2, look=12, settle=6, pace=5, polldelay=0,
           bq=1, resid=4, pace1=1, n1=6, noW=0, nopre=0, noh=0, maxn=1, ackgap=40, mp=10, noepi=0, noside=0, drole=0, outA=0, outB=0, wb=0, sent=70, rot=0, probe=0, malign=1, ya=0, dx=-1, early=2, paced=10, hw=0, lastat=1, ks=4224, sp0=2, tc=9, bl=1, nb1=0, xe=2, one=0, hb=0, ml=1, moal=1, pf=1, fpre=1, skip2=1, dfold=1)
for a in sys.argv[2:]:
    k, v = a.split("=")
    assert k in OPT, k
    OPT[k] = int(v)
PROF = OPT["prof"]

EPOCH, FLG, FLB, CAND, ARR, ESTAT, PART = 0, 0x1000, 0x5000, 0x9000, 0x10000, 0x18000, 0x20000
TOP = 0xA000
KVT, YT2, PROFB = 0x100000, 0x900000, 0x800000
KS = OPT['ks']
KV2D = 0x300000
WS_BYTES = 0x1000000
TBYTES = 2621440
WBYTES = 2211840
NMOE, NP1 = 54, 24
OOB = 0x7ffffff0
LA, A_C, A_CP = 0, 16640, 4160
LU, U_C, U_P = 66560, 9120, 4576
LY = 103040
LS, S_T = 103040, 15136
TC, TH, NR = ((9, 10, 2), (8, 8, 3))[OPT['tc'] == 8]
LF = 139776
LQ, LWR = 140032, 150272
LDS_BYTES = 151552
LWG, LWU, LWD, WD_P, LRED, LK, LX, X_P = 0, 40976, 81984, 1312, 123968, 125504, 125568, 1344
POLL_LIMIT = 1 << 16

sX, sJ, sW, sTAG, sXCC = "s3", "s4", "s5", "s6", "s7"
pQ, pK, pV, pSH, pH, pD, pWR, pWG, pWU, pWD, pOUT, pWS = 8, 10, 12, 14, 16, 18, 22, 24, 26, 28, 30, 34
WS = "s[36:39]"
sHI = "s52"
ALL = (1 << 64) - 1
A = Asm()


def sp(p):
    return f"s[{p}:{p+1}]"


def srd(reg, ptr, nbytes):
    A(f"s_mov_b32 s{reg}, s{ptr}")
    A(f"s_mov_b32 s{reg+1}, s{ptr+1}")
    A(f"s_mov_b32 s{reg+2}, {nbytes:#x}")
    A(f"s_mov_b32 s{reg+3}, 0x20000")


def stamp(k, wait=False):
    if PROF:
        A(f"s_memrealtime s[{64+2*k}:{65+2*k}]")
        if wait:
            A("s_waitcnt lgkmcnt(0)")


def vr(b, n):
    return f"v[{b}:{b+n-1}]"


def setexec(m):
    lo, hi = m & 0xffffffff, m >> 32
    if m == ALL:
        A("s_mov_b64 exec, -1")
    elif hi == 0 and lo < 0x80000000:
        A(f"s_mov_b64 exec, {lo:#x}")
    else:
        A(f"s_mov_b32 exec_lo, {lo:#x}")
        A(f"s_mov_b32 exec_hi, {hi:#x}")


def after_kernarg():
    A("s_waitcnt lgkmcnt(0)")
    A(f"s_load_dword {sTAG}, {sp(pWS)}, {EPOCH}")
    srd(36, pWS, WS_BYTES)


def make_tag():
    A("s_waitcnt lgkmcnt(0)")
    A(f"s_mul_i32 {sTAG}, {sTAG}, 0x9E3779B1")
    A(f"s_add_u32 {sTAG}, {sTAG}, 0x7F4A7C15")


def or_tree(regs):
    regs = list(regs)
    while len(regs) > 1:
        nxt = []
        i = 0
        while i < len(regs):
            if i + 2 < len(regs):
                A(f"v_or3_b32 v{regs[i]}, v{regs[i]}, v{regs[i+1]}, v{regs[i+2]}")
                nxt.append(regs[i]); i += 3
            elif i + 1 < len(regs):
                A(f"v_or_b32 v{regs[i]}, v{regs[i]}, v{regs[i+1]}")
                nxt.append(regs[i]); i += 2
            else:
                nxt.append(regs[i]); i += 1
        regs = nxt
    return regs[0]


def tag_check(lbl, tagregs, reissue, restore=None):
    A("s_mov_b32 s59, 0")
    A(f"{lbl}:")
    for r in tagregs:
        A(f"v_xor_b32 v{r}, {sTAG}, v{r}")
    r = or_tree(tagregs)
    A(f"v_cmp_ne_u32 vcc, 0, v{r}")
    A(f"s_cbranch_vccz {lbl}_ok")
    if restore:
        restore()
    reissue()
    A("s_add_u32 s59, s59, 1")
    A(f"s_cmp_lt_u32 s59, {POLL_LIMIT}")
    A("s_waitcnt vmcnt(0)")
    A(f"s_cbranch_scc1 {lbl}")
    A(f"{lbl}_ok:")


def merge_dpp(a, rs):
    for r in rs:
        d = f"row_ror:{r} row_mask:0xf bank_mask:0xf"
        A(f"v_min_u32_dpp v{a+1}, v{a}, v{a} {d}")
        A(f"v_max_u32_dpp v{a+3}, v{a+2}, v{a+2} {d}")
        A(f"v_max_u32_dpp v{a}, v{a}, v{a} {d}")
        A(f"v_max_u32 v{a+2}, v{a+1}, v{a+3}")


def cand_loads(t0, va, so, fl):
    for i in range(4):
        A(f"buffer_load_dwordx4 {vr(t0+4*i,4)}, v{va}, {WS}, {so} offen offset:{1024*i}{fl}")


def top2_merge(t0):
    def merge(a, b, tmp):
        A(f"v_min_u32 v{tmp}, v{a}, v{b}")
        A(f"v_max_u32 v{a}, v{a}, v{b}")
        A(f"v_max3_u32 v{a+2}, v{a+2}, v{b+2}, v{tmp}")
    merge(t0, t0+4, t0+1)
    merge(t0+8, t0+12, t0+3)
    merge(t0, t0+8, t0+1)
    merge_dpp(t0, (1, 2, 4, 8))
    A(f"v_readlane_b32 s54, v{t0}, 0")
    A(f"v_readlane_b32 s55, v{t0+2}, 0")
    for row in (16, 32, 48):
        A(f"v_readlane_b32 s56, v{t0}, {row}")
        A(f"v_readlane_b32 s59, v{t0+2}, {row}")
        A("s_max_u32 s55, s55, s59")
        A("s_min_u32 s59, s54, s56")
        A("s_max_u32 s54, s54, s56")
        A("s_max_u32 s55, s55, s59")


def moe_decode():
    A(f"s_cmp_lt_u32 {sX}, 3")
    A("s_cselect_b32 s54, 8, 6")
    A("s_cselect_b32 s55, 0, 6")
    A(f"s_mul_i32 s56, {sX}, s54")
    A("s_add_u32 s56, s56, s55")


def arr_store():
    A("s_lshl_b32 s59, s2, 7")
    A(f"s_add_u32 s59, s59, {ARR}")
    A(f"v_mov_b32 v32, {sTAG}")
    A(f"v_mov_b32 v33, {sXCC}")
    A("v_mov_b32 v34, s59")
    setexec(1)
    A(f"buffer_store_dwordx2 v[32:33], v34, {WS}, 0 offen sc1")
    setexec(ALL)


A(f"{NAME}_kernel:")
A("s_cmp_ge_u32 s2, 256")
A("s_cbranch_scc1 L_end")
A("s_load_dwordx16 s[8:23], s[0:1], 0")
A("s_load_dwordx8 s[24:31], s[0:1], 64")
A("s_load_dwordx4 s[32:35], s[0:1], 96")
A("v_lshrrev_b32 v1, 6, v0")
A("v_mov_b32 v9, v0")
A("v_and_b32 v0, 63, v0")
A(f"s_and_b32 {sX}, s2, 7")
A(f"s_lshr_b32 {sJ}, s2, 3")
A(f"v_readfirstlane_b32 {sW}, v1")
A(f"s_getreg_b32 {sXCC}, hwreg(HW_REG_XCC_ID)")
if OPT["force_fb"]:
    A(f"s_add_u32 {sXCC}, {sXCC}, {sJ}")
A(f"s_mov_b32 {sHI}, 0xffff0000")
if PROF:
    for k in range(64, 96):
        A(f"s_mov_b32 s{k}, 0")
stamp(0)
A(f"s_mul_i32 s53, {sX}, 20")
A(f"s_add_u32 s53, s53, {sJ}")
A(f"s_sub_u32 s63, {sJ}, 20")
if OPT["codewarm"] == 2:
    A("s_cmp_ge_u32 s63, 8")
    A("s_cbranch_scc1 L_nocw2")
    A("s_getpc_b64 s[54:55]")
    A("L_pc2:")
    A(f"s_sub_u32 s54, s54, L_pc2-{NAME}_kernel")
    A("s_subb_u32 s55, s55, 0")
    A("v_subrev_u32 v1, 320, v9")
    A("v_lshlrev_b32 v1, 7, v1")
    A(f"v_cmp_gt_u32 vcc, L_codeend-{NAME}_kernel, v1")
    A("s_and_saveexec_b64 s[56:57], vcc")
    A("s_cbranch_execz L_nocw3")
    A("global_load_dword v127, v1, s[54:55]")
    A("L_nocw3:")
    setexec(ALL)
    A("L_nocw2:")
A(f"s_sub_u32 s58, {sJ}, 8")
A(f"s_cmp_lt_u32 {sJ}, 20")
A(f"s_cselect_b32 s58, {sJ}, s58")
A(f"s_cmp_lg_u32 {sW}, 0")
A("s_cbranch_scc1 L_not7")
A("s_mov_b32 s99, s2")
A("L_ln:")

A("v_lshlrev_b32 v4, 4, v0")
A("s_mul_i32 s55, s99, 10240")
A(f"s_mov_b32 s42, {TBYTES}")
A("s_mov_b32 s43, 0x20000")
A("s_movk_i32 s46, 1280")
A("s_mov_b32 s47, 0x20000")
A(f"s_mov_b32 m0, {LQ}")
A("s_waitcnt lgkmcnt(0)")
A(f"s_mov_b64 s[40:41], {sp(pQ)}")
A(f"s_mov_b64 s[44:45], {sp(pWR)}")
for s in range(10):
    if s and s % 4 == 0:
        A(f"s_mov_b32 m0, {LQ + 1024*s}")
        A("s_add_u32 s55, s55, 4096")
    A(f"buffer_load_dwordx4 v4, s[40:43], s55 offen offset:{1024*(s%4)} lds")
A(f"s_mov_b32 m0, {LWR}")
A("buffer_load_dwordx4 v4, s[44:47], 0 offen lds")
setexec(0xffff)
A("buffer_load_dwordx4 v4, s[44:47], 0 offen offset:1024 lds")
setexec(ALL)
if OPT["bq"]:
    A("s_barrier")
A("s_branch L_lntail")
A("L_not7:")
A("s_cmp_lt_u32 s63, 8")
A("s_cbranch_scc1 L_nonp1")
A("v_subrev_u32 v9, 64, v9")
A(f"s_mul_i32 s60, s58, {NR*TH}")
A(f"s_sub_u32 s60, s60, {24*NR*TH - 256}")
A(f"s_mul_i32 s55, s58, {TC}")
MAG = {8: 4096, 9: 3641, 10: 3277}
A(f"s_movk_i32 s57, {MAG[TC]}")
A(f"s_cmp_lt_u32 {sJ}, 20")
A("s_cselect_b32 s60, s55, s60")
A(f"s_cselect_b32 s61, {TC}, {TH}")
A(f"s_cselect_b32 s57, s57, {MAG[TH]}")
A("s_mul_i32 s59, s61, 81")
A("s_add_u32 s59, s59, 79")
A(f"s_mul_i32 s55, s60, {8*1280}")
A(f"s_mul_i32 s54, {sX}, 160")
A("s_add_u32 s55, s55, s54")
A(f"s_sub_u32 s55, s55, {8*1280}")
A(f"v_mov_b32 v7, {OOB:#x}")
for i in range(2):
    d = 1 + i
    A(f"v_add_u32 v4, {50+448*i}, v9")
    A("v_mul_u32_u24 v5, 1619, v4")
    A("v_lshrrev_b32 v5, 17, v5")
    A("v_mul_u32_u24 v6, 81, v5")
    A("v_cmp_gt_u32 vcc, 81, v4" if i == 0 else "v_cmp_lt_u32 vcc, s59, v4")
    A("v_sub_u32 v4, v4, v6")
    A("v_mul_u32_u24 v6, 205, v4")
    A("v_lshrrev_b32 v6, 11, v6")
    A("v_lshl_add_u32 v5, v5, 3, v6")
    A("v_mul_u32_u24 v6, 10, v6")
    A("v_sub_u32 v4, v4, v6")
    A("v_mul_u32_u24 v5, 1280, v5")
    A("v_lshl_add_u32 v5, v4, 4, v5")
    A(f"v_add_u32 v{d}, s55, v5")
    A(f"v_cndmask_b32 v{3 if i == 0 else 2}, v{d}, v7, vcc")
A("s_mul_i32 s96, s61, 40")
A("s_sub_u32 s59, s96, 1")
A("v_min_u32 v9, s59, v9")
A("v_mul_u32_u24 v7, s57, v9")
A("v_lshrrev_b32 v7, 15, v7")
A("v_mul_u32_u24 v8, s61, v7")
A("v_sub_u32 v8, v9, v8")
A(f"s_mul_i32 s54, {sX}, 640")
A("v_lshl_add_u32 v9, v7, 4, s54")
A(f"s_lshl_b32 s56, {sW}, 10")
A(f"s_add_u32 s56, s56, {LS + 50*16 - 1024}")
A(f"s_lshl_b32 s97, {sW}, 6")
A("s_add_u32 s96, s96, 64")
after_kernarg()
srd(40, pK, TBYTES)
srd(44, pV, TBYTES)
if OPT["bq"]:
    A("s_barrier")
if OPT["hb"]:
    A(f"s_cmp_lt_u32 {sJ}, 20")
    A("s_cbranch_scc1 L_nhb")
    A("s_barrier")
    A("L_nhb:")
for rd in range(NR):
    if rd == 1:
        A("L_sk2:")
        A(f"global_load_dwordx4 v[20:23], v9, {sp(pSH)}")
        A(f"s_cmp_lt_u32 {sJ}, 20")
        A("s_cbranch_scc1 L_nodma")
        if OPT["bl"] and not OPT["hb"]:
            A("s_barrier")
    if rd:
        A(f"s_mov_b32 s55, {rd*TH*8*1280}")
    for i in range(2):
        if rd == 0 and i == 1 and OPT["skip2"]:
            A(f"s_cmp_lt_u32 {sJ}, 20")
            A(f"s_cselect_b32 s55, {sW}, 0")
            A("s_cmp_ge_u32 s55, 6")
            A("s_cbranch_scc1 L_sk2")
        for t, r in enumerate((40, 44)):
            A(f"s_add_u32 m0, s56, {t*S_T + 7168*i - rd*2*S_T}")
            A(f"buffer_load_dwordx4 v{2 if i else (3 if t else 1)}, s[{r}:{r+3}], {'s55' if rd else '0'} offen lds")
A("L_nodma:")
A("s_lshl_b32 s62, s53, 2")
A(f"s_and_b32 s54, {sW}, 3")
A("s_add_u32 s62, s62, s54")
A("s_min_u32 s62, s62, 639")
A("s_lshl_b32 s54, s62, 1")
A("s_and_b32 s54, s54, -4")
A(f"s_load_dword s63, {sp(pD)}, s54")
stamp(1)
A("v_mul_u32_u24 v1, 1296, v8")
A("v_lshl_add_u32 v1, v7, 2, v1")
A(f"v_add_u32 v1, {LS}, v1")
A(f"s_mul_i32 s55, {sX}, {80*KS}")
A("s_lshl_b32 s57, s60, 4")
A("s_add_u32 s55, s55, s57")
A(f"s_add_u32 s55, s55, {KVT}")
A(f"v_mul_u32_u24 v5, {2*KS}, v7")
A("v_lshl_add_u32 v5, v8, 4, v5")
A("v_add_u32 v5, s55, v5")
A(f"s_cmp_lg_u32 {sW}, 7")
A("s_cbranch_scc1 L_nz")
A(f"s_cmp_ge_u32 {sJ}, 20")
A("s_cbranch_scc1 L_nz")
for i in range(4):
    A(f"v_mov_b32 v{16+i}, 0")
A("v_lshrrev_b32 v2, 5, v0")
A(f"v_mul_u32_u24 v2, {U_P}, v2")
A("v_and_b32 v3, 31, v0")
A("v_min_u32 v3, 27, v3")
A("v_lshl_add_u32 v2, v3, 4, v2")
A(f"v_add_u32 v2, {LU}, v2")
for c in range(4):
    A(f"ds_write_b128 v2, v[16:19] offset:{c*U_C}")
A("v_lshrrev_b32 v2, 2, v0")
A(f"v_mul_u32_u24 v2, {A_CP}, v2")
A("v_and_b32 v3, 3, v0")
A("v_min_u32 v3, 2, v3")
A("v_lshl_add_u32 v2, v3, 4, v2")
A("ds_write_b128 v2, v[16:19]")
A("L_nz:")
make_tag()
A(f"s_cmp_lt_u32 {sJ}, 20")
A(f"s_cselect_b32 s61, 0, {NR-1}")
A("s_cbranch_scc0 L_w8")
A("s_waitcnt vmcnt(0)")
A("L_w8:")
A(f"s_waitcnt vmcnt({4*(NR-1)})")
A("v_lshlrev_b32 v10, 16, v20")
A("v_lshlrev_b32 v11, 16, v22")
A(f"v_and_b32 v12, {sHI}, v20")
A(f"v_and_b32 v13, {sHI}, v22")
A("v_lshlrev_b32 v14, 16, v21")
A("v_lshlrev_b32 v15, 16, v23")
A(f"v_and_b32 v16, {sHI}, v21")
A(f"v_and_b32 v17, {sHI}, v23")
stamp(12)
stamp(13)
A("L_round:")
A("s_barrier")
stamp(2, True)
A("s_cmp_ge_u32 s97, s96")
A("s_cbranch_scc1 L_nokv")


def koff(t):
    return (1296 + 160*t) if t >= 0 else 160*(8 + t)


def Kp(t):
    return vr(40 + 2*(t + 3), 2)


for i, t in enumerate(range(-3, 8)):
    A(f"ds_read_b32 v{20+i}, v1 offset:{koff(t)}")
for t in range(4):
    A(f"ds_read_b32 v{32+t}, v1 offset:{S_T + koff(t)}")
for i in range(11):
    if i in (0, 4, 8):
        A(f"s_waitcnt lgkmcnt({(11, 7, 8)[i//4]})")
    A(f"v_lshlrev_b32 v{40+2*i}, 16, v{20+i}")
    A(f"v_and_b32 v{41+2*i}, {sHI}, v{20+i}")
    if i == 7:
        for t in range(4, 8):
            A(f"ds_read_b32 v{32+t}, v1 offset:{S_T + koff(t)}")
for t in range(8):
    A(f"v_pk_mul_f32 {vr(96+2*t,2)}, v[16:17], {Kp(t-3)}")
for t in range(8):
    A(f"v_pk_fma_f32 {vr(96+2*t,2)}, v[14:15], {Kp(t-2)}, {vr(96+2*t,2)}")
for t in range(8):
    A(f"v_pk_fma_f32 {vr(96+2*t,2)}, v[12:13], {Kp(t-1)}, {vr(96+2*t,2)}")
for t in range(8):
    A(f"v_pk_fma_f32 {vr(96+2*t,2)}, v[10:11], {Kp(t)}, {vr(96+2*t,2)}")
A("s_waitcnt lgkmcnt(0)")
for t in range(8):
    A(f"v_lshlrev_b32 v{62+2*t}, 16, v{32+t}")
    A(f"v_and_b32 v{63+2*t}, {sHI}, v{32+t}")
for t in range(8):
    A(f"v_pk_mul_f32 {vr(96+2*t,2)}, {vr(96+2*t,2)}, {vr(62+2*t,2)}")
A(f"s_mov_b32 s55, {KS}")
for c in range(2):
    for i in range(4):
        A(f"v_cvt_pk_bf16_f32 v{80+4*c+i}, v{96+2*(7-2*i)+c}, v{96+2*(6-2*i)+c}")
    A(f"buffer_store_dwordx4 {vr(80+4*c,4)}, v5, {WS}, {'s55' if c else '0'} offen")
stamp(3)
A("L_nokv:")
A("s_sub_u32 s61, s61, 1")
A("s_cbranch_scc1 L_kvdone")
A(f"v_subrev_u32 v1, {2*S_T}, v1")
A(f"v_add_u32 v5, {16*TH}, v5")
if NR == 3:
    A("s_waitcnt vmcnt(4)")
    A("s_cmp_lg_u32 s61, 0")
    A("s_cbranch_scc1 L_round")
    A("s_waitcnt vmcnt(0)")
else:
    A("s_waitcnt vmcnt(2)")
A("s_branch L_round")
A("L_kvdone:")
A(f"s_lshl_b32 s55, {sX}, 11")
A("s_lshl_b32 s57, s58, 3")
A("s_add_u32 s57, s57, s55")
A(f"v_mov_b32 v10, {sTAG}")
A(f"v_mov_b32 v11, {sXCC}")
A("v_mov_b32 v12, s57")
A(f"v_min_u32 v1, {NP1-1}, v0")
A("v_lshl_add_u32 v1, v1, 3, s55")
A("s_lshl_b32 s54, s53, 2")
A(f"s_add_u32 s54, s54, {sW}")
A(f"s_mul_i32 s54, s54, {KS}")
A(f"s_add_u32 s54, s54, {KVT}")
A("v_lshl_add_u32 v44, v0, 4, s54")
A("v_subrev_u32 v14, 16, v44")
A("v_cmp_eq_u32 vcc, 0, v0")
A(f"v_mov_b32 v3, {OOB:#x}")
A("v_cndmask_b32 v14, v14, v3, vcc")
A(f"s_mov_b32 s55, {FLG}")
A("s_mov_b32 s59, 0")
A(f"s_mov_b32 s60, {KVT}")
A(f"s_mov_b32 s61, {FLG}")
A("s_waitcnt vmcnt(0)")
A("s_barrier")
stamp(4, True)
A(f"s_cmp_ge_u32 {sW}, 4")
A("s_cbranch_scc1 L_hi4")
A(f"s_cmp_lg_u32 {sW}, 0")
A("s_cbranch_scc1 L_poll")
A(f"s_cmp_lt_u32 {sJ}, 20")
A(f"s_cselect_b32 s57, s55, {FLG + 32}")
setexec(1)
A(f"buffer_store_dwordx2 v[10:11], v12, {WS}, s57 offen")
setexec(ALL)
A("L_poll:")
A(f"buffer_load_dwordx2 v[2:3], v1, {WS}, s55 offen sc1")
A("s_add_u32 s59, s59, 1")
A("s_waitcnt vmcnt(0)")
A("v_cmp_eq_u64 vcc, s[6:7], v[2:3]")
A("s_cmp_eq_u64 vcc, -1")
A("s_cbranch_scc1 L_synced")
A("s_and_b32 s57, s59, 15")
A("s_cmp_lg_u32 s57, 0")
A("s_cbranch_scc1 L_poll")
A("s_branch L_slowsync")
A("L_synced:")
stamp(5)
A(f"s_cmp_ge_u32 {sJ}, 20")
A("s_cbranch_scc1 L_special")

def stage(pieces, va, vprev0, vl, extra=0, so="0", fix=None, base=16):
    pv, tm = (28, 32) if base == 16 else (42, 16)
    for i, (off, m) in enumerate(pieces):
        if m != ALL:
            setexec(m)
        A(f"buffer_load_dwordx4 {vr(base+4*i,4)}, v{va}, {WS}, {so} offen offset:{off} sc1")
        if off == 0:
            A(f"buffer_load_dword v{28+i}, v{vprev0}, {WS}, 0 offen sc1")
        else:
            if fix:
                setexec(m & ~1)
            A(f"buffer_load_dword v{pv+i}, v{va}, {WS}, {so} offen offset:{off-16} sc1")
    setexec(ALL)
    yield
    n = len(pieces)
    for i, (off, m) in enumerate(pieces):
        A(f"s_waitcnt vmcnt({2*(n-1-i) + extra})")
        if m != ALL:
            setexec(m)
        b = base + 4*i
        if fix:
            A(fix)
        A(f"ds_write_b128 v{vl}, {vr(b,4)} offset:{U_P + off}")
        A(f"v_alignbyte_b32 v{tm+0+4*i}, v{b+1}, v{b}, 2")
        A(f"v_alignbyte_b32 v{tm+1+4*i}, v{b+2}, v{b+1}, 2")
        A(f"v_alignbyte_b32 v{tm+2+4*i}, v{b+3}, v{b+2}, 2")
        A(f"v_alignbyte_b32 v{tm+3+4*i}, v{pv+i}, v{b+3}, 2")
        A(f"ds_write_b128 v{vl}, {vr(tm+4*i,4)} offset:{off}")
    setexec(ALL)
    yield


XR, SR = (48, 56), (16, 32)
XN, CC = (64, 96), (80, 112)
OCT, CPO, QOF = (1, 2), (3, 3), (5, 6)


def stat_loads(fl):
    A(f"buffer_load_dwordx2 v[12:13], v7, {WS}, s57 offen{fl}")
    A(f"buffer_load_dwordx2 v[14:15], v7, {WS}, s58 offen{fl}")


def ofl(task):
    return ("", " sc1", " nt", " sc0 sc1")[OPT["outB" if task else "outA"]]


def rows(op, reg, task):
    for t in range(8):
        fl = ofl(task) if op == "store" else ""
        A(f"buffer_{op}_dword v{reg+t}, v{QOF[task]}, s[40:43], {'s49' if t >= 4 else '0'} offen offset:{1280*(t&3)}{fl}")


HALF = 0xffffffff
g_ = stage([(0, ALL), (1024, ALL), (2048, HALF)], 44, 14, 45)
next(g_)
A(f"s_mul_i32 s55, {sW}, {U_C}")
A(f"s_add_u32 s55, s55, {LU + 28*16}")
A("v_lshl_add_u32 v45, v0, 4, s55")
A(f"v_mov_b32 v2, {LF}")
A("v_mov_b32 v3, s61")
A("ds_write_b32 v2, v3")
A("v_min_u32 v4, 11, v0")
A("v_lshl_add_u32 v4, v4, 7, s54")
A(f"s_mul_i32 s54, {sX}, 160")
A(f"s_lshl_b32 s55, {sW}, 6")
A(f"s_lshl_b32 s56, {sJ}, 8")
A("s_add_u32 s55, s55, s56")
A("v_add_u32 v8, s55, v0")
A("v_mul_u32_u24 v1, 6554, v8")
A("v_lshrrev_b32 v1, 18, v1")
A("v_mul_u32_u24 v10, 40, v1")
A("v_sub_u32 v8, v8, v10")
A("v_add_u32 v2, 128, v1")
A("v_lshlrev_b32 v3, 3, v8")
A("v_mul_u32_u24 v9, 10240, v1")
A("v_lshl_add_u32 v9, v8, 2, v9")
A("v_add_u32 v5, s54, v9")
A(f"v_add_u32 v6, {1024*1280}, v5")
srd(40, pQ, TBYTES)
A("s_movk_i32 s49, 5120")
A(f"s_mov_b32 s57, {ESTAT}")
A(f"s_mov_b32 s58, {ESTAT + 8192}")
A("v_and_b32 v7, 7, v0")
A("v_lshl_add_u32 v7, v1, 3, v7")
A("v_lshlrev_b32 v7, 3, v7")

next(g_)
A("s_mov_b32 s51, s60")
A(f"s_mul_i32 s54, {sX}, {80*KS}")
A("s_add_u32 s60, s60, s54")
A(f"s_add_u32 s48, s60, {KS}")
A(f"s_lshl_b32 s54, {sX}, 11")
A("s_add_u32 s61, s61, s54")
A("s_add_u32 s61, s61, 512")
A(f"v_mul_u32_u24 v8, {KS//4}, v3")
A("v_lshl_add_u32 v8, v1, 4, v8")
A(f"s_lshl_b32 s54, {sX}, 7")
A(f"s_add_u32 s54, s54, {TOP}")
A("v_mov_b32 v9, s54")
A(f"s_lshl_b32 s55, {sW}, 2")
A(f"s_add_u32 s55, s55, {LF + 16}")
A("v_mov_b32 v47, s55")
A("v_and_b32 v46, 3, v0")
A("v_lshlrev_b32 v46, 3, v46")
A(f"s_cmp_eq_u32 s51, {KVT}")
A(f"s_cselect_b32 s96, {512 - 8*24}, {512 - 8*20}" if False else f"s_cselect_b32 s96, 24, 20")
A("s_lshl_b32 s96, s96, 3")
A("s_sub_u32 s55, s61, 512")
A("s_add_u32 s96, s96, s55")


if OPT["xe"] >= 1:
    stat_loads("")
if OPT["xe"] >= 2:
    rows("load", XR[0], 0)
stamp(6)
A("s_waitcnt lgkmcnt(0)")
A("s_barrier")

A("L_final:")
if OPT["xe"] < 1:
    stat_loads("")
if OPT["xe"] < 2:
    rows("load", XR[0], 0)
A(f"buffer_load_dword v40, v46, {WS}, s96 offen sc1")
rows("load", XR[1], 1)
A(f"buffer_load_dword v41, v4, {WS}, 0 offen offset:2560 sc1")
A(f"s_mov_b32 s40, s{pOUT}")
A(f"s_mov_b32 s41, s{pOUT+1}")
if PROF == 2:
    stamp(2)
A("s_waitcnt vmcnt(18)")
if PROF == 2:
    stamp(3)
tag_check("L_st", [13, 15], lambda: stat_loads(" sc1"))
for st in (12, 14):
    A(f"v_and_b32 v{st+1}, {sHI}, v{st}")
    A(f"v_rcp_f32 v{st+1}, v{st+1}")
    A(f"v_lshlrev_b32 v{st}, 16, v{st}")
for st in (12, 14):
    A(f"v_mul_f32 v{st}, v{st}, v{st+1}")


def precompute(task):
    for t in range(8):
        if t == 7:
            A("s_waitcnt lgkmcnt(6)")
        A(f"ds_swizzle_b32 v{16+2*t}, v{12+2*task} offset:{(t << 5) | 0x18}")
        A(f"ds_swizzle_b32 v{17+2*t}, v{13+2*task} offset:{(t << 5) | 0x18}")
    A(f"s_waitcnt vmcnt({(9, 6)[task]})")
    if PROF == 2:
        stamp(4 + 2*task)
    for t in range(8):
        cc = CC[task] + 2*t
        A(f"v_lshlrev_b32 v{cc}, 16, v{XR[task]+t}")
        A(f"v_and_b32 v{cc+1}, {sHI}, v{XR[task]+t}")
    A("s_waitcnt lgkmcnt(0)")
    for t in range(8):
        st, xn, cc = 16 + 2*t, XN[task] + 2*t, CC[task] + 2*t
        A(f"v_fma_f32 v{xn}, v{cc}, v{st+1}, -v{st}")
        A(f"v_fma_f32 v{xn+1}, v{cc+1}, v{st+1}, -v{st}")
        if not OPT["one"]:
            A(f"v_add_f32 v{cc}, v{cc}, v{xn}")
            A(f"v_add_f32 v{cc+1}, v{cc+1}, v{xn+1}")


def yflag_poll(lbl, va, so):
    A("s_mov_b32 s59, 0")
    A(f"{lbl}:")
    A(f"buffer_load_dwordx2 v[10:11], v{va}, {WS}, {so} offen sc1")
    A("s_add_u32 s59, s59, 1")
    A("s_waitcnt vmcnt(0)")
    A(f"v_cmp_ne_u32 vcc, {sTAG}, v10")
    A(f"v_cmp_ne_u32 s[54:55], {sTAG}, v11")
    A("s_or_b64 vcc, vcc, s[54:55]")
    A(f"s_cbranch_scc0 {lbl}_ok")
    A(f"s_cmp_lt_u32 s59, {POLL_LIMIT}")
    A(f"s_cbranch_scc1 {lbl}")
    A(f"{lbl}_ok:")


def top_load():
    A(f"buffer_load_dwordx2 v[10:11], v9, {WS}, 0 offen sc1")


def y_loads(task):
    A(f"buffer_load_dwordx4 v[48:51], v8, {WS}, s60 offen offset:{2048*task} sc1")
    A(f"buffer_load_dwordx4 v[52:55], v8, {WS}, s48 offen offset:{2048*task} sc1")


def f1_load():
    A(f"buffer_load_dword v40, v46, {WS}, s96 offen sc1")


def f0_load():
    A(f"buffer_load_dwordx2 v[42:43], v3, {WS}, s61 offen sc1")


def combine(task):
    for c in range(2):
        for i in range(4):
            A(f"v_lshlrev_b32 v{56+2*i}, 16, v{48+4*c+i}")
            A(f"v_and_b32 v{57+2*i}, {sHI}, v{48+4*c+i}")
        for pos in range(8):
            t = 2*(pos & 3) + (pos >> 2)
            A(f"v_fmac_f32 v{CC[task]+2*t+c}, v{XN[task]+2*t+c}, v{56+pos}")
    for t in range(8):
        A(f"v_cvt_pk_bf16_f32 v{48+t}, v{CC[task]+2*t}, v{CC[task]+2*t+1}")


def masks(task):
    A("s_lshr_b32 s56, s62, 3")
    A("s_lshr_b32 s57, s63, 3")
    A(f"v_cmp_eq_u32 s[44:45], s56, v{OCT[task]}")
    A(f"v_cmp_eq_u32 s[46:47], s57, v{OCT[task]}")


def out_stores(task):
    A("s_or_b64 s[54:55], s[44:45], s[46:47]")
    A(f"s_cbranch_scc1 L_msk{task}")
    rows("store", 48, task)
    A(f"L_mskd{task}:")


precompute(0)
if PROF == 2:
    stamp(5)
tag_check("L_h2", [40], f1_load)
g_ = stage([(2560, ALL), (3584, HALF)], 44, 44, 45, 1, base=32)
next(g_)
top_load()
precompute(1)
stamp(7)
for i in range(4):
    A(f"v_mov_b32 v{12+i}, -1")
A(f"s_sub_u32 s56, s51, {KVT}")
A(f"s_lshl_b32 s54, {sJ}, 4")
A(f"s_lshl_b32 s55, {sW}, 2")
A("s_add_u32 s54, s54, s55")
A("v_mov_b32 v30, s54")
A(f"v_mov_b32 v31, {sTAG}")
next(g_)
A("ds_write_b32 v47, v47")
stamp(12)
A(f"s_cmp_lg_u32 s51, {KVT}")
A("s_cbranch_scc1 L_sslow")
A(f"buffer_store_dwordx4 v[12:15], v44, {WS}, s56 offen offset:2048")
A(f"buffer_store_dwordx4 v[12:15], v44, {WS}, s56 offen offset:3072")
f0_load()
A("s_waitcnt vmcnt(0)")
setexec(1)
A(f"buffer_store_dword v31, v30, {WS}, s61 offen offset:1024")
A("L_sback:")
setexec(ALL)
A("ds_write_b32 v47, v47 offset:16")
tag_check("L_h3", [42, 43], f0_load)
y_loads(0)
tag_check("L_tp", [11], top_load)
A("v_readfirstlane_b32 s62, v10")
A("s_lshr_b32 s63, s62, 16")
A("s_and_b32 s62, s62, 0xffff")
masks(0)
A("s_waitcnt vmcnt(0)")
stamp(8)
combine(0)
out_stores(0)
stamp(9)
masks(1)
A("s_add_u32 s57, s61, 1024")
yflag_poll("L_yfs", 3, "s57")
stamp(1)
A("s_barrier")
A("s_mov_b32 s59, 0")
A("L_ys:")
y_loads(1)
A("s_add_u32 s59, s59, 1")
A("s_waitcnt vmcnt(0)")
A("v_max3_u32 v24, v48, v49, v50")
A("v_max3_u32 v25, v51, v52, v53")
A("v_max3_u32 v24, v24, v54, v55")
A("v_max_u32 v24, v24, v25")
A("v_cmp_eq_u32 vcc, -1, v24")
A("s_and_b64 exec, exec, vcc")
A("s_cbranch_execz L_ysok")
A("s_cmp_lt_u32 s59, 4096")
A("s_cbranch_scc1 L_ys")
setexec(ALL)
A("s_add_u32 s61, s61, 512")
yflag_poll("L_yf1", 3, "s61")
y_loads(1)
A("s_waitcnt vmcnt(0)")
A("L_ysok:")
setexec(ALL)
stamp(10)
combine(1)
out_stores(1)
stamp(11)
A("s_branch L_fin")
A("L_sslow:")
A(f"buffer_store_dwordx4 v[12:15], v44, {WS}, s56 offen offset:2048 sc1")
A(f"buffer_store_dwordx4 v[12:15], v44, {WS}, s56 offen offset:3072 sc1")
f0_load()
A("s_waitcnt vmcnt(0)")
setexec(1)
A(f"buffer_store_dword v31, v30, {WS}, s61 offen offset:1024 sc1")
A("s_branch L_sback")
for task in range(2):
    A(f"L_msk{task}:")
    A("s_and_b32 s56, s62, 7")
    A("s_and_b32 s57, s63, 7")
    for t in range(8):
        A(f"s_cmp_eq_u32 s56, {t}")
        A("s_cselect_b64 s[54:55], s[44:45], 0")
        A(f"s_cmp_eq_u32 s57, {t}")
        A("s_cselect_b64 vcc, s[46:47], 0")
        A("s_nor_b64 exec, s[54:55], vcc")
        A(f"s_cbranch_execz L_ms{task}_{t}")
        A(f"buffer_store_dword v{48+t}, v{QOF[task]}, s[40:43], {'s49' if t >= 4 else '0'} offen offset:{1280*(t&3)}{ofl(task)}")
        A(f"L_ms{task}_{t}:")
    setexec(ALL)
    A(f"s_branch L_mskd{task}")

A("L_special:")
A(f"s_and_b32 s96, {sJ}, 1")
A(f"s_bfe_u32 s97, {sJ}, 0x10001")
A("s_lshl_b32 s98, s96, 1")
A("s_add_u32 s98, s98, s97")
A("s_mul_i32 s98, s98, 320")
A(f"s_mul_i32 s55, {sX}, 1280")
A("s_add_u32 s98, s98, s55")
A(f"s_add_u32 s98, s98, {PART}")
A(f"s_cmp_lg_u32 {sW}, 0")
A("s_cbranch_scc1 L_sp1")
A("v_min_u32 v6, 19, v0")
A("v_mul_u32_u24 v5, 52, v6")
A("v_lshrrev_b32 v5, 8, v5")
A("v_mul_u32_u24 v1, 5, v5")
A("v_sub_u32 v1, v6, v1")
A("v_lshlrev_b32 v1, 3, v1")
A("v_lshl_add_u32 v1, v5, 1, v1")
A("v_add_u32 v1, s97, v1")
A("v_lshlrev_b32 v6, 3, v6")
A(f"s_lshl_b32 s54, {sX}, 7")
A(f"s_add_u32 s54, s54, {TOP}")
A("v_mov_b32 v9, s54")
top_load()
A("s_waitcnt vmcnt(0)")
tag_check("L_sc", [11], top_load)
A("v_readfirstlane_b32 s62, v10")
A("s_lshl_b32 s54, s96, 4")
A("s_lshr_b32 s62, s62, s54")
A("s_and_b32 s62, s62, 0x7ff")
srd(40, pQ, TBYTES)
A("s_mul_i32 s54, s62, 1280")
A(f"s_mul_i32 s55, {sX}, 160")
A("s_add_u32 s54, s54, s55")
A("v_lshl_add_u32 v2, v1, 2, s54")
A("buffer_load_dword v4, v2, s[40:43], 0 offen")
A("s_lshl_b32 s54, s62, 3")
A(f"s_add_u32 s54, s54, {ESTAT}")
A("v_mov_b32 v3, s54")


def sstat():
    A(f"buffer_load_dwordx2 v[8:9], v3, {WS}, 0 offen sc1")


sstat()
A("s_waitcnt vmcnt(0)")
tag_check("L_ss", [9], sstat)
A(f"v_and_b32 v9, {sHI}, v8")
A("v_rcp_f32 v9, v9")
A("v_lshlrev_b32 v8, 16, v8")
A("v_lshlrev_b32 v50, 16, v4")
A(f"v_and_b32 v51, {sHI}, v4")
A("v_sub_f32 v48, v50, v8")
A("v_sub_f32 v49, v51, v8")
A("v_mul_f32 v48, v48, v9")
A("v_mul_f32 v49, v49, v9")
if not OPT["one"]:
    A("v_add_f32 v50, v50, v48")
    A("v_add_f32 v51, v51, v49")
A(f"s_lshl_b32 s55, {sX}, 11")
A("s_add_u32 s61, s61, s55")
A("s_add_u32 s61, s61, 512")
A(f"s_mul_i32 s54, {sX}, {80*KS}")
A("s_add_u32 s60, s60, s54")
A("s_lshr_b32 s54, s62, 3")
A("s_lshl_b32 s54, s54, 4")
A("s_add_u32 s60, s60, s54")
A("s_and_b32 s54, s62, 1")
A("s_lshl_b32 s54, s54, 3")
A("s_add_u32 s60, s60, s54")
A("s_and_b32 s54, s62, 4")
A("s_add_u32 s60, s60, s54")
A(f"s_add_u32 s48, s60, {KS}")
A("s_bitcmp1_b32 s62, 1")
A("s_cselect_b32 s63, 0, 16")
A("v_lshlrev_b32 v3, 3, v1")
A(f"v_mul_u32_u24 v7, {2*KS}, v1")
srd(40, pOUT, TBYTES)


def sy_loads():
    A(f"buffer_load_dword v52, v7, {WS}, s60 offen sc1")
    A(f"buffer_load_dword v53, v7, {WS}, s48 offen sc1")


A("s_and_b32 s57, s62, 1024")
A("s_add_u32 s57, s57, s61")
if not OPT["pf"]:
    yflag_poll("L_s0", 3, "s57")
    sy_loads()
A(f"s_mul_i32 s55, {sX}, {6*10240}")
A("s_add_u32 s54, s98, s55")
A("v_mov_b32 v4, s54")


def probe1():
    if OPT["pf"]:
        A(f"buffer_load_dwordx2 v[18:19], v3, {WS}, s57 offen sc1")
    A(f"buffer_load_dwordx2 v[16:17], v4, {WS}, 0 offen sc1")


probe1()
A("s_waitcnt vmcnt(0)")
tag_check("L_p1", [17], probe1)
if OPT["pf"]:
    A(f"v_cmp_ne_u32 vcc, {sTAG}, v18")
    A(f"v_cmp_ne_u32 s[54:55], {sTAG}, v19")
    A("s_or_b64 vcc, vcc, s[54:55]")
    A("s_cbranch_scc1 L_pfl")
    sy_loads()
    A("s_barrier")
    A("s_branch L_pfd")
    A("L_pfl:")
    A("s_barrier")
    yflag_poll("L_s0", 3, "s57")
    sy_loads()
    A("L_pfd:")
else:
    A("s_barrier")
A("s_barrier")
stamp(8)
for i in range(18):
    if i == 12:
        A("s_waitcnt lgkmcnt(6)")
        for q in range(1, 6):
            A(f"v_add_f32 v12, v12, v{12+2*q}")
            A(f"v_add_f32 v13, v13, v{13+2*q}")
    A(f"ds_read_b64 {vr(12+2*i,2)}, v6 offset:{512*(i//3) + 160*(i%3)}")
A("v_add_f32 v50, v50, v12")
A("v_add_f32 v51, v51, v13")
A("s_waitcnt lgkmcnt(0)")
for q in range(1, 6):
    for h in (24, 36):
        A(f"v_add_f32 v{h}, v{h}, v{h+2*q}")
        A(f"v_add_f32 v{h+1}, v{h+1}, v{h+1+2*q}")
A("v_add_f32 v24, v24, v36")
A("v_add_f32 v25, v25, v37")
A("v_add_f32 v50, v50, v24")
A("v_add_f32 v51, v51, v25")
A("s_mov_b32 s59, 0")
A("L_sy:")
A("s_waitcnt vmcnt(0)")
A("v_max_u32 v34, v52, v53")
A("v_cmp_eq_u32 vcc, -1, v34")
A("s_cbranch_vccz L_syok")
sy_loads()
A("s_add_u32 s59, s59, 1")
A("s_cmp_lt_u32 s59, 4096")
A("s_cbranch_scc1 L_sy")
A("s_add_u32 s61, s61, 512")
yflag_poll("L_s1", 3, "s61")
sy_loads()
A("s_waitcnt vmcnt(0)")
A("L_syok:")
A("v_lshlrev_b32 v32, s63, v52")
A("v_lshlrev_b32 v33, s63, v53")
A(f"v_and_b32 v32, {sHI}, v32")
A(f"v_and_b32 v33, {sHI}, v33")
A("v_fmac_f32 v50, v48, v32")
A("v_fmac_f32 v51, v49, v33")
A("v_cvt_pk_bf16_f32 v50, v50, v51")
A("buffer_store_dword v50, v2, s[40:43], 0 offen")
stamp(9)
A("s_branch L_fin")
A("L_sp1:")
A("v_min_u32 v4, 59, v0")
A("v_mul_u32_u24 v5, 103, v4")
A("v_lshrrev_b32 v5, 11, v5")
A(f"v_mul_u32_u24 v5, {10240 - 320}, v5")
A("v_lshl_add_u32 v5, v4, 4, v5")
A(f"s_mul_i32 s55, {sW}, {9*10240}")
A("s_add_u32 s55, s55, s98")
A(f"s_sub_u32 s55, s55, {9*10240}")
A(f"s_add_u32 s56, s55, {3*10240}")
A(f"s_add_u32 s57, s55, {6*10240}")


def part_loads():
    for i in range(3):
        A(f"buffer_load_dwordx4 {vr(16+4*i,4)}, v5, {WS}, s{55+i} offen sc1")


A("s_barrier")
stamp(7)
part_loads()
A("s_waitcnt vmcnt(0)")
tag_check("L_pp", [17 + 2*i for i in range(6)], part_loads)
stamp(8)
A("v_add_f32 v16, v16, v20")
A("v_add_f32 v18, v18, v22")
A("v_add_f32 v16, v16, v24")
A("v_add_f32 v17, v18, v26")
A(f"s_lshl_b32 s54, {sW}, 9")
A("s_sub_u32 s54, s54, 512")
A("v_lshl_add_u32 v6, v0, 3, s54")
A("ds_write_b64 v6, v[16:17]")
A("s_waitcnt lgkmcnt(0)")
A("s_barrier")
A("s_branch L_fin")

A("L_lntail:")
after_kernarg()
stamp(1)
A("v_and_b32 v1, 7, v0")
A("v_bfe_u32 v2, v0, 3, 1")
A("v_lshrrev_b32 v3, 4, v0")
A("v_mul_u32_u24 v4, 1280, v1")
A("v_mul_u32_u24 v5, 640, v2")
A("v_add_u32 v4, v4, v5")
A("v_lshl_add_u32 v4, v3, 4, v4")
A(f"v_add_u32 v4, {LQ}, v4")
A("v_and_b32 v5, 15, v0")
A("v_cmp_lt_u32 vcc, 1, v5")
A("v_mov_b32 v6, 640")
A("v_cndmask_b32 v6, 0, v6, vcc")
A("v_lshl_add_u32 v6, v3, 4, v6")
A(f"v_add_u32 v6, {LWR}, v6")
A("s_mov_b32 s55, 0x3f803f80")
for i in range(44):
    A(f"v_mov_b32 v{56+i}, s55")
A("v_lshrrev_b32 v7, 2, v5")
A("v_lshl_add_u32 v7, v7, 4, v5")
A("v_lshlrev_b32 v7, 2, v7")
A("s_lshl_b32 s55, s99, 6")
A(f"s_add_u32 s55, s55, {ESTAT}")
A("v_lshl_add_u32 v122, v1, 3, s55")
A("s_lshl_b32 s56, s99, 3")
A("s_sub_u32 s56, 2047, s56")
A("v_sub_u32 v9, s56, v1")
for r, m in ((40, 0x22222222), (42, 0x44444444), (44, 0x88888888), (46, 0xff00ff00), (48, 0x00060006)):
    A(f"s_mov_b32 s{r}, {m:#x}")
    A(f"s_mov_b32 s{r+1}, {m:#x}")
A("s_lshl_b32 s55, s99, 4")
A(f"s_add_u32 s55, s55, {CAND}")
A("v_mov_b32 v8, s55")
make_tag()
A("s_waitcnt vmcnt(0)")
stamp(2, True)
for s in range(10):
    A(f"ds_read_b128 {vr(16+4*s,4)}, v4 offset:{64*s}")
for s in range(10):
    A("s_waitcnt lgkmcnt(9)")
    c = "0" if s == 0 else "v[100:103]"
    A(f"v_mfma_f32_16x16x32_bf16 v[100:103], {vr(16+4*s,4)}, {vr(16+4*s,4)}, {c}")
    A("s_mov_b64 exec, s[48:49]")
    A(f"ds_read_b128 {vr(56+4*s,4)}, v6 offset:{64*s}")
    setexec(ALL)
for s in range(10):
    A(f"s_waitcnt lgkmcnt({9-s + (1 if s > 3 else 0)})")
    c = "0" if s == 0 else "v[104:107]"
    A(f"v_mfma_f32_16x16x32_bf16 v[104:107], {vr(56+4*s,4)}, {vr(16+4*s,4)}, {c}")
    c = "0" if s == 0 else "v[108:111]"
    A(f"v_mfma_f32_16x16x32_bf16 v[108:111], {vr(56+4*s,4)}, v[96:99], {c}")
    if s == 3:
        A("v_cndmask_b32 v100, v100, v101, s[40:41]")
        A("v_cndmask_b32 v100, v100, v102, s[42:43]")
        A("v_cndmask_b32 v100, v100, v103, s[44:45]")
        A("ds_bpermute_b32 v100, v7, v100")
A("s_waitcnt lgkmcnt(0)")
ROR8 = "row_ror:8 row_mask:0xf bank_mask:0xf"
A(f"v_add_f32_dpp v100, v100, v100 {ROR8}")
A("v_mul_f32 v100, 0x3acccccd, v100")
A(f"v_mov_b32 v121, {sTAG}")
A("v_mov_b32 v14, 0")
A(f"v_add_f32_dpp v104, v104, v104 {ROR8}")
A("v_cndmask_b32 v105, v105, v106, s[46:47]")
A("v_mul_f32 v104, 0x3acccccd, v104")
A("v_add_f32 v109, v109, v110")
A("v_fma_f32 v100, -v104, v104, v100")
A(f"v_add_f32_dpp v105, v105, v105 {ROR8}")
A("v_max_f32 v100, 0, v100")
A("v_cvt_pk_bf16_f32 v104, v104, v100")
A(f"v_and_b32 v100, {sHI}, v104")
A("v_add_f32 v100, 0x3727c5ac, v100")
A("v_cvt_pk_bf16_f32 v100, v100, v100")
A(f"v_and_b32 v100, {sHI}, v100")
A("v_sqrt_f32 v100, v100")
A("v_lshlrev_b32 v106, 16, v104")
A("v_cvt_pk_bf16_f32 v120, v106, v100")
A(f"v_and_b32 v100, {sHI}, v120")
A("v_rcp_f32 v100, v100")
A("v_fma_f32 v105, -v106, v109, v105")
A("v_mul_f32 v105, v105, v100")
A("v_cvt_pk_bf16_f32 v105, v105, v105")
A("v_ashrrev_i32 v106, 31, v105")
A("v_or_b32 v106, 0x80000000, v106")
A("v_xor_b32 v105, v105, v106")
A(f"v_and_or_b32 v12, v105, {sHI}, v9")
merge_dpp(12, (1, 2, 4))
A(f"v_mov_b32 v13, {sTAG}")
A(f"v_mov_b32 v15, {sTAG}")
setexec(1)
A(f"buffer_store_dwordx4 v[12:15], v8, {WS}, 0 offen sc1")
setexec(0xff)
A(f"buffer_store_dwordx2 v[120:121], v122, {WS}, 0 offen sc1")
setexec(ALL)
stamp(8)
stamp(13)
A("s_cmp_lt_u32 s63, 8")
A("s_cbranch_scc1 L_moe0")
A(f"s_cmp_ge_u32 {sJ}, 20")
A("s_cbranch_scc1 L_h0")
A("s_lshl_b32 s54, s53, 14")
A(f"s_mul_i32 s55, s53, {4*KS}")
A(f"s_add_u32 s55, s55, {KVT}")
A("v_and_b32 v2, 31, v0")
A("v_min_u32 v2, 19, v2")
A("v_lshl_add_u32 v2, v2, 7, s55")
A("v_lshrrev_b32 v3, 5, v0")
A(f"v_mul_u32_u24 v3, {KS}, v3")
A("v_add_u32 v2, v2, v3")
A(f"s_lshl_b32 s55, {sX}, 11")
A(f"s_add_u32 s55, s55, {FLG}")
A("v_and_b32 v3, 15, v0")
A("v_lshl_add_u32 v3, v3, 7, s55")
A(f"s_movk_i32 s55, {2*KS}")
if not OPT["nopre"]:
    A(f"buffer_load_dword v127, v2, {WS}, 0 offen sc1")
    A(f"buffer_load_dword v127, v2, {WS}, s55 offen sc1")
if not OPT["fpre"]:
    A(f"buffer_load_dword v127, v3, {WS}, 0 offen sc1")
srd(48, pH, TBYTES)
A("v_lshlrev_b32 v2, 4, v0")
for c in range(0 if OPT["noh"] else 4):
    A(f"s_mov_b32 m0, {LA + c*A_C + 3*A_CP + 48}")
    for i in range(4):
        A(f"buffer_load_dwordx4 v2, s[48:51], s54 offen offset:{1024*i} lds")
    A("s_add_u32 s54, s54, 4096")
stamp(14)
A("L_b1:")
A("s_lshl_b32 s59, s2, 7")
A(f"s_add_u32 s59, s59, {ARR}")
A(f"v_mov_b32 v10, {sTAG}")
A(f"v_mov_b32 v11, {sXCC}")
A("v_mov_b32 v12, s59")
A("s_barrier")
setexec(1)
A(f"buffer_store_dwordx2 v[10:11], v12, {WS}, 0 offen sc1")
setexec(ALL)
A(f"s_cmp_lt_u32 {sJ}, 20")
A("s_cbranch_scc1 L_kvdone")
for _ in range(NR - 1):
    A("s_barrier")
A("s_branch L_kvdone")
A("L_h0:")
A(f"s_lshl_b32 s55, {sX}, 11")
if OPT["fpre"]:
    A(f"s_add_u32 s57, s55, {FLG}")
    A("v_and_b32 v3, 15, v0")
    A("v_lshl_add_u32 v3, v3, 7, s57")
    A(f"buffer_load_dword v127, v3, {WS}, 0 offen sc1")
A("s_lshl_b32 s57, s58, 3")
A("s_add_u32 s57, s57, s55")
A(f"s_add_u32 s57, s57, {FLG}")
A(f"v_mov_b32 v10, {sTAG}")
A(f"v_mov_b32 v11, {sXCC}")
A("v_mov_b32 v12, s57")
setexec(1)
A(f"buffer_store_dwordx2 v[10:11], v12, {WS}, 0 offen")
setexec(ALL)
if OPT["bl"]:
    A("s_barrier")
A("s_branch L_b1")

A("L_slowsync:")
A(f"v_min_u32 v4, {NP1-1}, v0")
A("v_add_u32 v5, 8, v4")
A("v_cmp_gt_u32 vcc, 20, v4")
A("v_cndmask_b32 v4, v5, v4, vcc")
A("v_lshlrev_b32 v4, 10, v4")
A(f"s_lshl_b32 s57, {sX}, 7")
A(f"s_add_u32 s57, s57, {ARR}")
A(f"buffer_load_dwordx2 v[2:3], v4, {WS}, s57 offen sc1")
A("s_waitcnt vmcnt(0)")
A(f"v_cmp_eq_u32 vcc, {sTAG}, v2")
A(f"v_cmp_ne_u32 s[56:57], {sXCC}, v3")
A("s_and_b64 vcc, vcc, s[56:57]")
A("s_cbranch_scc1 L_fb")
A(f"s_cmp_lt_u32 s59, {POLL_LIMIT}")
A("s_cbranch_scc1 L_poll")
A("s_branch L_synced")
A("L_fb:")
A(f"s_mov_b32 s57, {FLB}")
A(f"s_mov_b32 s60, {YT2}")
A(f"s_mov_b32 s61, {FLB}")
A(f"s_cmp_lg_u32 {sW}, 0")
A("s_cbranch_scc1 L_nowb")
A("buffer_wbl2 sc1")
A("s_waitcnt vmcnt(0)")
setexec(1)
A(f"buffer_store_dwordx2 v[10:11], v12, {WS}, s57 offen sc1")
setexec(ALL)
A("L_nowb:")
A(f"s_cmp_ge_u32 {sJ}, 20")
A("s_cbranch_scc1 L_synced")
A("s_mov_b32 s59, 0")
A("L_pollb:")
A(f"buffer_load_dwordx2 v[2:3], v1, {WS}, s57 offen sc1")
A("s_add_u32 s59, s59, 1")
A("s_waitcnt vmcnt(0)")
A(f"v_cmp_eq_u32 vcc, {sTAG}, v2")
A("s_cmp_eq_u64 vcc, -1")
A("s_cbranch_scc1 L_bok")
A("s_sleep 2")
A(f"s_cmp_lt_u32 s59, {POLL_LIMIT}")
A("s_cbranch_scc1 L_pollb")
A("L_bok:")
A("buffer_inv sc1")
A("s_waitcnt vmcnt(0)")
A("s_branch L_synced")

A("L_hi4:")
A(f"s_cmp_lt_u32 {sJ}, 20")
A("s_cbranch_scc1 L_mfma")
A(f"s_cmp_lg_u32 {sW}, 7")
A("s_cbranch_scc1 L_special")
A(f"s_cmp_lg_u32 s2, {28*8}")
A("s_cbranch_scc1 L_fin")
A("v_lshlrev_b32 v1, 7, v0")
for i in range(4):
    A(f"s_mov_b32 s{54+i}, {ARR + 8192*i}")


def arr_loads():
    A("s_sleep 8")
    for i in range(4):
        A(f"buffer_load_dword v{6+i}, v1, {WS}, s{54+i} offen sc1")


arr_loads()
A("s_waitcnt vmcnt(0)")
tag_check("L_ep", [6, 7, 8, 9], arr_loads)
A(f"v_mov_b32 v10, {sTAG}")
A(f"v_mov_b32 v11, {EPOCH}")
setexec(1)
A(f"buffer_store_dword v10, v11, {WS}, 0 offen sc1")
setexec(ALL)
A("s_branch L_fin")

A("L_mfma:")
A(f"s_sub_u32 s53, {sW}, 4")
A(f"s_mul_i32 s54, s53, {A_C}")
A("v_lshl_add_u32 v8, v0, 4, s54")
if OPT["dfold"]:
    A("s_bitcmp1_b32 s62, 0")
    A("s_cselect_b32 s55, 0, 16")
    A("s_lshl_b32 s55, s63, s55")
    A(f"s_and_b32 s55, s55, {sHI}")
for i in range(4):
    A(f"ds_read_b128 {vr(16+16*i,4)}, v8 offset:{3*A_CP + 32 + 1024*i}")
    A(f"ds_read_b128 {vr(20+16*i,4)}, v8 offset:{3*A_CP + 48 + 1024*i}")
for i in range(4):
    b = 16 + 16*i
    A(f"s_waitcnt lgkmcnt({6 + i + (1 if OPT['dfold'] and i else 0)})")
    if OPT["dfold"] and i == 0:
        setexec(1)
        A("v_lshlrev_b32 v9, 16, v20")
        A("v_add_f32 v9, s55, v9")
        A(f"v_and_b32 v10, {sHI}, v20")
        A("v_cvt_pk_bf16_f32 v20, v9, v10")
        A(f"ds_write_b32 v8, v20 offset:{3*A_CP + 48}")
        setexec(ALL)
    A(f"ds_write_b128 v8, {vr(b+2,4)} offset:{A_CP + 48 + 1024*i}")
    for q in range(6):
        A(f"v_mov_b32 v{b+8+q}, v{b+1+q}")
    A(f"ds_write_b128 v8, {vr(b+8,4)} offset:{48 + 1024*i}")
    A(f"ds_write_b128 v8, {vr(b+10,4)} offset:{2*A_CP + 48 + 1024*i}")
A("v_and_b32 v6, 3, v0")
A(f"v_mul_u32_u24 v1, {A_CP}, v6")
A("v_bfe_u32 v6, v0, 2, 2")
A("v_lshrrev_b32 v7, 4, v0")
A("v_add_u32 v6, v6, v7")
A("v_lshl_add_u32 v1, v6, 4, v1")
A("v_add_u32 v1, s54, v1")
A("v_and_b32 v6, 1, v0")
A(f"v_mul_u32_u24 v2, {U_P}, v6")
A("v_bfe_u32 v6, v0, 1, 3")
A("v_lshlrev_b32 v6, 2, v6")
A("v_sub_u32 v6, v6, v7")
A("v_lshl_add_u32 v2, v6, 4, v2")
A(f"s_mul_i32 s54, s53, {U_C}")
A(f"s_add_u32 s54, s54, {LU + 48}")
A("v_add_u32 v2, s54, v2")
A("v_bfe_u32 v6, v0, 1, 3")
A("v_lshl_add_u32 v6, v6, 2, v7")
A("v_and_b32 v5, 1, v0")
A("v_lshlrev_b32 v4, 4, v6")
A("v_lshl_add_u32 v4, v5, 3, v4")
A(f"s_mul_i32 s54, s62, {KS}")
A("v_add_u32 v4, s54, v4")
A(f"s_mul_i32 s54, {sX}, {2048 - 320}")
A("s_lshl_b32 s55, s62, 2")
A("s_add_u32 s54, s54, s55")
A("v_mov_b32 v5, s54")
A(f"v_mov_b32 v6, {sTAG}")
A(f"v_mov_b32 v7, {LF}")
if not OPT["dfold"]:
    A("s_bitcmp1_b32 s62, 0")
    A("s_cselect_b32 s54, 16, 0")
    A("s_lshr_b32 s63, s63, s54")
    A("s_and_b32 s63, s63, 0xffff")
    A("v_lshrrev_b32 v12, 4, v0")
    A("v_and_b32 v13, 15, v0")
    A("v_lshl_add_u32 v12, v12, 2, v13")
    A("v_mov_b32 v13, s63")
    for i in range(4):
        A(f"v_cmp_eq_u32 vcc, {15-i}, v12")
        A(f"v_cndmask_b32 v{8+i}, 0, v13, vcc")
A("s_lshl_b32 s54, s53, 2")
A(f"s_add_u32 s54, s54, {LF + 16}")
A("v_mov_b32 v12, s54")
A("v_mov_b32 v13, 0")
A("ds_write2_b32 v12, v13, v13 offset0:0 offset1:4")
A(f"s_mov_b32 s60, {KVT}")
A(f"s_mov_b32 s61, {FLG}")
A(f"s_mov_b32 s56, {YT2}")
A(f"s_mov_b32 s57, {FLB}")
A("s_waitcnt lgkmcnt(0)")
n = 0
for rho in range(OPT["resid"]):
    for a in range(4):
        A(f"ds_read_b128 a[{(rho*4+a)*4}:{(rho*4+a)*4+3}], v1 offset:{64*rho + 512*a}")
        n += 1
        if n % 8 == 0:
            A("s_waitcnt lgkmcnt(7)")
if OPT["malign"]:
    A("s_branch L_mbody")
    SLOW_AT = len(A.lines)
    A(".p2align 12")
    A("L_mbody:")
stamp(5)
if OPT["prio"]:
    A(f"s_setprio {OPT['prio']}")
A("s_waitcnt lgkmcnt(0)")
A("s_barrier")
if PROF:
    A("s_memtime s[90:91]")
stamp(6, True)


slow_sites = []


def ystore(txt_fast, txt_slow):
    k = len(slow_sites)
    slow_sites.append(txt_slow)
    return f"s_cbranch_scc1 L_ys{k}\n{txt_fast}\nL_yr{k}:"


def mfma_schedule():
    passes = [((0, 1, 2, 3), range(0, 4)), ((4, 5, 6, 7), range(0, 5)), ((5, 6, 7), range(5, 7)), ((7,), range(7, 8))]
    seq = []
    for pi, (tiles, bs) in enumerate(passes):
        for rho in range(8):
            for b in bs:
                for n in tiles:
                    if n >= b:
                        a = n - b
                        ak = ("A", a, rho) if a <= 3 else ("A", a, rho, pi)
                        seq.append((pi, n, ak, ("B", b, rho, pi)))
                        if a == 0 and rho == 0 and not OPT["dfold"]:
                            seq.append((pi, n, ("D",), ("B", b, rho, pi)))
    N = len(seq)
    end = [max(i for i, e in enumerate(seq) if e[0] == pi) for pi in range(4)]
    reg, pos = {}, {}
    side = {}

    def put(i, key, fn):
        while len(side.get(i, [])) >= 1 and i < N - 1:
            i += 1
        side.setdefault(i, []).append((key, fn))
        return i

    def acc(n, t):
        return 96 + 4*n + t

    def pack_store(n, i):
        i = put(i, None, lambda n=n: f"v_cvt_pk_bf16_f32 v{acc(n,0)}, v{acc(n,0)}, v{acc(n,1)}")
        i = put(i, None, lambda n=n: f"v_cvt_pk_bf16_f32 v{acc(n,1)}, v{acc(n,2)}, v{acc(n,3)}")
        return put(i, None, lambda n=n: ystore(
            f"buffer_store_dwordx2 {vr(acc(n,0),2)}, v4, {WS}, s60 offen offset:{512*n}" + (" sc1" if OPT["ya"] and n < 4 else ""),
            f"buffer_store_dwordx2 {vr(acc(n,0),2)}, v4, {WS}, s56 offen offset:{512*n} sc1"))

    def flag(pi, i):
        return put(i, None, lambda pi=pi: "s_waitcnt vmcnt(0)\ns_mov_b64 exec, 1\n" + ystore(
            f"buffer_store_dword v6, v5, {WS}, s61 offen offset:{512*(pi+1)}",
            f"buffer_store_dword v6, v5, {WS}, s57 offen offset:{512*(pi+1)} sc1") + "\ns_mov_b64 exec, -1" + ("\ns_memrealtime s[82:83]" if PROF and pi == 0 else ""))

    put(24, ("M",), lambda: f"v_readfirstlane_b32 s54, v15\ns_cmp_lg_u32 s54, {FLG}")
    i = end[0] + 5
    for n in passes[0][0]:
        i = pack_store(n, i)
    flag(0, i + OPT["ackgap"])

    FENCE = end[1] - 9
    put(FENCE, ("K", 0, 0, 0), lambda: "v_cmp_eq_u32 vcc, 0, v14\ns_cbranch_vccnz L_s2wait\nL_s2go:")
    FENCE2 = FENCE
    put(end[2] - 4, ("K", 1, 0, 0), lambda: "v_cmp_eq_u32 vcc, 0, v14\ns_cbranch_vccnz L_s3wait\nL_s3go:")
    pack_store(4, end[2] - 3)
    pack_store(5, end[2] + 3)
    first, last = {}, {}
    for i, (_, _, ak, bk) in enumerate(seq):
        ks = [k for k in (bk, ak) if len(k) == 4 or (len(k) == 3 and k[2] >= OPT["resid"])]
        ks += [k for k, _ in side.get(i, []) if k and k[0] == "K"]
        for k in ks:
            first.setdefault(k, i)
            last[k] = i
    loads = sorted(first, key=lambda k: (first[k], k[0] != "B"))
    free = [16 + 4*s for s in range(20)]
    issued = []
    st = dict(done=0, li=0)
    LOOK, SETTLE = OPT["look"], OPT["settle"]
    started = set()

    def rname(k):
        if len(k) == 1:
            return "v[8:11]"
        if len(k) == 3:
            return f"a[{(k[2]*4 + k[1])*4}:{(k[2]*4 + k[1])*4 + 3}]"
        return vr(reg[k], 4)

    def issue_loads(i, maxn):
        cnt = 0
        while st["li"] < len(loads) and cnt < maxn:
            k = loads[st["li"]]
            if first[k] > i + LOOK or len(issued) - st["done"] >= 14 or not free:
                break
            if k[0] == "B" and k[3] == 2 and i < FENCE:
                break
            if k[0] == "B" and k[3] == 3 and i < FENCE2:
                break
            if k[0] == "K" and first[k] > i + 8:
                break
            if len(k) == 4:
                reg[k] = free.pop(0)
            if k[0] == "A":
                A(f"ds_read_b128 {rname(k)}, v1 offset:{64*k[2] + 512*k[1]}")
            elif k[0] == "B":
                A(f"ds_read_b128 {rname(k)}, v2 offset:{512*k[1] + 64*(7-k[2])}")
            else:
                A(f"ds_read_b32 v14, v12 offset:{16*k[1]}")
            pos[k] = len(issued)
            issued.append((k, i))
            st["li"] += 1
            cnt += 1

    def wait_for(keys, i):
        needp = max([pos[k] for k in keys if k in pos] + [-1]) + 1
        for k in keys:
            assert k in pos or k not in first, (k, i)
        if needp > st["done"]:
            tgt = needp
            while tgt < len(issued) and issued[tgt][1] <= i - SETTLE:
                tgt += 1
            A(f"s_waitcnt lgkmcnt({len(issued) - tgt})")
            st["done"] = tgt

    issue_loads(-1, 10)
    A("ds_read_b32 v15, v7")
    pos[("M",)] = len(issued)
    issued.append((None, -1))
    for i, (pi, n, ak, bk) in enumerate(seq):
        wait_for([ak, bk] + [k for k, _ in side.get(i, []) if k], i)
        a_ = vr(96 + 4*n, 4)
        c = a_ if n in started else ("1.0" if OPT["one"] else "0")
        started.add(n)
        A(f"v_mfma_f32_16x16x32_bf16 {a_}, {rname(ak)}, {rname(bk)}, {c}")
        for k, fn in side.get(i, []):
            t_ = fn()
            if not (OPT["noside"] and t_.startswith("v_") and "readfirst" not in t_):
                A(t_)
        for k in list(reg):
            if last[k] == i:
                free.append(reg[k])
        behind = st["li"] < len(loads) and first[loads[st["li"]]] <= i + 8
        issue_loads(i, OPT["maxn"] + (1 if behind else 0))
    side.clear()
    i = N - 1
    for n in (6, 7):
        pack_store(n, i)
    put(i, None, lambda: "s_barrier")
    flag(1, i)
    if PROF:
        A("s_memtime s[92:93]")
    stamp(8)
    for k, fn in side[N-1]:
        A(fn())


mfma_schedule()
stamp(7)
A("s_branch L_fin")
_sl = []
for q_ in (2, 3):
    _sl += [f"L_s{q_}wait:", "s_mov_b32 s59, 0", f"L_s{q_}w:", f"ds_read_b32 v14, v12 offset:{16*(q_-2)}",
            "s_cselect_b32 s58, 1, 0", "s_add_u32 s59, s59, 1", f"s_cmp_ge_u32 s59, {16*POLL_LIMIT}",
            "s_cselect_b32 s54, 1, 0", "s_cmp_lg_u32 s58, 0", "s_waitcnt lgkmcnt(0)", "v_or_b32 v14, s54, v14",
            "v_cmp_eq_u32 vcc, 0, v14", f"s_cbranch_vccnz L_s{q_}w", f"s_branch L_s{q_}go"]
for k, t in enumerate(slow_sites):
    _sl += [f"L_ys{k}:", t, f"s_branch L_yr{k}"]
if OPT["malign"]:
    A.lines[SLOW_AT:SLOW_AT] = _sl
else:
    A.lines += _sl

A("L_nonp1:")
A("v_lshrrev_b32 v1, 2, v0")
A("v_mul_u32_u24 v1, 3456, v1")
A("v_lshrrev_b32 v2, 4, v0")
A("v_and_b32 v2, 2, v2")
A("v_and_b32 v3, 3, v0")
A("v_xor_b32 v2, v2, v3")
A("v_lshl_add_u32 v100, v2, 4, v1")
moe_decode()
A("s_add_u32 s53, s63, s56")
A("s_cmp_ge_u32 s63, s54")
A("s_cselect_b32 s58, 100, -1")
A(f"s_add_u32 s58, s58, {sW}")
A(f"s_mul_i32 s55, s58, {80*3456}")
A("s_lshl_b32 s56, s53, 6")
A("s_add_u32 s55, s55, s56")
A("s_mul_i32 s54, s58, 5120")
A("s_bitcmp1_b32 s53, 0")
A("s_cselect_b32 s96, 20, 0")
A(f"s_mul_i32 s62, s96, {16*3456}")
A("s_add_u32 s55, s55, s62")
A("s_lshl_b32 s57, s96, 10")
A("s_add_u32 s54, s54, s57")
A("s_lshl_b32 s96, s96, 1")
A("s_sub_u32 s96, 15, s96")
A(f"s_mul_i32 s62, s96, {16*3456}")
A("s_lshl_b32 s96, s96, 10")
after_kernarg()
srd(40, pWG, WBYTES)
srd(44, pWU, WBYTES)
srd(48, pWD, WBYTES)
if OPT["bq"]:
    A("s_barrier")
gu, dn = [], []
for i in range(10):
    pre = ["s_add_u32 s55, s55, s62", "s_add_u32 s54, s54, s96"] if i == 5 else []
    gu.append(pre + [f"s_add_u32 m0, s54, {LWG + 1024*i}", "buffer_load_dwordx4 v100, s[40:43], s55 offen lds"])
    gu.append([f"s_add_u32 m0, s54, {LWU + 1024*i}", "buffer_load_dwordx4 v100, s[44:47], s55 offen lds",
               f"s_add_u32 s55, s55, {16*3456}"])
    dn.append([f"s_add_u32 m0, s98, {LWD + 4096*i}", f"buffer_load_dwordx4 v{101+i}, s[48:51], s97 offen lds"])
NB1 = OPT["nb1"]
wl = gu[:10] + dn[:NB1] + gu[10:] + dn[NB1:]
A("s_mul_i32 s97, s53, 40960")
A("s_lshl_b32 s98, s58, 10")
A("s_cmp_ge_u32 s58, 4")
A("s_cbranch_scc1 L_noe")
for g in wl[:OPT["early"]]:
    for t in g:
        A(t)
A("L_noe:")
A("v_subrev_u32 v9, 64, v9")
for k in range(11):
    A(f"v_add_u32 v1, {256*k}, {'v0' if k == 10 else 'v9'}")
    A("v_mul_u32_u24 v2, 1599, v1")
    A("v_lshrrev_b32 v2, 17, v2")
    A("v_mul_u32_u24 v3, 82, v2")
    A("v_sub_u32 v1, v1, v3")
    A("v_min_u32 v1, 79, v1")
    A("v_mul_u32_u24 v2, 1280, v2")
    A(f"v_lshl_add_u32 v{101+k}, v1, 4, v2")
make_tag()
A("s_cmp_lt_u32 s58, 100")
A("s_cbranch_scc1 L_moe")
A("s_barrier")
A("s_branch L_fin")
A("L_moe0:")
moe_decode()
A("s_add_u32 s53, s63, s56")
A("s_mov_b32 s58, -1")
A("s_cmp_lt_u32 s63, s54")
A("s_cbranch_scc1 L_moe")
A("s_barrier")
A(f"s_cmp_lg_u32 {sW}, 0")
A("s_cbranch_scc1 L_fin")
arr_store()
A("s_branch L_fin")

if OPT["moal"]:
    A(".p2align 12")
A("L_moe:")
A("s_mov_b32 s57, 0x3f803f80")
for i in range(4):
    A(f"v_mov_b32 v{16+i}, s57")
A(f"s_mov_b32 s57, {LX + 2*X_P}")
A("v_lshl_add_u32 v2, v0, 4, s57")
A("ds_write_b128 v2, v[16:19]")
A("ds_write_b128 v2, v[16:19] offset:256")
A("v_bfe_u32 v1, v0, 3, 1")
A("v_lshrrev_b32 v2, 4, v0")
A("v_bfe_u32 v10, v0, 2, 2")
A("v_and_b32 v11, 3, v0")
A("v_lshl_add_u32 v14, v2, 3, v10")
A(f"v_mul_u32_u24 v12, {WD_P}, v14")
A(f"s_mul_i32 s57, {sW}, 160")
A(f"s_add_u32 s57, s57, {LWD}")
A("v_lshl_add_u32 v13, v11, 3, s57")
A("v_add_u32 v12, v12, v13")
A(f"s_and_b32 s60, {sW}, 1")
A(f"s_lshr_b32 s61, {sW}, 1")
A("v_lshlrev_b32 v14, 6, v14")
A("v_lshrrev_b32 v15, 1, v11")
A(f"v_mul_u32_u24 v15, {LWU}, v15")
A("v_add_u32 v14, v14, v15")
A("v_and_b32 v15, 1, v11")
A("v_lshl_add_u32 v14, v15, 3, v14")
A("v_and_b32 v15, 1, v2")
A("v_lshlrev_b32 v15, 1, v15")
A("v_xor_b32 v15, s61, v15")
A("v_lshl_add_u32 v14, v15, 4, v14")
A("s_bitcmp1_b32 s53, 0")
A("s_cselect_b32 s99, 2, 0")
A("s_add_u32 s59, s99, s60")
A(f"s_mul_i32 s57, s59, {160*64}")
A("v_add_u32 v92, s57, v14")
A("s_xor_b32 s57, s59, 2")
A(f"s_mul_i32 s57, s57, {160*64}")
A("v_add_u32 v14, s57, v14")
A("v_and_b32 v10, 7, v0")
A("v_lshl_add_u32 v11, v2, 3, v10")
A("v_lshlrev_b32 v11, 2, v11")
A(f"v_add_u32 v37, {LRED + 512}, v11")
A("v_lshl_add_u32 v36, v1, 8, v11")
A(f"v_add_u32 v36, {LRED}, v36")
A("v_and_b32 v18, 1, v10")
A("v_mov_b32 v19, 0xffff")
A(f"v_mov_b32 v20, {sHI}")
A("v_cmp_eq_u32 vcc, 1, v18")
A("v_cndmask_b32 v18, v19, v20, vcc")
A("v_lshrrev_b32 v13, 1, v10")
for i in range(4):
    A(f"v_cmp_eq_u32 vcc, {i}, v13")
    A(f"v_cndmask_b32 v{80+i}, 0, v18, vcc")
A("v_and_b32 v38, 15, v0")
A("v_lshlrev_b32 v38, 8, v38")
A("v_lshrrev_b32 v39, 1, v2")
A("v_lshl_add_u32 v38, v39, 7, v38")
A("v_and_b32 v39, 1, v2")
A("v_lshl_add_u32 v38, v39, 4, v38")
A("s_mul_i32 s57, s60, 768")
A("s_lshl_b32 s59, s61, 5")
A("s_add_u32 s57, s57, s59")
A(f"s_add_u32 s57, s57, {LRED}")
A("v_add_u32 v38, s57, v38")
A("v_mul_u32_u24 v39, 640, v1")
A("v_lshl_add_u32 v39, v10, 4, v39")
A("v_mul_u32_u24 v15, 80, v2")
A("v_add_u32 v39, v39, v15")
A("s_mul_i32 s57, s53, 10240")
A(f"s_mul_i32 s59, {sW}, 1280")
A("s_add_u32 s57, s57, s59")
A(f"s_add_u32 s57, s57, {PART}")
A("v_add_u32 v39, s57, v39")
A(f"s_mov_b32 s57, {LK}")
A("v_lshl_add_u32 v13, v1, 2, s57")
A("v_and_b32 v6, 15, v0")
A("v_min_u32 v6, 2, v6")
A(f"v_mul_u32_u24 v6, {X_P}, v6")
A("v_lshl_add_u32 v6, v2, 4, v6")
A("s_add_u32 s59, s99, s60")
A("s_mul_i32 s57, s59, 320")
A(f"s_add_u32 s57, s57, {LX}")
A("v_add_u32 v93, s57, v6")
A("s_xor_b32 s57, s59, 2")
A("s_mul_i32 s57, s57, 320")
A(f"s_add_u32 s57, s57, {LX}")
A("v_add_u32 v6, s57, v6")


def first_part():
    for s in range(5):
        A(f"ds_read_b64_tr_b16 a[{4*s}:{4*s+1}], v92 offset:{2048*s}")
        A(f"ds_read_b64_tr_b16 a[{4*s+2}:{4*s+3}], v92 offset:{2048*s + 256}")


for i in range(4):
    A(f"v_mov_b32 v{85+2*i}, {sTAG}")
if OPT["ml"]:
    A("s_barrier")
A("s_cmp_ge_u32 s58, 4")
A("s_cbranch_scc1 L_noload")
srd(40, pWG, WBYTES)
srd(44, pWU, WBYTES)
srd(48, pWD, WBYTES)
for n_, g in enumerate(wl):
    if n_ < OPT["early"]:
        continue
    if n_ < 10 + NB1:
        A(f"s_waitcnt vmcnt({OPT['pace']})")
    if n_ == 20 + NB1:
        A("s_waitcnt vmcnt(10)")
        A("s_barrier")
    for t in g:
        A(t)
    if n_ == OPT["mp"] + NB1 - 1:
        A("s_barrier")
        A("s_barrier")
first_part()
A(f"s_waitcnt vmcnt({10 - NB1})")
stamp(4)
A("s_branch L_nopoll")
A("L_noload:")
A("s_barrier")
A(f"s_cmp_eq_u32 {sW}, 0")
A("s_cbranch_scc1 L_poller")
A("s_barrier")
A("s_barrier")
first_part()
A(f"s_cmp_lg_u32 {sW}, 5")
A("s_cbranch_scc1 L_nopoll")
srd(48, pWD, WBYTES)
A(f"s_mov_b32 m0, {LWD + 40960}")
A("buffer_load_dwordx4 v111, s[48:51], s97 offen lds")
arr_store()
A("s_branch L_nopoll")
A("L_poller:")
A("v_lshlrev_b32 v32, 4, v0")
A(f"s_mov_b32 s58, {CAND}")
if OPT["polldelay"]:
    A(f"s_sleep {OPT['polldelay']}")
cand_loads(16, 32, "s58", " sc1")
A("s_barrier")
srd(40, pQ, TBYTES)
A("s_waitcnt vmcnt(0)")
tag_check("L_cm", [17 + 2*i for i in range(8)], lambda: cand_loads(16, 32, "s58", " sc1"))
top2_merge(16)
stamp(7)
A("s_andn2_b32 s56, 0x7ff, s54")
A("s_andn2_b32 s57, 0x7ff, s55")
A("s_mul_i32 s56, s56, 1280")
A("s_mul_i32 s57, s57, 1280")
A(f"s_mov_b32 m0, {LX}")
A("buffer_load_dwordx4 v32, s[40:43], s56 offen lds")
setexec(0xffff)
A("buffer_load_dwordx4 v32, s[40:43], s56 offen offset:1024 lds")
setexec(ALL)
A(f"s_mov_b32 m0, {LX + X_P}")
A("buffer_load_dwordx4 v32, s[40:43], s57 offen lds")
setexec(0xffff)
A("buffer_load_dwordx4 v32, s[40:43], s57 offen offset:1024 lds")
setexec(ALL)
A("v_mov_b32 v16, s54")
A("v_mov_b32 v17, s55")
A("v_cmp_eq_u32 vcc, 1, v1")
A("v_cndmask_b32 v5, v16, v17, vcc")
A("v_not_b32 v3, v5")
A("v_and_b32 v7, 0x7ff, v3")
A("v_lshlrev_b32 v7, 3, v7")
A(f"s_mov_b32 s57, {ESTAT}")


def mstat():
    A(f"buffer_load_dwordx2 v[8:9], v7, {WS}, s57 offen sc1")


mstat()
A("s_andn2_b32 s56, 0x7ff, s54")
A("s_andn2_b32 s58, 0x7ff, s55")
A(f"s_cmp_lg_u32 {sJ}, 20")
A("s_cbranch_scc1 L_ntp")
A("s_lshl_b32 s59, s58, 16")
A("s_or_b32 s59, s59, s56")
A("v_mov_b32 v16, s59")
A(f"s_lshl_b32 s59, {sX}, 7")
A(f"s_add_u32 s59, s59, {TOP}")
A(f"v_mov_b32 v17, {sTAG}")
A("v_mov_b32 v3, s59")
setexec(1)
A(f"buffer_store_dwordx2 v[16:17], v3, {WS}, 0 offen sc1")
setexec(ALL)
A("L_ntp:")
A("s_barrier")
first_part()
A(f"v_and_b32 v5, {sHI}, v5")
A("v_ashrrev_i32 v10, 31, v5")
A("v_not_b32 v10, v10")
A("v_or_b32 v10, 0x80000000, v10")
A("v_xor_b32 v5, v5, v10")
A(f"v_and_b32 v5, {sHI}, v5")
A("v_mul_f32 v5, 0xbfb8aa3b, v5")
A("v_exp_f32 v5, v5")
A("v_add_f32 v5, 1.0, v5")
A("v_rcp_f32 v5, v5")
A(f"s_cmp_eq_u32 {sJ}, 20")
A("s_cbranch_scc1 L_w1")
A("s_waitcnt vmcnt(0)")
A("L_w1:")
A("s_waitcnt vmcnt(1)")
tag_check("L_ms", [9], mstat)
A("ds_write2_b32 v13, v5, v8 offset0:0 offset1:2")
stamp(11)
A("L_nopoll:")
for t in range(1, 5):
    m = (1 << t) * 0x01010101
    A(f"s_mov_b32 s{40+2*t}, {m:#x}")
    A(f"s_mov_b32 s{41+2*t}, {m:#x}")
A("s_waitcnt lgkmcnt(0)")
stamp(5)
A("s_barrier")
stamp(6, True)
for s in range(5):
    A(f"ds_read_b128 {vr(40+4*s,4)}, v93 offset:{64*s}")
for s in range(3):
    A(f"ds_read_b64_tr_b16 a[{20+4*s}:{21+4*s}], v14 offset:{2048*s}")
    A(f"ds_read_b64_tr_b16 a[{22+4*s}:{23+4*s}], v14 offset:{2048*s + 256}")
    A(f"ds_read_b128 {vr(60+4*s,4)}, v6 offset:{64*s}")
A("s_waitcnt lgkmcnt(9)")
for s in range(5):
    c = "0" if s == 0 else "v[28:31]"
    A(f"v_mfma_f32_16x16x32_bf16 v[28:31], a[{4*s}:{4*s+3}], {vr(40+4*s,4)}, {c}")
    if s < 2:
        q = 3 + s
        A(f"ds_read_b64_tr_b16 a[{20+4*q}:{21+4*q}], v14 offset:{2048*q}")
        A(f"ds_read_b64_tr_b16 a[{22+4*q}:{23+4*q}], v14 offset:{2048*q + 256}")
        A(f"ds_read_b128 {vr(60+4*q,4)}, v6 offset:{64*q}")
for s in range(5):
    A(f"s_waitcnt lgkmcnt({3*(4-s) + (1 if s else 0)})")
    A(f"v_mfma_f32_16x16x32_bf16 v[28:31], a[{20+4*s}:{23+4*s}], {vr(60+4*s,4)}, v[28:31]")
    if s == 0:
        A("ds_read2_b32 v[4:5], v13 offset0:2 offset1:0")
A("s_waitcnt lgkmcnt(0)")
A(f"v_and_b32 v9, {sHI}, v4")
A("v_lshlrev_b32 v8, 16, v4")
A("v_rcp_f32 v9, v9")
A("v_mul_f32 v5, v5, v9")
setexec(0x0007000700070007)
A("ds_write_b128 v38, v[28:31]")
setexec(ALL)
A("s_waitcnt lgkmcnt(0)")
A("s_barrier")
stamp(3, True)
A("ds_read2_b32 v[28:29], v36 offset0:0 offset1:32")
A("ds_read2_b32 v[30:31], v36 offset0:192 offset1:224")
A("ds_read2_b32 v[32:33], v37 offset0:0 offset1:32")
A("ds_read2_b32 v[34:35], v37 offset0:192 offset1:224")
A("s_waitcnt lgkmcnt(2)")
A("v_add_f32 v28, v28, v30")
A("v_add_f32 v29, v29, v31")
A("s_waitcnt lgkmcnt(0)")
A("v_add_f32 v32, v32, v34")
A("v_add_f32 v33, v33, v35")
A("v_fma_f32 v28, -v8, v32, v28")
A("v_fma_f32 v29, -v8, v33, v29")
A("v_mul_f32 v28, v28, v9")
A("v_mul_f32 v29, v29, v5")
A("v_mul_f32 v30, 0xbfb8aa3b, v28")
A("v_exp_f32 v30, v30")
A("v_mul_f32 v29, v29, v28")
A("v_add_f32 v30, 1.0, v30")
A("v_rcp_f32 v30, v30")
A("v_mul_f32 v29, v29, v30")
A("v_cvt_pk_bf16_f32 v29, v29, v29")
for i in range(4):
    A(f"v_and_b32 v{32+i}, v29, v{80+i}")
for r in ("quad_perm:[1,0,3,2]", "quad_perm:[2,3,0,1]", "row_half_mirror"):
    for i in range(4):
        A(f"v_or_b32_dpp v{32+i}, v{32+i}, v{32+i} {r} row_mask:0xf bank_mask:0xf")
stamp(9)
A("s_waitcnt vmcnt(0)")
A("s_barrier")
stamp(10, True)
for t in range(5):
    A(f"ds_read_b64_tr_b16 a[{40+4*t}:{41+4*t}], v12 offset:{32*t}")
    A(f"ds_read_b64_tr_b16 a[{42+4*t}:{43+4*t}], v12 offset:{32*t + 4*WD_P}")
for t in range(5):
    A(f"s_waitcnt lgkmcnt({8-2*t})")
    A(f"v_mfma_f32_16x16x32_bf16 {vr(40+4*t,4)}, a[{40+4*t}:{43+4*t}], v[32:35], 0")
for t in range(1, 5):
    for i in range(4):
        A(f"v_cndmask_b32 v{84+2*i if t == 4 else 40+i}, v{40+i}, v{40+4*t+i}, s[{40+2*t}:{41+2*t}]")
setexec(0x1f1f1f1f1f1f1f1f)
A(f"buffer_store_dwordx4 v[84:87], v39, {WS}, 0 offen sc1")
A(f"buffer_store_dwordx4 v[88:91], v39, {WS}, 0 offen offset:320 sc1")
setexec(ALL)
stamp(12)
if OPT["wb"]:
    A(f"s_lshl_b32 s54, {sW}, 5")
    A(f"s_add_u32 s54, s54, {sJ}")
    A("s_cmp_lg_u32 s54, 20")
    A("s_cbranch_scc1 L_fin")
    if OPT["wb"] & 1:
        A("buffer_wbl2 sc1")
        A("s_waitcnt vmcnt(0)")
        stamp(10)
    if OPT["wb"] & 2:
        A("v_min_u32 v1, 39, v0")
        A(f"s_lshl_b32 s54, {sX}, 11")
        A("v_lshl_add_u32 v1, v1, 3, s54")
        A(f"s_mov_b32 s56, {FLG + 1024}")
        A(f"s_mov_b32 s57, {FLB + 1024}")
        A("s_mov_b32 s59, 0")
        A("L_wbp:")
        A("s_add_u32 s59, s59, 1")
        A("s_and_b32 s58, s59, 15")
        A("s_cselect_b32 s58, s56, s57")
        A(f"buffer_load_dwordx2 v[10:11], v1, {WS}, s58 offen sc1")
        A("s_waitcnt vmcnt(0)")
        A(f"v_cmp_ne_u32 vcc, {sTAG}, v10")
        A(f"v_cmp_ne_u32 s[54:55], {sTAG}, v11")
        A("s_or_b64 vcc, vcc, s[54:55]")
        A("s_cbranch_scc0 L_wbok")
        A(f"s_cmp_lt_u32 s59, {POLL_LIMIT}")
        A("s_cbranch_scc1 L_wbp")
        A("L_wbok:")
        A("buffer_wbl2 sc1")

A("L_fin:")
if PROF:
    A("s_waitcnt vmcnt(0)")
    stamp(15)
    A("s_waitcnt lgkmcnt(0)")
    if OPT["diag"] >= 0:
        k = OPT["diag"]
        A(f"s_sub_u32 s53, s{64+2*k}, s64")
        A(f"s_cmp_eq_u32 s{64+2*k}, 0")
        A("s_cselect_b32 s53, 0, s53")
        if OPT["drole"] == 1:
            A(f"s_cmp_ge_u32 {sJ}, 20")
            A("s_cselect_b32 s53, 0, s53")
        if OPT["drole"] == 2:
            A(f"s_sub_u32 s54, {sJ}, 20")
            A("s_cmp_ge_u32 s54, 8")
            A("s_cselect_b32 s53, 0, s53")
        A(f"s_mul_i32 s53, s53, {OPT['dmul']}")
        A("s_add_u32 s53, s53, 4000")
        if OPT["dx"] >= 0:
            A(f"s_cmp_lg_u32 {sX}, {OPT['dx']}")
            A("s_cselect_b32 s53, 0, s53")
        A("L_diag:")
        A("s_sleep 4")
        A("s_memrealtime s[54:55]")
        A("s_waitcnt lgkmcnt(0)")
        A("s_sub_u32 s54, s54, s64")
        A("s_cmp_lt_u32 s54, s53")
        A("s_cbranch_scc1 L_diag")
    A("s_lshl_b32 s53, s2, 3")
    A(f"s_add_u32 s53, s53, {sW}")
    A("s_lshl_b32 s53, s53, 6")
    A(f"s_add_u32 s53, s53, {PROFB}")
    A("v_mov_b32 v1, s53")
    setexec(1)
    for k in range(16):
        A(f"v_mov_b32 v2, s{64+2*k}")
        A(f"buffer_store_dword v2, v1, {WS}, 0 offen offset:{4*k}")
A("L_end:")
A("s_endpgm")
A("L_codeend:")


DOC = """
; ---------------------------------------------------------------------------------------------
; phase 1 (conv + helper): k,v tile -> LDS -> kv = shiftconv(k)*v, written channel-major to ws
; conv: y = Toeplitz(h) * kv as 16x16x32 bf16 MFMAs (h: 4 dword-shifted LDS copies, kv: 2 element-shifted
; FFN : gate/up on raw x with a ones column (LayerNorm applied to the sums), silu*up, down -> partial sums in ws
; ---------------------------------------------------------------------------------------------"""
hdr = open(os.path.join(os.path.dirname(os.path.abspath(__file__)), "..", "cdna_kernels", NAME + ".s.ref")).read().split("\n")
hdr = [l for l in hdr if l.startswith(";") and "@launch" not in l]
out = hdr + [f"; @launch grid=(256,1,1) block=(512,1,1) lds={LDS_BYTES}"] + DOC.strip().split("\n") + [
             '.amdgcn_target "amdgcn-amd-amdhsa--gfx950"', ".text", f".globl {NAME}_kernel", ".p2align 8",
             f".type {NAME}_kernel,@function"]
def move(first, after_last, before, back=0):
    i, j = A.lines.index(first), A.lines.index(after_last) - back
    blk = A.lines[i:j]
    assert blk[-1].startswith(("s_branch", "s_endpgm")), blk[-1]
    del A.lines[i:j]
    k = A.lines.index(before)
    assert A.lines[k-1].startswith(("s_branch", "s_endpgm")), A.lines[k-1]
    A.lines[k:k] = blk


if OPT["moal"]:
    move("L_nonp1:", "L_moe:", "L_s2wait:", 1)
    move("L_sslow:", "L_special:", "L_codeend:")
    move("L_slowsync:", "L_hi4:", "L_codeend:" if PROF else "L_lntail:")
    move("L_s2wait:", "L_mbody:", "L_lntail:", 1)
    A.lines.insert(A.lines.index("L_lntail:"), ".p2align 12")
if not PROF:
    A.lines = ["s_endpgm" if l == "s_branch L_fin" else l for l in A.lines]
out += A.padded()
out += ['.section .rodata,"a"', ".p2align 6", f".amdhsa_kernel {NAME}_kernel",
        "  .amdhsa_next_free_vgpr 256", "  .amdhsa_next_free_sgpr 102", "  .amdhsa_accum_offset 128",
        "  .amdhsa_group_segment_fixed_size 0", "  .amdhsa_kernarg_size 112", "  .amdhsa_user_sgpr_count 2",
        "  .amdhsa_user_sgpr_kernarg_segment_ptr 1", "  .amdhsa_system_sgpr_workgroup_id_x 1",
        "  .amdhsa_float_denorm_mode_32 3", ".end_amdhsa_kernel", ""]
open(sys.argv[1], "w").write("\n".join(out))
```
